```python
import torch

def _softmax(x, axis=-1):
    return torch.softmax(x, dim=axis)
def _gelu(x):
    return torch.nn.functional.gelu(x, approximate="tanh")
def _silu(x):
    return torch.nn.functional.silu(x)
def _sigmoid(x):
    return torch.sigmoid(x)
def _layernorm(x, axis=-1, eps=1e-5):
    m = x.mean(dim=axis, keepdim=True)
    v = x.var(dim=axis, keepdim=True, unbiased=False)
    return (x - m) / torch.sqrt(v + eps)
def _scatter_add(tgt, idx, src, axis=0):
    return tgt.clone().index_add_(axis, idx, src)
def _segment_sum(src, seg, n):
    out = torch.zeros((n,) + src.shape[1:], dtype=src.dtype)
    return out.index_add_(0, seg, src)
def _pad(x, pw):
    flat = tuple(v for pair in reversed(pw) for v in pair)
    return torch.nn.functional.pad(x, flat)

kernel_name = 'concat_heads__mha_block_cached__gqa_block_cached__near_ridge'

def setup_inputs():

    _w = (lambda a: (lambda t: t.to(torch.bfloat16) if t.is_floating_point() else t)(torch.as_tensor(a)))
    def _A_setup():
        B, Sq, D = 8, 192, 640
        H, Sk, Dh = 32, 1024, 128
        return {
            "x": _w((lambda *s: torch.randn(*s, dtype=torch.bfloat16) * 0.8)(B, Sq, D)),
            "k_cache": _w((lambda *s: torch.randn(*s, dtype=torch.bfloat16) * 0.8)(B, H, Sk, Dh)),
            "v_cache": _w((lambda *s: torch.randn(*s, dtype=torch.bfloat16) * 0.05)(B, H, Sk, Dh)),
            "wq": _w((lambda *s: torch.randn(*s, dtype=torch.bfloat16) * 0.8)(D, H * Dh) * (D ** -0.5)),
            "wo": _w((lambda *s: torch.randn(*s, dtype=torch.bfloat16) * 0.05)(H * Dh, D) * ((H * Dh) ** -0.5)),
        }
    _A_in = _A_setup()

    def _B_setup():
        B, Sq, D = 8, 192, 640
        Hq, Hkv, Sk, Dh = 32, 32, 1024, 128
        assert Hq % Hkv == 0, (Hq, Hkv)
        return {
            "x": _w((lambda *s: torch.randn(*s, dtype=torch.bfloat16) * 0.8)(B, Sq, D)),
            "k_cache": _w((lambda *s: torch.randn(*s, dtype=torch.bfloat16) * 0.8)(B, Hkv, Sk, Dh)),
            "v_cache": _w((lambda *s: torch.randn(*s, dtype=torch.bfloat16) * 0.05)(B, Hkv, Sk, Dh)),
            "wq": _w((lambda *s: torch.randn(*s, dtype=torch.bfloat16) * 0.8)(D, Hq * Dh) * (D ** -0.5)),
            "wo": _w((lambda *s: torch.randn(*s, dtype=torch.bfloat16) * 0.05)(Hq * Dh, D) * ((Hq * Dh) ** -0.5)),
        }
    _B_in = _B_setup()

    return {
        "A_x": _A_in["x"],
        "A_k_cache": _A_in["k_cache"],
        "A_v_cache": _A_in["v_cache"],
        "A_wq": _A_in["wq"],
        "A_wo": _A_in["wo"],
        "B_x": _B_in["x"],
        "B_k_cache": _B_in["k_cache"],
        "B_v_cache": _B_in["v_cache"],
        "B_wq": _B_in["wq"],
        "B_wo": _B_in["wo"],
    }

def reference(A_x, A_k_cache, A_v_cache, A_wq, A_wo, B_x, B_k_cache, B_v_cache, B_wq, B_wo):
    def _A_ref(x, k_cache, v_cache, wq, wo):
        B, Sq, D = x.shape
        H, Dh = 32, 128
        q = (lambda x, *d: x.permute(*d))((x @ wq).reshape(B, Sq, H, Dh), 0, 2, 1, 3)
        scores = torch.einsum("bhqd,bhkd->bhqk", q, k_cache) * (Dh ** -0.5)
        p = _softmax(scores, axis=-1)
        o = torch.einsum("bhqk,bhkd->bhqd", p, v_cache)
        return (lambda x, *d: x.permute(*d))(o, 0, 2, 1, 3).reshape(B, Sq, H * Dh) @ wo

    def _B_ref(x, k_cache, v_cache, wq, wo):
        B, Sq, D = x.shape
        Hq, Dh = 32, 128
        Hkv = k_cache.shape[1]
        rep = Hq // Hkv
        q = (lambda x, *d: x.permute(*d))((x @ wq).reshape(B, Sq, Hq, Dh), 0, 2, 1, 3)
        k = (lambda x, n, axis: torch.repeat_interleave(x, n, dim=axis))(k_cache, rep, axis=1)
        v = (lambda x, n, axis: torch.repeat_interleave(x, n, dim=axis))(v_cache, rep, axis=1)
        scores = torch.einsum("bhqd,bhkd->bhqk", q, k) * (Dh ** -0.5)
        p = _softmax(scores, axis=-1)
        o = torch.einsum("bhqk,bhkd->bhqd", p, v)
        return (lambda x, *d: x.permute(*d))(o, 0, 2, 1, 3).reshape(B, Sq, Hq * Dh) @ wo

    a = _A_ref(A_x, A_k_cache, A_v_cache, A_wq, A_wo)
    b = _B_ref(B_x, B_k_cache, B_v_cache, B_wq, B_wo)
    return torch.concatenate([a, b], axis=-1)
```

```python
from gen import mfma, vr, ar, STAMP_BASE

def gen_k2(A, cfg):
    K2 = "oproj_kernel"
    D = 8
    A(f".globl {K2}\n.p2align 8\n.type {K2},@function\n{K2}:")
    A("s_cmp_ge_u32 s2, 240\ns_cbranch_scc1 L2_end")
    nst = [0]
    def stamp():
        if cfg.stamps:
            A(f"s_memrealtime s[{70+2*nst[0]}:{71+2*nst[0]}]"); nst[0] += 1
    stamp()
    A("s_and_b32 s23, s2, 7\ns_lshr_b32 s24, s2, 3\ns_lshr_b32 s25, s23, 2")
    A("s_mul_i32 s26, s24, 205\ns_lshr_b32 s26, s26, 11")
    A("s_mul_i32 s27, s26, 10\ns_sub_u32 s27, s24, s27")
    A("s_and_b32 s28, s23, 3\ns_mul_i32 s28, s28, 3\ns_add_u32 s26, s26, s28")
    A("s_mul_i32 s28, s25, 40")
    A("s_add_u32 s62, s0, s28\ns_addc_u32 s63, s1, 0")
    A("s_load_dwordx2 s[36:37], s[62:63], 32")
    A("s_load_dwordx2 s[38:39], s[0:1], 80")
    A("s_load_dwordx2 s[44:45], s[0:1], 96")
    A("v_lshrrev_b32 v1, 6, v0")
    A("v_and_b32 v2, 63, v0")
    A("v_readfirstlane_b32 s20, v1")
    A("v_and_b32 v3, 15, v2\nv_lshrrev_b32 v4, 4, v2\nv_and_b32 v5, 31, v2\nv_lshrrev_b32 v6, 5, v2")
    A("v_lshlrev_b32 v7, 4, v2")
    for i in range(4):
        A(f"s_add_u32 s29, s20, {i}\ns_and_b32 s29, s29, 3")
        A("s_lshl_b32 s30, s29, 18")
        A(f"v_add_u32 v{8+i}, s30, v7")
        A("s_mul_i32 s30, s29, 24576")
        if i > 0: A(f"s_add_u32 s30, s30, {(i-1)*8192}")
        A(f"v_add_u32 v{12+i}, s30, v7")
    A("v_lshrrev_b32 v20, 3, v2\nv_and_b32 v21, 7, v2\nv_bfe_u32 v22, v20, 1, 1\nv_lshlrev_b32 v22, 2, v22\nv_xor_b32 v21, v21, v22")
    A("v_mul_u32_u24 v20, 1280, v20")
    A("v_lshl_add_u32 v16, v21, 4, v20")
    A(f"s_mul_i32 s31, s20, {D*2048}")
    A("v_lshrrev_b32 v20, 2, v3\nv_lshl_add_u32 v20, v6, 2, v20\nv_lshlrev_b32 v20, 7, v20")
    A("v_and_b32 v21, 1, v4\nv_lshlrev_b32 v21, 1, v21\nv_and_b32 v22, 1, v3\nv_add_u32 v21, v21, v22")
    A("v_lshl_add_u32 v20, v21, 4, v20")
    A("v_bfe_u32 v21, v3, 1, 1\nv_lshl_add_u32 v20, v21, 3, v20")
    A("v_add_u32 v20, s31, v20")
    A("v_lshrrev_b32 v21, 3, v3")
    A("v_lshl_add_u32 v17, v21, 6, v20")
    A("v_xor_b32 v21, 1, v21")
    A("v_lshl_add_u32 v18, v21, 6, v20")
    A("v_mul_u32_u24 v19, 2560, v5\nv_lshl_add_u32 v19, v6, 4, v19")
    A("s_waitcnt lgkmcnt(0)")
    A("s_mul_i32 s29, s25, 48\ns_lshl_b32 s30, s26, 2\ns_add_u32 s29, s29, s30\ns_lshl_b32 s29, s29, 18")
    A("s_lshl_b32 s30, s20, 16\ns_add_u32 s29, s29, s30")
    A(f"s_add_u32 s4, s44, s29\ns_addc_u32 s5, s45, 0\ns_mov_b32 s6, {3*262144+65536}\ns_mov_b32 s7, 0x20000")
    A("s_mul_i32 s29, s20, 1310720\ns_lshl_b32 s30, s27, 7\ns_add_u32 s29, s29, s30")
    A("s_add_u32 s8, s36, s29\ns_addc_u32 s9, s37, 0\ns_sub_u32 s10, 5242880, s29\ns_mov_b32 s11, 0x20000")
    A("s_lshl_b32 s29, s26, 7\ns_lshl_b32 s30, s20, 5\ns_add_u32 s29, s29, s30\ns_mul_i32 s29, s29, 2560")
    A("s_mul_i32 s30, s25, 1280\ns_add_u32 s29, s29, s30\ns_lshl_b32 s30, s27, 7\ns_add_u32 s29, s29, s30")
    A("s_add_u32 s12, s38, s29\ns_addc_u32 s13, s39, 0\ns_sub_u32 s14, 3932160, s29\ns_mov_b32 s15, 0x20000")
    ACC = 128
    def acc(i, nt): return ACC + 32 * i + 16 * nt
    def bf(ks, i): return 16 * (ks % D) + 4 * i
    def af(ks, nt): return 32 + 8 * (ks % 2) + 4 * nt
    def ld_w(ks, half):
        return [f"s_add_u32 m0, s31, {(ks % D)*2048 + half*1024}", f"s_mov_b32 s33, {(16*ks + 8*half)*1280}",
                (f"buffer_load_dwordx4 v16, s[8:11], s33 offen lds", f"W{ks}")]
    def ld_b(ks, i):
        r = []
        if i == 0 and ks % 4 == 0: r.append(f"s_mov_b32 s32, {ks*1024}")
        r.append((f"buffer_load_dwordx4 {ar(bf(ks, i), 4)}, v{8+i}, s[4:7], s32 offen offset:{(ks % 4)*1024}", f"B{ks}"))
        return r
    def a_reads(ks):
        return [f"ds_read_b64_tr_b16 {vr(af(ks, nt) + 2*e, 2)}, v{17+nt} offset:{(ks % D)*2048 + e*1024}"
                for nt in range(2) for e in range(2)]
    def emit(items):
        for it in items:
            if isinstance(it, tuple): A.vmem(it[0], it[1])
            else: A(it)
    for ks in range(D):
        for h in range(2): emit(ld_w(ks, h))
        for i in range(4): emit(ld_b(ks, i))
    A(f"s_waitcnt vmcnt({A.vm_count_after(['W0'])})")
    stamp()
    for r in a_reads(0): A(r)
    for ks in range(64):
        need = [f"B{ks}"] + ([f"W{ks+1}"] if ks + 1 < 64 else [])
        A(f"s_waitcnt vmcnt({A.vm_count_after(need)}) lgkmcnt(0)")
        reads = a_reads(ks + 1) if ks + 1 < 64 else []
        g = 0
        for i in range(4):
            for nt in range(2):
                d = vr(acc(i, nt), 16)
                A(mfma(d, vr(af(ks, nt), 4), ar(bf(ks, i), 4), "0" if ks == 0 else d))
                if g < 2:
                    for _ in range(2):
                        if reads: A(reads.pop(0))
                if ks + D < 64:
                    if g in (2, 3): emit(ld_w(ks + D, g - 2))
                    if g >= 4: emit(ld_b(ks + D, g - 4))
                g += 1
    stamp()
    A("s_barrier")
    A("s_nop 7")
    for i in range(1, 4):
        for q in range(8):
            A(f"ds_write_b128 v{12+i}, {vr(acc(i, 0) + 4*q, 4)} offset:{q*1024}")
    A("s_waitcnt lgkmcnt(0)")
    A("s_barrier")
    for i in range(3):
        for q in range(8):
            A(f"ds_read_b128 {vr(32 + 32*i + 4*q, 4)}, v12 offset:{i*8192 + q*1024}")
    for i in range(3):
        A(f"s_waitcnt lgkmcnt({min(15, 16 - 8*i)})" if i != 0 else "s_waitcnt lgkmcnt(15)")
        if i == 0: A("s_waitcnt lgkmcnt(15)")
        for k in range(32):
            A(f"v_add_f32 v{ACC+k}, v{ACC+k}, v{32 + 32*i + k}")
    for k in range(16):
        A(f"v_cvt_pk_bf16_f32 v{32+k}, v{ACC+2*k}, v{ACC+2*k+1}")
    for q in range(4):
        A(f"buffer_store_dwordx4 {vr(32 + 4*q, 4)}, v19, s[12:15], 0 offen offset:{q*32}")
    if cfg.stamps:
        A("s_waitcnt vmcnt(0)")
        stamp()
        A("s_waitcnt lgkmcnt(0)")
        A(f"s_add_u32 s44, s44, {STAMP_BASE + (1<<20)}\ns_addc_u32 s45, s45, 0\ns_mov_b32 s46, 0x100000\ns_mov_b32 s47, 0x20000")
        A("s_lshl_b32 s34, s2, 2\ns_add_u32 s34, s34, s20\ns_lshl_b32 s34, s34, 6")
        A("v_mov_b32 v1, s34")
        for k in range(nst[0]):
            A(f"v_mov_b32 v2, s{70+2*k}\nv_mov_b32 v3, s{71+2*k}")
            A(f"buffer_store_dwordx2 v[2:3], v1, s[44:47], 0 offen offset:{8*k}")
            A("s_nop 1")
    A("L2_end:\ns_endpgm")
```

```python
import sys, struct, math
NAME = "concat_heads__mha_block_cached__gqa_block_cached__near_ridge"

def f32bits(x): return struct.unpack("<I", struct.pack("<f", x))[0]

class Cfg:
    mapping = 2
    stamps = False
    kv_flags = "nt"
    stop_after_q = False

class Asm:
    def __init__(s):
        s.l = []; s.vm = []
    def __call__(s, x):
        s.l.append(x)
    def vmem(s, x, tag):
        s.l.append(x); s.vm.append(tag)
    def vm_count_after(s, tags):
        last = -1
        for i, t in enumerate(s.vm):
            if t in tags: last = i
        assert last >= 0, tags
        return min(63, len(s.vm) - 1 - last)
    def text(s): return "\n".join(s.l) + "\n"

def mfma(d, a, b, c): return f"v_mfma_f32_32x32x16_bf16 {d}, {a}, {b}, {c}"
def vr(b, n): return f"v[{b}:{b+n-1}]" if n > 1 else f"v{b}"
def ar(b, n): return f"a[{b}:{b+n-1}]" if n > 1 else f"a{b}"

STAMP_BASE = 64 << 20

def kv_lds(hd, st, isv): return hd * 65536 + st * 16384 + isv * 8192
XBUF = [32768, 98304]
def WBUF(i, hd):
    if i < 2: return 131072 + (i * 2 + hd) * 8192
    return XBUF[hd] + 24576

def gen_k1(A, cfg):
    K1 = "attn_kernel"
    A(f".globl {K1}\n.p2align 8\n.type {K1},@function\n{K1}:")
    A("s_cmp_ge_u32 s2, 256\ns_cbranch_scc1 L1_end")
    nst = [0]
    def stamp():
        if cfg.stamps:
            A(f"s_memrealtime s[{70+2*nst[0]}:{71+2*nst[0]}]"); nst[0] += 1
    stamp()
    A("s_and_b32 s23, s2, 7")
    A("s_lshr_b32 s24, s2, 3")
    A("s_lshr_b32 s25, s23, 2")
    if cfg.mapping == 2:
        A("s_and_b32 s26, s23, 3\ns_lshl_b32 s26, s26, 2\ns_and_b32 s27, s24, 3\ns_add_u32 s26, s26, s27")
        A("s_lshr_b32 s27, s24, 2")
    else:
        A("s_and_b32 s26, s24, 15")
        A("s_and_b32 s27, s23, 3\ns_lshl_b32 s27, s27, 1\ns_lshr_b32 s28, s24, 4\ns_add_u32 s27, s27, s28")
    A("s_mul_i32 s28, s25, 40")
    A("s_add_u32 s62, s0, s28\ns_addc_u32 s63, s1, 0")
    A("s_load_dwordx4 s[36:39], s[62:63], 0")
    A("s_load_dwordx4 s[40:43], s[62:63], 16")
    A("s_load_dwordx2 s[44:45], s[0:1], 96")
    A("v_lshrrev_b32 v1, 6, v0")
    A("v_and_b32 v2, 63, v0")
    A("v_readfirstlane_b32 s20, v1")
    A("s_nop 3")
    A("s_lshr_b32 s21, s20, 1")
    A("s_and_b32 s22, s20, 1")
    A("s_lshl_b32 s29, s26, 1\ns_add_u32 s29, s29, s21")
    A(f"s_mov_b32 s30, 0x{f32bits(128 ** -0.5 * math.log2(math.e)):08x}")
    A(f"s_mov_b32 s31, 0x{f32bits(2.0 ** 14):08x}")
    A("v_and_b32 v3, 15, v2\nv_lshrrev_b32 v4, 4, v2\nv_and_b32 v5, 31, v2\nv_lshrrev_b32 v6, 5, v2")
    A("v_lshrrev_b32 v10, 3, v2\nv_and_b32 v11, 7, v2\nv_lshrrev_b32 v12, 1, v10")
    A("v_xor_b32 v13, v11, v12")
    A("v_mul_u32_u24 v14, 1280, v10")
    A("v_lshl_add_u32 v8, v13, 4, v14")
    A("v_xor_b32 v13, 4, v13")
    A("v_lshl_add_u32 v9, v13, 4, v14")
    A("v_lshlrev_b32 v10, 2, v4\nv_xor_b32 v10, v3, v10")
    A("v_lshlrev_b32 v11, 13, v4")
    A("v_lshl_add_u32 v7, v10, 4, v11")
    A("v_xor_b32 v11, v3, v4")
    A("s_cmp_eq_u32 s22, 1")
    A("s_cselect_b64 s[32:33], -1, 0")
    A("v_lshlrev_b32 v12, 8, v4")
    for n in range(4):
        A(f"v_xor_b32 v13, {4*n}, v11")
        A("v_cndmask_b32 v13, v13, v10, s[32:33]")
        A(f"v_lshl_add_u32 v{16+n}, v13, 4, v12")
    A("s_mul_i32 s34, s22, 12288")
    A("v_lshrrev_b32 v10, 1, v5\nv_and_b32 v10, 7, v10\nv_xor_b32 v10, v6, v10")
    A("v_lshlrev_b32 v11, 7, v5\nv_add_u32 v11, s34, v11")
    for s in range(4):
        A(f"v_xor_b32 v12, {2*s}, v10")
        A("v_lshl_add_u32 v12, v12, 4, v11")
        A(f"v_add_u32 v{20+s}, {XBUF[0]}, v12")
        A(f"v_add_u32 v{24+s}, {XBUF[1]}, v12")
    A("v_lshrrev_b32 v10, 2, v3")
    A("v_lshl_add_u32 v11, v6, 3, v10")
    A("v_lshlrev_b32 v11, 8, v11")
    A("v_and_b32 v12, 1, v4\nv_lshlrev_b32 v12, 1, v12")
    A("v_and_b32 v13, 1, v3\nv_add_u32 v13, v12, v13")
    A("v_lshl_add_u32 v11, v13, 4, v11")
    A("v_bfe_u32 v13, v3, 1, 1")
    A("v_lshl_add_u32 v11, v13, 3, v11")
    A("s_lshl_b32 s34, s21, 13\ns_add_u32 s34, s34, 131072")
    A(f"s_lshl_b32 s35, s21, 16\ns_add_u32 s35, s35, {XBUF[0] + 24576}")
    for dt in range(4):
        A(f"v_xor_b32 v13, {dt}, v10")
        A("v_lshl_add_u32 v13, v13, 6, v11")
        A(f"v_add_u32 v{28+dt}, s34, v13")
        A(f"v_add_u32 v{32+dt}, s35, v13")
    A("v_lshl_add_u32 v11, v6, 2, v10\nv_lshlrev_b32 v11, 8, v11")
    A("v_bfe_u32 v13, v3, 1, 1\nv_add_u32 v13, v12, v13")
    A("v_lshl_add_u32 v11, v13, 4, v11")
    A("v_and_b32 v13, 1, v3")
    A("v_lshl_add_u32 v11, v13, 3, v11")
    A("s_lshl_b32 s46, s21, 16")
    A("s_add_u32 s47, s46, 8192")
    for dt in range(4):
        A(f"v_xor_b32 v13, {dt}, v10")
        A("v_lshl_add_u32 v13, v13, 6, v11")
        A(f"v_add_u32 v{36+dt}, s47, v13")
    A("v_xor_b32 v10, v6, v3")
    A("v_lshlrev_b32 v11, 8, v5\nv_add_u32 v11, s46, v11")
    for s in range(8):
        A(f"v_xor_b32 v12, {2*s}, v10")
        A(f"v_lshl_add_u32 v{40+s}, v12, 4, v11")
    A("v_lshlrev_b32 v48, 4, v2")
    A("s_waitcnt lgkmcnt(0)")
    A("s_mul_i32 s34, s27, 245760")
    A("s_add_u32 s4, s36, s34\ns_addc_u32 s5, s37, 0\ns_mov_b32 s6, 245760\ns_mov_b32 s7, 0x20000")
    A("s_lshl_b32 s34, s29, 8")
    A("s_add_u32 s8, s42, s34\ns_addc_u32 s9, s43, 0\ns_sub_u32 s10, 5242880, s34\ns_mov_b32 s11, 0x20000")
    A("s_cmp_eq_u32 s22, 1")
    A("s_cselect_b32 s12, s40, s38\ns_cselect_b32 s13, s41, s39")
    A("s_lshl_b32 s34, s27, 5\ns_add_u32 s34, s34, s29\ns_lshl_b32 s34, s34, 18")
    A("s_add_u32 s12, s12, s34\ns_addc_u32 s13, s13, 0\ns_mov_b32 s14, 0x40000\ns_mov_b32 s15, 0x20000")
    A("s_mul_i32 s34, s25, 48\ns_mul_i32 s35, s27, 6\ns_add_u32 s34, s34, s35\ns_mul_i32 s35, s22, 3\ns_add_u32 s34, s34, s35")
    A("s_lshl_b32 s34, s34, 18\ns_lshl_b32 s35, s29, 13\ns_add_u32 s34, s34, s35")
    A("s_add_u32 s16, s44, s34\ns_addc_u32 s17, s45, 0")
    A(f"s_mov_b32 s18, {2*262144 + 8192}\ns_mov_b32 s19, 0x20000")
    A("s_mul_i32 s48, s20, 6144")
    A("s_mul_i32 s49, s20, 61440")
    A("s_lshl_b32 s50, s22, 12")
    A("s_lshl_b32 s34, s21, 13\ns_add_u32 s51, s50, s34\ns_add_u32 s51, s51, 131072")
    A(f"s_add_u32 s52, s46, s50\ns_add_u32 s52, s52, {XBUF[0] + 24576}")
    A("s_lshl_b32 s53, s22, 17")
    A("s_lshl_b32 s54, s22, 13\ns_add_u32 s54, s54, s46")

    def dma_x(xi, n):
        return [f"s_add_u32 m0, s48, {XBUF[xi % 2] + n*1024}",
                f"s_add_u32 s55, s49, {n*10240 + xi*128}",
                (f"buffer_load_dwordx4 v{8 + (n & 1)}, s[4:7], s55 offen lds", f"X{xi}")]
    def dma_w(sg, n):
        i = sg % 3
        m0 = f"s_add_u32 m0, s51, {i*16384 + n*1024}" if i < 2 else f"s_add_u32 m0, s52, {n*1024}"
        return [m0, f"s_add_u32 s55, s53, {(sg*32 + n*4)*8192}",
                (f"buffer_load_dwordx4 v7, s[8:11], s55 offen lds", f"W{sg}")]
    def dma_kv_static(step, n):
        st = step % 4
        return [f"s_add_u32 m0, s54, {st*16384 + n*1024}", f"s_mov_b32 s55, {step*8192 + n*1024}",
                (f"buffer_load_dwordx4 v{16 + (n & 3)}, s[12:15], s55 offen {cfg.kv_flags} lds", f"KV{step}")]
    def emit(items):
        for it in items:
            if isinstance(it, tuple): A.vmem(it[0], it[1])
            elif callable(it): it()
            else: A(it)
    for n in range(6): emit(dma_x(0, n))
    for n in range(4): emit(dma_w(0, n))
    for n in range(4): emit(dma_w(1, n))
    for n in range(6): emit(dma_x(1, n))
    for n in range(4): emit(dma_w(2, n))

    ACC = 64
    def acc(t, dt): return ACC + 16 * (t * 4 + dt)
    FA = 192
    def fa(p, dt): return FA + 28 * p + 4 * dt
    def fb(p, t): return FA + 28 * p + 16 + 4 * t
    def q_reads(kap):
        sg, s = kap // 2, kap % 2
        xi, sx = kap // 4, kap % 4
        p = kap % 2
        r = []
        for t in range(3):
            r.append(f"ds_read_b128 {ar(fb(p, t), 4)}, v{20 + 4*(xi % 2) + sx} offset:{t*4096}")
        i = sg % 3
        for dt in range(4):
            for e in range(2):
                off = (16*s + 4*e) * 256 + (16384 if i == 1 else 0)
                base = 28 + dt if i < 2 else 32 + dt
                r.append(f"ds_read_b64_tr_b16 {ar(fa(p, dt) + 2*e, 2)}, v{base} offset:{off}")
        return r
    A(f"s_waitcnt vmcnt({A.vm_count_after(['X0', 'W0'])})")
    A("s_barrier")
    stamp()
    for r in q_reads(0): A(r)
    zero_list = [f"v_accvgpr_write_b32 a{i}, 0" for i in range(192)]
    kv_pre = [(st, n) for st in range(2) for n in range(8)]
    pend = []
    for kap in range(40):
        sg, s = kap // 2, kap % 2
        p = kap % 2
        A("s_waitcnt lgkmcnt(0)")
        if s == 1 and sg < 19:
            need = [f"W{sg+1}", f"X{(sg+1)//2}"]
            A(f"s_waitcnt vmcnt({A.vm_count_after(need)})")
            A("s_barrier")
            if sg + 3 < 20:
                pend += [dma_w(sg + 3, n) for n in range(4)]
            if sg % 2 == 1 and sg // 2 + 2 < 10:
                pend += [dma_x(sg // 2 + 2, n) for n in range(6)]
            for _ in range(2):
                if kv_pre:
                    st, n = kv_pre.pop(0); pend.append(dma_kv_static(st, n))
        reads = q_reads(kap + 1) if kap + 1 < 40 else []
        g = 0
        for dt in range(4):
            for t in range(3):
                d = vr(acc(t, dt), 16)
                A(mfma(d, ar(fa(p, dt), 4), ar(fb(p, t), 4), "0" if kap == 0 else d))
                if reads: A(reads.pop(0))
                if reads: A(reads.pop(0))
                if pend and g >= 6: emit(pend.pop(0))
                for _ in range(3):
                    if zero_list: A(zero_list.pop(0))
                g += 1
        assert not reads
    assert not pend and not kv_pre and not zero_list
    A("s_barrier")
    stamp()
    for n in range(8): emit(dma_kv_static(2, n))
    for n in range(5): emit(dma_kv_static(3, n))
    A.vmem(f"buffer_load_dwordx4 v17, s[12:15], s55 offen offset:1024 {cfg.kv_flags} lds", "KV3")
    A("s_nop 7")
    for k in range(96):
        A(f"v_cvt_pk_bf16_f32 v{ACC+k}, v{ACC+2*k}, v{ACC+2*k+1}")
    def qfrag(t, s): return ACC + 8 * (t * 4 + s // 2) + 4 * (s % 2)
    if cfg.stop_after_q:
        for t in range(3):
            for s in range(8):
                A(f"s_mov_b32 s55, {t*262144 + s*1024}")
                A(f"buffer_store_dwordx4 {vr(qfrag(t, s), 4)}, v48, s[16:19], s55 offen")
        A("s_waitcnt vmcnt(0)")
        A("s_endpgm")
    S = [160, 176]; P = [192, 200]; T = 208
    TS = 216; L = [217, 218, 219]; MC = [220, 221, 222]; R0, R1, R2 = 223, 224, 225
    KF = 192; VF = 224
    def O(t, dt): return 64 * t + 16 * dt
    for t in range(3):
        A(f"v_mov_b32 v{L[t]}, 0")
        A(f"v_mov_b32 v{MC[t]}, 0xff800000")
    def k_read(st, s): return f"ds_read_b128 {ar(KF + 4*s, 4)}, v{40+s} offset:{st*16384}"
    def v_read(st, rho):
        f, e = rho >> 1, rho & 1
        sp, dt = f >> 2, f & 3
        return f"ds_read_b64_tr_b16 {ar(VF + 4*f + 2*e, 2)}, v{36+dt} offset:{st*16384 + (16*sp + 8*e)*256}"
    def sm_ops(t, par):
        def F(e): return (f"v_fma_f32 v{T + e % 8}, v{S[par] + e}, s30, -v{MC[t]}", 4)
        def E(e): return (f"v_exp_f32 v{T + e % 8}, v{T + e % 8}", 8)
        def Ad(e): return (f"v_add_f32 v{TS}, v{TS}, v{T + e % 8}", 4)
        def C(k): return (f"v_cvt_pk_bf16_f32 v{P[par] + k}, v{T + (2*k) % 8}, v{T + (2*k+1) % 8}", 4)
        ops = [F(0), F(1)]
        for k in range(9):
            if k < 8:
                if 2*k + 2 < 16: ops.append(F(2*k + 2))
                ops.append(E(2*k))
                if 2*k + 3 < 16: ops.append(F(2*k + 3))
                ops.append(E(2*k + 1))
            if k >= 1:
                kk = k - 1
                if kk == 0:
                    ops.append((f"v_add_f32 v{TS}, v{T}, v{T+1}", 4))
                else:
                    ops.append(Ad(2*kk)); ops.append(Ad(2*kk + 1))
                ops.append(C(kk))
        return ops
    NG = 14
    def split_ops(ops):
        tot = sum(c for _, c in ops)
        out = [[] for _ in range(NG)]
        acc_c = 0
        for ins, c in ops:
            g = min(NG - 1, int((acc_c + c / 2) * NG / tot))
            out[g].append(ins); acc_c += c
        return out
    A(f"s_waitcnt vmcnt({A.vm_count_after(['KV0'])})")
    A("s_barrier")
    for s in range(8): A(k_read(0, s))
    for rho in range(16): A(v_read(0, rho))
    A("s_waitcnt lgkmcnt(0)")
    for s in range(8):
        A(mfma(vr(S[0], 16), ar(KF + 4*s, 4), vr(qfrag(0, s), 4), "0" if s == 0 else vr(S[0], 16)))
    A("s_nop 15")
    sp0 = split_ops(sm_ops(0, 0))
    for g in range(6):
        for ins in sp0[g]: A(ins)
    A("s_mov_b32 s56, 24576")
    A("s_mov_b32 s57, 8")
    A("s_mov_b32 s58, 1")
    stamp()
    A(".p2align 6")
    A("L1_loop:")
    stubs = []
    for u in range(12):
        t, par, j = u % 3, u % 2, u // 3
        t1, par1 = (u + 1) % 3, (u + 1) % 2
        cur = split_ops(sm_ops(t, par)); nxt = split_ops(sm_ops(t1, par1))
        pre = [[] for _ in range(16)]
        before = [[] for _ in range(16)]
        stn = (j + 1) % 4
        def dma_loop(n, st):
            r = []
            if n % 4 == 0:
                r.append(f"s_add_u32 m0, s54, {st*16384 + n*1024}")
                r.append(f"s_add_u32 s55, s56, {n*1024}")
            r.append(f"buffer_load_dwordx4 v{16 + (n & 3)}, s[12:15], s55 offen offset:{(n % 4)*1024} {cfg.kv_flags} lds")
            return r
        if t == 1:
            before[0] += ["s_waitcnt vmcnt(16)", "s_barrier"]
            for s in range(8): pre[s].append(k_read(stn, s))
            for n, g in enumerate((8, 11, 14)): pre[g] += dma_loop(n, j % 4)
        if t == 2:
            before[0].append("s_waitcnt lgkmcnt(0)")
            for n, g in zip((3, 4, 5), (1, 4, 7)): pre[g] += dma_loop(n, j % 4)
            for rho in range(8): pre[8 + rho].append(v_read(stn, rho))
        if t == 0:
            for rho in range(8, 16): pre[rho - 8].append(v_read(j % 4, rho))
            before[8].append("s_waitcnt lgkmcnt(8)")
            before[12].append("s_waitcnt lgkmcnt(0)")
            for n, g in zip((6, 7), (9, 13)): pre[g] += dma_loop(n, (j - 1) % 4)
            pre[14].append("s_add_u32 s56, s56, 8192")
        for g in range(16):
            for ins in before[g]: A(ins)
            if g < 8:
                A(mfma(vr(S[par1], 16), ar(KF + 4*g, 4), vr(qfrag(t1, g), 4), "0" if g == 0 else vr(S[par1], 16)))
                valu = cur[6 + g]
            else:
                f = g - 8; sp, dt = f >> 2, f & 3
                A(mfma(ar(O(t, dt), 16), ar(VF + 4*f, 4), vr(P[par] + 4*sp, 4), ar(O(t, dt), 16)))
                valu = nxt[g - 10] if g >= 10 else []
                if g == 8: valu = [f"v_add_f32 v{L[t]}, v{L[t]}, v{TS}"]
            for ins in pre[g]: A(ins)
            for ins in valu: A(ins)
            if g == 7:
                A(f"v_cmp_nge_f32 vcc, s31, v{TS}")
                A(f"s_cbranch_vccnz L1_stub{u}")
                A(f"L1_back{u}:")
                stubs.append((u, t, par))
        if u == 2: A("s_mov_b32 s58, 0")
    A("s_sub_u32 s57, s57, 1\ns_cmp_lg_u32 s57, 0\ns_cbranch_scc1 L1_loop")
    stamp()
    A("s_nop 15")
    for t in range(3):
        A(f"v_mov_b32 v{R0}, v{L[t]}")
        A("s_nop 1")
        A(f"v_permlane32_swap_b32 v{L[t]}, v{R0}")
        A(f"v_add_f32 v{R0}, v{L[t]}, v{R0}")
        A(f"v_rcp_f32 v{R0}, v{R0}")
        A(f"s_mov_b32 s55, {t*262144}")
        for ks in range(8):
            dt, sp = ks >> 1, ks & 1
            tb = 160 + 16 * (ks % 2)
            ob = 192 + 4 * (ks % 4)
            for k in range(8): A(f"v_accvgpr_read_b32 v{tb+k}, a{O(t, dt) + 8*sp + k}")
            for k in range(8): A(f"v_mul_f32 v{tb+k}, v{tb+k}, v{R0}")
            for k in range(4): A(f"v_cvt_pk_bf16_f32 v{ob+k}, v{tb+2*k}, v{tb+2*k+1}")
            if ks == 4: A(f"s_add_u32 s55, s55, 4096")
            A(f"buffer_store_dwordx4 {vr(ob, 4)}, v48, s[16:19], s55 offen offset:{(ks % 4)*1024}")
    if cfg.stamps:
        A("s_waitcnt vmcnt(0)")
        stamp()
        A("s_waitcnt lgkmcnt(0)")
        A(f"s_add_u32 s44, s44, {STAMP_BASE}\ns_addc_u32 s45, s45, 0\ns_mov_b32 s46, 0x100000\ns_mov_b32 s47, 0x20000")
        A("s_lshl_b32 s34, s2, 2\ns_add_u32 s34, s34, s20\ns_lshl_b32 s34, s34, 6")
        A("v_mov_b32 v1, s34")
        for k in range(nst[0]):
            A(f"v_mov_b32 v2, s{70+2*k}\nv_mov_b32 v3, s{71+2*k}")
            A(f"buffer_store_dwordx2 v[2:3], v1, s[44:47], 0 offen offset:{8*k}")
            A("s_nop 1")
    A("L1_end:\ns_endpgm")
    for u, t, par in stubs:
        A(f"L1_stub{u}:")
        A(f"s_call_b64 s[60:61], L1_rare{t}_{par}")
        A(f"s_branch L1_back{u}")
    for t in range(3):
        for par in range(2):
            A(f"L1_rare{t}_{par}:")
            s0 = S[par]
            A(f"v_max3_f32 v{R0}, v{s0}, v{s0+1}, v{s0+2}")
            for k in range(3, 15, 2): A(f"v_max3_f32 v{R0}, v{R0}, v{s0+k}, v{s0+k+1}")
            A(f"v_max_f32 v{R0}, v{R0}, v{s0+15}")
            A(f"v_mov_b32 v{R1}, v{R0}")
            A("s_nop 1")
            A(f"v_permlane32_swap_b32 v{R0}, v{R1}")
            A(f"v_max_f32 v{R0}, v{R0}, v{R1}")
            A(f"v_mul_f32 v{R0}, s30, v{R0}")
            A(f"v_max_f32 v{R0}, v{R0}, v{MC[t]}")
            A(f"v_sub_f32 v{R1}, v{MC[t]}, v{R0}")
            A(f"v_exp_f32 v{R1}, v{R1}")
            A(f"v_mov_b32 v{MC[t]}, v{R0}")
            A(f"v_mul_f32 v{L[t]}, v{L[t]}, v{R1}")
            A("s_cmp_eq_u32 s58, 1")
            A(f"s_cbranch_scc1 L1_rskip{t}_{par}")
            for k in range(0, 64, 4):
                for q in range(4): A(f"v_accvgpr_read_b32 v{T+q}, a{64*t + k + q}")
                for q in range(4): A(f"v_mul_f32 v{T+q}, v{T+q}, v{R1}")
                for q in range(4): A(f"v_accvgpr_write_b32 a{64*t + k + q}, v{T+q}")
            A(f"L1_rskip{t}_{par}:")
            for ins, _ in sm_ops(t, par): A(ins)
            A("s_nop 1")
            A("s_setpc_b64 s[60:61]")

def kd(name, vgpr=512, accum=256):
    return (f".amdhsa_kernel {name}\n  .amdhsa_next_free_vgpr {vgpr}\n  .amdhsa_next_free_sgpr 102\n"
            f"  .amdhsa_accum_offset {accum}\n  .amdhsa_group_segment_fixed_size 0\n  .amdhsa_kernarg_size 104\n"
            "  .amdhsa_user_sgpr_count 2\n  .amdhsa_user_sgpr_kernarg_segment_ptr 1\n"
            "  .amdhsa_system_sgpr_workgroup_id_x 1\n.end_amdhsa_kernel")

def gen(cfg, k1=True, k2=True):
    from gen2 import gen_k2
    A = Asm()
    if k1: A("; @launch kernel=attn_kernel grid=(256,1,1) block=(256,1,1) lds=163840")
    if k2: A("; @launch kernel=oproj_kernel grid=(240,1,1) block=(256,1,1) lds=98304")
    A('.amdgcn_target "amdgcn-amd-amdhsa--gfx950"\n.text')
    if k1: gen_k1(A, cfg)
    if k2:
        A.vm = []
        gen_k2(A, cfg)
    A('.section .rodata,"a"\n.p2align 6')
    if k1: A(kd("attn_kernel"))
    if k2:
        A(".p2align 6")
        A(kd("oproj_kernel"))
    return A.text()

if __name__ == "__main__":
    cfg = Cfg()
    out = sys.argv[1]
    k1 = k2 = True
    for a in sys.argv[2:]:
        k, v = a.split("=")
        if k == "k1": k1 = bool(int(v))
        elif k == "k2": k2 = bool(int(v))
        else:
            old = getattr(cfg, k)
            setattr(cfg, k, type(old)(int(v)) if isinstance(old, (bool, int)) else v)
    open(out, "w").write(gen(cfg, k1, k2))
```

```python
import sys, struct, math
NAME = "concat_heads__mha_block_cached__gqa_block_cached__near_ridge"
def f32bits(x): return struct.unpack("<I", struct.pack("<f", x))[0]

class Cfg:
    stamps = 0
    kv_flags = "nt"; xld = 'nt'; wqld = 'nt'; pfl = 'nt'
    ost = 'sc1'; old = ''; wold = ''; pst = 'sc1'; pld = ''; wopfl = ''
    wopf = 1
    force_fb = False
    thr_log2 = 40
    cpf = 1
    xwpf = 0
    qchain = 1
    qdsp = 3
    rot = 1
    acq = 0
    psleep = 2
    rescue = 64
    lag = 4
    pat = 1
    sigstep = 1
    no_dma = False; no_bar = False; q_nodma = False

class Asm:
    def __init__(s): s.l = []; s.vm = []
    def __call__(s, x): s.l.append(x)
    def vmem(s, x, tag): s.l.append(x); s.vm.append(tag)
    def vm_after(s, tags):
        last = -1
        for i, t in enumerate(s.vm):
            if t in tags: last = i
        assert last >= 0, tags
        return min(63, len(s.vm) - 1 - last)
    def emit(s, items):
        for it in items:
            if isinstance(it, tuple): s.vmem(it[0], it[1])
            elif callable(it): it()
            else: s(it)
    def text(s): return "\n".join(s.l) + "\n"

def mf(d, a, b, c): return f"v_mfma_f32_16x16x32_bf16 {d}, {a}, {b}, {c}"
def vr(b, n=4): return f"v[{b}:{b+n-1}]" if n > 1 else f"v{b}"
def ar(b, n=4): return f"a[{b}:{b+n-1}]" if n > 1 else f"a{b}"
STAMP_BASE = 64 << 20
PBASE = 32 << 20
MBOX = 30 << 20

class Stamper:
    def __init__(s, A, cfg): s.A = A; s.cfg = cfg; s.n = 0
    def __call__(s, mode=3):
        if s.cfg.stamps & mode:
            s.A(f"s_memrealtime s[{64+4*s.n}:{65+4*s.n}]\ns_memtime s[{66+4*s.n}:{67+4*s.n}]"); s.n += 1
    def finish(s):
        A = s.A
        if not s.cfg.stamps: return
        A("s_waitcnt vmcnt(0)")
        s()
        assert s.n <= 7
        A("s_waitcnt lgkmcnt(0)")
        A(f"s_add_u32 s44, s44, {STAMP_BASE}\ns_addc_u32 s45, s45, 0\ns_mov_b32 s46, 0x100000\ns_mov_b32 s47, 0x20000")
        A("s_lshl_b32 s34, s2, 2\ns_add_u32 s34, s34, s20\ns_lshl_b32 s34, s34, 6")
        A("v_mov_b32 v1, s34")
        A(f"v_mov_b32 v2, {s.n}\nv_mov_b32 v3, s59\nbuffer_store_dwordx2 v[2:3], v1, s[44:47], 0 offen offset:56\ns_nop 1")
        for k in range(s.n):
            A(f"v_mov_b32 v2, s{64+4*k}\nv_mov_b32 v3, s{66+4*k}")
            A(f"buffer_store_dwordx2 v[2:3], v1, s[44:47], 0 offen offset:{8*k}")
            A("s_nop 1")

XBUF = [114688, 139264]
WSLOT = [2, 0, 1]

def gen_kernel(A, cfg):
    K1 = NAME + "_kernel"
    A(f".globl {K1}\n.p2align 8\n.type {K1},@function\n{K1}:")
    A("s_cmp_ge_u32 s2, 256\ns_cbranch_scc1 L_end")
    stamp = Stamper(A, cfg)
    stamp()
    A("s_bfe_u32 s25, s2, 0x10002")
    A("s_mul_i32 s28, s25, 40")
    A("s_add_u32 s62, s0, s28\ns_addc_u32 s63, s1, 0")
    A("s_load_dwordx4 s[36:39], s[62:63], 0")
    A("s_load_dwordx4 s[40:43], s[62:63], 16")
    A("s_load_dwordx2 s[44:45], s[0:1], 96")
    A("s_load_dwordx2 s[92:93], s[62:63], 32")
    if cfg.cpf:
        A("s_getpc_b64 s[88:89]")
        A("L_pc:")
        A("s_mov_b32 s90, L_end - L_pc\ns_mov_b32 s91, 0x20000")
        A("v_lshlrev_b32 v54, 7, v0")
        A.vmem("buffer_load_dword v56, v54, s[88:91], 0 offen", "CPF")
    A("s_lshr_b32 s24, s2, 3")
    A("s_and_b32 s28, s2, 3")
    A("s_and_b32 s23, s24, 3")
    A("s_lshl_b32 s26, s28, 2\ns_add_u32 s26, s26, s23")
    A("s_lshr_b32 s27, s24, 2")
    A("v_lshrrev_b32 v1, 6, v0")
    A("v_and_b32 v2, 63, v0")
    A("v_readfirstlane_b32 s20, v1")
    A("v_and_b32 v3, 15, v2\nv_lshrrev_b32 v4, 4, v2")
    A("v_lshrrev_b32 v10, 3, v2\nv_and_b32 v11, 7, v2")
    A("v_xor_b32 v13, v11, v4")
    A("v_mul_u32_u24 v14, 1280, v10")
    A("v_lshl_add_u32 v58, v13, 4, v14")
    A("v_xor_b32 v13, 4, v13")
    A("v_lshl_add_u32 v59, v13, 4, v14")
    A("v_add_u32 v59, 9216, v59")
    A("v_add_u32 v60, 18432, v58\nv_add_u32 v61, 18432, v59")
    A("v_lshlrev_b32 v10, 2, v4\nv_xor_b32 v10, v3, v10")
    A("v_lshlrev_b32 v11, 13, v4")
    A("v_lshl_add_u32 v6, v10, 4, v11")
    for n in range(1, 4): A(f"v_add_u32 v{6+n}, {n*31744}, v6")
    A("s_lshr_b32 s21, s20, 1\ns_and_b32 s22, s20, 1")
    A("s_lshl_b32 s29, s26, 1\ns_add_u32 s29, s29, s21")
    A("s_lshl_b32 s46, s21, 16")
    A("s_mul_i32 s48, s20, 6144")
    A("s_lshl_b32 s54, s22, 13\ns_add_u32 s54, s54, s46")
    A("s_mul_i32 s34, s27, 245760\ns_mul_i32 s49, s20, 61440")
    A("s_lshl_b32 s35, s29, 8\ns_lshl_b32 s53, s22, 18")
    A("s_waitcnt lgkmcnt(0)")
    A("s_add_u32 s4, s36, s34\ns_addc_u32 s5, s37, 0\ns_mov_b32 s6, 245760\ns_mov_b32 s7, 0x20000")
    A("s_add_u32 s8, s42, s35\ns_addc_u32 s9, s43, 0\ns_sub_u32 s10, 5242880, s35\ns_mov_b32 s11, 0x20000")
    def dma_x(xi):
        r = []
        for n in range(6):
            if n % 4 == 0:
                r += [f"s_add_u32 m0, s48, {XBUF[xi % 2] + n*1024}", f"s_add_u32 s55, s49, {n*10240 + xi*128}"]
            r.append((f"buffer_load_dwordx4 v{58 + (n & 3)}, s[4:7], s55 offen offset:{(n & 3)*1024} {cfg.xld} lds", f"X{xi}"))
        return r
    def dma_w(sg):
        r = []
        for n in range(8):
            if n % 4 == 0:
                r += [f"s_add_u32 m0, s54, {WSLOT[sg % 3]*16384 + n*1024}", f"s_add_u32 s55, s53, {(sg*64 + n*4)*8192}"]
            r.append((f"buffer_load_dwordx4 v{6 + (n & 3)}, s[8:11], s55 offen offset:{(n & 3)*1024} {cfg.wqld} lds", f"W{sg}"))
        return r
    def dma_kv(step, nmax=8):
        r = []
        for n in range(nmax):
            if n % 4 == 0:
                r += [f"s_add_u32 m0, s54, {(step % 4)*16384 + n*1024}", f"s_add_u32 s55, s30, {step*8192 + n*1024}", "s_and_b32 s55, s55, 0x3ffff"]
            r.append((f"buffer_load_dwordx4 v{16 + (n & 3)}, s[12:15], s55 offen offset:{(n & 3)*1024} {cfg.kv_flags} lds", f"KV{step}"))
        return r
    A.emit(dma_x(0)); A.emit(dma_w(0))
    A("s_lshl_b32 s34, s27, 5\ns_add_u32 s34, s34, s29\ns_lshl_b32 s34, s34, 18")
    A("s_add_u32 s36, s38, s34\ns_addc_u32 s37, s39, 0")
    A("s_add_u32 s38, s40, s34\ns_addc_u32 s39, s41, 0")
    A("s_cmp_eq_u32 s22, 1")
    A("s_cselect_b32 s12, s38, s36\ns_cselect_b32 s13, s39, s37")
    A("s_mov_b32 s14, 0x40000\ns_mov_b32 s15, 0x20000")
    A("s_cselect_b64 s[32:33], -1, 0")
    A("v_xor_b32 v11, v3, v4")
    A("v_lshlrev_b32 v10, 1, v4\nv_xor_b32 v10, v3, v10")
    A("v_lshlrev_b32 v12, 8, v4")
    for n in range(4):
        A(f"v_xor_b32 v13, {4*n}, v11")
        A(f"v_xor_b32 v14, {8*(n&1)}, v10")
        A("v_cndmask_b32 v13, v13, v14, s[32:33]")
        A(f"v_lshl_add_u32 v{16+n}, v13, 4, v12")
    A("v_lshlrev_b32 v12, 8, v3\nv_add_u32 v12, s46, v12")
    for c in range(4):
        A(f"v_xor_b32 v13, {4*c}, v11")
        A(f"v_lshl_add_u32 v{20+c}, v13, 4, v12")
    A("v_lshrrev_b32 v10, 2, v3\nv_lshl_add_u32 v11, v4, 2, v10")
    A("v_and_b32 v12, 7, v11")
    A("v_lshlrev_b32 v11, 8, v11")
    A("v_and_b32 v13, 3, v3\nv_lshl_add_u32 v11, v13, 3, v11")
    A("s_add_u32 s47, s46, 8192")
    A("v_add_u32 v11, s47, v11")
    for dt in range(8):
        A(f"v_xor_b32 v14, {dt}, v12")
        A(f"v_lshl_add_u32 v{24+dt}, v14, 5, v11")
    A("v_lshlrev_b32 v32, 4, v2\nv_add_u32 v33, 4096, v32")
    A(f"s_mul_i32 s34, s22, 12288\ns_add_u32 s34, s34, {XBUF[0]}")
    A("v_lshrrev_b32 v11, 1, v3\nv_xor_b32 v11, v4, v11")
    A("v_lshlrev_b32 v12, 7, v3\nv_add_u32 v12, s34, v12")
    for s in range(2):
        A(f"v_xor_b32 v14, {4*s}, v11")
        A(f"v_lshl_add_u32 v{52+s}, v14, 4, v12")
    A("v_lshl_add_u32 v11, v4, 3, v10\nv_lshlrev_b32 v11, 8, v11")
    A("v_lshl_add_u32 v11, v13, 4, v11")
    A("v_add_u32 v11, s46, v11")
    for c in range(4):
        A(f"v_xor_b32 v14, {c}, v10")
        A(f"v_lshl_add_u32 v{40+c}, v14, 6, v11")
    for k in range(4): A(f"v_mov_b32 v{48+k}, 0x3f803f80")
    A("v_lshl_add_u32 v45, v4, 4, s46")
    cs = f32bits(128 ** -0.5 * math.log2(math.e))
    A(f"v_mov_b32 v46, 0x{cs:08x}\nv_mov_b32 v47, 0x{cs:08x}")
    A(f"s_mov_b32 s31, 0x{f32bits(2.0 ** cfg.thr_log2):08x}")
    A("s_lshl_b32 s40, s25, 3\ns_add_u32 s40, s40, s27")
    A("s_lshl_b32 s34, s40, 5\ns_add_u32 s34, s34, s29\ns_lshl_b32 s34, s34, 1\ns_add_u32 s34, s34, s22\ns_mul_i32 s34, s34, 24576")
    A("s_add_u32 s16, s44, s34\ns_addc_u32 s17, s45, 0\ns_movk_i32 s18, 0x6000\ns_mov_b32 s19, 0x20000")
    A("s_mov_b32 s59, 0")
    if cfg.rot:
        A("s_lshl_b32 s30, s2, 1\ns_add_u32 s30, s30, s21\ns_mul_i32 s30, s30, 0x9E3779B1\ns_lshr_b32 s30, s30, 27\ns_lshl_b32 s30, s30, 13")
    else:
        A("s_mov_b32 s30, 0")
    if cfg.cpf:
        A("s_mov_b32 s34, 0x8000")
        A.vmem("buffer_load_dword v56, v54, s[88:91], s34 offen", "CPF")
    A.emit(dma_x(1)); A.emit(dma_w(1))

    ACC = 64
    def acc(T, dt): return ACC + 32 * T + 4 * dt
    def fa(dt, s): return 80 + 8 * dt + 4 * s
    def fb(p, T, s): return (144 if p == 0 else 192) + 8 * T + 4 * s
    def qa_reads(sg, dt):
        c, e = dt >> 1, dt & 1
        return [f"ds_read_b64_tr_b16 {ar(fa(dt, s) + 2*f, 2)}, v{40+c} offset:{WSLOT[sg % 3]*16384 + s*8192 + f*1024 + 8*e}"
                for s in range(2) for f in range(2)]
    def qb_read(sg, T, s):
        return f"ds_read_b128 {ar(fb(sg % 2, T, s))}, v{52 + s} offset:{(sg % 2)*24576 + T*2048}"
    A(f"s_waitcnt vmcnt({A.vm_after(['X0', 'W0'])})")
    A("s_barrier")
    for T in range(6):
        for s in range(2): A(qb_read(0, T, s))
    for dt in range(8):
        for r in qa_reads(0, dt): A(r)
    fill = [f"v_accvgpr_write_b32 a{i}, 0" for i in range(80)]
    pend = dma_w(2)
    for sg in range(10):
        last = sg == 9
        slots = [[] for _ in range(96)]
        if not last:
            need = [f"W{sg+1}", f"X{sg+1}"]
            slots[10] = ["WAIT"]; slots[11] = ["BAR"]
            for dt in range(8):
                r = qa_reads(sg + 1, dt)
                g0 = 12 * dt + 11 + (1 if dt == 0 else 0)
                if dt == 7: slots[95] += r
                else: slots[g0] += r[:2]; slots[g0 + 1] += r[2:]
            for T in range(6): slots[14 + T] += [qb_read(sg + 1, T, 0), qb_read(sg + 1, T, 1)]
        else:
            fill += [f"v_accvgpr_write_b32 a{i}, 0" for i in range(144, 192)]
            for n in range(5):
                fill += [f"v_add_u32 v14, {64*n}, v2", "v_mul_u32_u24 v15, 3277, v14", "v_lshrrev_b32 v15, 16, v15",
                         "v_mul_u32_u24 v34, 20, v15", "v_sub_u32 v14, v14, v34", "v_bfe_u32 v34, v15, 2, 1", "v_lshlrev_b32 v34, 1, v34",
                         "v_xor_b32 v14, v14, v34", "v_mul_u32_u24 v15, 1280, v15", f"v_lshl_add_u32 v{5+n}, v14, 4, v15"]
                if 0 < n < 4: fill.append(f"v_subrev_u32 v{5+n}, {1024*n}, v{5+n}")
        A("s_waitcnt lgkmcnt(15)")
        order = [(T, s) for T in range(6) for s in range(2)] if cfg.qchain else [(T, s) for s in range(2) for T in range(6)]
        g = 0
        for dt in range(8):
            for T, s in order:
                d = vr(acc(T, dt))
                A(mf(d, ar(fa(dt, s)), ar(fb(sg % 2, T, s)), "0" if sg == 0 and s == 0 else d))
                used = 0
                for x in slots[g]:
                    if x == "WAIT": A(f"s_waitcnt vmcnt({A.vm_after(need)}) lgkmcnt(0)"); used = 2
                    elif x == "BAR":
                        A("s_barrier"); used = 2
                        if sg + 2 < 10: pend += dma_x(sg + 2)
                        if sg + 3 < 10: pend += dma_w(sg + 3)
                        if sg == 7: pend += dma_kv(0)
                        if sg == 8: pend += dma_kv(1)
                    else: A(x); used = 2
                if last and g == 11: A("s_waitcnt lgkmcnt(0)")
                if last and g % 12 == 11 and g < 95:
                    fill += [f"v_accvgpr_write_b32 a{i}, 0" for i in range(fa(dt, 0), fa(dt, 0) + 8)]
                if not used and pend and (g >= 20 or g < 10):
                    if isinstance(pend[0], str): A(pend.pop(0))
                    elif g % cfg.qdsp == 0:
                        it = pend.pop(0); used = 2
                        if cfg.q_nodma and not it[1].startswith("KV"): A.vm.append(it[1])
                        else: A.vmem(*it)
                if not used:
                    for _ in range(2):
                        if fill: A(fill.pop(0))
                g += 1
    assert not pend, len(pend)
    fill += [f"v_accvgpr_write_b32 a{i}, 0" for i in range(fa(7, 0), fa(7, 0) + 8)]
    A("s_barrier")
    stamp(1)
    A("s_load_dwordx4 s[48:51], s[0:1], 80")
    A("s_lshl_b32 s41, s40, 2\ns_add_u32 s42, s41, s23\ns_add_u32 s41, s41, s28")
    A(f"s_add_u32 s8, s44, {MBOX}\ns_addc_u32 s9, s45, 0\ns_mov_b32 s10, 0x8000\ns_mov_b32 s11, 0x20000")
    A("s_lshl_b32 s99, s41, 8\ns_lshl_b32 s100, s42, 8\ns_add_u32 s100, s100, 0x4000")
    A("v_mov_b32 v57, 0")
    A.vmem("buffer_load_dword v62, v57, s[8:11], s99 offen sc1", "SNAP")
    A.vmem("buffer_load_dword v63, v57, s[8:11], s100 offen sc1", "SNAP")
    for z in fill: A(z)
    for k in range(96):
        A(f"v_pk_mul_f32 v[{ACC+2*k}:{ACC+2*k+1}], v[{ACC+2*k}:{ACC+2*k+1}], v[46:47]")
        if k >= 1: A(f"v_cvt_pk_bf16_f32 v{ACC+k-1}, v{ACC+2*k-2}, v{ACC+2*k-1}")
    A(f"v_cvt_pk_bf16_f32 v{ACC+95}, v{ACC+190}, v{ACC+191}")
    def qf(T, c): return ACC + 16 * T + 4 * c
    A("s_waitcnt lgkmcnt(0)")

    S = [160, 176]; P = [192, 200]; NEGM = 208; L = 232; ONES = 48
    KF = 192; VF = 224
    def O(T, dt): return 32 * T + 4 * dt
    def k_read(st, kt, c): return f"ds_read_b128 {ar(KF + 16*kt + 4*c)}, v{20+c} offset:{st*16384 + kt*4096}"
    def v_read(st, dt, e): return f"ds_read_b64_tr_b16 {ar(VF + 4*dt + 2*e, 2)}, v{24+dt} offset:{st*16384 + e*4096}"
    def qk_mfmas(t, par):
        r = []
        for Tl in range(2):
            T = 2*t + Tl
            for kt in range(2):
                d = vr(S[par] + 8*Tl + 4*kt)
                for c in range(4):
                    r.append(mf(d, ar(KF + 16*kt + 4*c), vr(qf(T, c)), vr(NEGM + 4*T) if c == 0 else d))
        return r
    def pv_mfmas(t, par):
        r = []
        for Tl in range(2):
            T = 2*t + Tl
            for dt in range(8):
                r.append(mf(ar(O(T, dt)), ar(VF + 4*dt), vr(P[par] + 4*Tl), ar(O(T, dt))))
            r.append(mf(vr(L + 4*T), vr(ONES), vr(P[par] + 4*Tl), vr(L + 4*T)))
        return r
    def EX(par, e): return f"v_exp_f32 v{S[par]+e}, v{S[par]+e}"
    def CV(par, k): return f"v_cvt_pk_bf16_f32 v{P[par]+k}, v{S[par]+2*k}, v{S[par]+2*k+1}"
    A(f"s_waitcnt vmcnt({A.vm_after(['KV0'])})")
    A("s_barrier")
    for c in range(4): A(f"ds_read_b128 {vr(S[1] + 4*c)}, v45 offset:{64*c}")
    for kt in range(2):
        for c in range(4): A(k_read(0, kt, c))
    for k in range(24): A(f"v_mov_b32 v{L+k}, 0")
    A("s_waitcnt lgkmcnt(8)")
    for k in range(16): A(f"v_xor_b32 v{S[1]+k}, 0x80008000, v{S[1]+k}")
    A("s_nop 1")
    NST = {0: 5, 1: 8, 2: 3}[cfg.pat]
    qend = 8 + cfg.lag + NST
    assert qend >= 16
    kv2 = dma_kv(2, min(8, qend - 16)); kv3 = dma_kv(3, max(0, qend - 24))
    gam = "v14"
    misc = ["v_and_b32 v14, 1, v4", "v_xor_b32 v15, 1, v14",
            "v_lshrrev_b32 v34, 2, v3", "v_lshl_add_u32 v34, v4, 2, v34", "v_mul_u32_u24 v34, 320, v34",
            "v_and_b32 v35, 3, v3", "v_lshl_add_u32 v34, v35, 3, v34", "v_add_u32 v34, s46, v34",
            "v_lshl_add_u32 v36, v14, 5, v34", "v_lshl_add_u32 v37, v15, 5, v34",
            "v_add_u32 v38, 128, v37", "v_add_u32 v39, 192, v36",
            "MASK",
            "v_cndmask_b32 v10, v36, v38, s[32:33]", "v_cndmask_b32 v11, v37, v39, s[32:33]",
            "v_cndmask_b32 v12, v38, v36, s[32:33]", "v_cndmask_b32 v13, v39, v37, s[32:33]",
            "v_mul_u32_u24 v34, 2560, v3", "v_lshl_add_u32 v34, v4, 3, v34",
            "v_lshlrev_b32 v35, 7, v0", "v_add_u32 v36, 0x8000, v35"]
    def misc_step():
        for _ in range(2):
            if misc:
                m = misc.pop(0)
                if m == "MASK": A("s_cmp_eq_u32 s21, 1\ns_cselect_b64 s[32:33], -1, 0")
                else: A(m)
    for T in range(6):
        for c in range(4):
            d = vr(NEGM + 4*T)
            A(mf(d, vr(S[1] + 4*c), vr(qf(T, c)), "0" if c == 0 else d))
            if kv2 and (isinstance(kv2[0], str) or c % 2 == 0): A.emit([kv2.pop(0)])
            else: misc_step()
    assert not kv2
    A("s_waitcnt lgkmcnt(0)")
    for k, m in enumerate(qk_mfmas(0, 0)):
        A(m)
        if kv3 and (isinstance(kv3[0], str) or k % 2 == 0): A.emit([kv3.pop(0)])
        else: misc_step()
    A.emit(kv3)
    while misc: misc_step()
    A("s_lshl_b32 s34, s26, 3\ns_add_u32 s34, s34, s27\ns_mul_i32 s34, s34, 40960")
    A("s_add_u32 s88, s92, s34\ns_addc_u32 s89, s93, 0\ns_mov_b32 s90, 40960\ns_mov_b32 s91, 0x20000")
    A("s_lshl_b32 s34, s28, 10\ns_lshl_b32 s35, s21, 7\ns_add_u32 s34, s34, s35\ns_lshl_b32 s35, s22, 4\ns_add_u32 s34, s34, s35")
    A("s_mul_i32 s34, s34, 1280\ns_mul_i32 s35, s23, 320\ns_add_u32 s34, s34, s35")
    A("s_add_u32 s92, s92, s34\ns_addc_u32 s93, s93, 0\ns_sub_u32 s94, 5242880, s34\ns_mov_b32 s95, 0x20000")
    for e in range(16): A(EX(0, e))
    for k in range(4): A(CV(0, k))
    A(f"s_add_u32 s30, s30, {(16 + cfg.lag - (4 if cfg.pat == 2 else 0))*1024}\ns_mul_i32 s96, s23, 327680")
    A("s_mov_b32 s57, 7")
    stamp(1)
    def w2_dma(c, sreg, tag):
        r = []
        for n in range(5):
            if n == 0: r += [f"s_add_u32 m0, s54, {c*16384}", f"s_add_u32 s55, {sreg}, {c*40960}"]
            if n == 4: r += [f"s_add_u32 m0, s54, {c*16384 + 4096}", "s_nop 0"]
            r.append((f"buffer_load_dwordx4 v{5+n}, s[92:95], s55 offen offset:{(n & 3)*1024} {cfg.wold} lds", tag))
        return r
    N = cfg.lag
    wq = [0, 1, 2, 3]
    def body(u, last):
        t, par, j = u % 3, u % 2, u // 3
        t1, par1 = (u + 1) % 3, (u + 1) % 2
        fin = last and u == 11
        ms = qk_mfmas(t1, par1) + pv_mfmas(t, par)
        pre = [[] for _ in range(34)]
        val = [[] for _ in range(34)]
        val[0] = [CV(par, 4), CV(par, 5)]; val[1] = [CV(par, 6), CV(par, 7)]
        for e in range(16): val[16 + e] = [EX(par1, e)]
        val[32] = [CV(par1, 0), CV(par1, 1)]; val[33] = [CV(par1, 2), CV(par1, 3)]
        jj = (28 + j) if last else j
        iv = jj if t == 2 else jj - 1
        def q_of(i): return 8 * (iv + 2) + N + i
        def live(i): return (not last) or q_of(i) < 256
        def dma(i, g):
            q = q_of(i)
            if live(i):
                pre[g].append((f"buffer_load_dwordx4 v{16 + (q & 3)}, s[12:15], s55 offen offset:{(q & 3)*1024} {cfg.kv_flags} lds", f"KV{q >> 3}"))
        def group(i, g):
            q = q_of(i)
            if live(i):
                pre[g].append(f"s_add_u32 m0, s54, {((q >> 3) % 4)*16384 + (q & 4)*1024}")
                pre[g + 1].append("s_and_b32 s55, s30, 0x3ffff")
                pre[g + 3].append("s_add_u32 s30, s30, 4096")
        stn = (j + 1) % 4
        if t == 1:
            if cfg.pat == 0: dma(7, 3)
            if cfg.pat == 2: dma(6, 2); dma(7, 4)
            if not last: pre[5].append(f"s_waitcnt vmcnt({N})")
            elif j < 3: pre[5].append(lambda: A(f"s_waitcnt vmcnt({A.vm_after([f'KV{29+j}'])})"))
            pre[6].append("s_barrier")
            if not (last and j == 3):
                for kt in range(2):
                    for c in range(4): pre[8 + 4*kt + c].append(k_read(stn, kt, c))
                pre[33].append("s_waitcnt lgkmcnt(0)")
        if t == 2 and cfg.pat == 0:
            group(0, 0)
            for i, g in zip(range(4), (2, 5, 8, 11)): dma(i, g)
            group(4, 12)
            dma(4, 14)
        if t == 2 and cfg.pat == 1:
            group(0, 0)
            for i, g in zip(range(4), (2, 4, 5, 6)): dma(i, g)
            group(4, 7)
            for i, g in zip(range(4, 8), (9, 11, 13, 15)): dma(i, g)
        if t == 2 and cfg.pat == 2:
            group(0, 0)
            for i, g in zip(range(3), (2, 8, 14)): dma(i, g)
        if t == 0:
            for dt in range(8):
                pre[2 + dt] += [v_read(j % 4, dt, 0), v_read(j % 4, dt, 1)]
            if cfg.pat == 0: dma(5, 11); dma(6, 14)
            if cfg.pat == 2:
                dma(3, 10); group(4, 11); dma(4, 13); dma(5, 15)
            pre[15].append("s_waitcnt lgkmcnt(0)")
        if last and not live(0 if t == 2 else (3 if cfg.pat == 2 else 4)) and wq and wq[0] <= iv - 28 and t != 1:
            c = wq.pop(0)
            w = w2_dma(c, "s96", f"W{c}")
            gs = (0, 1, 2, 5, 8, 11, 12, 13, 14) if t == 2 else (0, 1, 10, 11, 12, 13, 16, 17, 18)
            if fin: gs = (16, 17, 18, 20, 22, 24, 25, 26, 27)
            for it, g in zip(w, gs): pre[g].append(it)
        if cfg.wopf and last and u == cfg.wopf:
            assert t == 1
            pre[7].append((f"buffer_load_dword v39, v35, s[88:91], 0 offen {cfg.wopfl}", "PF"))
            pre[16].append((f"buffer_load_dword v39, v36, s[88:91], 0 offen {cfg.wopfl}", "PF"))
        if fin:
            for k in range(4, 8): A(CV(par, k))
        for g in range(34):
            if fin and g < 16: continue
            A(ms[g])
            x = pre[g]
            if cfg.no_dma: x = [y for y in x if not isinstance(y, tuple)]
            A.emit(x)
            if not fin:
                for y in val[g]: A(y)
    A(".p2align 6")
    A("L_loop:")
    for u in range(12): body(u, False)
    A("s_sub_u32 s57, s57, 1\ns_cmp_lg_u32 s57, 0\ns_cbranch_scc1 L_loop")
    A.vm = [f"KV{q >> 3}" for q in range(8*28, 8*29 + N + NST)]
    for u in range(12): body(u, True)
    for c in wq: A.emit(w2_dma(c, "s96", f"W{c}"))
    stamp()
    A("v_readfirstlane_b32 s56, v62\nv_readfirstlane_b32 s58, v63")
    A("s_nop 5")
    A(f"v_cmp_nge_f32 vcc, s31, v{L}")
    for T in range(1, 6):
        A(f"v_cmp_nge_f32 s[34:35], s31, v{L + 4*T}")
        A("s_or_b64 vcc, vcc, s[34:35]")
    if cfg.force_fb: A("s_branch L_fallback")
    A("s_cbranch_vccnz L_fallback")
    A("L_epi:")
    BB = 40; KEEP = 136; AF = 192
    def bfr(c, T): return BB + 24 * c + 4 * T
    def acc2(nu, T): return vr(KEEP + 24*nu + 4*T) if nu < 5 else ar(24*(nu - 5) + 4*T)
    def b_loads(c, sreg, tag):
        r = [f"s_add_u32 s52, {sreg}, {c*6144}"]
        for T in range(6):
            r.append((f"buffer_load_dwordx4 {vr(bfr(c, T))}, v{32 + T//4}, s[4:7], s52 offen offset:{(T % 4)*1024} {cfg.old}", tag))
        return r
    def a_reads(c, nu):
        n5 = nu % 5
        reg = 10 + 2*(nu // 5) + (n5 & 1)
        return [f"ds_read_b64_tr_b16 {ar(AF + 4*nu + 2*e, 2)}, v{reg} offset:{c*16384 + e*8192 + 64*(n5 >> 1)}" for e in range(2)]
    for T in range(6): A(f"v_rcp_f32 v{L + 4*T}, v{L + 4*T}")
    for T in range(6): A(f"v_mov_b32 v{L + 4*T + 1}, v{L + 4*T}")
    q = 0
    for c in range(4):
        A(f"s_movk_i32 s52, {c*6144}")
        for T in range(6):
            tb = KEEP + 8 * (q % 2); ob = bfr(c, T); q += 1
            for k in range(8): A(f"v_accvgpr_read_b32 v{tb+k}, a{O(T, 2*c) + k}")
            for k in range(4): A(f"v_pk_mul_f32 v[{tb+2*k}:{tb+2*k+1}], v[{tb+2*k}:{tb+2*k+1}], v[{L+4*T}:{L+4*T+1}]")
            for k in range(4): A(f"v_cvt_pk_bf16_f32 v{ob+k}, v{tb+2*k}, v{tb+2*k+1}")
            A.vmem(f"buffer_store_dwordx4 {vr(ob)}, v{32 + T//4}, s[16:19], s52 offen offset:{(T % 4)*1024} {cfg.ost}", "OST")
        if c == 2:
            A(f"s_waitcnt vmcnt({A.vm_after(['W0'])})")
            A("s_barrier")
            for nu in range(10): A.emit(a_reads(0, nu))
    A("s_lshl_b32 s34, s40, 5\ns_lshl_b32 s35, s28, 3\ns_add_u32 s34, s34, s35\ns_add_u32 s34, s34, s21\ns_lshl_b32 s34, s34, 1\ns_add_u32 s34, s34, s22\ns_mul_i32 s34, s34, 24576")
    A(f"s_add_u32 s4, s44, s34\ns_addc_u32 s5, s45, 0\ns_mov_b32 s6, {3*98304 + 24576}\ns_mov_b32 s7, 0x20000")
    A(f"s_add_u32 s8, s44, {MBOX}\ns_addc_u32 s9, s45, 0\ns_mov_b32 s10, 0x8000\ns_mov_b32 s11, 0x20000")
    A("s_mov_b32 s36, s50\ns_mov_b32 s37, s51\ns_movk_i32 s38, 0x100\ns_mov_b32 s39, 0x20000")
    A("s_lshl_b32 s41, s41, 2")
    A("s_add_u32 s53, s23, 1\ns_and_b32 s53, s53, 3")
    A("s_mul_i32 s96, s53, 327680\ns_mul_i32 s98, s53, 98304")
    A("v_mov_b32 v14, 0\nv_mov_b32 v15, 1\nv_mov_b32 v18, 1")
    stamp(1)
    npoll = [0]
    def signal(mreg, sreg):
        k = npoll[0]; npoll[0] += 1
        A(f"s_cmp_lg_u32 s20, 0\ns_cbranch_scc1 L_sg{k}")
        A("s_mov_b64 exec, 1")
        A(f"buffer_atomic_add v18, v14, s[8:11], {mreg} offen")
        A(f"buffer_atomic_add v15, v14, s[36:39], {sreg} offen")
        A("s_mov_b64 exec, -1")
        A(f"L_sg{k}:")
    def poll(mreg, snap, sreg, field):
        k = npoll[0]; npoll[0] += 1
        A(f"s_cmp_lg_u32 s20, 0\ns_cbranch_scc1 L_pd{k}")
        A("s_mov_b64 exec, 1")
        A("s_mov_b32 s61, 0x40000")
        A(f"L_pl{k}:")
        A(f"buffer_load_dword v19, v14, s[8:11], {mreg} offen sc1")
        A("s_waitcnt vmcnt(0)")
        A("v_readfirstlane_b32 s34, v19")
        A("s_sub_u32 s61, s61, 1")
        A(f"s_sub_u32 s34, s34, {snap}")
        A(f"s_cmp_eq_u32 s34, 4\ns_cbranch_scc1 L_pg{k}")
        if cfg.stamps: A("s_add_u32 s59, s59, 1")
        A(f"s_sleep {cfg.psleep}")
        A(f"s_and_b32 s34, s61, {cfg.rescue - 1}\ns_cbranch_scc1 L_pl{k}")
        A(f"buffer_load_dword v19, v14, s[36:39], {sreg} offen sc1")
        A("s_waitcnt vmcnt(0)")
        A("v_readfirstlane_b32 s34, v19")
        A(f"s_cmp_eq_u32 s61, 0\ns_cbranch_scc1 L_pg{k}")
        A(f"s_bfe_u32 s34, s34, {field}")
        A(f"s_cmp_lt_u32 s34, 4\ns_cbranch_scc1 L_pl{k}")
        A(f"L_pg{k}:")
        A("s_mov_b64 exec, -1")
        if cfg.acq: A("buffer_inv sc1\ns_waitcnt vmcnt(0)")
        A(f"L_pd{k}:")
    def step(c, first):
        cn = (c + 1) % 4
        pre = [[] for _ in range(60)]
        for nu in range(10):
            g0 = 6*nu + 5 + (1 if nu == 0 else 0)
            pre[g0] += a_reads(cn, nu)
        seq = w2_dma(c, "s96", f"Wn{c}")
        if first:
            top = "s_waitcnt lgkmcnt(15)"
            need = [f"W{c+1}" if c < 3 else "Wn0"] + (["OST"] if c == cfg.sigstep else [])
            bar = [lambda: A(f"s_waitcnt vmcnt({A.vm_after(need)}) lgkmcnt(0)")]
            if c == cfg.sigstep + 1: bar.append(lambda: poll("s99", "s56", "s41", "0x100000"))
            bar.append("s_barrier")
            if c == cfg.sigstep: bar.append(lambda: signal("s99", "s41"))
            bl = []
            if c == cfg.sigstep + 1:
                for cc in range(2, c + 1): bl += b_loads(cc - 2, "s98", f"B{cc-2}")
            elif c > cfg.sigstep + 1: bl = b_loads(c - 2, "s98", f"B{c-2}")
            seq = bl + seq if c == 3 else seq + bl
        else:
            top = "s_waitcnt vmcnt(11) lgkmcnt(15)"
            bar = ["s_waitcnt lgkmcnt(0)", "s_barrier"]
            seq += b_loads((c + 2) % 4, "s97" if c < 2 else "s98", "B")
        pre[4] += bar[:1]; pre[5] += bar[1:]
        free = [g for g in range(7, 58) if not pre[g]]
        nv = sum(isinstance(x, tuple) for x in seq)
        sp = max(1, (len(free) - (len(seq) - nv)) // nv)
        k = 0
        for it in seq:
            pre[free[k]].append(it)
            k += sp if isinstance(it, tuple) else 1
        A(top)
        for g in range(60):
            nu, T = g // 6, g % 6
            d = acc2(nu, T)
            A(mf(d, ar(AF + 4*nu), vr(bfr(c, T)), "0" if first and c == 0 else d))
            A.emit(pre[g])
    def advance():
        A("s_mov_b32 s97, s98")
        A("s_add_u32 s53, s53, 1\ns_and_b32 s53, s53, 3")
        A("s_mul_i32 s96, s53, 327680\ns_mul_i32 s98, s53, 98304")
        A("s_cmp_eq_u32 s53, s23")
        A("s_cselect_b32 s96, 0x800000, s96\ns_cselect_b32 s98, 0x800000, s98")
    for c in range(4): step(c, True)
    advance()
    A(f"s_waitcnt vmcnt({A.vm_after(['B0'])})")
    A("s_mov_b32 s57, 3")
    A(".p2align 6")
    A("L_p2loop:")
    for c in range(4): step(c, False)
    advance()
    A("s_sub_u32 s57, s57, 1\ns_cmp_lg_u32 s57, 0\ns_cbranch_scc1 L_p2loop")
    stamp()
    A("s_lshl_b32 s34, s20, 15\ns_xor_b32 s35, s34, 0x10000")
    A("v_add_u32 v16, s34, v32\nv_add_u32 v17, s35, v32")
    A(f"s_lshl_b32 s34, s42, 18\ns_add_u32 s34, s34, {PBASE}")
    A("s_add_u32 s12, s44, s34\ns_addc_u32 s13, s45, 0\ns_mov_b32 s14, 0x40000\ns_mov_b32 s15, 0x20000")
    A("s_lshl_b32 s52, s20, 2\ns_add_u32 s52, s52, s28\ns_lshl_b32 s52, s52, 14")
    A("s_lshl_b32 s42, s42, 2")
    A("v_mov_b32 v15, 0x10000")
    A("s_waitcnt vmcnt(0) lgkmcnt(0)")
    A("s_barrier")
    for k in range(30): A(f"ds_write_b128 v16, {ar(4*k)} offset:{k*1024}")
    A("s_waitcnt lgkmcnt(0)")
    A("s_barrier")
    for base, cnt in ((0, 14), (14, 16)):
        rb = 40 if base == 0 else 72
    tiles = list(range(30))
    LR = 40
    issued = 0
    def rd(k): A(f"ds_read_b128 {vr(LR + 4*(k % 24))}, v17 offset:{k*1024}")
    while issued < 14: rd(issued); issued += 1
    for m in range(15):
        A(f"s_waitcnt lgkmcnt({issued - 2*m - 2})")
        for kk in (2*m, 2*m + 1):
            r = LR + 4*(kk % 24)
            for z in range(2):
                A(f"v_pk_add_f32 v[{KEEP+4*kk+2*z}:{KEEP+4*kk+2*z+1}], v[{KEEP+4*kk+2*z}:{KEEP+4*kk+2*z+1}], v[{r+2*z}:{r+2*z+1}]")
        for _ in range(2):
            if issued < 30: rd(issued); issued += 1
        ob = KEEP + 8*m
        for z in range(4): A(f"v_cvt_pk_bf16_f32 v{ob+z}, v{ob+2*z}, v{ob+2*z+1}")
        if m == 8: A("s_add_u32 s52, s52, 8192")
        A(f"buffer_store_dwordx4 {vr(ob)}, v{32 + (m % 8)//4}, s[12:15], s52 offen offset:{(m % 4)*1024} {cfg.pst}")
    A("s_mul_i32 s34, s27, 192\ns_and_b32 s35, s28, 1\ns_mul_i32 s35, s35, 96\ns_add_u32 s34, s34, s35\ns_lshl_b32 s35, s20, 5\ns_add_u32 s34, s34, s35\ns_mul_i32 s34, s34, 2560")
    A("s_mul_i32 s35, s25, 1280\ns_add_u32 s34, s34, s35\ns_mul_i32 s35, s23, 320\ns_add_u32 s34, s34, s35\ns_lshr_b32 s35, s28, 1\ns_mul_i32 s35, s35, 160\ns_add_u32 s34, s34, s35")
    A("s_add_u32 s16, s48, s34\ns_addc_u32 s17, s49, 0\ns_sub_u32 s18, 3932160, s34\ns_mov_b32 s19, 0x20000")
    A("s_lshl_b32 s52, s28, 16\ns_lshl_b32 s35, s20, 10\ns_add_u32 s52, s52, s35")
    stamp(2)
    A("s_waitcnt vmcnt(0)")
    A("s_barrier")
    stamp(2)
    signal("s100", "s42")
    poll("s100", "s58", "s42", "0x100010")
    A("s_barrier")
    stamp(2)
    A("s_cmp_eq_u32 s20, 3\ns_cbranch_scc1 L_end")
    for nu in range(5):
        for src in range(4):
            A(f"s_add_u32 s55, s52, {src*16384 + nu*3072}")
            A(f"buffer_load_dwordx4 {vr(40 + 16*nu + 4*src)}, v32, s[12:15], s55 offen {cfg.pld}")
    A("s_mov_b32 s55, 40960")
    A("s_mov_b32 s34, 0xffff0000")
    for nu in range(5):
        A(f"s_waitcnt vmcnt({16 - 4*nu + 2*nu})")
        b = 40 + 16*nu; lo = 128;
        for k in range(16): A(f"v_lshlrev_b32 v{lo+k}, 16, v{b+k}")
        for k in range(16): A(f"v_and_b32 v{b+k}, s34, v{b+k}")
        for base in (lo, b):
            for z in range(2):
                A(f"v_pk_add_f32 v[{base+2*z}:{base+2*z+1}], v[{base+2*z}:{base+2*z+1}], v[{base+4+2*z}:{base+5+2*z}]")
                A(f"v_pk_add_f32 v[{base+8+2*z}:{base+9+2*z}], v[{base+8+2*z}:{base+9+2*z}], v[{base+12+2*z}:{base+13+2*z}]")
        for base in (lo, b):
            for z in range(2):
                A(f"v_pk_add_f32 v[{base+2*z}:{base+2*z+1}], v[{base+2*z}:{base+2*z+1}], v[{base+8+2*z}:{base+9+2*z}]")
        for z in range(4): A(f"v_cvt_pk_bf16_f32 v{b+4+z}, v{lo+z}, v{b+z}")
        A(f"buffer_store_dwordx2 {vr(b+4, 2)}, v34, s[16:19], 0 offen offset:{nu*32}")
        A(f"buffer_store_dwordx2 {vr(b+6, 2)}, v34, s[16:19], s55 offen offset:{nu*32}")
    stamp.finish()
    A("L_end:\ns_endpgm")

    A("L_fallback:")
    A("s_waitcnt vmcnt(0) lgkmcnt(0)")
    A("s_mov_b32 s4, s36\ns_mov_b32 s5, s37\ns_mov_b32 s6, 0x40000\ns_mov_b32 s7, 0x20000")
    A("s_mov_b32 s8, s38\ns_mov_b32 s9, s39\ns_mov_b32 s10, 0x40000\ns_mov_b32 s11, 0x20000")
    A("s_lshl_b32 s52, s20, 13\ns_add_u32 s52, s52, 131072")
    A("v_xor_b32 v58, v3, v4")
    A("v_lshlrev_b32 v59, 1, v4\nv_xor_b32 v59, v3, v59")
    A("v_lshlrev_b32 v60, 8, v4")
    for n in range(4):
        A(f"v_xor_b32 v61, {4*n}, v58")
        A(f"v_lshl_add_u32 v{40+n}, v61, 4, v60")
    for n in range(2):
        A(f"v_xor_b32 v61, {8*n}, v59")
        A(f"v_lshl_add_u32 v{44+n}, v61, 4, v60")
    A("s_sub_u32 s34, s52, s46")
    for c in range(4): A(f"v_add_u32 v{20+c}, s34, v{20+c}")
    A("s_sub_u32 s34, s52, s47")
    for dt in range(8): A(f"v_add_u32 v{24+dt}, s34, v{24+dt}")
    for i in range(192): A(f"v_accvgpr_write_b32 a{i}, 0")
    for k in range(24): A(f"v_mov_b32 v{L+k}, 0")
    A("s_mov_b32 s60, 0")
    A("L_fb_loop:")
    for isv in range(2):
        for n in range(8):
            A(f"s_add_u32 m0, s52, {n*1024}")
            A(f"s_add_u32 s55, s60, {n*1024}")
            A(f"buffer_load_dwordx4 v{(44 + (n & 1)) if isv else (40 + (n & 3))}, s[{8 if isv else 4}:{11 if isv else 7}], s55 offen lds")
        A("s_waitcnt vmcnt(0)")
        if isv:
            for dt in range(8):
                for e in range(2): A(v_read(0, dt, e))
        else:
            for kt in range(2):
                for c in range(4): A(k_read(0, kt, c))
        A("s_waitcnt lgkmcnt(0)")
    R0, R1 = 52, 53
    for t in range(3):
        for m in qk_mfmas(t, 0): A(m)
        A("s_nop 7")
        for Tl in range(2):
            T = 2*t + Tl; s0 = S[0] + 8*Tl
            A(f"v_max3_f32 v{R0}, v{s0}, v{s0+1}, v{s0+2}")
            A(f"v_max3_f32 v{R0}, v{R0}, v{s0+3}, v{s0+4}")
            A(f"v_max3_f32 v{R0}, v{R0}, v{s0+5}, v{s0+6}")
            A(f"v_max3_f32 v{R0}, v{R0}, v{s0+7}, 0")
            A(f"v_mov_b32 v{R1}, v{R0}\ns_nop 1\nv_permlane16_swap_b32 v{R0}, v{R1}\nv_max_f32 v{R0}, v{R0}, v{R1}")
            A(f"v_mov_b32 v{R1}, v{R0}\ns_nop 1\nv_permlane32_swap_b32 v{R0}, v{R1}\nv_max_f32 v{R0}, v{R0}, v{R1}")
            A(f"v_exp_f32 v{R1}, -v{R0}")
            for k in range(8): A(f"v_sub_f32 v{s0+k}, v{s0+k}, v{R0}")
            for k in range(4): A(f"v_sub_f32 v{NEGM+4*T+k}, v{NEGM+4*T+k}, v{R0}")
            for k in range(4): A(f"v_mul_f32 v{L+4*T+k}, v{L+4*T+k}, v{R1}")
            for k in range(0, 32, 4):
                for q in range(4): A(f"v_accvgpr_read_b32 v{54+q}, a{32*T + k + q}")
                for q in range(4): A(f"v_mul_f32 v{54+q}, v{54+q}, v{R1}")
                for q in range(4): A(f"v_accvgpr_write_b32 a{32*T + k + q}, v{54+q}")
        for e in range(16): A(EX(0, e))
        A("s_nop 0")
        for k in range(8): A(CV(0, k))
        A("s_nop 1")
        for m in pv_mfmas(t, 0): A(m)
    A("s_add_u32 s60, s60, 8192\ns_cmp_lt_u32 s60, 0x40000\ns_cbranch_scc1 L_fb_loop")
    A("s_nop 7")
    A("s_branch L_epi")

def gen(cfg):
    A = Asm()
    A("; @launch grid=(256,1,1) block=(256,1,1) lds=163840")
    A('.amdgcn_target "amdgcn-amd-amdhsa--gfx950"\n.text')
    gen_kernel(A, cfg)
    A('.section .rodata,"a"\n.p2align 6')
    A(f".amdhsa_kernel {NAME}_kernel\n  .amdhsa_next_free_vgpr 512\n  .amdhsa_next_free_sgpr 102\n"
      "  .amdhsa_accum_offset 256\n  .amdhsa_group_segment_fixed_size 0\n  .amdhsa_kernarg_size 104\n"
      "  .amdhsa_user_sgpr_count 2\n  .amdhsa_user_sgpr_kernarg_segment_ptr 1\n"
      "  .amdhsa_system_sgpr_workgroup_id_x 1\n.end_amdhsa_kernel")
    return A.text()

if __name__ == "__main__":
    cfg = Cfg()
    for a in sys.argv[2:]:
        k, v = a.split("=")
        old = getattr(cfg, k)
        setattr(cfg, k, type(old)(int(v)) if isinstance(old, (bool, int)) else v.replace('+', ' '))
    open(sys.argv[1], "w").write(gen(cfg))
```

```python
import sys, struct, math
NAME = "concat_heads__mha_block_cached__gqa_block_cached__near_ridge"
def f32bits(x): return struct.unpack("<I", struct.pack("<f", x))[0]

class Cfg:
    stamps = 0
    kv_flags = "nt"; xld = ''; wqld = ''; pfl = 'nt'
    ost = 'sc1'; old = 'sc1'; wold = ''; pst = 'sc1'; pld = 'sc1'; wopfl = ''; outst = ''
    wopf = 4
    force_fb = False
    thr_log2 = 40
    cpf = 1
    xwpf = 0
    qchain = 1
    qdsp = 3
    rot = 2
    rotd = 16
    wrot = 0
    wsg = 7
    acq = 0
    psleep = 2
    rescue = 64
    lag = 8
    qrot = 0
    ramp = 0
    dpos = -5
    wpat = '45554555'
    win = 1
    xp = 0
    ssk = 0
    ss0 = 0
    ssr = 0
    ssn = 1
    sparse1 = 0
    wlate = 0
    wmode = 0
    stride = 1
    kvpf = 0
    kvpfl = ''
    kvpf0 = 0
    kvpf1 = 7
    pat = 3
    sigstep = 1
    no_dma = False; no_bar = False; q_nodma = False

class Asm:
    def __init__(s): s.l = []; s.vm = []
    def __call__(s, x): s.l.append(x)
    def vmem(s, x, tag): s.l.append(x); s.vm.append(tag)
    def vm_after(s, tags):
        last = -1
        for i, t in enumerate(s.vm):
            if t in tags: last = i
        assert last >= 0, tags
        return min(63, len(s.vm) - 1 - last)
    def emit(s, items):
        for it in items:
            if isinstance(it, tuple): s.vmem(it[0], it[1])
            elif callable(it): it()
            else: s(it)
    def text(s): return "\n".join(s.l) + "\n"

def mf(d, a, b, c): return f"v_mfma_f32_16x16x32_bf16 {d}, {a}, {b}, {c}"
def vr(b, n=4): return f"v[{b}:{b+n-1}]" if n > 1 else f"v{b}"
def ar(b, n=4): return f"a[{b}:{b+n-1}]" if n > 1 else f"a{b}"
STAMP_BASE = 64 << 20
PBASE = 32 << 20
MBOX = 30 << 20

class Stamper:
    def __init__(s, A, cfg): s.A = A; s.cfg = cfg; s.n = 0
    def __call__(s, mode=15):
        if s.cfg.stamps & mode:
            s.A(f"s_memrealtime s[{64+4*s.n}:{65+4*s.n}]\ns_memtime s[{66+4*s.n}:{67+4*s.n}]"); s.n += 1
    def finish(s):
        A = s.A
        if not s.cfg.stamps: return
        A("s_waitcnt vmcnt(0)")
        s(31)
        assert s.n <= 7
        A("s_waitcnt lgkmcnt(0)")
        A(f"s_add_u32 s44, s44, {STAMP_BASE}\ns_addc_u32 s45, s45, 0\ns_mov_b32 s46, 0x100000\ns_mov_b32 s47, 0x20000")
        A("s_lshl_b32 s34, s2, 2\ns_add_u32 s34, s34, s20\ns_lshl_b32 s34, s34, 6")
        A("v_mov_b32 v1, s34")
        A(f"v_mov_b32 v2, {s.n}\nv_mov_b32 v3, s59\nbuffer_store_dwordx2 v[2:3], v1, s[44:47], 0 offen offset:56\ns_nop 1")
        for k in range(s.n):
            A(f"v_mov_b32 v2, s{64+4*k}\nv_mov_b32 v3, s{66+4*k}")
            A(f"buffer_store_dwordx2 v[2:3], v1, s[44:47], 0 offen offset:{8*k}")
            A("s_nop 1")

XBUF = [114688, 139264]
WSLOT = [2, 0, 1]

def gen_kernel(A, cfg):
    K1 = NAME + "_kernel"
    A(f".globl {K1}\n.p2align 8\n.type {K1},@function\n{K1}:")
    A("s_cmp_ge_u32 s2, 256\ns_cbranch_scc1 L_end")
    stamp = Stamper(A, cfg)
    stamp(31)
    A("s_bfe_u32 s25, s2, 0x10002")
    A("s_mul_i32 s28, s25, 40")
    A("s_add_u32 s62, s0, s28\ns_addc_u32 s63, s1, 0")
    A("s_load_dwordx4 s[36:39], s[62:63], 0")
    A("s_load_dwordx4 s[40:43], s[62:63], 16")
    A("s_load_dwordx2 s[44:45], s[0:1], 96")
    A("s_load_dwordx2 s[92:93], s[62:63], 32")
    if cfg.cpf:
        A("s_getpc_b64 s[88:89]")
        A("L_pc:")
        A("s_mov_b32 s90, L_end - L_pc\ns_mov_b32 s91, 0x20000")
        A("v_lshlrev_b32 v54, 7, v0")
        A.vmem("buffer_load_dword v56, v54, s[88:91], 0 offen", "CPF")
    A("s_lshr_b32 s24, s2, 3")
    A("s_and_b32 s28, s2, 3")
    A("s_and_b32 s23, s24, 3")
    A("s_lshl_b32 s26, s28, 2\ns_add_u32 s26, s26, s23")
    A("s_lshr_b32 s27, s24, 2")
    A("v_lshrrev_b32 v1, 6, v0")
    A("v_and_b32 v2, 63, v0")
    A("v_readfirstlane_b32 s20, v1")
    A("v_and_b32 v3, 15, v2\nv_lshrrev_b32 v4, 4, v2")
    A("v_lshrrev_b32 v10, 3, v2\nv_and_b32 v11, 7, v2")
    A("v_xor_b32 v13, v11, v4")
    A("v_mul_u32_u24 v14, 1280, v10")
    A("v_lshl_add_u32 v58, v13, 4, v14")
    A("v_xor_b32 v13, 4, v13")
    A("v_lshl_add_u32 v59, v13, 4, v14")
    A("v_add_u32 v59, 9216, v59")
    A("v_add_u32 v60, 18432, v58\nv_add_u32 v61, 18432, v59")
    A("v_lshlrev_b32 v10, 2, v4\nv_xor_b32 v10, v3, v10")
    A("v_lshlrev_b32 v11, 13, v4")
    A("v_lshl_add_u32 v6, v10, 4, v11")
    for n in range(1, 4): A(f"v_add_u32 v{6+n}, {n*31744}, v6")
    A("s_lshr_b32 s21, s20, 1\ns_and_b32 s22, s20, 1")
    A("s_lshl_b32 s29, s26, 1\ns_add_u32 s29, s29, s21")
    A("s_lshl_b32 s46, s21, 16")
    A("s_mul_i32 s48, s20, 6144")
    A("s_lshl_b32 s54, s22, 13\ns_add_u32 s54, s54, s46")
    A("s_mul_i32 s34, s27, 245760\ns_mul_i32 s49, s20, 61440")
    A("s_lshl_b32 s35, s29, 8\ns_lshl_b32 s53, s22, 18")
    A("s_waitcnt lgkmcnt(0)")
    A("s_add_u32 s4, s36, s34\ns_addc_u32 s5, s37, 0\ns_mov_b32 s6, 245760\ns_mov_b32 s7, 0x20000")
    A("s_add_u32 s8, s42, s35\ns_addc_u32 s9, s43, 0\ns_sub_u32 s10, 5242880, s35\ns_mov_b32 s11, 0x20000")
    if cfg.qrot:
        A("s_mul_i32 s34, s27, 5\ns_mul_i32 s35, s23, 10\ns_add_u32 s34, s34, s35\ns_lshr_b32 s34, s34, 2")
        A("s_cmp_ge_u32 s34, 10\ns_cselect_b32 s35, 10, 0\ns_sub_u32 s34, s34, s35")
    else: A("s_mov_b32 s34, 0")
    A("s_lshl_b32 s50, s34, 7\ns_add_u32 s50, s50, s49\ns_add_u32 s96, s49, 1280")
    A("s_lshl_b32 s51, s34, 19\ns_add_u32 s51, s51, s53\ns_add_u32 s97, s53, 5242880")
    def dma_x(xi):
        r = []
        for n in range(6):
            if n % 4 == 0:
                r += [f"s_add_u32 m0, s48, {XBUF[xi % 2] + n*1024}", f"s_add_u32 s55, s50, {n*10240}"]
            r.append((f"buffer_load_dwordx4 v{58 + (n & 3)}, s[4:7], s55 offen offset:{(n & 3)*1024} {cfg.xld} lds", f"X{xi}"))
        r += ["s_add_u32 s50, s50, 128", "s_cmp_eq_u32 s50, s96\ns_cselect_b32 s50, s49, s50"]
        return r
    def dma_w(sg):
        r = []
        for n in range(8):
            if n % 4 == 0:
                r += [f"s_add_u32 m0, s54, {WSLOT[sg % 3]*16384 + n*1024}", f"s_add_u32 s55, s51, {n*4*8192}"]
            r.append((f"buffer_load_dwordx4 v{6 + (n & 3)}, s[8:11], s55 offen offset:{(n & 3)*1024} {cfg.wqld} lds", f"W{sg}"))
        r += ["s_add_u32 s51, s51, 0x80000", "s_cmp_eq_u32 s51, s97\ns_cselect_b32 s51, s53, s51"]
        return r
    def dma_kv(step, nmax=8):
        r = []
        for n in range(nmax):
            if n % 4 == 0:
                r += [f"s_add_u32 m0, s54, {(step % 4)*16384 + n*1024}", "s_and_b32 s55, s30, 0x3ffff", "s_add_u32 s30, s30, s101" if n else "s_add_u32 s30, s30, 4096"]
            r.append((f"buffer_load_dwordx4 v{16 + (n & 3)}, s[12:15], s55 offen offset:{(n & 3)*1024} {cfg.kv_flags} lds", f"KV{step}"))
        return r
    A.emit(dma_x(0)); A.emit(dma_w(0))
    A("s_lshl_b32 s34, s27, 5\ns_add_u32 s34, s34, s29\ns_lshl_b32 s34, s34, 18")
    A("s_add_u32 s36, s38, s34\ns_addc_u32 s37, s39, 0")
    A("s_add_u32 s38, s40, s34\ns_addc_u32 s39, s41, 0")
    A("s_cmp_eq_u32 s22, 1")
    A("s_cselect_b32 s12, s38, s36\ns_cselect_b32 s13, s39, s37")
    A("s_mov_b32 s14, 0x40000\ns_mov_b32 s15, 0x20000")
    A("s_cselect_b64 s[32:33], -1, 0")
    A("v_xor_b32 v11, v3, v4")
    A("v_lshlrev_b32 v10, 1, v4\nv_xor_b32 v10, v3, v10")
    A("v_lshlrev_b32 v12, 8, v4")
    for n in range(4):
        A(f"v_xor_b32 v13, {4*n}, v11")
        A(f"v_xor_b32 v14, {8*(n&1)}, v10")
        A("v_cndmask_b32 v13, v13, v14, s[32:33]")
        A(f"v_lshl_add_u32 v{16+n}, v13, 4, v12")
    A("v_lshlrev_b32 v12, 8, v3\nv_add_u32 v12, s46, v12")
    for c in range(4):
        A(f"v_xor_b32 v13, {4*c}, v11")
        A(f"v_lshl_add_u32 v{20+c}, v13, 4, v12")
    A("v_lshrrev_b32 v10, 2, v3\nv_lshl_add_u32 v11, v4, 2, v10")
    A("v_and_b32 v12, 7, v11")
    A("v_lshlrev_b32 v11, 8, v11")
    A("v_and_b32 v13, 3, v3\nv_lshl_add_u32 v11, v13, 3, v11")
    A("s_add_u32 s47, s46, 8192")
    A("v_add_u32 v11, s47, v11")
    for dt in range(8):
        A(f"v_xor_b32 v14, {dt}, v12")
        A(f"v_lshl_add_u32 v{24+dt}, v14, 5, v11")
    A("v_lshlrev_b32 v32, 4, v2\nv_add_u32 v33, 4096, v32")
    A(f"s_mul_i32 s34, s22, 12288\ns_add_u32 s34, s34, {XBUF[0]}")
    A("v_lshrrev_b32 v11, 1, v3\nv_xor_b32 v11, v4, v11")
    A("v_lshlrev_b32 v12, 7, v3\nv_add_u32 v12, s34, v12")
    for s in range(2):
        A(f"v_xor_b32 v14, {4*s}, v11")
        A(f"v_lshl_add_u32 v{52+s}, v14, 4, v12")
    A("v_lshl_add_u32 v11, v4, 3, v10\nv_lshlrev_b32 v11, 8, v11")
    A("v_lshl_add_u32 v11, v13, 4, v11")
    A("v_add_u32 v11, s46, v11")
    for c in range(4):
        A(f"v_xor_b32 v14, {c}, v10")
        A(f"v_lshl_add_u32 v{40+c}, v14, 6, v11")
    if cfg.kvpf:
        lam = cfg.kvpf; sh = lam.bit_length() - 1
        A(f"v_lshrrev_b32 v55, {sh}, v2\nv_lshlrev_b32 v55, 13, v55\nv_and_b32 v14, {lam-1}, v2\nv_lshl_add_u32 v55, v14, 7, v55")
        npf = lam // 2
        kvpf_list = [[f"s_mov_b32 s50, {k*(64//lam)*8192}", (f"buffer_load_dword v56, v55, s[12:15], s50 offen {cfg.kvpfl}", "PF")] for k in range(npf)]
        nsl = cfg.kvpf1 - cfg.kvpf0 + 1
    if cfg.sparse1:
        A("v_and_b32 v14, 3, v2\nv_cmp_eq_u32 vcc, 0, v14\nv_mov_b32 v14, 0x3f803f80\ns_nop 0")
        for k in range(4): A(f"v_cndmask_b32 v{48+k}, 0, v14, vcc")
    else:
        for k in range(4): A(f"v_mov_b32 v{48+k}, 0x3f803f80")
    A("v_lshl_add_u32 v45, v4, 4, s46")
    cs = f32bits(128 ** -0.5 * math.log2(math.e))
    A(f"v_mov_b32 v46, 0x{cs:08x}\nv_mov_b32 v47, 0x{cs:08x}")
    A(f"s_mov_b32 s31, 0x{f32bits(2.0 ** cfg.thr_log2):08x}")
    A("s_lshl_b32 s40, s25, 3\ns_add_u32 s40, s40, s27")
    A("s_lshl_b32 s34, s40, 5\ns_add_u32 s34, s34, s29\ns_lshl_b32 s34, s34, 1\ns_add_u32 s34, s34, s22\ns_mul_i32 s34, s34, 24576")
    A("s_add_u32 s16, s44, s34\ns_addc_u32 s17, s45, 0\ns_movk_i32 s18, 0x6000\ns_mov_b32 s19, 0x20000")
    A("s_mov_b32 s59, 0")
    if cfg.rot:
        if cfg.rot == 1:
            A("s_lshl_b32 s30, s2, 1\ns_add_u32 s30, s30, s21\ns_mul_i32 s34, s30, 0x9E3779B1\ns_lshr_b32 s30, s34, 27\ns_lshl_b32 s30, s30, 13")
        else:
            A(f"s_add_u32 s30, s2, 1\ns_mul_i32 s34, s30, 0x9E3779B1\ns_lshr_b32 s30, s34, 27\ns_mul_i32 s35, s21, {cfg.rotd}\ns_add_u32 s30, s30, s35\ns_lshl_b32 s30, s30, 13")
        if cfg.stride: A("s_bfe_u32 s101, s34, 0x40017\ns_lshl_b32 s101, s101, 14\ns_add_u32 s101, s101, 4096")
        else: A("s_movk_i32 s101, 0x1000")
    else:
        A("s_mov_b32 s30, 0\ns_movk_i32 s101, 0x1000")
    if cfg.cpf:
        A("s_mov_b32 s34, 0x8000")
        A.vmem("buffer_load_dword v56, v54, s[88:91], s34 offen", "CPF")
    if cfg.wmode == 3:
        A("s_lshl_b32 s34, s26, 3\ns_add_u32 s34, s34, s27\ns_mul_i32 s34, s34, 40960")
        A("s_add_u32 s88, s92, s34\ns_addc_u32 s89, s93, 0\ns_mov_b32 s90, 40960\ns_mov_b32 s91, 0x20000")
        A("v_add_u32 v55, 0x8000, v54")
    A.emit(dma_x(1)); A.emit(dma_w(1))

    ACC = 64
    def acc(T, dt): return ACC + 32 * T + 4 * dt
    def fa(dt, s): return 80 + 8 * dt + 4 * s
    def fb(p, T, s): return (144 if p == 0 else 192) + 8 * T + 4 * s
    def qa_reads(sg, dt):
        c, e = dt >> 1, dt & 1
        return [f"ds_read_b64_tr_b16 {ar(fa(dt, s) + 2*f, 2)}, v{40+c} offset:{WSLOT[sg % 3]*16384 + s*8192 + f*1024 + 8*e}"
                for s in range(2) for f in range(2)]
    def qb_read(sg, T, s):
        return f"ds_read_b128 {ar(fb(sg % 2, T, s))}, v{52 + s} offset:{(sg % 2)*24576 + T*2048}"
    A(f"s_waitcnt vmcnt({A.vm_after(['X0', 'W0'])})")
    A("s_barrier")
    for T in range(6):
        for s in range(2): A(qb_read(0, T, s))
    for dt in range(8):
        for r in qa_reads(0, dt): A(r)
    fill = [f"v_accvgpr_write_b32 a{i}, 0" for i in range(80)]
    pend = dma_w(2)
    for sg in range(10):
        last = sg == 9
        slots = [[] for _ in range(96)]
        if not last:
            need = [f"W{sg+1}", f"X{sg+1}"]
            slots[10] = ["WAIT"]; slots[11] = ["BAR"]
            for dt in range(8):
                r = qa_reads(sg + 1, dt)
                g0 = 12 * dt + 11 + (1 if dt == 0 else 0)
                if dt == 7: slots[95] += r
                else: slots[g0] += r[:2]; slots[g0 + 1] += r[2:]
            for T in range(6): slots[14 + T] += [qb_read(sg + 1, T, 0), qb_read(sg + 1, T, 1)]
        else:
            fill += [f"v_accvgpr_write_b32 a{i}, 0" for i in range(144, 192)]
            for n in range(5):
                fill += [f"v_add_u32 v14, {64*n}, v2", "v_mul_u32_u24 v15, 3277, v14", "v_lshrrev_b32 v15, 16, v15",
                         "v_mul_u32_u24 v34, 20, v15", "v_sub_u32 v14, v14, v34", "v_bfe_u32 v34, v15, 2, 1", "v_lshlrev_b32 v34, 1, v34",
                         "v_xor_b32 v14, v14, v34", "v_mul_u32_u24 v15, 1280, v15", f"v_lshl_add_u32 v{5+n}, v14, 4, v15"]
                if 0 < n < 4: fill.append(f"v_subrev_u32 v{5+n}, {1024*n}, v{5+n}")
        A("s_waitcnt lgkmcnt(15)")
        order = [(T, s) for T in range(6) for s in range(2)] if cfg.qchain else [(T, s) for s in range(2) for T in range(6)]
        g = 0
        for dt in range(8):
            for T, s in order:
                d = vr(acc(T, dt))
                A(mf(d, ar(fa(dt, s)), ar(fb(sg % 2, T, s)), "0" if sg == 0 and s == 0 else d))
                used = 0
                for x in slots[g]:
                    if x == "WAIT": A(f"s_waitcnt vmcnt({A.vm_after(need)}) lgkmcnt(0)"); used = 2
                    elif x == "BAR":
                        A("s_barrier"); used = 2
                        if sg + 2 < 10: pend += dma_x(sg + 2)
                        if cfg.kvpf and cfg.kvpf0 <= sg <= cfg.kvpf1:
                            r = sg - cfg.kvpf0
                            for k in range(r * npf // nsl, (r + 1) * npf // nsl): pend += kvpf_list[k]
                        if sg + 3 < 10: pend += dma_w(sg + 3)
                        if cfg.wmode == 3 and sg == cfg.wsg:
                            pend += [(f"buffer_load_dword v56, v54, s[88:91], 0 offen {cfg.wopfl}", "KVPF"), (f"buffer_load_dword v56, v55, s[88:91], 0 offen {cfg.wopfl}", "KVPF")]
                        if sg == 7: pend += dma_kv(0)
                        if sg == 8: pend += dma_kv(1)
                    else: A(x); used = 2
                if last and g == 11: A("s_waitcnt lgkmcnt(0)")
                if last and g % 12 == 11 and g < 95:
                    fill += [f"v_accvgpr_write_b32 a{i}, 0" for i in range(fa(dt, 0), fa(dt, 0) + 8)]
                if not used and pend and (g >= 20 or g < 10):
                    if isinstance(pend[0], str): A(pend.pop(0))
                    elif g % cfg.qdsp == 0:
                        it = pend.pop(0); used = 2
                        if cfg.q_nodma and not it[1].startswith("KV"): A.vm.append(it[1])
                        else: A.vmem(*it)
                if not used:
                    for _ in range(2):
                        if fill: A(fill.pop(0))
                g += 1
    assert not pend, len(pend)
    fill += [f"v_accvgpr_write_b32 a{i}, 0" for i in range(fa(7, 0), fa(7, 0) + 8)]
    A("s_barrier")
    stamp(1)
    A("s_load_dwordx4 s[48:51], s[0:1], 80")
    A("s_lshl_b32 s41, s40, 2\ns_add_u32 s42, s41, s23\ns_add_u32 s41, s41, s28")
    A(f"s_add_u32 s8, s44, {MBOX}\ns_addc_u32 s9, s45, 0\ns_mov_b32 s10, 0x8000\ns_mov_b32 s11, 0x20000")
    A("s_lshl_b32 s99, s41, 8\ns_lshl_b32 s100, s42, 8\ns_add_u32 s100, s100, 0x4000")
    A("v_mov_b32 v57, 0")
    A.vmem("buffer_load_dword v62, v57, s[8:11], s99 offen sc1", "SNAP")
    A.vmem("buffer_load_dword v63, v57, s[8:11], s100 offen sc1", "SNAP")
    for z in fill: A(z)
    for k in range(96):
        A(f"v_pk_mul_f32 v[{ACC+2*k}:{ACC+2*k+1}], v[{ACC+2*k}:{ACC+2*k+1}], v[46:47]")
        if k >= 1: A(f"v_cvt_pk_bf16_f32 v{ACC+k-1}, v{ACC+2*k-2}, v{ACC+2*k-1}")
    A(f"v_cvt_pk_bf16_f32 v{ACC+95}, v{ACC+190}, v{ACC+191}")
    def qf(T, c): return ACC + 16 * T + 4 * c
    A("s_waitcnt lgkmcnt(0)")

    S = [160, 176]; P = [192, 200]; NEGM = 208; L = 232; ONES = 48
    KF = 192; VF = 224
    def O(T, dt): return 32 * T + 4 * dt
    def k_read(st, kt, c): return f"ds_read_b128 {ar(KF + 16*kt + 4*c)}, v{20+c} offset:{st*16384 + kt*4096}"
    def v_read(st, dt, e): return f"ds_read_b64_tr_b16 {ar(VF + 4*dt + 2*e, 2)}, v{24+dt} offset:{st*16384 + e*4096}"
    def qk_mfmas(t, par):
        r = []
        for Tl in range(2):
            T = 2*t + Tl
            for kt in range(2):
                d = vr(S[par] + 8*Tl + 4*kt)
                for c in range(4):
                    r.append(mf(d, ar(KF + 16*kt + 4*c), vr(qf(T, c)), vr(NEGM + 4*T) if c == 0 else d))
        return r
    def pv_mfmas(t, par):
        r = []
        for Tl in range(2):
            T = 2*t + Tl
            for dt in range(8):
                r.append(mf(ar(O(T, dt)), ar(VF + 4*dt), vr(P[par] + 4*Tl), ar(O(T, dt))))
            r.append(mf(vr(L + 4*T), vr(ONES), vr(P[par] + 4*Tl), vr(L + 4*T)))
        return r
    def EX(par, e): return f"v_exp_f32 v{S[par]+e}, v{S[par]+e}" if not cfg.xp & 1 else "s_nop 1"
    def CV(par, k): return f"v_cvt_pk_bf16_f32 v{P[par]+k}, v{S[par]+2*k}, v{S[par]+2*k+1}" if not cfg.xp & 2 else f"v_mov_b32 v{P[par]+k}, 0x3f803f80"
    A(f"s_waitcnt vmcnt({A.vm_after(['KV0'])})")
    A("s_barrier")
    for c in range(4): A(f"ds_read_b128 {vr(S[1] + 4*c)}, v45 offset:{64*c}")
    for kt in range(2):
        for c in range(4): A(k_read(0, kt, c))
    for k in range(24): A(f"v_mov_b32 v{L+k}, 0")
    A("s_waitcnt lgkmcnt(8)")
    for k in range(16): A(f"v_xor_b32 v{S[1]+k}, 0x80008000, v{S[1]+k}")
    A("s_nop 1")
    NST = (5 if cfg.win else 8)
    qend = 8 + cfg.lag + NST
    assert qend >= 16
    kv2 = dma_kv(2, min(8, qend - 16)); kv3 = dma_kv(3, max(0, qend - 24))
    gam = "v14"
    misc = ["v_and_b32 v14, 1, v4", "v_xor_b32 v15, 1, v14",
            "v_lshrrev_b32 v34, 2, v3", "v_lshl_add_u32 v34, v4, 2, v34", "v_mul_u32_u24 v34, 320, v34",
            "v_and_b32 v35, 3, v3", "v_lshl_add_u32 v34, v35, 3, v34", "v_add_u32 v34, s46, v34",
            "v_lshl_add_u32 v36, v14, 5, v34", "v_lshl_add_u32 v37, v15, 5, v34",
            "v_add_u32 v38, 128, v37", "v_add_u32 v39, 192, v36",
            "MASK",
            "v_cndmask_b32 v10, v36, v38, s[32:33]", "v_cndmask_b32 v11, v37, v39, s[32:33]",
            "v_cndmask_b32 v12, v38, v36, s[32:33]", "v_cndmask_b32 v13, v39, v37, s[32:33]",
            "v_mul_u32_u24 v34, 2560, v3", "v_lshl_add_u32 v34, v4, 3, v34",
            "v_lshlrev_b32 v35, 7, v0", "v_add_u32 v36, 0x8000, v35"]
    if cfg.wmode == 1:
        misc = misc[:-2] + ["v_mul_u32_u24 v35, 12, v1", "v_add_u32 v35, v35, v2", "v_lshlrev_b32 v35, 7, v35",
            "v_cmp_gt_u32 vcc, 12, v2", "v_mov_b32 v36, 0x100000", "s_nop 0", "v_cndmask_b32 v35, v36, v35, vcc", "s_mov_b32 s60, 0"]
    def misc_step():
        for _ in range(2):
            if misc:
                m = misc.pop(0)
                if m == "MASK": A("s_cmp_eq_u32 s21, 1\ns_cselect_b64 s[32:33], -1, 0")
                else: A(m)
    for T in range(6):
        for c in range(4):
            d = vr(NEGM + 4*T)
            A(mf(d, vr(S[1] + 4*c), vr(qf(T, c)), "0" if c == 0 else d))
            if kv2 and (isinstance(kv2[0], str) or c % 2 == 0): A.emit([kv2.pop(0)])
            else: misc_step()
    assert not kv2
    A("s_waitcnt lgkmcnt(0)")
    for k, m in enumerate(qk_mfmas(0, 0)):
        A(m)
        if kv3 and (isinstance(kv3[0], str) or k % 2 == 0): A.emit([kv3.pop(0)])
        else: misc_step()
    A.emit(kv3)
    while misc: misc_step()
    A("s_lshl_b32 s34, s26, 3\ns_add_u32 s34, s34, s27\ns_mul_i32 s34, s34, 40960")
    A("s_add_u32 s88, s92, s34\ns_addc_u32 s89, s93, 0\ns_mov_b32 s90, 40960\ns_mov_b32 s91, 0x20000")
    A("s_lshl_b32 s34, s28, 10\ns_lshl_b32 s35, s21, 7\ns_add_u32 s34, s34, s35\ns_lshl_b32 s35, s22, 4\ns_add_u32 s34, s34, s35")
    A("s_mul_i32 s34, s34, 1280\ns_mul_i32 s35, s23, 320\ns_add_u32 s34, s34, s35")
    A("s_add_u32 s92, s92, s34\ns_addc_u32 s93, s93, 0\ns_sub_u32 s94, 5242880, s34\ns_mov_b32 s95, 0x20000")
    if cfg.wmode == 2:
        A(f"buffer_load_dword v39, v35, s[88:91], 0 offen {cfg.wopfl}")
        A(f"buffer_load_dword v39, v36, s[88:91], 0 offen {cfg.wopfl}")
    for e in range(16): A(EX(0, e))
    for k in range(4): A(CV(0, k))
    A("s_mul_i32 s96, s23, 327680")
    A("s_mov_b32 s57, 7\ns_mov_b64 vcc, -1")
    if cfg.ssr:
        A(f"s_mul_i32 s61, s2, 0x9E3779B1\ns_lshr_b32 s61, s61, 16\ns_mul_i32 s61, s61, {cfg.ssr}\ns_lshr_b32 s61, s61, 16\ns_add_u32 s61, s61, {cfg.ss0}\ns_bfm_b32 s61, s61, 0")
    stamp(1)
    def w2_dma(c, sreg, tag, coff=1):
        r = []
        for n in range(5):
            if n == 0: r += [f"s_add_u32 m0, s54, {c*16384}", f"s_add_u32 s55, {sreg}, {c*40960*coff}"]
            if n == 4: r += [f"s_add_u32 m0, s54, {c*16384 + 4096}", "s_nop 0"]
            r.append((f"buffer_load_dwordx4 v{5+n}, s[92:95], s55 offen offset:{(n & 3)*1024} {cfg.wold} lds", tag))
        return r
    N = cfg.lag
    rq = []
    for q in range(8*29 + cfg.lag + NST, 256):
        if q % 4 == 0:
            rq += [f"s_add_u32 m0, s54, {((q >> 3) % 4)*16384 + (q & 4)*1024}", "s_and_b32 s55, s30, 0x3ffff",
                   "s_add_u32 s30, s30, s101" if q & 4 else "s_add_u32 s30, s30, 4096"]
        rq.append((f"buffer_load_dwordx4 v{16 + (q & 3)}, s[12:15], s55 offen offset:{(q & 3)*1024} {cfg.kv_flags} lds", f"KV{q >> 3}"))
    wq = [0, 1, 2, 3]
    def body(u, last):
        t, par, j = u % 3, u % 2, u // 3
        t1, par1 = (u + 1) % 3, (u + 1) % 2
        fin = last and u == 11
        kv_here = bool(rq) and cfg.ramp
        ms = qk_mfmas(t1, par1) + pv_mfmas(t, par)
        pre = [[] for _ in range(34)]
        val = [[] for _ in range(34)]
        val[0] = [CV(par, 4), CV(par, 5)]; val[1] = [CV(par, 6), CV(par, 7)]
        for e in range(16): val[16 + e] = [EX(par1, e)]
        val[32] = [CV(par1, 0), CV(par1, 1)]; val[33] = [CV(par1, 2), CV(par1, 3)]
        jj = (28 + j) if last else j
        iv = jj if t == 2 else jj - 1
        def q_of(i): return 8 * (iv + 2) + N + i
        def live(i): return (not last) or q_of(i) < 256
        def dma(i, g):
            q = q_of(i)
            if live(i):
                pre[g].append((f"buffer_load_dwordx4 v{16 + (q & 3)}, s[12:15], s55 offen offset:{(q & 3)*1024} {cfg.kv_flags} lds", f"KV{q >> 3}"))
        stn = (j + 1) % 4
        if t == 1:
            if not last:
                if cfg.ssr:
                    pre[3] += ["s_bitcmp1_b32 s61, 0"]
                    pre[4] += [f"s_cbranch_scc0 L_ss{u}", f"s_waitcnt vmcnt({cfg.ssn})", f"L_ss{u}:"]
                    pre[7] += ["s_lshr_b32 s61, s61, 1"]
                if cfg.ssk: pre[4] += [f"s_cbranch_vccz L_ss{u}", f"s_waitcnt vmcnt({cfg.ssn})", f"L_ss{u}:"]
                pre[5].append(f"s_waitcnt vmcnt({N})")
            elif j < 3: pre[5].append(lambda: A(f"s_waitcnt vmcnt({A.vm_after([f'KV{29+j}'])})"))
            pre[6].append("s_barrier")
            if not (last and j == 3):
                for kt in range(2):
                    for c in range(4): pre[8 + 4*kt + c].append(k_read(stn, kt, c))
                pre[33].append("s_waitcnt lgkmcnt(0)")
        def inc(q): return "s_add_u32 s30, s30, s101" if q & 4 else "s_add_u32 s30, s30, 4096"
        if cfg.win and not (last and cfg.ramp):
            assert N % 4 == 0
            sites = {1: [(-1, 7, 2), (0, 0, 18), (0, 1, 30)], 2: [(0, 2, 8), (0, 3, 20), (0, 4, 31)], 0: [(-1, 5, 11), (-1, 6, 24)]}[t]
            for off, i, g in sites:
                q = 8 * (jj + off + 2) + N + i
                if last and q >= 256: continue
                kv_here = True
                if q % 4 == 0:
                    pre[g - 3].append(f"s_add_u32 m0, s54, {((q >> 3) % 4)*16384 + (q & 4)*1024}")
                    pre[g - 2].append("s_and_b32 s55, s30, 0x3ffff")
                    pre[g + 1].append(inc(q))
                w = int(cfg.wpat[i])
                pre[g - 1].append(f"s_waitcnt vmcnt({w - 1})")
                pre[g].append((f"buffer_load_dwordx4 v{16 + (q & 3)}, s[12:15], s55 offen offset:{(q & 3)*1024} {cfg.kv_flags} lds", f"KV{q >> 3}"))
        if t in (1, 2) and not (last and cfg.ramp) and not cfg.win:
            iv = jj
            g = (0 if N % 4 == 0 else 2) + cfg.dpos
            def put(gg, it):
                if t == 2 and gg >= 0: pre[gg].append(it)
                if t == 1 and gg < 0: pre[34 + gg].append(it)
            for i in range(8):
                q = 8 * (iv + 2) + N + i
                lv = (not last) or q < 256
                if q % 4 == 0:
                    if lv:
                        put(g, f"s_add_u32 m0, s54, {((q >> 3) % 4)*16384 + (q & 4)*1024}")
                        put(g + 1, "s_and_b32 s55, s30, 0x3ffff")
                        put(g + 1, inc(q))
                    g += 2
                if lv: put(g, (f"buffer_load_dwordx4 v{16 + (q & 3)}, s[12:15], s55 offen offset:{(q & 3)*1024} {cfg.kv_flags} lds", f"KV{q >> 3}"))
                g += 1 if i % 3 else 2
            assert g <= 33, g
            iv = jj if t == 2 else jj - 1
        if last and cfg.ramp and rq:
            gl = {0: list(range(10, 15)) + list(range(16, 32)), 1: [2, 3, 4, 7] + list(range(16, 32)), 2: list(range(2, 32))}[t]
            for g in gl:
                if not rq: break
                if isinstance(rq[0], tuple) and g >= 16 and g % 2: continue
                pre[g].append(rq.pop(0))
        if t == 0:
            for dt in range(8):
                pre[2 + dt] += [v_read(j % 4, dt, 0), v_read(j % 4, dt, 1)]
            pre[15].append("s_waitcnt lgkmcnt(0)")
        if last and ((not kv_here and not rq) if cfg.ramp else (not kv_here and u >= 2 + (16 - N) * 3 // 8)) and wq and wq[0] <= iv - 28 and t != 1 and u >= cfg.wlate:
            c = wq.pop(0)
            w = w2_dma(c, "s96", f"W{c}")
            gs = (0, 1, 2, 5, 8, 11, 12, 13, 14) if t == 2 else (0, 1, 10, 11, 12, 13, 16, 17, 18)
            if fin: gs = (16, 17, 18, 20, 22, 24, 25, 26, 27)
            for it, g in zip(w, gs): pre[g].append(it)
        if cfg.wmode == 1 and not last and u == 4:
            pre[7].append((f"buffer_load_dword v39, v35, s[88:91], s60 offen {cfg.wopfl}", "PF"))
            pre[16].append("s_add_u32 s60, s60, 6144")
        if cfg.wmode == 0 and cfg.wopf and last and u == cfg.wopf:
            assert t != 0
            pre[2].append((f"buffer_load_dword v39, v35, s[88:91], 0 offen {cfg.wopfl}", "PF"))
            pre[4].append((f"buffer_load_dword v39, v36, s[88:91], 0 offen {cfg.wopfl}", "PF"))
        if fin:
            for k in range(4, 8): A(CV(par, k))
        for g in range(34):
            if fin and g < 16: continue
            A(ms[g])
            x = pre[g]
            if cfg.no_dma: x = [y for y in x if not isinstance(y, tuple)]
            A.emit(x)
            if not fin:
                for y in val[g]: A(y)
    A(".p2align 6")
    A("L_loop:")
    for u in range(12): body(u, False)
    if cfg.stamps & 16:
        A("s_memrealtime s[60:61]\ns_waitcnt lgkmcnt(0)")
        A("s_cmp_lt_u32 s57, 3\ns_cbranch_scc1 L_nosh")
        A("s_mov_b32 s68, s72\ns_mov_b32 s72, s76\ns_mov_b32 s76, s80\ns_mov_b32 s80, s84\ns_mov_b32 s84, s60")
        A("L_nosh:")
        stamp.n = 6
    if cfg.ssk: A(f"s_cmp_gt_u32 s57, {8 - cfg.ssk}\ns_cselect_b64 vcc, -1, 0")
    A("s_sub_u32 s57, s57, 1\ns_cmp_lg_u32 s57, 0\ns_cbranch_scc1 L_loop")
    A.vm = [f"KV{q >> 3}" for q in range(8*28, 8*29 + N + NST)]
    stamp(8)
    for u in range(12):
        body(u, True)
        if u in (4, 8): stamp(8)
    for c in wq: A.emit(w2_dma(c, "s96", f"W{c}"))
    stamp()
    A("v_readfirstlane_b32 s56, v62\nv_readfirstlane_b32 s58, v63")
    A("s_nop 5")
    A(f"v_cmp_nge_f32 vcc, s31, v{L}")
    for T in range(1, 6):
        A(f"v_cmp_nge_f32 s[34:35], s31, v{L + 4*T}")
        A("s_or_b64 vcc, vcc, s[34:35]")
    if cfg.force_fb: A("s_branch L_fallback")
    A("s_cbranch_vccnz L_fallback")
    A("L_epi:")
    BB = 40; KEEP = 136; AF = 192
    def bfr(c, T): return BB + 24 * c + 4 * T
    def acc2(nu, T): return vr(KEEP + 24*nu + 4*T) if nu < 5 else ar(24*(nu - 5) + 4*T)
    def b_loads(c, tag):
        return [(f"buffer_load_dwordx4 {vr(bfr(c, T))}, v{32 + T//4}, s[4:7], s{88+c} offen offset:{(T % 4)*1024} {cfg.old}", tag) for T in range(6)]
    def next_tile(c):
        return ["s_lshr_b32 s32, s53, 2\ns_and_b32 s33, s53, 3",
                "s_lshl_b32 s34, s32, 3\ns_add_u32 s34, s34, s33",
                "s_mul_i32 s96, s34, 40960\ns_lshl_b32 s32, s32, 4",
                "s_or_b32 s96, s96, s98\ns_add_u32 s32, s32, s33",
                f"s_mul_i32 s32, s32, 6144\ns_add_u32 s53, s53, 1",
                f"s_or_b32 s{88+c}, s32, s98\ns_and_b32 s53, s53, 15",
                "s_cmp_eq_u32 s53, s97\ns_cselect_b32 s53, s60, s53"]
    def a_reads(c, nu):
        n5 = nu % 5
        reg = 10 + 2*(nu // 5) + (n5 & 1)
        return [f"ds_read_b64_tr_b16 {ar(AF + 4*nu + 2*e, 2)}, v{reg} offset:{c*16384 + e*8192 + 64*(n5 >> 1)}" for e in range(2)]
    for T in range(6): A(f"v_rcp_f32 v{L + 4*T}, v{L + 4*T}")
    for T in range(6): A(f"v_mov_b32 v{L + 4*T + 1}, v{L + 4*T}")
    q = 0
    for c in range(4):
        A(f"s_movk_i32 s52, {c*6144}")
        for T in range(6):
            tb = KEEP + 8 * (q % 2); ob = bfr(c, T); q += 1
            for k in range(8): A(f"v_accvgpr_read_b32 v{tb+k}, a{O(T, 2*c) + k}")
            for k in range(4): A(f"v_pk_mul_f32 v[{tb+2*k}:{tb+2*k+1}], v[{tb+2*k}:{tb+2*k+1}], v[{L+4*T}:{L+4*T+1}]")
            for k in range(4): A(f"v_cvt_pk_bf16_f32 v{ob+k}, v{tb+2*k}, v{tb+2*k+1}")
            A.vmem(f"buffer_store_dwordx4 {vr(ob)}, v{32 + T//4}, s[16:19], s52 offen offset:{(T % 4)*1024} {cfg.ost}", "OST")
        if c == 2:
            A(f"s_waitcnt vmcnt({A.vm_after(['W0'])})")
            A("s_barrier")
            for nu in range(10): A.emit(a_reads(0, nu))
    A("s_lshl_b32 s34, s40, 5\ns_lshl_b32 s35, s28, 3\ns_add_u32 s34, s34, s35\ns_add_u32 s34, s34, s21\ns_lshl_b32 s34, s34, 1\ns_add_u32 s34, s34, s22\ns_mul_i32 s34, s34, 24576")
    A(f"s_add_u32 s4, s44, s34\ns_addc_u32 s5, s45, 0\ns_mov_b32 s6, {3*98304 + 24576}\ns_mov_b32 s7, 0x20000")
    A(f"s_add_u32 s8, s44, {MBOX}\ns_addc_u32 s9, s45, 0\ns_mov_b32 s10, 0x8000\ns_mov_b32 s11, 0x20000")
    A("s_mov_b32 s36, s50\ns_mov_b32 s37, s51\ns_movk_i32 s38, 0x100\ns_mov_b32 s39, 0x20000")
    A("s_lshl_b32 s41, s41, 2")
    A("s_lshl_b32 s97, s23, 2\ns_add_u32 s60, s97, 4\ns_and_b32 s60, s60, 15\ns_mov_b32 s98, 0")
    if cfg.wrot: A("s_mul_i32 s53, s27, 3\ns_lshr_b32 s53, s53, 1\ns_add_u32 s53, s53, s60\ns_and_b32 s53, s53, 15")
    else: A("s_mov_b32 s53, s60")
    A("v_mov_b32 v14, 0\nv_mov_b32 v15, 1\nv_mov_b32 v18, 1")
    stamp(5)
    npoll = [0]
    def signal(mreg, sreg):
        k = npoll[0]; npoll[0] += 1
        A(f"s_cmp_lg_u32 s20, 0\ns_cbranch_scc1 L_sg{k}")
        A("s_mov_b64 exec, 1")
        A(f"buffer_atomic_add v18, v14, s[8:11], {mreg} offen")
        A(f"buffer_atomic_add v15, v14, s[36:39], {sreg} offen")
        A("s_mov_b64 exec, -1")
        A(f"L_sg{k}:")
    def poll(mreg, snap, sreg, field):
        k = npoll[0]; npoll[0] += 1
        A(f"s_cmp_lg_u32 s20, 0\ns_cbranch_scc1 L_pd{k}")
        A("s_mov_b64 exec, 1")
        A("s_mov_b32 s61, 0x40000")
        A(f"L_pl{k}:")
        A(f"buffer_load_dword v19, v14, s[8:11], {mreg} offen sc1")
        A("s_waitcnt vmcnt(0)")
        A("v_readfirstlane_b32 s34, v19")
        A("s_sub_u32 s61, s61, 1")
        A(f"s_sub_u32 s34, s34, {snap}")
        A(f"s_cmp_eq_u32 s34, 4\ns_cbranch_scc1 L_pg{k}")
        if cfg.stamps: A("s_add_u32 s59, s59, 1")
        A(f"s_sleep {cfg.psleep}")
        A(f"s_and_b32 s34, s61, {cfg.rescue - 1}\ns_cbranch_scc1 L_pl{k}")
        A(f"buffer_load_dword v19, v14, s[36:39], {sreg} offen sc1")
        A("s_waitcnt vmcnt(0)")
        A("v_readfirstlane_b32 s34, v19")
        A(f"s_cmp_eq_u32 s61, 0\ns_cbranch_scc1 L_pg{k}")
        A(f"s_bfe_u32 s34, s34, {field}")
        A(f"s_cmp_lt_u32 s34, 4\ns_cbranch_scc1 L_pl{k}")
        A(f"L_pg{k}:")
        A("s_mov_b64 exec, -1")
        if cfg.acq: A("buffer_inv sc1\ns_waitcnt vmcnt(0)")
        A(f"L_pd{k}:")
    def step(c, first):
        cn = (c + 1) % 4
        pre = [[] for _ in range(60)]
        for nu in range(10):
            g0 = 6*nu + 5 + (1 if nu == 0 else 0)
            pre[g0] += a_reads(cn, nu)
        seq = next_tile(c) + w2_dma(c, "s96", f"Wn{c}", 0)
        if first:
            top = "s_waitcnt lgkmcnt(15)"
            need = [f"W{c+1}" if c < 3 else "Wn0"] + (["OST"] if c == cfg.sigstep else [])
            bar = [lambda: A(f"s_waitcnt vmcnt({A.vm_after(need)}) lgkmcnt(0)")]
            if c == cfg.sigstep + 1: bar.append(lambda: poll("s99", "s56", "s41", "0x100000"))
            bar.append("s_barrier")
            if c == cfg.sigstep: bar.append(lambda: signal("s99", "s41"))
            bl = []
            if c == cfg.sigstep + 1:
                for cc in range(2, c + 1): bl += b_loads(cc - 2, f"B{cc-2}")
            elif c > cfg.sigstep + 1: bl = b_loads(c - 2, f"B{c-2}")
            seq = bl + seq if c == 3 else seq + bl
        else:
            top = "s_waitcnt vmcnt(11) lgkmcnt(15)"
            bar = ["s_waitcnt lgkmcnt(0)", "s_barrier"]
            seq += b_loads((c + 2) % 4, "B")
        pre[4] += bar[:1]; pre[5] += bar[1:]
        free = [g for g in range(7, 58) if not pre[g]]
        nv = sum(isinstance(x, tuple) for x in seq)
        sp = max(1, (len(free) - (len(seq) - nv)) // nv)
        k = 0
        for it in seq:
            pre[free[k]].append(it)
            k += sp if isinstance(it, tuple) else 1
        A(top)
        for g in range(60):
            nu, T = g // 6, g % 6
            d = acc2(nu, T)
            A(mf(d, ar(AF + 4*nu), vr(bfr(c, T)), "0" if first and c == 0 else d))
            A.emit(pre[g])
    for c in range(4):
        step(c, True)
        if c == 1: stamp(4)
    stamp(4)
    A(f"s_waitcnt vmcnt({A.vm_after(['B0'])})")
    A("s_mov_b32 s57, 3")
    A(".p2align 6")
    A("L_p2loop:")
    for c in range(4): step(c, False)
    A("s_cmp_eq_u32 s57, 2\ns_cselect_b32 s98, 0x800000, 0")
    A("s_sub_u32 s57, s57, 1\ns_cmp_lg_u32 s57, 0\ns_cbranch_scc1 L_p2loop")
    stamp()
    A("s_lshl_b32 s34, s20, 15\ns_xor_b32 s35, s34, 0x10000")
    A("v_add_u32 v16, s34, v32\nv_add_u32 v17, s35, v32")
    A(f"s_lshl_b32 s34, s42, 18\ns_add_u32 s34, s34, {PBASE}")
    A("s_add_u32 s12, s44, s34\ns_addc_u32 s13, s45, 0\ns_mov_b32 s14, 0x40000\ns_mov_b32 s15, 0x20000")
    A("s_lshl_b32 s52, s20, 2\ns_add_u32 s52, s52, s28\ns_lshl_b32 s52, s52, 14")
    A("s_lshl_b32 s42, s42, 2")
    A("v_mov_b32 v15, 0x10000")
    A("s_waitcnt vmcnt(0) lgkmcnt(0)")
    A("s_barrier")
    for k in range(30): A(f"ds_write_b128 v16, {ar(4*k)} offset:{k*1024}")
    A("s_waitcnt lgkmcnt(0)")
    A("s_barrier")
    for base, cnt in ((0, 14), (14, 16)):
        rb = 40 if base == 0 else 72
    tiles = list(range(30))
    LR = 40
    issued = 0
    def rd(k): A(f"ds_read_b128 {vr(LR + 4*(k % 24))}, v17 offset:{k*1024}")
    while issued < 14: rd(issued); issued += 1
    for m in range(15):
        A(f"s_waitcnt lgkmcnt({issued - 2*m - 2})")
        for kk in (2*m, 2*m + 1):
            r = LR + 4*(kk % 24)
            for z in range(2):
                A(f"v_pk_add_f32 v[{KEEP+4*kk+2*z}:{KEEP+4*kk+2*z+1}], v[{KEEP+4*kk+2*z}:{KEEP+4*kk+2*z+1}], v[{r+2*z}:{r+2*z+1}]")
        for _ in range(2):
            if issued < 30: rd(issued); issued += 1
        ob = KEEP + 8*m
        for z in range(4): A(f"v_cvt_pk_bf16_f32 v{ob+z}, v{ob+2*z}, v{ob+2*z+1}")
        if m == 8: A("s_add_u32 s52, s52, 8192")
        A(f"buffer_store_dwordx4 {vr(ob)}, v{32 + (m % 8)//4}, s[12:15], s52 offen offset:{(m % 4)*1024} {cfg.pst}")
    A("s_mul_i32 s34, s27, 192\ns_and_b32 s35, s28, 1\ns_mul_i32 s35, s35, 96\ns_add_u32 s34, s34, s35\ns_lshl_b32 s35, s20, 5\ns_add_u32 s34, s34, s35\ns_mul_i32 s34, s34, 2560")
    A("s_mul_i32 s35, s25, 1280\ns_add_u32 s34, s34, s35\ns_mul_i32 s35, s23, 320\ns_add_u32 s34, s34, s35\ns_lshr_b32 s35, s28, 1\ns_mul_i32 s35, s35, 160\ns_add_u32 s34, s34, s35")
    A("s_add_u32 s16, s48, s34\ns_addc_u32 s17, s49, 0\ns_sub_u32 s18, 3932160, s34\ns_mov_b32 s19, 0x20000")
    A("s_lshl_b32 s52, s28, 16\ns_lshl_b32 s35, s20, 10\ns_add_u32 s52, s52, s35")
    stamp(2)
    A("s_waitcnt vmcnt(0)")
    A("s_barrier")
    stamp(2)
    signal("s100", "s42")
    poll("s100", "s58", "s42", "0x100010")
    A("s_barrier")
    stamp(2)
    A("s_cmp_eq_u32 s20, 3\ns_cbranch_scc1 L_end")
    for nu in range(5):
        for src in range(4):
            A(f"s_add_u32 s55, s52, {src*16384 + nu*3072}")
            A(f"buffer_load_dwordx4 {vr(40 + 16*nu + 4*src)}, v32, s[12:15], s55 offen {cfg.pld}")
    A("s_mov_b32 s55, 40960")
    A("s_mov_b32 s34, 0xffff0000")
    for nu in range(5):
        A(f"s_waitcnt vmcnt({16 - 4*nu + 2*nu})")
        b = 40 + 16*nu; lo = 128;
        for k in range(16): A(f"v_lshlrev_b32 v{lo+k}, 16, v{b+k}")
        for k in range(16): A(f"v_and_b32 v{b+k}, s34, v{b+k}")
        for base in (lo, b):
            for z in range(2):
                A(f"v_pk_add_f32 v[{base+2*z}:{base+2*z+1}], v[{base+2*z}:{base+2*z+1}], v[{base+4+2*z}:{base+5+2*z}]")
                A(f"v_pk_add_f32 v[{base+8+2*z}:{base+9+2*z}], v[{base+8+2*z}:{base+9+2*z}], v[{base+12+2*z}:{base+13+2*z}]")
        for base in (lo, b):
            for z in range(2):
                A(f"v_pk_add_f32 v[{base+2*z}:{base+2*z+1}], v[{base+2*z}:{base+2*z+1}], v[{base+8+2*z}:{base+9+2*z}]")
        for z in range(4): A(f"v_cvt_pk_bf16_f32 v{b+4+z}, v{lo+z}, v{b+z}")
        A(f"buffer_store_dwordx2 {vr(b+4, 2)}, v34, s[16:19], 0 offen offset:{nu*32} {cfg.outst}")
        A(f"buffer_store_dwordx2 {vr(b+6, 2)}, v34, s[16:19], s55 offen offset:{nu*32} {cfg.outst}")
    stamp.finish()
    A("L_end:\ns_endpgm")

    A("L_fallback:")
    A("s_waitcnt vmcnt(0) lgkmcnt(0)")
    A("s_mov_b32 s4, s36\ns_mov_b32 s5, s37\ns_mov_b32 s6, 0x40000\ns_mov_b32 s7, 0x20000")
    A("s_mov_b32 s8, s38\ns_mov_b32 s9, s39\ns_mov_b32 s10, 0x40000\ns_mov_b32 s11, 0x20000")
    A("s_lshl_b32 s52, s20, 13\ns_add_u32 s52, s52, 131072")
    A("v_xor_b32 v58, v3, v4")
    A("v_lshlrev_b32 v59, 1, v4\nv_xor_b32 v59, v3, v59")
    A("v_lshlrev_b32 v60, 8, v4")
    for n in range(4):
        A(f"v_xor_b32 v61, {4*n}, v58")
        A(f"v_lshl_add_u32 v{40+n}, v61, 4, v60")
    for n in range(2):
        A(f"v_xor_b32 v61, {8*n}, v59")
        A(f"v_lshl_add_u32 v{44+n}, v61, 4, v60")
    A("s_sub_u32 s34, s52, s46")
    for c in range(4): A(f"v_add_u32 v{20+c}, s34, v{20+c}")
    A("s_sub_u32 s34, s52, s47")
    for dt in range(8): A(f"v_add_u32 v{24+dt}, s34, v{24+dt}")
    for i in range(192): A(f"v_accvgpr_write_b32 a{i}, 0")
    for k in range(24): A(f"v_mov_b32 v{L+k}, 0")
    A("s_mov_b32 s60, 0")
    A("L_fb_loop:")
    for isv in range(2):
        for n in range(8):
            A(f"s_add_u32 m0, s52, {n*1024}")
            A(f"s_add_u32 s55, s60, {n*1024}")
            A(f"buffer_load_dwordx4 v{(44 + (n & 1)) if isv else (40 + (n & 3))}, s[{8 if isv else 4}:{11 if isv else 7}], s55 offen lds")
        A("s_waitcnt vmcnt(0)")
        if isv:
            for dt in range(8):
                for e in range(2): A(v_read(0, dt, e))
        else:
            for kt in range(2):
                for c in range(4): A(k_read(0, kt, c))
        A("s_waitcnt lgkmcnt(0)")
    R0, R1 = 52, 53
    for t in range(3):
        for m in qk_mfmas(t, 0): A(m)
        A("s_nop 7")
        for Tl in range(2):
            T = 2*t + Tl; s0 = S[0] + 8*Tl
            A(f"v_max3_f32 v{R0}, v{s0}, v{s0+1}, v{s0+2}")
            A(f"v_max3_f32 v{R0}, v{R0}, v{s0+3}, v{s0+4}")
            A(f"v_max3_f32 v{R0}, v{R0}, v{s0+5}, v{s0+6}")
            A(f"v_max3_f32 v{R0}, v{R0}, v{s0+7}, 0")
            A(f"v_mov_b32 v{R1}, v{R0}\ns_nop 1\nv_permlane16_swap_b32 v{R0}, v{R1}\nv_max_f32 v{R0}, v{R0}, v{R1}")
            A(f"v_mov_b32 v{R1}, v{R0}\ns_nop 1\nv_permlane32_swap_b32 v{R0}, v{R1}\nv_max_f32 v{R0}, v{R0}, v{R1}")
            A(f"v_exp_f32 v{R1}, -v{R0}")
            for k in range(8): A(f"v_sub_f32 v{s0+k}, v{s0+k}, v{R0}")
            for k in range(4): A(f"v_sub_f32 v{NEGM+4*T+k}, v{NEGM+4*T+k}, v{R0}")
            for k in range(4): A(f"v_mul_f32 v{L+4*T+k}, v{L+4*T+k}, v{R1}")
            for k in range(0, 32, 4):
                for q in range(4): A(f"v_accvgpr_read_b32 v{54+q}, a{32*T + k + q}")
                for q in range(4): A(f"v_mul_f32 v{54+q}, v{54+q}, v{R1}")
                for q in range(4): A(f"v_accvgpr_write_b32 a{32*T + k + q}, v{54+q}")
        for e in range(16): A(EX(0, e))
        A("s_nop 0")
        for k in range(8): A(CV(0, k))
        A("s_nop 1")
        for m in pv_mfmas(t, 0): A(m)
    A("s_add_u32 s60, s60, 8192\ns_cmp_lt_u32 s60, 0x40000\ns_cbranch_scc1 L_fb_loop")
    A("s_nop 7")
    A("s_branch L_epi")

def gen(cfg):
    A = Asm()
    A("; @launch grid=(256,1,1) block=(256,1,1) lds=163840")
    A('.amdgcn_target "amdgcn-amd-amdhsa--gfx950"\n.text')
    gen_kernel(A, cfg)
    A('.section .rodata,"a"\n.p2align 6')
    A(f".amdhsa_kernel {NAME}_kernel\n  .amdhsa_next_free_vgpr 512\n  .amdhsa_next_free_sgpr 102\n"
      "  .amdhsa_accum_offset 256\n  .amdhsa_group_segment_fixed_size 0\n  .amdhsa_kernarg_size 104\n"
      "  .amdhsa_user_sgpr_count 2\n  .amdhsa_user_sgpr_kernarg_segment_ptr 1\n"
      "  .amdhsa_system_sgpr_workgroup_id_x 1\n.end_amdhsa_kernel")
    return A.text()

if __name__ == "__main__":
    cfg = Cfg()
    for a in sys.argv[2:]:
        k, v = a.split("=")
        old = getattr(cfg, k)
        setattr(cfg, k, type(old)(int(v)) if isinstance(old, (bool, int)) else v.replace('+', ' '))
    open(sys.argv[1], "w").write(gen(cfg))
```

```python
import sys, struct, math
NAME = "concat_heads__mha_block_cached__gqa_block_cached__near_ridge"
def f32bits(x): return struct.unpack("<I", struct.pack("<f", x))[0]

class Cfg:
    stamps = 0
    kv_flags = "sc1 nt"; xld = ''; wqld = ''; pfl = 'nt'
    ost = 'sc1'; old = 'sc1'; wold = ''; pst = 'sc1'; pld = 'sc1'; wopfl = ''; outst = ''
    wopf = 4
    force_fb = False
    thr_log2 = 40
    cpf = 1
    xwpf = 0
    qchain = 1
    qdsp = 3
    rot = 2
    rotd = 16
    wrot = 0
    wsg = 7
    acq = 0
    psleep = 2
    rescue = 64
    lag = 8
    qrot = 2
    cpf2 = 0
    ramp = 0
    dpos = -5
    wpat = '45454545'
    win = 1
    xp = 0
    nearly = 2
    keep = 1
    early = 0
    barg = '70,50,30,10'
    slabst = 0
    ssk = 0
    ss0 = 0
    ssr = 0
    ssn = 1
    sparse1 = 1
    pvord = 1
    wlate = 0
    wmode = 0
    stride = 1
    kvpf = 0
    kvpfl = ''
    kvpf0 = 0
    kvpf1 = 7
    pat = 3
    sigstep = 0
    no_dma = False; no_bar = False; q_nodma = False

class Asm:
    def __init__(s): s.l = []; s.vm = []
    def __call__(s, x): s.l.append(x)
    def vmem(s, x, tag): s.l.append(x); s.vm.append(tag)
    def vm_after(s, tags):
        last = -1
        for i, t in enumerate(s.vm):
            if t in tags: last = i
        assert last >= 0, tags
        return min(63, len(s.vm) - 1 - last)
    def emit(s, items):
        for it in items:
            if isinstance(it, tuple): s.vmem(it[0], it[1])
            elif callable(it): it()
            else: s(it)
    def text(s): return "\n".join(s.l) + "\n"

def mf(d, a, b, c): return f"v_mfma_f32_16x16x32_bf16 {d}, {a}, {b}, {c}"
def vr(b, n=4): return f"v[{b}:{b+n-1}]" if n > 1 else f"v{b}"
def ar(b, n=4): return f"a[{b}:{b+n-1}]" if n > 1 else f"a{b}"
STAMP_BASE = 64 << 20
PBASE = 32 << 20
MBOX = 30 << 20

class Stamper:
    def __init__(s, A, cfg): s.A = A; s.cfg = cfg; s.n = 0
    def __call__(s, mode=15):
        if s.cfg.stamps & mode:
            s.A(f"s_memrealtime s[{64+4*s.n}:{65+4*s.n}]\ns_memtime s[{66+4*s.n}:{67+4*s.n}]"); s.n += 1
    def finish(s):
        A = s.A
        if not s.cfg.stamps: return
        A("s_waitcnt vmcnt(0)")
        s(31)
        assert s.n <= 7
        A("s_waitcnt lgkmcnt(0)")
        A(f"s_add_u32 s44, s44, {STAMP_BASE}\ns_addc_u32 s45, s45, 0\ns_mov_b32 s46, 0x100000\ns_mov_b32 s47, 0x20000")
        A("s_lshl_b32 s34, s2, 2\ns_add_u32 s34, s34, s20\ns_lshl_b32 s34, s34, 6")
        A("v_mov_b32 v1, s34")
        A(f"v_mov_b32 v2, {s.n}\nv_mov_b32 v3, s59\nbuffer_store_dwordx2 v[2:3], v1, s[44:47], 0 offen offset:56\ns_nop 1")
        for k in range(s.n):
            A(f"v_mov_b32 v2, s{64+4*k}\nv_mov_b32 v3, s{66+4*k}")
            A(f"buffer_store_dwordx2 v[2:3], v1, s[44:47], 0 offen offset:{8*k}")
            A("s_nop 1")

XBUF = [114688, 139264]
WSLOT = [2, 0, 1]

def gen_kernel(A, cfg):
    K1 = NAME + "_kernel"
    A(f".globl {K1}\n.p2align 8\n.type {K1},@function\n{K1}:")
    A("s_cmp_ge_u32 s2, 256\ns_cbranch_scc1 L_end")
    stamp = Stamper(A, cfg)
    stamp(31)
    A("s_bfe_u32 s25, s2, 0x10002")
    A("s_mul_i32 s28, s25, 40")
    A("s_add_u32 s62, s0, s28\ns_addc_u32 s63, s1, 0")
    A("s_load_dwordx4 s[36:39], s[62:63], 0")
    A("s_load_dwordx4 s[40:43], s[62:63], 16")
    A("s_load_dwordx2 s[44:45], s[0:1], 96")
    A("s_load_dwordx2 s[92:93], s[62:63], 32")
    if cfg.cpf:
        A("s_getpc_b64 s[88:89]")
        A("L_pc:")
        A("s_mov_b32 s90, L_end - L_pc\ns_mov_b32 s91, 0x20000")
        A("v_lshlrev_b32 v54, 7, v0")
        A.vmem("buffer_load_dword v56, v54, s[88:91], 0 offen", "CPF")
    A("s_lshr_b32 s24, s2, 3")
    A("s_and_b32 s28, s2, 3")
    A("s_and_b32 s23, s24, 3")
    A("s_lshl_b32 s26, s28, 2\ns_add_u32 s26, s26, s23")
    A("s_lshr_b32 s27, s24, 2")
    A("v_lshrrev_b32 v1, 6, v0")
    A("v_and_b32 v2, 63, v0")
    A("v_readfirstlane_b32 s20, v1")
    A("v_and_b32 v3, 15, v2\nv_lshrrev_b32 v4, 4, v2")
    A("v_lshrrev_b32 v10, 3, v2\nv_and_b32 v11, 7, v2")
    A("v_xor_b32 v13, v11, v4")
    A("v_mul_u32_u24 v14, 1280, v10")
    A("v_lshl_add_u32 v58, v13, 4, v14")
    A("v_xor_b32 v13, 4, v13")
    A("v_lshl_add_u32 v59, v13, 4, v14")
    A("v_add_u32 v59, 9216, v59")
    A("v_add_u32 v60, 18432, v58\nv_add_u32 v61, 18432, v59")
    A("v_lshlrev_b32 v10, 2, v4\nv_xor_b32 v10, v3, v10")
    A("v_lshlrev_b32 v11, 13, v4")
    A("v_lshl_add_u32 v6, v10, 4, v11")
    for n in range(1, 4): A(f"v_add_u32 v{6+n}, {n*31744}, v6")
    A("s_lshr_b32 s21, s20, 1\ns_and_b32 s22, s20, 1")
    A("s_lshl_b32 s29, s26, 1\ns_add_u32 s29, s29, s21")
    A("s_lshl_b32 s46, s21, 16")
    A("s_mul_i32 s48, s20, 6144")
    A("s_lshl_b32 s54, s22, 13\ns_add_u32 s54, s54, s46")
    A("s_mul_i32 s34, s27, 245760\ns_mul_i32 s49, s20, 61440")
    A("s_lshl_b32 s35, s29, 8\ns_lshl_b32 s53, s22, 18")
    A("s_waitcnt lgkmcnt(0)")
    A("s_add_u32 s4, s36, s34\ns_addc_u32 s5, s37, 0\ns_mov_b32 s6, 245760\ns_mov_b32 s7, 0x20000")
    A("s_add_u32 s8, s42, s35\ns_addc_u32 s9, s43, 0\ns_sub_u32 s10, 5242880, s35\ns_mov_b32 s11, 0x20000")
    if cfg.qrot == 2: A("s_add_u32 s34, s27, s23\ns_and_b32 s34, s34, 1\ns_mul_i32 s34, s34, 5")
    elif cfg.qrot == 3: A("s_add_u32 s34, s27, s23\ns_and_b32 s34, s34, 3\ns_mul_i32 s34, s34, 5\ns_lshr_b32 s34, s34, 1")
    elif cfg.qrot:
        A("s_mul_i32 s34, s27, 5\ns_mul_i32 s35, s23, 10\ns_add_u32 s34, s34, s35\ns_lshr_b32 s34, s34, 2")
        A("s_cmp_ge_u32 s34, 10\ns_cselect_b32 s35, 10, 0\ns_sub_u32 s34, s34, s35")
    else: A("s_mov_b32 s34, 0")
    A("s_lshl_b32 s50, s34, 7\ns_add_u32 s50, s50, s49\ns_add_u32 s96, s49, 1280")
    A("s_lshl_b32 s51, s34, 19\ns_add_u32 s51, s51, s53\ns_add_u32 s97, s53, 5242880")
    def dma_x(xi):
        r = []
        for n in range(6):
            if n % 4 == 0:
                r += [f"s_add_u32 m0, s48, {XBUF[xi % 2] + n*1024}", f"s_add_u32 s55, s50, {n*10240}"]
            r.append((f"buffer_load_dwordx4 v{58 + (n & 3)}, s[4:7], s55 offen offset:{(n & 3)*1024} {cfg.xld} lds", f"X{xi}"))
        r += ["s_add_u32 s50, s50, 128", "s_cmp_eq_u32 s50, s96\ns_cselect_b32 s50, s49, s50"]
        return r
    def dma_w(sg):
        r = []
        for n in range(8):
            if n % 4 == 0:
                r += [f"s_add_u32 m0, s54, {WSLOT[sg % 3]*16384 + n*1024}", f"s_add_u32 s55, s51, {n*4*8192}"]
            r.append((f"buffer_load_dwordx4 v{6 + (n & 3)}, s[8:11], s55 offen offset:{(n & 3)*1024} {cfg.wqld} lds", f"W{sg}"))
        r += ["s_add_u32 s51, s51, 0x80000", "s_cmp_eq_u32 s51, s97\ns_cselect_b32 s51, s53, s51"]
        return r
    def dma_kv(step, nmax=8):
        r = []
        for n in range(nmax):
            if n % 4 == 0:
                r += [f"s_add_u32 m0, s54, {(step % 4)*16384 + n*1024}", "s_and_b32 s55, s30, 0x3ffff", "s_add_u32 s30, s30, s101" if n else "s_add_u32 s30, s30, 4096"]
            r.append((f"buffer_load_dwordx4 v{16 + (n & 3)}, s[12:15], s55 offen offset:{(n & 3)*1024} {cfg.kv_flags} lds", f"KV{step}"))
        return r
    A.emit(dma_x(0)); A.emit(dma_w(0))
    A("s_lshl_b32 s34, s27, 5\ns_add_u32 s34, s34, s29\ns_lshl_b32 s34, s34, 18")
    A("s_add_u32 s36, s38, s34\ns_addc_u32 s37, s39, 0")
    A("s_add_u32 s38, s40, s34\ns_addc_u32 s39, s41, 0")
    A("s_cmp_eq_u32 s22, 1")
    A("s_cselect_b32 s12, s38, s36\ns_cselect_b32 s13, s39, s37")
    A("s_mov_b32 s14, 0x40000\ns_mov_b32 s15, 0x20000")
    A("s_cselect_b64 s[32:33], -1, 0")
    A("v_xor_b32 v11, v3, v4")
    A("v_lshlrev_b32 v10, 1, v4\nv_xor_b32 v10, v3, v10")
    A("v_lshlrev_b32 v12, 8, v4")
    for n in range(4):
        A(f"v_xor_b32 v13, {4*n}, v11")
        A(f"v_xor_b32 v14, {8*(n&1)}, v10")
        A("v_cndmask_b32 v13, v13, v14, s[32:33]")
        A(f"v_lshl_add_u32 v{16+n}, v13, 4, v12")
    A("v_lshlrev_b32 v12, 8, v3\nv_add_u32 v12, s46, v12")
    for c in range(4):
        A(f"v_xor_b32 v13, {4*c}, v11")
        A(f"v_lshl_add_u32 v{20+c}, v13, 4, v12")
    A("v_lshrrev_b32 v10, 2, v3\nv_lshl_add_u32 v11, v4, 2, v10")
    A("v_and_b32 v12, 7, v11")
    A("v_lshlrev_b32 v11, 8, v11")
    A("v_and_b32 v13, 3, v3\nv_lshl_add_u32 v11, v13, 3, v11")
    A("s_add_u32 s47, s46, 8192")
    A("v_add_u32 v11, s47, v11")
    for dt in range(8):
        A(f"v_xor_b32 v14, {dt}, v12")
        A(f"v_lshl_add_u32 v{24+dt}, v14, 5, v11")
    A("v_lshlrev_b32 v32, 4, v2\nv_add_u32 v33, 4096, v32")
    A(f"s_mul_i32 s34, s22, 12288\ns_add_u32 s34, s34, {XBUF[0]}")
    A("v_lshrrev_b32 v11, 1, v3\nv_xor_b32 v11, v4, v11")
    A("v_lshlrev_b32 v12, 7, v3\nv_add_u32 v12, s34, v12")
    for s in range(2):
        A(f"v_xor_b32 v14, {4*s}, v11")
        A(f"v_lshl_add_u32 v{52+s}, v14, 4, v12")
    A("v_lshl_add_u32 v11, v4, 3, v10\nv_lshlrev_b32 v11, 8, v11")
    A("v_lshl_add_u32 v11, v13, 4, v11")
    A("v_add_u32 v11, s46, v11")
    for c in range(4):
        A(f"v_xor_b32 v14, {c}, v10")
        A(f"v_lshl_add_u32 v{40+c}, v14, 6, v11")
    if cfg.kvpf:
        lam = cfg.kvpf; sh = lam.bit_length() - 1
        A(f"v_lshrrev_b32 v55, {sh}, v2\nv_lshlrev_b32 v55, 13, v55\nv_and_b32 v14, {lam-1}, v2\nv_lshl_add_u32 v55, v14, 7, v55")
        npf = lam // 2
        kvpf_list = [[f"s_mov_b32 s50, {k*(64//lam)*8192}", (f"buffer_load_dword v56, v55, s[12:15], s50 offen {cfg.kvpfl}", "PF")] for k in range(npf)]
        nsl = cfg.kvpf1 - cfg.kvpf0 + 1
    if cfg.sparse1:
        A("v_and_b32 v14, 3, v2\nv_cmp_eq_u32 vcc, 0, v14\nv_mov_b32 v14, 0x3f803f80\ns_nop 0")
        for k in range(4): A(f"v_cndmask_b32 v{48+k}, 0, v14, vcc")
    else:
        for k in range(4): A(f"v_mov_b32 v{48+k}, 0x3f803f80")
    A("v_lshl_add_u32 v45, v4, 4, s46")
    cs = f32bits(128 ** -0.5 * math.log2(math.e))
    A(f"v_mov_b32 v46, 0x{cs:08x}\nv_mov_b32 v47, 0x{cs:08x}")
    A(f"s_mov_b32 s31, 0x{f32bits(2.0 ** cfg.thr_log2):08x}")
    A("s_lshl_b32 s40, s25, 3\ns_add_u32 s40, s40, s27")
    A("s_lshl_b32 s34, s40, 5\ns_add_u32 s34, s34, s29\ns_lshl_b32 s34, s34, 1\ns_add_u32 s34, s34, s22\ns_mul_i32 s34, s34, 24576")
    A("s_add_u32 s16, s44, s34\ns_addc_u32 s17, s45, 0\ns_movk_i32 s18, 0x6000\ns_mov_b32 s19, 0x20000")
    A("s_mov_b32 s59, 0")
    if cfg.rot:
        if cfg.rot == 1:
            A("s_lshl_b32 s30, s2, 1\ns_add_u32 s30, s30, s21\ns_mul_i32 s34, s30, 0x9E3779B1\ns_lshr_b32 s30, s34, 27\ns_lshl_b32 s30, s30, 13")
        else:
            A(f"s_add_u32 s30, s2, 1\ns_mul_i32 s34, s30, 0x9E3779B1\ns_lshr_b32 s30, s34, 27\ns_mul_i32 s35, s21, {cfg.rotd}\ns_add_u32 s30, s30, s35\ns_lshl_b32 s30, s30, 13")
        if cfg.stride: A("s_bfe_u32 s101, s34, 0x40017\ns_lshl_b32 s101, s101, 14\ns_add_u32 s101, s101, 4096")
        else: A("s_movk_i32 s101, 0x1000")
    else:
        A("s_mov_b32 s30, 0\ns_movk_i32 s101, 0x1000")
    if cfg.cpf:
        A("s_mov_b32 s34, 0x8000")
        A.vmem("buffer_load_dword v56, v54, s[88:91], s34 offen", "CPF")
    if cfg.wmode == 3:
        A("s_lshl_b32 s34, s26, 3\ns_add_u32 s34, s34, s27\ns_mul_i32 s34, s34, 40960")
        A("s_add_u32 s88, s92, s34\ns_addc_u32 s89, s93, 0\ns_mov_b32 s90, 40960\ns_mov_b32 s91, 0x20000")
        A("v_add_u32 v55, 0x8000, v54")
    if not cfg.early: A.emit(dma_x(1)); A.emit(dma_w(1))

    ACC = 64
    def acc(T, dt): return ACC + 32 * T + 4 * dt
    def fa(dt, s): return 80 + 8 * dt + 4 * s
    def fb(p, T, s): return (144 if p == 0 else 192) + 8 * T + 4 * s
    def qa_reads(sg, dt):
        c, e = dt >> 1, dt & 1
        return [f"ds_read_b64_tr_b16 {ar(fa(dt, s) + 2*f, 2)}, v{40+c} offset:{WSLOT[sg % 3]*16384 + s*8192 + f*1024 + 8*e}"
                for s in range(2) for f in range(2)]
    def qb_read(sg, T, s):
        return f"ds_read_b128 {ar(fb(sg % 2, T, s))}, v{52 + s} offset:{(sg % 2)*24576 + T*2048}"
    A(f"s_waitcnt vmcnt({A.vm_after(['X0', 'W0'])})")
    A("s_barrier")
    for T in range(6):
        for s in range(2): A(qb_read(0, T, s))
    for dt in range(8):
        for r in qa_reads(0, dt): A(r)
    fill = [f"v_accvgpr_write_b32 a{i}, 0" for i in range(80)]
    pend = (dma_x(1) + dma_w(1) if cfg.early else []) + dma_w(2)
    BG = [int(x) for x in cfg.barg.split(",")] if cfg.early else [10]
    for sg in range(10):
        last = sg == 9
        slots = [[] for _ in range(96)]
        if not last:
            need = [f"W{sg+1}", f"X{sg+1}"]
            G = BG[min(sg, len(BG) - 1)]
            slots[G] = ["WAIT"]; slots[G + 1] = ["BAR"]
            if G > 11: slots[11] = ["s_waitcnt lgkmcnt(0)"]
            rl = [(11, r) for r in qa_reads(sg + 1, 0)]
            for T in range(6): rl += [(0, qb_read(sg + 1, T, 0)), (0, qb_read(sg + 1, T, 1))]
            for dt in range(1, 8): rl += [(12*dt + 11, r) for r in qa_reads(sg + 1, dt)]
            for g in range(G + 2, 96):
                k = 0
                while rl and rl[0][0] <= g and (k < 2 or g == 95):
                    slots[g].append(rl.pop(0)[1]); k += 1
            assert not rl
        else:
            fill += [f"v_accvgpr_write_b32 a{i}, 0" for i in range(144, 192)]
            for n in range(5):
                fill += [f"v_add_u32 v14, {64*n}, v2", "v_mul_u32_u24 v15, 3277, v14", "v_lshrrev_b32 v15, 16, v15",
                         "v_mul_u32_u24 v34, 20, v15", "v_sub_u32 v14, v14, v34", "v_bfe_u32 v34, v15, 2, 1", "v_lshlrev_b32 v34, 1, v34",
                         "v_xor_b32 v14, v14, v34", "v_mul_u32_u24 v15, 1280, v15", f"v_lshl_add_u32 v{5+n}, v14, 4, v15"]
                if 0 < n < 4: fill.append(f"v_subrev_u32 v{5+n}, {1024*n}, v{5+n}")
        if cfg.slabst:
            A(f"s_memrealtime s[60:61]\ns_waitcnt lgkmcnt(0)\nv_writelane_b32 v57, s60, {sg + 1}")
        A("s_waitcnt lgkmcnt(15)")
        order = [(T, s) for T in range(6) for s in range(2)] if cfg.qchain else [(T, s) for s in range(2) for T in range(6)]
        g = 0
        for dt in range(8):
            for T, s in order:
                d = vr(acc(T, dt))
                A(mf(d, ar(fa(dt, s)), ar(fb(sg % 2, T, s)), "0" if sg == 0 and s == 0 else d))
                used = 0
                for x in slots[g]:
                    if x == "WAIT": A(f"s_waitcnt vmcnt({A.vm_after(need)}) lgkmcnt(0)"); used = 2
                    elif x == "BAR":
                        A("s_barrier"); used = 2
                        if sg + 2 < 10: pend += dma_x(sg + 2)
                        if cfg.kvpf and cfg.kvpf0 <= sg <= cfg.kvpf1:
                            r = sg - cfg.kvpf0
                            for k in range(r * npf // nsl, (r + 1) * npf // nsl): pend += kvpf_list[k]
                        if sg + 3 < 10: pend += dma_w(sg + 3)
                        if cfg.wmode == 3 and sg == cfg.wsg:
                            pend += [(f"buffer_load_dword v56, v54, s[88:91], 0 offen {cfg.wopfl}", "KVPF"), (f"buffer_load_dword v56, v55, s[88:91], 0 offen {cfg.wopfl}", "KVPF")]
                        if sg == 7: pend += dma_kv(0)
                        if sg == 8: pend += dma_kv(1)
                    else: A(x); used = 2
                if last and g == 11: A("s_waitcnt lgkmcnt(0)")
                if last and g % 12 == 11 and g < 95:
                    fill += [f"v_accvgpr_write_b32 a{i}, 0" for i in range(fa(dt, 0), fa(dt, 0) + 8)]
                if not used and pend:
                    if isinstance(pend[0], str): A(pend.pop(0))
                    elif g % (cfg.qdsp if sg >= len(BG) - 1 else 2) == 0:
                        it = pend.pop(0); used = 2
                        if cfg.q_nodma and not it[1].startswith("KV"): A.vm.append(it[1])
                        else: A.vmem(*it)
                if not used:
                    for _ in range(2):
                        if fill: A(fill.pop(0))
                g += 1
    assert not pend, len(pend)
    fill += [f"v_accvgpr_write_b32 a{i}, 0" for i in range(fa(7, 0), fa(7, 0) + 8)]
    A("s_barrier")
    stamp(1)
    if cfg.slabst:
        A(f"s_memrealtime s[60:61]\ns_waitcnt lgkmcnt(0)\nv_writelane_b32 v57, s60, 11\nv_writelane_b32 v57, s64, 0")
        A(f"s_add_u32 s88, s44, {STAMP_BASE + 0x80000}\ns_addc_u32 s89, s45, 0\ns_mov_b32 s90, 0x100000\ns_mov_b32 s91, 0x20000")
        A("s_lshl_b32 s34, s2, 10\nv_lshlrev_b32 v62, 2, v0")
        A.vmem("buffer_store_dword v57, v62, s[88:91], s34 offen", "ST")
        A("s_nop 3")
    A("s_load_dwordx4 s[48:51], s[0:1], 80")
    A("s_lshl_b32 s41, s40, 2\ns_add_u32 s42, s41, s23\ns_add_u32 s41, s41, s28")
    A(f"s_add_u32 s8, s44, {MBOX}\ns_addc_u32 s9, s45, 0\ns_mov_b32 s10, 0x8000\ns_mov_b32 s11, 0x20000")
    A("s_lshl_b32 s99, s41, 8\ns_lshl_b32 s100, s42, 8\ns_add_u32 s100, s100, 0x4000")
    A("v_mov_b32 v57, 0")
    A.vmem("buffer_load_dword v62, v57, s[8:11], s99 offen sc1", "SNAP")
    A.vmem("buffer_load_dword v63, v57, s[8:11], s100 offen sc1", "SNAP")
    for z in fill: A(z)
    for k in range(96):
        A(f"v_pk_mul_f32 v[{ACC+2*k}:{ACC+2*k+1}], v[{ACC+2*k}:{ACC+2*k+1}], v[46:47]")
        if k >= 1: A(f"v_cvt_pk_bf16_f32 v{ACC+k-1}, v{ACC+2*k-2}, v{ACC+2*k-1}")
    A(f"v_cvt_pk_bf16_f32 v{ACC+95}, v{ACC+190}, v{ACC+191}")
    def qf(T, c): return ACC + 16 * T + 4 * c
    A("s_waitcnt lgkmcnt(0)")

    S = [160, 176]; P = [192, 200]; NEGM = 208; L = 232; ONES = 48
    KF = 192; VF = 224
    def O(T, dt): return 32 * T + 4 * dt
    def k_read(st, kt, c): return f"ds_read_b128 {ar(KF + 16*kt + 4*c)}, v{20+c} offset:{st*16384 + kt*4096}"
    def v_read(st, dt, e): return f"ds_read_b64_tr_b16 {ar(VF + 4*dt + 2*e, 2)}, v{24+dt} offset:{st*16384 + e*4096}"
    def qk_mfmas(t, par):
        r = []
        for Tl in range(2):
            T = 2*t + Tl
            for kt in range(2):
                d = vr(S[par] + 8*Tl + 4*kt)
                for c in range(4):
                    r.append(mf(d, ar(KF + 16*kt + 4*c), vr(qf(T, c)), vr(NEGM + 4*T) if c == 0 else d))
        return r
    def pv_mfmas(t, par):
        r = []
        if cfg.pvord:
            for dt in range(8):
                for Tl in range(2):
                    T = 2*t + Tl
                    r.append(mf(ar(O(T, dt)), ar(VF + 4*dt), vr(P[par] + 4*Tl), ar(O(T, dt))))
            for Tl in range(2):
                T = 2*t + Tl
                r.append(mf(vr(L + 4*T), vr(ONES), vr(P[par] + 4*Tl), vr(L + 4*T)))
            return r
        for Tl in range(2):
            T = 2*t + Tl
            for dt in range(8):
                r.append(mf(ar(O(T, dt)), ar(VF + 4*dt), vr(P[par] + 4*Tl), ar(O(T, dt))))
            r.append(mf(vr(L + 4*T), vr(ONES), vr(P[par] + 4*Tl), vr(L + 4*T)))
        return r
    def EX(par, e): return f"v_exp_f32 v{S[par]+e}, v{S[par]+e}" if not cfg.xp & 1 else "s_nop 1"
    def CV(par, k): return f"v_cvt_pk_bf16_f32 v{P[par]+k}, v{S[par]+2*k}, v{S[par]+2*k+1}" if not cfg.xp & 2 else f"v_mov_b32 v{P[par]+k}, 0x3f803f80"
    A(f"s_waitcnt vmcnt({A.vm_after(['KV0'])})")
    A("s_barrier")
    for c in range(4): A(f"ds_read_b128 {vr(S[1] + 4*c)}, v45 offset:{64*c}")
    for kt in range(2):
        for c in range(4): A(k_read(0, kt, c))
    for k in range(24): A(f"v_mov_b32 v{L+k}, 0")
    A("s_waitcnt lgkmcnt(8)")
    for k in range(16): A(f"v_xor_b32 v{S[1]+k}, 0x80008000, v{S[1]+k}")
    A("s_nop 1")
    NST = (5 if cfg.win else 8)
    qend = 8 + cfg.lag + NST
    assert qend >= 16
    kv2 = dma_kv(2, min(8, qend - 16)); kv3 = dma_kv(3, max(0, qend - 24))
    gam = "v14"
    misc = ["v_and_b32 v14, 1, v4", "v_xor_b32 v15, 1, v14",
            "v_lshrrev_b32 v34, 2, v3", "v_lshl_add_u32 v34, v4, 2, v34", "v_mul_u32_u24 v34, 320, v34",
            "v_and_b32 v35, 3, v3", "v_lshl_add_u32 v34, v35, 3, v34", "v_add_u32 v34, s46, v34",
            "v_lshl_add_u32 v36, v14, 5, v34", "v_lshl_add_u32 v37, v15, 5, v34",
            "v_add_u32 v38, 128, v37", "v_add_u32 v39, 192, v36",
            "MASK",
            "v_cndmask_b32 v10, v36, v38, s[32:33]", "v_cndmask_b32 v11, v37, v39, s[32:33]",
            "v_cndmask_b32 v12, v38, v36, s[32:33]", "v_cndmask_b32 v13, v39, v37, s[32:33]",
            "v_mul_u32_u24 v34, 2560, v3", "v_lshl_add_u32 v34, v4, 3, v34",
            "v_lshlrev_b32 v35, 7, v0", "v_add_u32 v36, 0x8000, v35"]
    if cfg.wmode == 1:
        misc = misc[:-2] + ["v_mul_u32_u24 v35, 12, v1", "v_add_u32 v35, v35, v2", "v_lshlrev_b32 v35, 7, v35",
            "v_cmp_gt_u32 vcc, 12, v2", "v_mov_b32 v36, 0x100000", "s_nop 0", "v_cndmask_b32 v35, v36, v35, vcc", "s_mov_b32 s60, 0"]
    def misc_step():
        for _ in range(2):
            if misc:
                m = misc.pop(0)
                if m == "MASK": A("s_cmp_eq_u32 s21, 1\ns_cselect_b64 s[32:33], -1, 0")
                else: A(m)
    for T in range(6):
        for c in range(4):
            d = vr(NEGM + 4*T)
            A(mf(d, vr(S[1] + 4*c), vr(qf(T, c)), "0" if c == 0 else d))
            if kv2 and (isinstance(kv2[0], str) or c % 2 == 0): A.emit([kv2.pop(0)])
            else: misc_step()
    assert not kv2
    A("s_waitcnt lgkmcnt(0)")
    for k, m in enumerate(qk_mfmas(0, 0)):
        A(m)
        if kv3 and (isinstance(kv3[0], str) or k % 2 == 0): A.emit([kv3.pop(0)])
        else: misc_step()
    A.emit(kv3)
    while misc: misc_step()
    A("s_lshl_b32 s34, s26, 3\ns_add_u32 s34, s34, s27\ns_mul_i32 s34, s34, 40960")
    A("s_add_u32 s88, s92, s34\ns_addc_u32 s89, s93, 0\ns_mov_b32 s90, 40960\ns_mov_b32 s91, 0x20000")
    A("s_lshl_b32 s34, s28, 10\ns_lshl_b32 s35, s21, 7\ns_add_u32 s34, s34, s35\ns_lshl_b32 s35, s22, 4\ns_add_u32 s34, s34, s35")
    A("s_mul_i32 s34, s34, 1280\ns_mul_i32 s35, s23, 320\ns_add_u32 s34, s34, s35")
    A("s_add_u32 s92, s92, s34\ns_addc_u32 s93, s93, 0\ns_sub_u32 s94, 5242880, s34\ns_mov_b32 s95, 0x20000")
    if cfg.wmode == 2:
        A(f"buffer_load_dword v39, v35, s[88:91], 0 offen {cfg.wopfl}")
        A(f"buffer_load_dword v39, v36, s[88:91], 0 offen {cfg.wopfl}")
    for e in range(16): A(EX(0, e))
    for k in range(4): A(CV(0, k))
    A("s_mul_i32 s96, s23, 327680")
    A("s_mov_b32 s57, 7\ns_mov_b64 vcc, -1")
    if cfg.cpf2:
        tgt = "L_peel" if cfg.cpf2 == 2 else "L_epi"
        A("s_getpc_b64 s[4:5]\nL_pc2:")
        A(f"s_add_u32 s4, s4, {tgt} - L_pc2\ns_addc_u32 s5, s5, 0\ns_mov_b32 s6, L_end - {tgt}\ns_mov_b32 s7, 0x20000")
    if cfg.ssr:
        A(f"s_mul_i32 s61, s2, 0x9E3779B1\ns_lshr_b32 s61, s61, 16\ns_mul_i32 s61, s61, {cfg.ssr}\ns_lshr_b32 s61, s61, 16\ns_add_u32 s61, s61, {cfg.ss0}\ns_bfm_b32 s61, s61, 0")
    stamp(1)
    def w2_dma(c, sreg, tag, coff=1):
        r = []
        for n in range(5):
            if n == 0: r += [f"s_add_u32 m0, s54, {c*16384}", f"s_add_u32 s55, {sreg}, {c*40960*coff}"]
            if n == 4: r += [f"s_add_u32 m0, s54, {c*16384 + 4096}", "s_nop 0"]
            r.append((f"buffer_load_dwordx4 v{5+n}, s[92:95], s55 offen offset:{(n & 3)*1024} {cfg.wold} lds", tag))
        return r
    N = cfg.lag
    rq = []
    for q in range(8*29 + cfg.lag + NST, 256):
        if q % 4 == 0:
            rq += [f"s_add_u32 m0, s54, {((q >> 3) % 4)*16384 + (q & 4)*1024}", "s_and_b32 s55, s30, 0x3ffff",
                   "s_add_u32 s30, s30, s101" if q & 4 else "s_add_u32 s30, s30, 4096"]
        rq.append((f"buffer_load_dwordx4 v{16 + (q & 3)}, s[12:15], s55 offen offset:{(q & 3)*1024} {cfg.kv_flags} lds", f"KV{q >> 3}"))
    wq = [0, 1, 2, 3]
    def body(u, last):
        t, par, j = u % 3, u % 2, u // 3
        t1, par1 = (u + 1) % 3, (u + 1) % 2
        fin = last and u == 11
        kv_here = bool(rq) and cfg.ramp
        ms = qk_mfmas(t1, par1) + pv_mfmas(t, par)
        pre = [[] for _ in range(34)]
        val = [[] for _ in range(34)]
        val[0] = [CV(par, 4), CV(par, 5)]; val[1] = [CV(par, 6), CV(par, 7)]
        for e in range(16): val[16 + e] = [EX(par1, e)]
        val[32] = [CV(par1, 0), CV(par1, 1)]; val[33] = [CV(par1, 2), CV(par1, 3)]
        jj = (28 + j) if last else j
        iv = jj if t == 2 else jj - 1
        def q_of(i): return 8 * (iv + 2) + N + i
        def live(i): return (not last) or q_of(i) < 256
        def dma(i, g):
            q = q_of(i)
            if live(i):
                pre[g].append((f"buffer_load_dwordx4 v{16 + (q & 3)}, s[12:15], s55 offen offset:{(q & 3)*1024} {cfg.kv_flags} lds", f"KV{q >> 3}"))
        stn = (j + 1) % 4
        if t == 1:
            if not last:
                if cfg.ssr:
                    pre[3] += ["s_bitcmp1_b32 s61, 0"]
                    pre[4] += [f"s_cbranch_scc0 L_ss{u}", f"s_waitcnt vmcnt({cfg.ssn})", f"L_ss{u}:"]
                    pre[7] += ["s_lshr_b32 s61, s61, 1"]
                if cfg.ssk: pre[4] += [f"s_cbranch_vccz L_ss{u}", f"s_waitcnt vmcnt({cfg.ssn})", f"L_ss{u}:"]
                pre[5].append(f"s_waitcnt vmcnt({N})")
            elif j < 3: pre[5].append(lambda: A(f"s_waitcnt vmcnt({A.vm_after([f'KV{29+j}'])})"))
            pre[6].append("s_barrier")
            if not (last and j == 3):
                for kt in range(2):
                    for c in range(4): pre[8 + 4*kt + c].append(k_read(stn, kt, c))
                pre[33].append("s_waitcnt lgkmcnt(0)")
        def inc(q): return "s_add_u32 s30, s30, s101" if q & 4 else "s_add_u32 s30, s30, 4096"
        if cfg.win and not (last and cfg.ramp):
            assert N % 4 == 0
            sites = {1: [(-1, 7, 2), (0, 0, 18), (0, 1, 30)], 2: [(0, 2, 8), (0, 3, 20), (0, 4, 31)], 0: [(-1, 5, 11), (-1, 6, 24)]}[t]
            for off, i, g in sites:
                q = 8 * (jj + off + 2) + N + i
                if last and q >= 256: continue
                kv_here = True
                if q % 4 == 0:
                    pre[g - 3].append(f"s_add_u32 m0, s54, {((q >> 3) % 4)*16384 + (q & 4)*1024}")
                    pre[g - 2].append("s_and_b32 s55, s30, 0x3ffff")
                    pre[g + 1].append(inc(q))
                w = int(cfg.wpat[(8 * ((jj + off) % 4) + i) % len(cfg.wpat)])
                pre[g - 1].append(f"s_waitcnt vmcnt({w - 1})")
                pre[g].append((f"buffer_load_dwordx4 v{16 + (q & 3)}, s[12:15], s55 offen offset:{(q & 3)*1024} {cfg.kv_flags} lds", f"KV{q >> 3}"))
        if t in (1, 2) and not (last and cfg.ramp) and not cfg.win:
            iv = jj
            g = (0 if N % 4 == 0 else 2) + cfg.dpos
            def put(gg, it):
                if t == 2 and gg >= 0: pre[gg].append(it)
                if t == 1 and gg < 0: pre[34 + gg].append(it)
            for i in range(8):
                q = 8 * (iv + 2) + N + i
                lv = (not last) or q < 256
                if q % 4 == 0:
                    if lv:
                        put(g, f"s_add_u32 m0, s54, {((q >> 3) % 4)*16384 + (q & 4)*1024}")
                        put(g + 1, "s_and_b32 s55, s30, 0x3ffff")
                        put(g + 1, inc(q))
                    g += 2
                if lv: put(g, (f"buffer_load_dwordx4 v{16 + (q & 3)}, s[12:15], s55 offen offset:{(q & 3)*1024} {cfg.kv_flags} lds", f"KV{q >> 3}"))
                g += 1 if i % 3 else 2
            assert g <= 33, g
            iv = jj if t == 2 else jj - 1
        if last and cfg.ramp and rq:
            gl = {0: list(range(10, 15)) + list(range(16, 32)), 1: [2, 3, 4, 7] + list(range(16, 32)), 2: list(range(2, 32))}[t]
            for g in gl:
                if not rq: break
                if isinstance(rq[0], tuple) and g >= 16 and g % 2: continue
                pre[g].append(rq.pop(0))
        if t == 0:
            for dt in range(8):
                pre[2 + dt] += [v_read(j % 4, dt, 0), v_read(j % 4, dt, 1)]
            pre[15].append("s_waitcnt lgkmcnt(0)")
        if last and ((not kv_here and not rq) if cfg.ramp else (not kv_here and u >= 2 + (16 - N) * 3 // 8)) and wq and wq[0] <= iv - 28 and t != 1 and u >= cfg.wlate:
            c = wq.pop(0)
            w = w2_dma(c, "s96", f"W{c}")
            gs = (0, 1, 2, 5, 8, 11, 12, 13, 14) if t == 2 else (0, 1, 10, 11, 12, 13, 16, 17, 18)
            if fin: gs = (16, 17, 18, 20, 22, 24, 25, 26, 27)
            for it, g in zip(w, gs): pre[g].append(it)
        if (cfg.cpf2 == 2 and not last and u == 6) or (cfg.cpf2 == 1 and last and u == 0):
            pre[13].append(("buffer_load_dword v39, v54, s[4:7], 0 offen", "PF"))
        if cfg.wmode == 1 and not last and u == 4:
            pre[7].append((f"buffer_load_dword v39, v35, s[88:91], s60 offen {cfg.wopfl}", "PF"))
            pre[16].append("s_add_u32 s60, s60, 6144")
        if cfg.wmode == 0 and cfg.wopf and last and u == cfg.wopf:
            assert t != 0
            pre[2].append((f"buffer_load_dword v39, v35, s[88:91], 0 offen {cfg.wopfl}", "PF"))
            pre[4].append((f"buffer_load_dword v39, v36, s[88:91], 0 offen {cfg.wopfl}", "PF"))
        if fin:
            for k in range(4, 8): A(CV(par, k))
            A("s_nop 0")
        for g in range(34):
            if fin and g < 16: continue
            A(ms[g])
            x = pre[g]
            if cfg.no_dma: x = [y for y in x if not isinstance(y, tuple)]
            A.emit(x)
            if not fin:
                for y in val[g]: A(y)
    A(".p2align 6")
    A("L_loop:")
    for u in range(12): body(u, False)
    if cfg.stamps & 16:
        A("s_memrealtime s[60:61]\ns_waitcnt lgkmcnt(0)")
        A("s_cmp_lt_u32 s57, 3\ns_cbranch_scc1 L_nosh")
        A("s_mov_b32 s68, s72\ns_mov_b32 s72, s76\ns_mov_b32 s76, s80\ns_mov_b32 s80, s84\ns_mov_b32 s84, s60")
        A("L_nosh:")
        stamp.n = 6
    if cfg.ssk: A(f"s_cmp_gt_u32 s57, {8 - cfg.ssk}\ns_cselect_b64 vcc, -1, 0")
    A("s_sub_u32 s57, s57, 1\ns_cmp_lg_u32 s57, 0\ns_cbranch_scc1 L_loop")
    A.vm = [f"KV{q >> 3}" for q in range(8*28, 8*29 + N + NST)]
    A("L_peel:")
    stamp(8)
    for u in range(12):
        body(u, True)
        if u in (4, 8): stamp(8)
    for c in wq: A.emit(w2_dma(c, "s96", f"W{c}"))
    stamp()
    A("v_readfirstlane_b32 s56, v62\nv_readfirstlane_b32 s58, v63")
    A("s_nop 5")
    A(f"v_cmp_nge_f32 vcc, s31, v{L}")
    for T in range(1, 6):
        A(f"v_cmp_nge_f32 s[34:35], s31, v{L + 4*T}")
        A("s_or_b64 vcc, vcc, s[34:35]")
    if cfg.force_fb: A("s_branch L_fallback")
    A("s_cbranch_vccnz L_fallback")
    A("L_epi:")
    BB = 40; KEEP = 136; AF = 192; AX = 232
    def bfr(c, T): return BB + 24 * c + 4 * T
    def acc2(nu, T): return vr(KEEP + 24*nu + 4*T) if nu < 5 else ar(24*(nu - 5) + 4*T)
    def b_loads(c, tag):
        return [(f"buffer_load_dwordx4 {vr(bfr(c, T))}, v{32 + T//4}, s[4:7], s{88+c} offen offset:{(T % 4)*1024} {cfg.old}", tag) for T in range(6)]
    def o_store(c, T, tag):
        return (f"buffer_store_dwordx4 {vr(bfr(c, T))}, v{32 + T//4}, s[16:19], s52 offen offset:{(T % 4)*1024} {cfg.ost}", tag)
    def next_tile(c):
        return ["s_add_u32 s53, s62, s97\ns_lshr_b64 s[62:63], s[62:63], 4",
                "s_bfe_u32 s32, s53, 0x20002\ns_and_b32 s33, s53, 3",
                "s_lshl_b32 s34, s32, 3\ns_add_u32 s34, s34, s33",
                "s_mul_i32 s96, s34, 40960\ns_lshl_b32 s32, s32, 4",
                f"s_add_u32 s32, s32, s33\ns_mul_i32 s{88+c}, s32, 6144"]
    def a_reads(c, nu, dst=None):
        n5 = nu % 5
        reg = 10 + 2*(nu // 5) + (n5 & 1)
        d = AF + 4*nu if dst is None else dst
        return [f"ds_read_b64_tr_b16 {ar(d + 2*e, 2)}, v{reg} offset:{c*16384 + e*8192 + 64*(n5 >> 1)}" for e in range(2)]
    for T in range(6): A(f"v_rcp_f32 v{L + 4*T}, v{L + 4*T}")
    for T in range(6): A(f"v_mov_b32 v{L + 4*T + 1}, v{L + 4*T}")
    q = 0
    NA = cfg.nearly
    for c in range(4):
        if c < NA: A(f"s_movk_i32 s52, {c*6144}")
        for T in range(6):
            tb = KEEP + 8 * (q % 2); ob = bfr(c, T); q += 1
            for k in range(8): A(f"v_accvgpr_read_b32 v{tb+k}, a{O(T, 2*c) + k}")
            for k in range(4): A(f"v_pk_mul_f32 v[{tb+2*k}:{tb+2*k+1}], v[{tb+2*k}:{tb+2*k+1}], v[{L+4*T}:{L+4*T+1}]")
            for k in range(4): A(f"v_cvt_pk_bf16_f32 v{ob+k}, v{tb+2*k}, v{tb+2*k+1}")
            if c < NA: A.vmem(*o_store(c, T, "OA"))
        if c == 2:
            A(f"s_waitcnt vmcnt({A.vm_after(['W0'])})")
            A("s_barrier")
            for nu in range(10): A.emit(a_reads(0, nu))
    A("s_lshl_b32 s34, s40, 5\ns_lshl_b32 s35, s28, 3\ns_add_u32 s34, s34, s35\ns_add_u32 s34, s34, s21\ns_lshl_b32 s34, s34, 1\ns_add_u32 s34, s34, s22\ns_mul_i32 s34, s34, 24576")
    A(f"s_add_u32 s4, s44, s34\ns_addc_u32 s5, s45, 0\ns_mov_b32 s6, {3*98304 + 24576}\ns_mov_b32 s7, 0x20000")
    A(f"s_add_u32 s8, s44, {MBOX}\ns_addc_u32 s9, s45, 0\ns_mov_b32 s10, 0x8000\ns_mov_b32 s11, 0x20000")
    A("s_mov_b32 s36, s50\ns_mov_b32 s37, s51\ns_movk_i32 s38, 0x100\ns_mov_b32 s39, 0x20000")
    A("s_lshl_b32 s41, s41, 2\ns_lshl_b32 s97, s23, 2")
    tiles = [4*(1 + p) + c for p in range(3) for c in range(2)] + [4*(1 + p) + c for p in range(3) for c in (2, 3)]
    tbl = sum(t << (4*i) for i, t in enumerate(tiles))
    A(f"s_mov_b32 s62, 0x{tbl & 0xffffffff:x}\ns_mov_b32 s63, 0x{tbl >> 32:x}\ns_mov_b32 s98, 0")
    A("v_mov_b32 v14, 0\nv_mov_b32 v15, 1\nv_mov_b32 v18, 0x100\nv_mov_b32 v22, 0x10000")
    stamp(5)
    npoll = [0]
    def signal(vm, vd, mreg, sreg):
        k = npoll[0]; npoll[0] += 1
        A(f"s_cmp_lg_u32 s20, 1\ns_cbranch_scc1 L_sg{k}")
        A("s_mov_b64 exec, 1")
        A(f"buffer_atomic_add {vm}, v14, s[8:11], {mreg} offen")
        A(f"buffer_atomic_add {vd}, v14, s[36:39], {sreg} offen")
        A("s_mov_b64 exec, -1")
        A(f"L_sg{k}:")
    def poll(mreg, snap, mfield, sreg, field):
        k = npoll[0]; npoll[0] += 1
        A(f"s_cmp_lg_u32 s20, 0\ns_cbranch_scc1 L_pd{k}")
        A(f"s_bfe_u32 s34, s98, {mfield}\ns_cmp_eq_u32 s34, 4\ns_cbranch_scc1 L_pd{k}")
        A("s_mov_b32 s61, 0x40000")
        A(f"L_pl{k}:")
        A(f"buffer_load_dword v19, v14, s[8:11], {mreg} offen sc1")
        A("s_waitcnt vmcnt(0)")
        A("v_readfirstlane_b32 s98, v19")
        A("s_sub_u32 s61, s61, 1")
        A(f"s_sub_u32 s98, s98, {snap}")
        A(f"s_bfe_u32 s34, s98, {mfield}\ns_cmp_eq_u32 s34, 4\ns_cbranch_scc1 L_pd{k}")
        if cfg.stamps: A("s_add_u32 s59, s59, 1")
        A(f"s_sleep {cfg.psleep}")
        A(f"s_and_b32 s34, s61, {cfg.rescue - 1}\ns_cbranch_scc1 L_pl{k}")
        A(f"buffer_load_dword v19, v14, s[36:39], {sreg} offen sc1")
        A("s_waitcnt vmcnt(0)")
        A("v_readfirstlane_b32 s34, v19")
        A(f"s_cmp_eq_u32 s61, 0\ns_cbranch_scc1 L_pd{k}")
        A(f"s_bfe_u32 s34, s34, {field}")
        A(f"s_cmp_lt_u32 s34, 4\ns_cbranch_scc1 L_pl{k}")
        A(f"L_pd{k}:")
    def place(pre, seq, lo=7, hi=58):
        free = [g for g in range(lo, hi) if not pre[g]]
        nv = sum(isinstance(x, tuple) for x in seq)
        sp = max(1, (len(free) - (len(seq) - nv)) // max(nv, 1))
        k = 0
        for it in seq:
            pre[free[k]].append(it)
            k += sp if isinstance(it, tuple) else 1
    def step(c, first):
        cn = (c + 1) % 4
        pre = [[] for _ in range(60)]
        for nu in range(10):
            pre[6*nu + 5 + (1 if nu == 0 else 0)] += a_reads(cn, nu)
        seq = next_tile(c) + w2_dma(c, "s96", f"Wn{c}", 0)
        if first:
            top = "s_waitcnt lgkmcnt(15)"
            need = [f"W{c+1}" if c < 3 else "Wn0"] + (["OA"] if c == cfg.sigstep else []) + (["OB"] if c == 3 and NA < 4 else [])
            bar = [lambda: A(f"s_waitcnt vmcnt({A.vm_after(need)}) lgkmcnt(0)")]
            if c == 2: bar.append(lambda: poll("s99", "s56", "0x80000", "s41", "0x80000"))
            bar.append("s_barrier")
            if c == cfg.sigstep: bar.append(lambda: signal("v15", "v15", "s99", "s41"))
            if c == 3: bar.append(lambda: signal("v18", "v18", "s99", "s41"))
            if NA + c < 4 and c < 2:
                seq = [f"s_movk_i32 s52, {(NA + c)*6144}"] + [o_store(NA + c, T, "OB") for T in range(6)] + seq
            if c >= 2: seq = b_loads(c - 2, f"B{c-2}") + seq
        else:
            top = "s_waitcnt vmcnt(16) lgkmcnt(15)"
            bar = ["s_waitcnt lgkmcnt(0)"] + ([lambda: poll("s99", "s56", "0x80008", "s41", "0x80008")] if c == 3 else []) + ["s_barrier"]
            seq = b_loads((c + 2) % 4, "B") + seq
        pre[4] += bar[:1]; pre[5] += bar[1:]
        place(pre, seq)
        A(top)
        for g in range(60):
            nu, T = g // 6, g % 6
            d = acc2(nu, T)
            A(mf(d, ar(AF + 4*nu), vr(bfr(c, T)), "0" if first and c == 0 else d))
            A.emit(pre[g])
    assert NA in (2, 4) and cfg.sigstep < 2
    for c in range(4):
        step(c, True)
        if c == 1: stamp(4)
    stamp(4)
    A("s_mov_b32 s57, 2")
    A(".p2align 6")
    A("L_p2loop:")
    for c in range(4): step(c, False)
    A("s_sub_u32 s57, s57, 1\ns_cmp_lg_u32 s57, 0\ns_cbranch_scc1 L_p2loop")
    GR = [5, 0, 6, 1, 7, 2, 8, 3, 9, 4]
    def ax(pos, c): return AX + 8*(pos % 2) + 4*(c - 2)
    def ax_reads(pos): return a_reads(2, GR[pos], ax(pos, 2)) + a_reads(3, GR[pos], ax(pos, 3))
    pre = [[] for _ in range(60)]
    for nu in range(10): pre[6*nu + 5 + (1 if nu == 0 else 0)] += a_reads(1, nu)
    b2 = b_loads(2, "B"); b3 = b_loads(3, "B")
    pre[0] += b2[0:2]; pre[1] += b2[2:4]; pre[2] += b2[4:6]
    pre[4].append("s_waitcnt vmcnt(6) lgkmcnt(0)"); pre[5].append("s_barrier")
    setup = [f"s_lshl_b32 s34, s42, 18\ns_add_u32 s34, s34, {PBASE}",
             "s_add_u32 s12, s44, s34\ns_addc_u32 s13, s45, 0", ("s_cmp_eq_u32 s20, s28\ns_cselect_b32 s14, 0, 0x40000\ns_mov_b32 s15, 0x20000" if cfg.keep else "s_mov_b32 s14, 0x40000\ns_mov_b32 s15, 0x20000"),
             "s_lshl_b32 s52, s20, 2\ns_add_u32 s52, s52, s28", "s_lshl_b32 s52, s52, 14\ns_lshl_b32 s42, s42, 2",
             "s_xor_b32 s34, s54, 0x10000\nv_add_u32 v16, s54, v32", "v_add_u32 v20, s34, v32\ns_lshl_b32 s34, s20, 13",
             "s_add_u32 s34, s34, 131072\ns_xor_b32 s35, s34, 0x4000", "v_add_u32 v17, s34, v32\nv_add_u32 v21, s35, v32"]
    place(pre, b3 + setup, 7, 40)
    r0 = ax_reads(0); pre[50] += r0[:2]; pre[51] += r0[2:]
    A("s_waitcnt vmcnt(16) lgkmcnt(15)")
    for g in range(60):
        nu, T = g // 6, g % 6
        d = acc2(nu, T)
        A(mf(d, ar(AF + 4*nu), vr(bfr(0, T)), d))
        A.emit(pre[g])
    TMP = bfr(0, 0)
    def x_reads(r): return [f"ds_read_b128 {vr(TMP + 4*T)}, v{20 + r % 2} offset:{T*1024}" for T in range(6)]
    def x_writes(r): return [f"ds_write_b128 v{16 + r % 2}, {ar(24*r + 4*T)} offset:{T*1024}" for T in range(6)]
    def flush(r, pk=False):
        w = []
        for p in range(3):
            ob = KEEP + 24*r + 8*p
            if pk: w += [f"v_pk_add_f32 v[{ob+z}:{ob+z+1}], v[{ob+z}:{ob+z+1}], v[{TMP+8*p+z}:{TMP+8*p+z+1}]" for z in range(0, 8, 2)]
            else: w += [f"v_add_f32 v{ob+z}, v{ob+z}, v{TMP+8*p+z}" for z in range(8)]
            w += [f"v_cvt_pk_bf16_f32 v{ob+z}, v{ob+2*z}, v{ob+2*z+1}" for z in range(4)]
            w.append(("ST", f"buffer_store_dwordx4 {vr(ob)}, v32, s[12:15], s52 offen offset:{p*1024} {cfg.pst}"))
        w.append(("SA", "s_add_u32 s52, s52, 3072"))
        return w
    A("s_waitcnt vmcnt(0) lgkmcnt(0)")
    for r in range(5):
        pre = [[] for _ in range(36)]
        ra = ax_reads(2*r + 1); pre[0] += ra[:2]; pre[1] += ra[2:]
        if r < 4:
            rb = ax_reads(2*r + 2); pre[18] += rb[:2]; pre[19] += rb[2:]
        for T, w in enumerate(x_writes(r)): pre[20 + T].append(w)
        work = []
        if r:
            xr = x_reads(r - 1)
            for k in range(3): pre[2 + k] += xr[2*k:2*k+2]
            work = flush(r - 1)
        pre[8].append("s_waitcnt lgkmcnt(0)")
        gaps = [g for g in range(8, 35) if g == 8 or not pre[g]]
        for gi, g in enumerate(gaps):
            left = len(gaps) - gi
            cost = sum(2 if isinstance(x, tuple) and x[0] == "ST" else 0 if isinstance(x, tuple) else 1 for x in work)
            budget = max(2, -(-cost // left)); n = 0
            while work and n < budget:
                it = work[0]
                if isinstance(it, tuple):
                    if it[0] == "ST" and n > 0 and left > 1: break
                    pre[g].append(it[1]); n += 2 if it[0] == "ST" else 0
                else: pre[g].append(it); n += 1
                work.pop(0)
        for it in work: pre[34].append(it[1] if isinstance(it, tuple) else it)
        pre[35] += ["s_waitcnt lgkmcnt(0)", "s_barrier"]
        g = 0
        for pos in (2*r, 2*r + 1):
            nu = GR[pos]
            for T in range(6):
                for c in (1, 2, 3):
                    d = acc2(nu, T)
                    A(mf(d, ar(AF + 4*nu) if c == 1 else ar(ax(pos, c)), vr(bfr(c, T)), d))
                    A.emit(pre[g]); g += 1
    stamp()
    A.emit(x_reads(4))
    A("s_waitcnt lgkmcnt(0)")
    for it in flush(4, True): A(it[1] if isinstance(it, tuple) else it)
    if cfg.keep:
        A("s_cmp_lg_u32 s20, s28\ns_cbranch_scc1 L_nokeep")
        for m in range(15): A(f"ds_write_b128 v32, {vr(KEEP + 8*m)} offset:{32768 + m*1024}")
        A("L_nokeep:")
        A("s_mov_b32 s14, 0x40000")
    A("s_mul_i32 s34, s27, 192\ns_and_b32 s35, s28, 1\ns_mul_i32 s35, s35, 96\ns_add_u32 s34, s34, s35\ns_lshl_b32 s35, s20, 5\ns_add_u32 s34, s34, s35\ns_mul_i32 s34, s34, 2560")
    A("s_mul_i32 s35, s25, 1280\ns_add_u32 s34, s34, s35\ns_mul_i32 s35, s23, 320\ns_add_u32 s34, s34, s35\ns_lshr_b32 s35, s28, 1\ns_mul_i32 s35, s35, 160\ns_add_u32 s34, s34, s35")
    A("s_add_u32 s16, s48, s34\ns_addc_u32 s17, s49, 0\ns_sub_u32 s18, 3932160, s34\ns_mov_b32 s19, 0x20000")
    A("s_lshl_b32 s52, s28, 16\ns_lshl_b32 s35, s20, 10\ns_add_u32 s52, s52, s35")
    if cfg.keep:
        for i in range(1, 4): A(f"s_add_u32 s34, s28, {i}\ns_and_b32 s34, s34, 3\ns_lshl_b32 s34, s34, 14\ns_add_u32 s{88+i}, s52, s34")
        A("v_add_u32 v16, s35, v32")
    else:
        for i in range(4): A(f"s_add_u32 s{88+i}, s52, {i*16384}")
    A("v_add_u32 v17, 6144, v32\nv_add_u32 v20, 12288, v32")
    stamp(2)
    A("s_waitcnt vmcnt(0) lgkmcnt(0)")
    A("s_barrier")
    stamp(2)
    signal("v15", "v22", "s100", "s42")
    if cfg.keep:
        for nu in range(5): A(f"ds_read_b128 {vr(40 + 16*nu)}, v16 offset:{32768 + nu*3072}")
    A("s_mov_b32 s98, 0")
    poll("s100", "s58", "0x80000", "s42", "0x100010")
    A("s_barrier")
    stamp(2)
    A("s_cmp_eq_u32 s20, 3\ns_cbranch_scc1 L_end")
    NS = 3 if cfg.keep else 4
    for nu in range(5):
        for src in range(4 - NS, 4):
            A(f"buffer_load_dwordx4 {vr(40 + 16*nu + 4*src)}, v{(32, 17, 20)[nu // 2]}, s[12:15], s{88+src} offen offset:{(nu % 2)*3072} {cfg.pld}")
    A("s_mov_b32 s55, 40960")
    A("s_mov_b32 s34, 0xffff0000")
    for nu in range(5):
        A(f"s_waitcnt vmcnt({NS*(4 - nu) + 2*nu}) lgkmcnt(0)")
        b = 40 + 16*nu; lo = 128;
        for k in range(16): A(f"v_lshlrev_b32 v{lo+k}, 16, v{b+k}")
        for k in range(16): A(f"v_and_b32 v{b+k}, s34, v{b+k}")
        for base in (lo, b):
            for z in range(2):
                A(f"v_pk_add_f32 v[{base+2*z}:{base+2*z+1}], v[{base+2*z}:{base+2*z+1}], v[{base+4+2*z}:{base+5+2*z}]")
                A(f"v_pk_add_f32 v[{base+8+2*z}:{base+9+2*z}], v[{base+8+2*z}:{base+9+2*z}], v[{base+12+2*z}:{base+13+2*z}]")
        for base in (lo, b):
            for z in range(2):
                A(f"v_pk_add_f32 v[{base+2*z}:{base+2*z+1}], v[{base+2*z}:{base+2*z+1}], v[{base+8+2*z}:{base+9+2*z}]")
        for z in range(4): A(f"v_cvt_pk_bf16_f32 v{b+4+z}, v{lo+z}, v{b+z}")
        A(f"buffer_store_dwordx2 {vr(b+4, 2)}, v34, s[16:19], 0 offen offset:{nu*32} {cfg.outst}")
        A(f"buffer_store_dwordx2 {vr(b+6, 2)}, v34, s[16:19], s55 offen offset:{nu*32} {cfg.outst}")
    stamp.finish()
    A("L_end:\ns_endpgm")

    A("L_fallback:")
    A("s_waitcnt vmcnt(0) lgkmcnt(0)")
    A("s_mov_b32 s4, s36\ns_mov_b32 s5, s37\ns_mov_b32 s6, 0x40000\ns_mov_b32 s7, 0x20000")
    A("s_mov_b32 s8, s38\ns_mov_b32 s9, s39\ns_mov_b32 s10, 0x40000\ns_mov_b32 s11, 0x20000")
    A("s_lshl_b32 s52, s20, 13\ns_add_u32 s52, s52, 131072")
    A("v_xor_b32 v58, v3, v4")
    A("v_lshlrev_b32 v59, 1, v4\nv_xor_b32 v59, v3, v59")
    A("v_lshlrev_b32 v60, 8, v4")
    for n in range(4):
        A(f"v_xor_b32 v61, {4*n}, v58")
        A(f"v_lshl_add_u32 v{40+n}, v61, 4, v60")
    for n in range(2):
        A(f"v_xor_b32 v61, {8*n}, v59")
        A(f"v_lshl_add_u32 v{44+n}, v61, 4, v60")
    A("s_sub_u32 s34, s52, s46")
    for c in range(4): A(f"v_add_u32 v{20+c}, s34, v{20+c}")
    A("s_sub_u32 s34, s52, s47")
    for dt in range(8): A(f"v_add_u32 v{24+dt}, s34, v{24+dt}")
    for i in range(192): A(f"v_accvgpr_write_b32 a{i}, 0")
    for k in range(24): A(f"v_mov_b32 v{L+k}, 0")
    A("s_mov_b32 s60, 0")
    A("L_fb_loop:")
    for isv in range(2):
        for n in range(8):
            A(f"s_add_u32 m0, s52, {n*1024}")
            A(f"s_add_u32 s55, s60, {n*1024}")
            A(f"buffer_load_dwordx4 v{(44 + (n & 1)) if isv else (40 + (n & 3))}, s[{8 if isv else 4}:{11 if isv else 7}], s55 offen lds")
        A("s_waitcnt vmcnt(0)")
        if isv:
            for dt in range(8):
                for e in range(2): A(v_read(0, dt, e))
        else:
            for kt in range(2):
                for c in range(4): A(k_read(0, kt, c))
        A("s_waitcnt lgkmcnt(0)")
    R0, R1 = 52, 53
    for t in range(3):
        for m in qk_mfmas(t, 0): A(m)
        A("s_nop 7")
        for Tl in range(2):
            T = 2*t + Tl; s0 = S[0] + 8*Tl
            A(f"v_max3_f32 v{R0}, v{s0}, v{s0+1}, v{s0+2}")
            A(f"v_max3_f32 v{R0}, v{R0}, v{s0+3}, v{s0+4}")
            A(f"v_max3_f32 v{R0}, v{R0}, v{s0+5}, v{s0+6}")
            A(f"v_max3_f32 v{R0}, v{R0}, v{s0+7}, 0")
            A(f"v_mov_b32 v{R1}, v{R0}\ns_nop 1\nv_permlane16_swap_b32 v{R0}, v{R1}\nv_max_f32 v{R0}, v{R0}, v{R1}")
            A(f"v_mov_b32 v{R1}, v{R0}\ns_nop 1\nv_permlane32_swap_b32 v{R0}, v{R1}\nv_max_f32 v{R0}, v{R0}, v{R1}")
            A(f"v_exp_f32 v{R1}, -v{R0}")
            for k in range(8): A(f"v_sub_f32 v{s0+k}, v{s0+k}, v{R0}")
            for k in range(4): A(f"v_sub_f32 v{NEGM+4*T+k}, v{NEGM+4*T+k}, v{R0}")
            for k in range(4): A(f"v_mul_f32 v{L+4*T+k}, v{L+4*T+k}, v{R1}")
            for k in range(0, 32, 4):
                for q in range(4): A(f"v_accvgpr_read_b32 v{54+q}, a{32*T + k + q}")
                for q in range(4): A(f"v_mul_f32 v{54+q}, v{54+q}, v{R1}")
                for q in range(4): A(f"v_accvgpr_write_b32 a{32*T + k + q}, v{54+q}")
        for e in range(16): A(EX(0, e))
        A("s_nop 0")
        for k in range(8): A(CV(0, k))
        A("s_nop 1")
        for m in pv_mfmas(t, 0): A(m)
    A("s_add_u32 s60, s60, 8192\ns_cmp_lt_u32 s60, 0x40000\ns_cbranch_scc1 L_fb_loop")
    A("s_nop 7")
    A("s_branch L_epi")

def gen(cfg):
    A = Asm()
    A("; @launch grid=(256,1,1) block=(256,1,1) lds=163840")
    A('.amdgcn_target "amdgcn-amd-amdhsa--gfx950"\n.text')
    gen_kernel(A, cfg)
    A('.section .rodata,"a"\n.p2align 6')
    A(f".amdhsa_kernel {NAME}_kernel\n  .amdhsa_next_free_vgpr 512\n  .amdhsa_next_free_sgpr 102\n"
      "  .amdhsa_accum_offset 256\n  .amdhsa_group_segment_fixed_size 0\n  .amdhsa_kernarg_size 104\n"
      "  .amdhsa_user_sgpr_count 2\n  .amdhsa_user_sgpr_kernarg_segment_ptr 1\n"
      "  .amdhsa_system_sgpr_workgroup_id_x 1\n.end_amdhsa_kernel")
    return A.text()

if __name__ == "__main__":
    cfg = Cfg()
    for a in sys.argv[2:]:
        k, v = a.split("=")
        old = getattr(cfg, k)
        setattr(cfg, k, type(old)(int(v)) if isinstance(old, (bool, int)) else v.replace('+', ' '))
    open(sys.argv[1], "w").write(gen(cfg))
```

```python
import sys, struct, math
NAME = "concat_heads__mha_block_cached__gqa_block_cached__near_ridge"
def f32bits(x): return struct.unpack("<I", struct.pack("<f", x))[0]

class Cfg:
    stamps = 0
    kv_flags = "sc1 nt"; xld = ''; wqld = ''; pfl = 'nt'
    ost = 'sc1'; old = 'sc1'; wold = ''; pst = 'sc1'; pld = 'sc1'; wopfl = ''; outst = ''
    wopf = 4
    force_fb = False
    thr_log2 = 40
    cpf = 1
    xwpf = 0
    qchain = 1
    qdsp = 3
    rot = 2
    rotd = 16
    wrot = 0
    wsg = 7
    acq = 0
    psleep = 2
    rescue = 64
    lag = 8
    qrot = 2
    cpf2 = 0
    ramp = 0
    dpos = -5
    wpat = '5'
    win = 1
    xp = 0
    nearly = 2
    keep = 1
    swin = 0
    swin2 = 0
    swk = 4
    obsteps = 2
    sigb = 3
    xw0 = 20
    xwsp = 2
    p2x = 0
    w5it = 0
    wramp = '777733'
    kvq = 2
    early = 0
    barg = '70,50,30,10'
    slabst = 0
    ssk = 0
    ss0 = 0
    ssr = 0
    ssn = 1
    sparse1 = 1
    pvord = 1
    wlate = 0
    wmode = 3
    stride = 1
    kvpf = 0
    kvpfl = ''
    kvpf0 = 0
    kvpf1 = 7
    pat = 3
    sigstep = 0
    no_dma = False; no_bar = False; q_nodma = False

class Asm:
    def __init__(s): s.l = []; s.vm = []
    def __call__(s, x): s.l.append(x)
    def vmem(s, x, tag): s.l.append(x); s.vm.append(tag)
    def vm_after(s, tags):
        last = -1
        for i, t in enumerate(s.vm):
            if t in tags: last = i
        assert last >= 0, tags
        return min(63, len(s.vm) - 1 - last)
    def emit(s, items):
        for it in items:
            if isinstance(it, tuple): s.vmem(it[0], it[1])
            elif callable(it): it()
            else: s(it)
    def text(s): return "\n".join(s.l) + "\n"

def mf(d, a, b, c): return f"v_mfma_f32_16x16x32_bf16 {d}, {a}, {b}, {c}"
def vr(b, n=4): return f"v[{b}:{b+n-1}]" if n > 1 else f"v{b}"
def ar(b, n=4): return f"a[{b}:{b+n-1}]" if n > 1 else f"a{b}"
STAMP_BASE = 64 << 20
PBASE = 32 << 20
MBOX = 30 << 20

class Stamper:
    def __init__(s, A, cfg): s.A = A; s.cfg = cfg; s.n = 0
    def __call__(s, mode=47):
        if s.cfg.stamps & mode:
            s.A(f"s_memrealtime s[{64+4*s.n}:{65+4*s.n}]\ns_memtime s[{66+4*s.n}:{67+4*s.n}]"); s.n += 1
    def finish(s):
        A = s.A
        if not s.cfg.stamps: return
        A("s_waitcnt vmcnt(0)")
        s(63)
        assert s.n <= 7
        A("s_waitcnt lgkmcnt(0)")
        A(f"s_add_u32 s44, s44, {STAMP_BASE}\ns_addc_u32 s45, s45, 0\ns_mov_b32 s46, 0x100000\ns_mov_b32 s47, 0x20000")
        A("s_lshl_b32 s34, s2, 2\ns_add_u32 s34, s34, s20\ns_lshl_b32 s34, s34, 6")
        A("v_mov_b32 v1, s34")
        A(f"v_mov_b32 v2, {s.n}\nv_mov_b32 v3, s59\nbuffer_store_dwordx2 v[2:3], v1, s[44:47], 0 offen offset:56\ns_nop 1")
        for k in range(s.n):
            A(f"v_mov_b32 v2, s{64+4*k}\nv_mov_b32 v3, s{66+4*k}")
            A(f"buffer_store_dwordx2 v[2:3], v1, s[44:47], 0 offen offset:{8*k}")
            A("s_nop 1")

XBUF = [114688, 139264]
WSLOT = [2, 0, 1]

def gen_kernel(A, cfg):
    K1 = NAME + "_kernel"
    A(f".globl {K1}\n.p2align 8\n.type {K1},@function\n{K1}:")
    A("s_cmp_ge_u32 s2, 256\ns_cbranch_scc1 L_end")
    stamp = Stamper(A, cfg)
    stamp(63)
    A("s_bfe_u32 s25, s2, 0x10002")
    A("s_mul_i32 s28, s25, 40")
    A("s_add_u32 s62, s0, s28\ns_addc_u32 s63, s1, 0")
    A("s_load_dwordx4 s[36:39], s[62:63], 0")
    A("s_load_dwordx4 s[40:43], s[62:63], 16")
    A("s_load_dwordx2 s[44:45], s[0:1], 96")
    A("s_load_dwordx2 s[92:93], s[62:63], 32")
    if cfg.cpf:
        A("s_getpc_b64 s[88:89]")
        A("L_pc:")
        A("s_mov_b32 s90, L_end - L_pc\ns_mov_b32 s91, 0x20000")
        A("v_lshlrev_b32 v54, 7, v0")
        A.vmem("buffer_load_dword v56, v54, s[88:91], 0 offen", "CPF")
    A("s_lshr_b32 s24, s2, 3")
    A("s_and_b32 s28, s2, 3")
    A("s_and_b32 s23, s24, 3")
    A("s_lshl_b32 s26, s28, 2\ns_add_u32 s26, s26, s23")
    A("s_lshr_b32 s27, s24, 2")
    A("v_lshrrev_b32 v1, 6, v0")
    A("v_and_b32 v2, 63, v0")
    A("v_readfirstlane_b32 s20, v1")
    A("v_and_b32 v3, 15, v2\nv_lshrrev_b32 v4, 4, v2")
    A("v_lshrrev_b32 v10, 3, v2\nv_and_b32 v11, 7, v2")
    A("v_xor_b32 v13, v11, v4")
    A("v_mul_u32_u24 v14, 1280, v10")
    A("v_lshl_add_u32 v58, v13, 4, v14")
    A("v_xor_b32 v13, 4, v13")
    A("v_lshl_add_u32 v59, v13, 4, v14")
    A("v_add_u32 v59, 9216, v59")
    A("v_add_u32 v60, 18432, v58\nv_add_u32 v61, 18432, v59")
    A("v_lshlrev_b32 v10, 2, v4\nv_xor_b32 v10, v3, v10")
    A("v_lshlrev_b32 v11, 13, v4")
    A("v_lshl_add_u32 v6, v10, 4, v11")
    for n in range(1, 4): A(f"v_add_u32 v{6+n}, {n*31744}, v6")
    A("s_lshr_b32 s21, s20, 1\ns_and_b32 s22, s20, 1")
    A("s_lshl_b32 s29, s26, 1\ns_add_u32 s29, s29, s21")
    A("s_lshl_b32 s46, s21, 16")
    A("s_mul_i32 s48, s20, 6144")
    A("s_lshl_b32 s54, s22, 13\ns_add_u32 s54, s54, s46")
    A("s_mul_i32 s34, s27, 245760\ns_mul_i32 s49, s20, 61440")
    A("s_lshl_b32 s35, s29, 8\ns_lshl_b32 s53, s22, 18")
    A("s_waitcnt lgkmcnt(0)")
    A("s_add_u32 s4, s36, s34\ns_addc_u32 s5, s37, 0\ns_mov_b32 s6, 245760\ns_mov_b32 s7, 0x20000")
    A("s_add_u32 s8, s42, s35\ns_addc_u32 s9, s43, 0\ns_sub_u32 s10, 5242880, s35\ns_mov_b32 s11, 0x20000")
    if cfg.qrot == 2: A("s_add_u32 s34, s27, s23\ns_and_b32 s34, s34, 1\ns_mul_i32 s34, s34, 5")
    elif cfg.qrot == 3: A("s_add_u32 s34, s27, s23\ns_and_b32 s34, s34, 3\ns_mul_i32 s34, s34, 5\ns_lshr_b32 s34, s34, 1")
    elif cfg.qrot:
        A("s_mul_i32 s34, s27, 5\ns_mul_i32 s35, s23, 10\ns_add_u32 s34, s34, s35\ns_lshr_b32 s34, s34, 2")
        A("s_cmp_ge_u32 s34, 10\ns_cselect_b32 s35, 10, 0\ns_sub_u32 s34, s34, s35")
    else: A("s_mov_b32 s34, 0")
    A("s_lshl_b32 s50, s34, 7\ns_add_u32 s50, s50, s49\ns_add_u32 s96, s49, 1280")
    A("s_lshl_b32 s51, s34, 19\ns_add_u32 s51, s51, s53\ns_add_u32 s97, s53, 5242880")
    def dma_x(xi):
        r = []
        for n in range(6):
            if n % 4 == 0:
                r += [f"s_add_u32 m0, s48, {XBUF[xi % 2] + n*1024}", f"s_add_u32 s55, s50, {n*10240}"]
            r.append((f"buffer_load_dwordx4 v{58 + (n & 3)}, s[4:7], s55 offen offset:{(n & 3)*1024} {cfg.xld} lds", f"X{xi}"))
        r += ["s_add_u32 s50, s50, 128", "s_cmp_eq_u32 s50, s96\ns_cselect_b32 s50, s49, s50"]
        return r
    def dma_w(sg):
        r = []
        for n in range(8):
            if n % 4 == 0:
                r += [f"s_add_u32 m0, s54, {WSLOT[sg % 3]*16384 + n*1024}", f"s_add_u32 s55, s51, {n*4*8192}"]
            r.append((f"buffer_load_dwordx4 v{6 + (n & 3)}, s[8:11], s55 offen offset:{(n & 3)*1024} {cfg.wqld} lds", f"W{sg}"))
        r += ["s_add_u32 s51, s51, 0x80000", "s_cmp_eq_u32 s51, s97\ns_cselect_b32 s51, s53, s51"]
        return r
    def dma_kv(step, nmax=8):
        r = []
        for n in range(nmax):
            if n % 4 == 0:
                r += [f"s_add_u32 m0, s54, {(step % 4)*16384 + n*1024}", "s_and_b32 s55, s30, 0x3ffff", "s_add_u32 s30, s30, s101" if n else "s_add_u32 s30, s30, 4096"]
            r.append((f"buffer_load_dwordx4 v{16 + (n & 3)}, s[12:15], s55 offen offset:{(n & 3)*1024} {cfg.kv_flags} lds", f"KV{step}"))
        return r
    A.emit(dma_x(0)); A.emit(dma_w(0))
    A("s_lshl_b32 s34, s27, 5\ns_add_u32 s34, s34, s29\ns_lshl_b32 s34, s34, 18")
    A("s_add_u32 s36, s38, s34\ns_addc_u32 s37, s39, 0")
    A("s_add_u32 s38, s40, s34\ns_addc_u32 s39, s41, 0")
    A("s_cmp_eq_u32 s22, 1")
    A("s_cselect_b32 s12, s38, s36\ns_cselect_b32 s13, s39, s37")
    A("s_mov_b32 s14, 0x40000\ns_mov_b32 s15, 0x20000")
    A("s_cselect_b64 s[32:33], -1, 0")
    A("v_xor_b32 v11, v3, v4")
    A("v_lshlrev_b32 v10, 1, v4\nv_xor_b32 v10, v3, v10")
    A("v_lshlrev_b32 v12, 8, v4")
    for n in range(4):
        A(f"v_xor_b32 v13, {4*n}, v11")
        A(f"v_xor_b32 v14, {8*(n&1)}, v10")
        A("v_cndmask_b32 v13, v13, v14, s[32:33]")
        A(f"v_lshl_add_u32 v{16+n}, v13, 4, v12")
    A("v_lshlrev_b32 v12, 8, v3\nv_add_u32 v12, s46, v12")
    for c in range(4):
        A(f"v_xor_b32 v13, {4*c}, v11")
        A(f"v_lshl_add_u32 v{20+c}, v13, 4, v12")
    A("v_lshrrev_b32 v10, 2, v3\nv_lshl_add_u32 v11, v4, 2, v10")
    A("v_and_b32 v12, 7, v11")
    A("v_lshlrev_b32 v11, 8, v11")
    A("v_and_b32 v13, 3, v3\nv_lshl_add_u32 v11, v13, 3, v11")
    A("s_add_u32 s47, s46, 8192")
    A("v_add_u32 v11, s47, v11")
    for dt in range(8):
        A(f"v_xor_b32 v14, {dt}, v12")
        A(f"v_lshl_add_u32 v{24+dt}, v14, 5, v11")
    A("v_lshlrev_b32 v32, 4, v2\nv_add_u32 v33, 4096, v32")
    A(f"s_mul_i32 s34, s22, 12288\ns_add_u32 s34, s34, {XBUF[0]}")
    A("v_lshrrev_b32 v11, 1, v3\nv_xor_b32 v11, v4, v11")
    A("v_lshlrev_b32 v12, 7, v3\nv_add_u32 v12, s34, v12")
    for s in range(2):
        A(f"v_xor_b32 v14, {4*s}, v11")
        A(f"v_lshl_add_u32 v{52+s}, v14, 4, v12")
    A("v_lshl_add_u32 v11, v4, 3, v10\nv_lshlrev_b32 v11, 8, v11")
    A("v_lshl_add_u32 v11, v13, 4, v11")
    A("v_add_u32 v11, s46, v11")
    for c in range(4):
        A(f"v_xor_b32 v14, {c}, v10")
        A(f"v_lshl_add_u32 v{40+c}, v14, 6, v11")
    if cfg.kvpf:
        lam = cfg.kvpf; sh = lam.bit_length() - 1
        A(f"v_lshrrev_b32 v55, {sh}, v2\nv_lshlrev_b32 v55, 13, v55\nv_and_b32 v14, {lam-1}, v2\nv_lshl_add_u32 v55, v14, 7, v55")
        npf = lam // 2
        kvpf_list = [[f"s_mov_b32 s50, {k*(64//lam)*8192}", (f"buffer_load_dword v56, v55, s[12:15], s50 offen {cfg.kvpfl}", "PF")] for k in range(npf)]
        nsl = cfg.kvpf1 - cfg.kvpf0 + 1
    if cfg.sparse1:
        A("v_and_b32 v14, 3, v2\nv_cmp_eq_u32 vcc, 0, v14\nv_mov_b32 v14, 0x3f803f80\ns_nop 0")
        for k in range(4): A(f"v_cndmask_b32 v{48+k}, 0, v14, vcc")
    else:
        for k in range(4): A(f"v_mov_b32 v{48+k}, 0x3f803f80")
    A("v_lshl_add_u32 v45, v4, 4, s46")
    cs = f32bits(128 ** -0.5 * math.log2(math.e))
    A(f"v_mov_b32 v46, 0x{cs:08x}\nv_mov_b32 v47, 0x{cs:08x}")
    A(f"s_mov_b32 s31, 0x{f32bits(2.0 ** cfg.thr_log2):08x}")
    A("s_lshl_b32 s40, s25, 3\ns_add_u32 s40, s40, s27")
    A("s_lshl_b32 s34, s40, 5\ns_add_u32 s34, s34, s29\ns_lshl_b32 s34, s34, 1\ns_add_u32 s34, s34, s22\ns_mul_i32 s34, s34, 24576")
    A("s_add_u32 s16, s44, s34\ns_addc_u32 s17, s45, 0\ns_movk_i32 s18, 0x6000\ns_mov_b32 s19, 0x20000")
    A("s_mov_b32 s59, 0")
    if cfg.rot:
        if cfg.rot == 1:
            A("s_lshl_b32 s30, s2, 1\ns_add_u32 s30, s30, s21\ns_mul_i32 s34, s30, 0x9E3779B1\ns_lshr_b32 s30, s34, 27\ns_lshl_b32 s30, s30, 13")
        else:
            A(f"s_add_u32 s30, s2, 1\ns_mul_i32 s34, s30, 0x9E3779B1\ns_lshr_b32 s30, s34, 27\ns_mul_i32 s35, s21, {cfg.rotd}\ns_add_u32 s30, s30, s35\ns_lshl_b32 s30, s30, 13")
        if cfg.stride: A("s_bfe_u32 s101, s34, 0x40017\ns_lshl_b32 s101, s101, 14\ns_add_u32 s101, s101, 4096")
        else: A("s_movk_i32 s101, 0x1000")
    else:
        A("s_mov_b32 s30, 0\ns_movk_i32 s101, 0x1000")
    if cfg.cpf:
        A("s_mov_b32 s34, 0x8000")
        A.vmem("buffer_load_dword v56, v54, s[88:91], s34 offen", "CPF")
    if cfg.wmode == 3:
        A("s_lshl_b32 s34, s26, 3\ns_add_u32 s34, s34, s27\ns_mul_i32 s34, s34, 40960")
        A("s_add_u32 s88, s92, s34\ns_addc_u32 s89, s93, 0\ns_mov_b32 s90, 40960\ns_mov_b32 s91, 0x20000")
        A("v_add_u32 v55, 0x8000, v54")
    if not cfg.early: A.emit(dma_x(1)); A.emit(dma_w(1))

    ACC = 64
    def acc(T, dt): return ACC + 32 * T + 4 * dt
    def fa(dt, s): return 80 + 8 * dt + 4 * s
    def fb(p, T, s): return (144 if p == 0 else 192) + 8 * T + 4 * s
    def qa_reads(sg, dt):
        c, e = dt >> 1, dt & 1
        return [f"ds_read_b64_tr_b16 {ar(fa(dt, s) + 2*f, 2)}, v{40+c} offset:{WSLOT[sg % 3]*16384 + s*8192 + f*1024 + 8*e}"
                for s in range(2) for f in range(2)]
    def qb_read(sg, T, s):
        return f"ds_read_b128 {ar(fb(sg % 2, T, s))}, v{52 + s} offset:{(sg % 2)*24576 + T*2048}"
    A(f"s_waitcnt vmcnt({A.vm_after(['X0', 'W0'])})")
    A("s_barrier")
    for T in range(6):
        for s in range(2): A(qb_read(0, T, s))
    for dt in range(8):
        for r in qa_reads(0, dt): A(r)
    fill = [f"v_accvgpr_write_b32 a{i}, 0" for i in range(80)]
    pend = (dma_x(1) + dma_w(1) if cfg.early else []) + dma_w(2)
    BG = [int(x) for x in cfg.barg.split(",")] if cfg.early else [10]
    for sg in range(10):
        last = sg == 9
        slots = [[] for _ in range(96)]
        if not last:
            need = [f"W{sg+1}", f"X{sg+1}"]
            G = BG[min(sg, len(BG) - 1)]
            slots[G] = ["WAIT"]; slots[G + 1] = ["BAR"]
            if G > 11: slots[11] = ["s_waitcnt lgkmcnt(0)"]
            rl = [(11, r) for r in qa_reads(sg + 1, 0)]
            for T in range(6): rl += [(0, qb_read(sg + 1, T, 0)), (0, qb_read(sg + 1, T, 1))]
            for dt in range(1, 8): rl += [(12*dt + 11, r) for r in qa_reads(sg + 1, dt)]
            for g in range(G + 2, 96):
                k = 0
                while rl and rl[0][0] <= g and (k < 2 or g == 95):
                    slots[g].append(rl.pop(0)[1]); k += 1
            assert not rl
        else:
            fill += [f"v_accvgpr_write_b32 a{i}, 0" for i in range(144, 192)]
            for n in range(5):
                fill += [f"v_add_u32 v14, {64*n}, v2", "v_mul_u32_u24 v15, 3277, v14", "v_lshrrev_b32 v15, 16, v15",
                         "v_mul_u32_u24 v34, 20, v15", "v_sub_u32 v14, v14, v34", "v_bfe_u32 v34, v15, 2, 1", "v_lshlrev_b32 v34, 1, v34",
                         "v_xor_b32 v14, v14, v34", "v_mul_u32_u24 v15, 1280, v15", f"v_lshl_add_u32 v{5+n}, v14, 4, v15"]
                if 0 < n < 4: fill.append(f"v_subrev_u32 v{5+n}, {1024*n}, v{5+n}")
        if cfg.slabst:
            A(f"s_memrealtime s[60:61]\ns_waitcnt lgkmcnt(0)\nv_writelane_b32 v57, s60, {sg + 1}")
        A("s_waitcnt lgkmcnt(15)")
        order = [(T, s) for T in range(6) for s in range(2)] if cfg.qchain else [(T, s) for s in range(2) for T in range(6)]
        g = 0
        for dt in range(8):
            for T, s in order:
                d = vr(acc(T, dt))
                A(mf(d, ar(fa(dt, s)), ar(fb(sg % 2, T, s)), "0" if sg == 0 and s == 0 else d))
                used = 0
                for x in slots[g]:
                    if x == "WAIT": A(f"s_waitcnt vmcnt({A.vm_after(need)}) lgkmcnt(0)"); used = 2
                    elif x == "BAR":
                        A("s_barrier"); used = 2
                        if sg + 2 < 10: pend += dma_x(sg + 2)
                        if cfg.kvpf and cfg.kvpf0 <= sg <= cfg.kvpf1:
                            r = sg - cfg.kvpf0
                            for k in range(r * npf // nsl, (r + 1) * npf // nsl): pend += kvpf_list[k]
                        if sg + 3 < 10: pend += dma_w(sg + 3)
                        if cfg.wmode == 3 and sg == cfg.wsg:
                            pend += [(f"buffer_load_dword v56, v54, s[88:91], 0 offen {cfg.wopfl}", "KVPF"), (f"buffer_load_dword v56, v55, s[88:91], 0 offen {cfg.wopfl}", "KVPF")]
                        if sg == (7 if cfg.kvq == 2 else 8) and cfg.kvq: pend += dma_kv(0)
                        if sg == 8 and cfg.kvq == 2: pend += dma_kv(1)
                    else: A(x); used = 2
                if last and g == 11: A("s_waitcnt lgkmcnt(0)")
                if last and g % 12 == 11 and g < 95:
                    fill += [f"v_accvgpr_write_b32 a{i}, 0" for i in range(fa(dt, 0), fa(dt, 0) + 8)]
                if not used and pend:
                    if isinstance(pend[0], str): A(pend.pop(0))
                    elif g % (cfg.qdsp if sg >= len(BG) - 1 else 2) == 0:
                        it = pend.pop(0); used = 2
                        if cfg.q_nodma and not it[1].startswith("KV"): A.vm.append(it[1])
                        else: A.vmem(*it)
                if not used:
                    for _ in range(2):
                        if fill: A(fill.pop(0))
                g += 1
    assert not pend, len(pend)
    fill += [f"v_accvgpr_write_b32 a{i}, 0" for i in range(fa(7, 0), fa(7, 0) + 8)]
    A("s_barrier")
    stamp(1)
    if cfg.slabst:
        A(f"s_memrealtime s[60:61]\ns_waitcnt lgkmcnt(0)\nv_writelane_b32 v57, s60, 11\nv_writelane_b32 v57, s64, 0")
        A(f"s_add_u32 s88, s44, {STAMP_BASE + 0x80000}\ns_addc_u32 s89, s45, 0\ns_mov_b32 s90, 0x100000\ns_mov_b32 s91, 0x20000")
        A("s_lshl_b32 s34, s2, 10\nv_lshlrev_b32 v62, 2, v0")
        A.vmem("buffer_store_dword v57, v62, s[88:91], s34 offen", "ST")
        A("s_nop 3")
    A("s_load_dwordx4 s[48:51], s[0:1], 80")
    A("s_lshl_b32 s41, s40, 2\ns_add_u32 s42, s41, s23\ns_add_u32 s41, s41, s28")
    A(f"s_add_u32 s8, s44, {MBOX}\ns_addc_u32 s9, s45, 0\ns_mov_b32 s10, 0x8000\ns_mov_b32 s11, 0x20000")
    A("s_lshl_b32 s99, s41, 8\ns_lshl_b32 s100, s42, 8\ns_add_u32 s100, s100, 0x4000")
    A("v_mov_b32 v57, 0")
    A.vmem("buffer_load_dword v62, v57, s[8:11], s99 offen sc1", "SNAP")
    A.vmem("buffer_load_dword v63, v57, s[8:11], s100 offen sc1", "SNAP")
    for st in range(cfg.kvq, 2): A.emit(dma_kv(st))
    for z in fill: A(z)
    for k in range(96):
        A(f"v_pk_mul_f32 v[{ACC+2*k}:{ACC+2*k+1}], v[{ACC+2*k}:{ACC+2*k+1}], v[46:47]")
        if k >= 1: A(f"v_cvt_pk_bf16_f32 v{ACC+k-1}, v{ACC+2*k-2}, v{ACC+2*k-1}")
    A(f"v_cvt_pk_bf16_f32 v{ACC+95}, v{ACC+190}, v{ACC+191}")
    def qf(T, c): return ACC + 16 * T + 4 * c
    A("s_waitcnt lgkmcnt(0)")

    S = [160, 176]; P = [192, 200]; NEGM = 208; L = 232; ONES = 48
    KF = 192; VF = 224
    def O(T, dt): return 32 * T + 4 * dt
    def k_read(st, kt, c): return f"ds_read_b128 {ar(KF + 16*kt + 4*c)}, v{20+c} offset:{st*16384 + kt*4096}"
    def v_read(st, dt, e): return f"ds_read_b64_tr_b16 {ar(VF + 4*dt + 2*e, 2)}, v{24+dt} offset:{st*16384 + e*4096}"
    def qk_mfmas(t, par):
        r = []
        for Tl in range(2):
            T = 2*t + Tl
            for kt in range(2):
                d = vr(S[par] + 8*Tl + 4*kt)
                for c in range(4):
                    r.append(mf(d, ar(KF + 16*kt + 4*c), vr(qf(T, c)), vr(NEGM + 4*T) if c == 0 else d))
        return r
    def pv_mfmas(t, par):
        r = []
        if cfg.pvord:
            for dt in range(8):
                for Tl in range(2):
                    T = 2*t + Tl
                    r.append(mf(ar(O(T, dt)), ar(VF + 4*dt), vr(P[par] + 4*Tl), ar(O(T, dt))))
            for Tl in range(2):
                T = 2*t + Tl
                r.append(mf(vr(L + 4*T), vr(ONES), vr(P[par] + 4*Tl), vr(L + 4*T)))
            return r
        for Tl in range(2):
            T = 2*t + Tl
            for dt in range(8):
                r.append(mf(ar(O(T, dt)), ar(VF + 4*dt), vr(P[par] + 4*Tl), ar(O(T, dt))))
            r.append(mf(vr(L + 4*T), vr(ONES), vr(P[par] + 4*Tl), vr(L + 4*T)))
        return r
    def EX(par, e): return f"v_exp_f32 v{S[par]+e}, v{S[par]+e}" if not cfg.xp & 1 else "s_nop 1"
    def CV(par, k): return f"v_cvt_pk_bf16_f32 v{P[par]+k}, v{S[par]+2*k}, v{S[par]+2*k+1}" if not cfg.xp & 2 else f"v_mov_b32 v{P[par]+k}, 0x3f803f80"
    A(f"s_waitcnt vmcnt({A.vm_after(['KV0'])})")
    A("s_barrier")
    for c in range(4): A(f"ds_read_b128 {vr(S[1] + 4*c)}, v45 offset:{64*c}")
    for kt in range(2):
        for c in range(4): A(k_read(0, kt, c))
    for k in range(24): A(f"v_mov_b32 v{L+k}, 0")
    A("s_waitcnt lgkmcnt(8)")
    for k in range(16): A(f"v_xor_b32 v{S[1]+k}, 0x80008000, v{S[1]+k}")
    A("s_nop 1")
    NST = (5 if cfg.win else 8)
    qend = 8 + cfg.lag + NST
    assert qend >= 16
    kv2 = dma_kv(2, min(8, qend - 16)); kv3 = dma_kv(3, max(0, qend - 24))
    gam = "v14"
    misc = ["v_and_b32 v14, 1, v4", "v_xor_b32 v15, 1, v14",
            "v_lshrrev_b32 v34, 2, v3", "v_lshl_add_u32 v34, v4, 2, v34", "v_mul_u32_u24 v34, 320, v34",
            "v_and_b32 v35, 3, v3", "v_lshl_add_u32 v34, v35, 3, v34", "v_add_u32 v34, s46, v34",
            "v_lshl_add_u32 v36, v14, 5, v34", "v_lshl_add_u32 v37, v15, 5, v34",
            "v_add_u32 v38, 128, v37", "v_add_u32 v39, 192, v36",
            "MASK",
            "v_cndmask_b32 v10, v36, v38, s[32:33]", "v_cndmask_b32 v11, v37, v39, s[32:33]",
            "v_cndmask_b32 v12, v38, v36, s[32:33]", "v_cndmask_b32 v13, v39, v37, s[32:33]",
            "v_mul_u32_u24 v34, 2560, v3", "v_lshl_add_u32 v34, v4, 3, v34",
            "v_lshlrev_b32 v35, 7, v0", "v_add_u32 v36, 0x8000, v35"]
    if cfg.wmode == 1:
        misc = misc[:-2] + ["v_mul_u32_u24 v35, 12, v1", "v_add_u32 v35, v35, v2", "v_lshlrev_b32 v35, 7, v35",
            "v_cmp_gt_u32 vcc, 12, v2", "v_mov_b32 v36, 0x100000", "s_nop 0", "v_cndmask_b32 v35, v36, v35, vcc", "s_mov_b32 s60, 0"]
    def misc_step():
        for _ in range(2):
            if misc:
                m = misc.pop(0)
                if m == "MASK": A("s_cmp_eq_u32 s21, 1\ns_cselect_b64 s[32:33], -1, 0")
                else: A(m)
    for T in range(6):
        for c in range(4):
            d = vr(NEGM + 4*T)
            A(mf(d, vr(S[1] + 4*c), vr(qf(T, c)), "0" if c == 0 else d))
            if kv2 and (isinstance(kv2[0], str) or c % 2 == 0): A.emit([kv2.pop(0)])
            else: misc_step()
    assert not kv2
    A("s_waitcnt lgkmcnt(0)")
    for k, m in enumerate(qk_mfmas(0, 0)):
        A(m)
        if kv3 and (isinstance(kv3[0], str) or k % 2 == 0): A.emit([kv3.pop(0)])
        else: misc_step()
    A.emit(kv3)
    while misc: misc_step()
    A("s_lshl_b32 s34, s26, 3\ns_add_u32 s34, s34, s27\ns_mul_i32 s34, s34, 40960")
    A("s_add_u32 s88, s92, s34\ns_addc_u32 s89, s93, 0\ns_mov_b32 s90, 40960\ns_mov_b32 s91, 0x20000")
    A("s_lshl_b32 s34, s28, 10\ns_lshl_b32 s35, s21, 7\ns_add_u32 s34, s34, s35\ns_lshl_b32 s35, s22, 4\ns_add_u32 s34, s34, s35")
    A("s_mul_i32 s34, s34, 1280\ns_mul_i32 s35, s23, 320\ns_add_u32 s34, s34, s35")
    A("s_add_u32 s92, s92, s34\ns_addc_u32 s93, s93, 0\ns_sub_u32 s94, 5242880, s34\ns_mov_b32 s95, 0x20000")
    if cfg.wmode == 2:
        A(f"buffer_load_dword v39, v35, s[88:91], 0 offen {cfg.wopfl}")
        A(f"buffer_load_dword v39, v36, s[88:91], 0 offen {cfg.wopfl}")
    for e in range(16): A(EX(0, e))
    for k in range(4): A(CV(0, k))
    A("s_mul_i32 s96, s23, 327680")
    A("s_mov_b32 s57, 7\ns_mov_b64 vcc, -1")
    if cfg.wramp: A(f"s_mov_b32 s61, 0x{cfg.wramp[::-1]}")
    if cfg.cpf2:
        tgt = "L_peel" if cfg.cpf2 == 2 else "L_epi"
        A("s_getpc_b64 s[4:5]\nL_pc2:")
        A(f"s_add_u32 s4, s4, {tgt} - L_pc2\ns_addc_u32 s5, s5, 0\ns_mov_b32 s6, L_end - {tgt}\ns_mov_b32 s7, 0x20000")
    if cfg.ssr:
        A(f"s_mul_i32 s61, s2, 0x9E3779B1\ns_lshr_b32 s61, s61, 16\ns_mul_i32 s61, s61, {cfg.ssr}\ns_lshr_b32 s61, s61, 16\ns_add_u32 s61, s61, {cfg.ss0}\ns_bfm_b32 s61, s61, 0")
    stamp(1)
    def w2_dma(c, sreg, tag, coff=1):
        r = []
        for n in range(5):
            if n == 0: r += [f"s_add_u32 m0, s54, {c*16384}", f"s_add_u32 s55, {sreg}, {c*40960*coff}"]
            if n == 4: r += [f"s_add_u32 m0, s54, {c*16384 + 4096}", "s_nop 0"]
            r.append((f"buffer_load_dwordx4 v{5+n}, s[92:95], s55 offen offset:{(n & 3)*1024} {cfg.wold} lds", tag))
        return r
    N = cfg.lag
    rq = []
    for q in range(8*29 + cfg.lag + NST, 256):
        if q % 4 == 0:
            rq += [f"s_add_u32 m0, s54, {((q >> 3) % 4)*16384 + (q & 4)*1024}", "s_and_b32 s55, s30, 0x3ffff",
                   "s_add_u32 s30, s30, s101" if q & 4 else "s_add_u32 s30, s30, 4096"]
        rq.append((f"buffer_load_dwordx4 v{16 + (q & 3)}, s[12:15], s55 offen offset:{(q & 3)*1024} {cfg.kv_flags} lds", f"KV{q >> 3}"))
    wq = [0, 1, 2, 3]
    def body(u, last):
        t, par, j = u % 3, u % 2, u // 3
        t1, par1 = (u + 1) % 3, (u + 1) % 2
        fin = last and u == 11
        kv_here = bool(rq) and cfg.ramp
        ms = qk_mfmas(t1, par1) + pv_mfmas(t, par)
        pre = [[] for _ in range(34)]
        val = [[] for _ in range(34)]
        val[0] = [CV(par, 4), CV(par, 5)]; val[1] = [CV(par, 6), CV(par, 7)]
        for e in range(16): val[16 + e] = [EX(par1, e)]
        val[32] = [CV(par1, 0), CV(par1, 1)]; val[33] = [CV(par1, 2), CV(par1, 3)]
        jj = (28 + j) if last else j
        iv = jj if t == 2 else jj - 1
        def q_of(i): return 8 * (iv + 2) + N + i
        def live(i): return (not last) or q_of(i) < 256
        def dma(i, g):
            q = q_of(i)
            if live(i):
                pre[g].append((f"buffer_load_dwordx4 v{16 + (q & 3)}, s[12:15], s55 offen offset:{(q & 3)*1024} {cfg.kv_flags} lds", f"KV{q >> 3}"))
        stn = (j + 1) % 4
        if t == 1:
            if not last:
                if cfg.ssr:
                    pre[3] += ["s_bitcmp1_b32 s61, 0"]
                    pre[4] += [f"s_cbranch_scc0 L_ss{u}", f"s_waitcnt vmcnt({cfg.ssn})", f"L_ss{u}:"]
                    pre[7] += ["s_lshr_b32 s61, s61, 1"]
                if cfg.ssk: pre[4] += [f"s_cbranch_vccz L_ss{u}", f"s_waitcnt vmcnt({cfg.ssn})", f"L_ss{u}:"]
                pre[5].append(f"s_waitcnt vmcnt({N})")
            elif j < 3: pre[5].append(lambda: A(f"s_waitcnt vmcnt({A.vm_after([f'KV{29+j}'])})"))
            pre[6].append("s_barrier")
            if not (last and j == 3):
                for kt in range(2):
                    for c in range(4): pre[8 + 4*kt + c].append(k_read(stn, kt, c))
                pre[33].append("s_waitcnt lgkmcnt(0)")
        def inc(q): return "s_add_u32 s30, s30, s101" if q & 4 else "s_add_u32 s30, s30, 4096"
        if cfg.win and not (last and cfg.ramp):
            assert N % 4 == 0
            sites = {1: [(-1, 7, 2), (0, 0, 18), (0, 1, 30)], 2: [(0, 2, 8), (0, 3, 20), (0, 4, 31)], 0: [(-1, 5, 11), (-1, 6, 24)]}[t]
            for off, i, g in sites:
                q = 8 * (jj + off + 2) + N + i
                if last and q >= 256: continue
                kv_here = True
                if q % 4 == 0:
                    pre[g - 3].append(f"s_add_u32 m0, s54, {((q >> 3) % 4)*16384 + (q & 4)*1024}")
                    pre[g - 2].append("s_and_b32 s55, s30, 0x3ffff")
                    pre[g + 1].append(inc(q))
                w = int(cfg.wpat[(8 * ((jj + off) % 4) + i) % len(cfg.wpat)])
                if cfg.wramp and not last:
                    cls = {0: 0, 4: 1, 2: 2, 6: 2}.get(i, 3)
                    pre[g - 1].append(f"s_bitcmp1_b32 s61, {cls}\ns_cbranch_scc0 L_w{u}_{i}\ns_waitcnt vmcnt(3)\nL_w{u}_{i}:")
                    if cfg.w5it: pre[g - 1].append(f"s_cbranch_vccz L_v{u}_{i}\ns_waitcnt vmcnt(4)\nL_v{u}_{i}:")
                pre[g - 1].append(f"s_waitcnt vmcnt({w - 1})")
                pre[g].append((f"buffer_load_dwordx4 v{16 + (q & 3)}, s[12:15], s55 offen offset:{(q & 3)*1024} {cfg.kv_flags} lds", f"KV{q >> 3}"))
        if t in (1, 2) and not (last and cfg.ramp) and not cfg.win:
            iv = jj
            g = (0 if N % 4 == 0 else 2) + cfg.dpos
            def put(gg, it):
                if t == 2 and gg >= 0: pre[gg].append(it)
                if t == 1 and gg < 0: pre[34 + gg].append(it)
            for i in range(8):
                q = 8 * (iv + 2) + N + i
                lv = (not last) or q < 256
                if q % 4 == 0:
                    if lv:
                        put(g, f"s_add_u32 m0, s54, {((q >> 3) % 4)*16384 + (q & 4)*1024}")
                        put(g + 1, "s_and_b32 s55, s30, 0x3ffff")
                        put(g + 1, inc(q))
                    g += 2
                if lv: put(g, (f"buffer_load_dwordx4 v{16 + (q & 3)}, s[12:15], s55 offen offset:{(q & 3)*1024} {cfg.kv_flags} lds", f"KV{q >> 3}"))
                g += 1 if i % 3 else 2
            assert g <= 33, g
            iv = jj if t == 2 else jj - 1
        if last and cfg.ramp and rq:
            gl = {0: list(range(10, 15)) + list(range(16, 32)), 1: [2, 3, 4, 7] + list(range(16, 32)), 2: list(range(2, 32))}[t]
            for g in gl:
                if not rq: break
                if isinstance(rq[0], tuple) and g >= 16 and g % 2: continue
                pre[g].append(rq.pop(0))
        if t == 0:
            for dt in range(8):
                pre[2 + dt] += [v_read(j % 4, dt, 0), v_read(j % 4, dt, 1)]
            pre[15].append("s_waitcnt lgkmcnt(0)")
        if last and ((not kv_here and not rq) if cfg.ramp else (not kv_here and u >= 2 + (16 - N) * 3 // 8)) and wq and wq[0] <= iv - 28 and t != 1 and u >= cfg.wlate:
            c = wq.pop(0)
            w = w2_dma(c, "s96", f"W{c}")
            gs = (0, 1, 2, 5, 8, 11, 12, 13, 14) if t == 2 else (0, 1, 10, 11, 12, 13, 16, 17, 18)
            if fin: gs = (16, 17, 18, 20, 22, 24, 25, 26, 27)
            for it, g in zip(w, gs): pre[g].append(it)
        if (cfg.cpf2 == 2 and not last and u == 6) or (cfg.cpf2 == 1 and last and u == 0):
            pre[13].append(("buffer_load_dword v39, v54, s[4:7], 0 offen", "PF"))
        if cfg.wmode == 1 and not last and u == 4:
            pre[7].append((f"buffer_load_dword v39, v35, s[88:91], s60 offen {cfg.wopfl}", "PF"))
            pre[16].append("s_add_u32 s60, s60, 6144")
        if cfg.wmode == 0 and cfg.wopf and last and u == cfg.wopf:
            assert t != 0
            pre[2].append((f"buffer_load_dword v39, v35, s[88:91], 0 offen {cfg.wopfl}", "PF"))
            pre[4].append((f"buffer_load_dword v39, v36, s[88:91], 0 offen {cfg.wopfl}", "PF"))
        if fin:
            for k in range(4, 8): A(CV(par, k))
            A("s_nop 0")
        for g in range(34):
            if fin and g < 16: continue
            A(ms[g])
            x = pre[g]
            if cfg.no_dma: x = [y for y in x if not isinstance(y, tuple)]
            A.emit(x)
            if not fin:
                for y in val[g]: A(y)
    A(".p2align 6")
    A("L_loop:")
    for u in range(12): body(u, False)
    if cfg.stamps & 16:
        A("s_memrealtime s[60:61]\ns_waitcnt lgkmcnt(0)")
        A("s_cmp_lt_u32 s57, 3\ns_cbranch_scc1 L_nosh")
        A("s_mov_b32 s68, s72\ns_mov_b32 s72, s76\ns_mov_b32 s76, s80\ns_mov_b32 s80, s84\ns_mov_b32 s84, s60")
        A("L_nosh:")
        stamp.n = 6
    if cfg.wramp: A("s_lshr_b32 s61, s61, 4")
    if cfg.w5it: A(f"s_cmp_gt_u32 s57, {8 - cfg.w5it}\ns_cselect_b64 vcc, -1, 0")
    if cfg.ssk: A(f"s_cmp_gt_u32 s57, {8 - cfg.ssk}\ns_cselect_b64 vcc, -1, 0")
    A("s_sub_u32 s57, s57, 1\ns_cmp_lg_u32 s57, 0\ns_cbranch_scc1 L_loop")
    A.vm = [f"KV{q >> 3}" for q in range(8*28, 8*29 + N + NST)]
    A("L_peel:")
    stamp(8)
    for u in range(12):
        body(u, True)
        if u in (4, 8): stamp(8)
    for c in wq: A.emit(w2_dma(c, "s96", f"W{c}"))
    stamp()
    A("v_readfirstlane_b32 s56, v62\nv_readfirstlane_b32 s58, v63")
    A("s_nop 5")
    A(f"v_cmp_nge_f32 vcc, s31, v{L}")
    for T in range(1, 6):
        A(f"v_cmp_nge_f32 s[34:35], s31, v{L + 4*T}")
        A("s_or_b64 vcc, vcc, s[34:35]")
    if cfg.force_fb: A("s_branch L_fallback")
    A("s_cbranch_vccnz L_fallback")
    A("L_epi:")
    BB = 40; KEEP = 136; AF = 192; AX = 232
    def bfr(c, T): return BB + 24 * c + 4 * T
    def acc2(nu, T): return vr(KEEP + 24*nu + 4*T) if nu < 5 else ar(24*(nu - 5) + 4*T)
    def b_loads(c, tag):
        return [(f"buffer_load_dwordx4 {vr(bfr(c, T))}, v{32 + T//4}, s[4:7], s{88+c} offen offset:{(T % 4)*1024} {cfg.old}", tag) for T in range(6)]
    def o_store(c, T, tag):
        return (f"buffer_store_dwordx4 {vr(bfr(c, T))}, v{32 + T//4}, s[16:19], s52 offen offset:{(T % 4)*1024} {cfg.ost}", tag)
    def next_tile(c):
        return ["s_add_u32 s53, s62, s97\ns_lshr_b64 s[62:63], s[62:63], 4",
                "s_bfe_u32 s32, s53, 0x20002\ns_and_b32 s33, s53, 3",
                "s_lshl_b32 s34, s32, 3\ns_add_u32 s34, s34, s33",
                "s_mul_i32 s96, s34, 40960\ns_lshl_b32 s32, s32, 4",
                f"s_add_u32 s32, s32, s33\ns_mul_i32 s{88+c}, s32, 6144"]
    def a_reads(c, nu, dst=None):
        n5 = nu % 5
        reg = 10 + 2*(nu // 5) + (n5 & 1)
        d = AF + 4*nu if dst is None else dst
        return [f"ds_read_b64_tr_b16 {ar(d + 2*e, 2)}, v{reg} offset:{c*16384 + e*8192 + 64*(n5 >> 1)}" for e in range(2)]
    for T in range(6): A(f"v_rcp_f32 v{L + 4*T}, v{L + 4*T}")
    for T in range(6): A(f"v_mov_b32 v{L + 4*T + 1}, v{L + 4*T}")
    q = 0
    NA = cfg.nearly
    for c in range(4):
        if c < NA: A(f"s_movk_i32 s52, {c*6144}")
        for T in range(6):
            tb = KEEP + 8 * (q % 2); ob = bfr(c, T); q += 1
            for k in range(8): A(f"v_accvgpr_read_b32 v{tb+k}, a{O(T, 2*c) + k}")
            for k in range(4): A(f"v_pk_mul_f32 v[{tb+2*k}:{tb+2*k+1}], v[{tb+2*k}:{tb+2*k+1}], v[{L+4*T}:{L+4*T+1}]")
            for k in range(4): A(f"v_cvt_pk_bf16_f32 v{ob+k}, v{tb+2*k}, v{tb+2*k+1}")
            if c < NA:
                if cfg.swin: A(f"s_waitcnt vmcnt({cfg.swin - 1})")
                A.vmem(*o_store(c, T, "OA"))
        if c == 2:
            A(f"s_waitcnt vmcnt({A.vm_after(['W0'])})")
            A("s_barrier")
            for nu in range(10): A.emit(a_reads(0, nu))
    A("s_lshl_b32 s34, s40, 5\ns_lshl_b32 s35, s28, 3\ns_add_u32 s34, s34, s35\ns_add_u32 s34, s34, s21\ns_lshl_b32 s34, s34, 1\ns_add_u32 s34, s34, s22\ns_mul_i32 s34, s34, 24576")
    A(f"s_add_u32 s4, s44, s34\ns_addc_u32 s5, s45, 0\ns_mov_b32 s6, {3*98304 + 24576}\ns_mov_b32 s7, 0x20000")
    A(f"s_add_u32 s8, s44, {MBOX}\ns_addc_u32 s9, s45, 0\ns_mov_b32 s10, 0x8000\ns_mov_b32 s11, 0x20000")
    A("s_mov_b32 s36, s50\ns_mov_b32 s37, s51\ns_movk_i32 s38, 0x100\ns_mov_b32 s39, 0x20000")
    A("s_lshl_b32 s41, s41, 2\ns_lshl_b32 s97, s23, 2")
    tiles = [4*(1 + p) + c for p in range(3) for c in range(2)] + [4*(1 + p) + c for p in range(3) for c in (2, 3)]
    tbl = sum(t << (4*i) for i, t in enumerate(tiles))
    A(f"s_mov_b32 s62, 0x{tbl & 0xffffffff:x}\ns_mov_b32 s63, 0x{tbl >> 32:x}\ns_mov_b32 s98, 0")
    A("v_mov_b32 v14, 0\nv_mov_b32 v15, 1\nv_mov_b32 v18, 0x100\nv_mov_b32 v22, 0x10000")
    stamp(37)
    npoll = [0]
    def signal(vm, vd, mreg, sreg):
        k = npoll[0]; npoll[0] += 1
        A(f"s_cmp_lg_u32 s20, 1\ns_cbranch_scc1 L_sg{k}")
        A("s_mov_b64 exec, 1")
        A(f"buffer_atomic_add {vm}, v14, s[8:11], {mreg} offen")
        A(f"buffer_atomic_add {vd}, v14, s[36:39], {sreg} offen")
        A("s_mov_b64 exec, -1")
        A(f"L_sg{k}:")
    def poll(mreg, snap, mfield, sreg, field):
        k = npoll[0]; npoll[0] += 1
        A(f"s_cmp_lg_u32 s20, 0\ns_cbranch_scc1 L_pd{k}")
        A(f"s_bfe_u32 s34, s98, {mfield}\ns_cmp_eq_u32 s34, 4\ns_cbranch_scc1 L_pd{k}")
        A("s_mov_b32 s61, 0x40000")
        A(f"L_pl{k}:")
        A(f"buffer_load_dword v19, v14, s[8:11], {mreg} offen sc1")
        A("s_waitcnt vmcnt(0)")
        A("v_readfirstlane_b32 s98, v19")
        A("s_sub_u32 s61, s61, 1")
        A(f"s_sub_u32 s98, s98, {snap}")
        A(f"s_bfe_u32 s34, s98, {mfield}\ns_cmp_eq_u32 s34, 4\ns_cbranch_scc1 L_pd{k}")
        if cfg.stamps: A("s_add_u32 s59, s59, 1")
        A(f"s_sleep {cfg.psleep}")
        A(f"s_and_b32 s34, s61, {cfg.rescue - 1}\ns_cbranch_scc1 L_pl{k}")
        A(f"buffer_load_dword v19, v14, s[36:39], {sreg} offen sc1")
        A("s_waitcnt vmcnt(0)")
        A("v_readfirstlane_b32 s34, v19")
        A(f"s_cmp_eq_u32 s61, 0\ns_cbranch_scc1 L_pd{k}")
        A(f"s_bfe_u32 s34, s34, {field}")
        A(f"s_cmp_lt_u32 s34, 4\ns_cbranch_scc1 L_pl{k}")
        A(f"L_pd{k}:")
    def place(pre, seq, lo=7, hi=58):
        free = [g for g in range(lo, hi) if not pre[g]]
        nv = sum(isinstance(x, tuple) for x in seq)
        sp = max(1, (len(free) - (len(seq) - nv)) // max(nv, 1))
        k = 0
        for it in seq:
            pre[free[k]].append(it)
            k += sp if isinstance(it, tuple) else 1
    GR = [5, 0, 6, 1, 7, 2, 8, 3, 9, 4]
    def ax(pos, c): return AX + 8*(pos % 2) + 4*(c - 2)
    def ax_reads(pos): return a_reads(2, GR[pos], ax(pos, 2)) + a_reads(3, GR[pos], ax(pos, 3))
    BX = 120
    def bx(c, T): return ar(BX + 24*(c - 2) + 4*T)
    def bx_loads(c, tag):
        return [(f"buffer_load_dwordx4 {bx(c, T)}, v{32 + T//4}, s[4:7], s{88+c} offen offset:{(T % 4)*1024} {cfg.old}", tag) for T in range(6)]
    setup = [f"s_lshl_b32 s34, s42, 18\ns_add_u32 s34, s34, {PBASE}",
             "s_add_u32 s12, s44, s34\ns_addc_u32 s13, s45, 0",
             "s_cmp_eq_u32 s20, s28\ns_cselect_b32 s14, 0, 0x40000", "s_mov_b32 s15, 0x20000",
             "s_lshl_b32 s52, s20, 2\ns_add_u32 s52, s52, s28", "s_lshl_b32 s52, s52, 14\ns_lshl_b32 s42, s42, 2",
             "s_xor_b32 s34, s54, 0x10000\nv_add_u32 v16, s54, v32", "v_add_u32 v20, s34, v32\ns_lshl_b32 s34, s20, 13",
             "s_add_u32 s34, s34, 131072\ns_xor_b32 s35, s34, 0x4000", "v_add_u32 v17, s34, v32\nv_add_u32 v21, s35, v32"]
    obs = []
    for c in range(NA, 4): obs += [f"s_movk_i32 s52, {c*6144}"] + [o_store(c, T, "OB") for T in range(6)]
    def step(k):
        c = k % 4; cn = (c + 1) % 4
        pre = [[] for _ in range(60)]
        for nu in range(10):
            pre[6*nu + 5 + (1 if nu == 0 else 0)] += a_reads(cn, nu)
        seq = []
        if obs:
            n = -(-len(obs) // (cfg.obsteps - k))
            seq += obs[:n]; del obs[:n]
        if 2 <= k < 12: seq += b_loads((c + 2) % 4, f"B{k+2}")
        if k < 12: seq += next_tile(c) + w2_dma(c, "s96", f"W{k+4}", 0)
        if k in (10, 11): seq += bx_loads(c, f"B{k+4}")
        if k == 12: seq += setup
        need = [f"W{k+1}"] + (["OA"] if k == cfg.sigstep else []) + (["OB"] if k == cfg.sigb and NA < 4 else [])
        bar = [lambda: A(f"s_waitcnt vmcnt({A.vm_after(need)}) lgkmcnt(0)")]
        if k == 2: bar.append(lambda: poll("s99", "s56", "0x80000", "s41", "0x80000"))
        if k == 8: bar.append(lambda: poll("s99", "s56", "0x80008", "s41", "0x80008"))
        bar.append("s_barrier")
        if k == cfg.sigstep: bar.append(lambda: signal("v15", "v15", "s99", "s41"))
        if k == cfg.sigb: bar.append(lambda: signal("v18", "v18", "s99", "s41"))
        pre[4] += bar[:1]; pre[5] += bar[1:]
        if k == 12:
            pre[48].append("s_waitcnt vmcnt(0)"); pre[49].append("s_barrier")
            r0 = ax_reads(0); pre[50] += r0[:2]; pre[51] += r0[2:]
        place(pre, seq, 7, 58 if k < 12 else 46)
        if cfg.swin2 and k < cfg.swk:
            for g in range(1, 60):
                if any(isinstance(x, tuple) for x in pre[g]): pre[g].insert(0, f"s_waitcnt vmcnt({cfg.swin2 - 1})")
        A(f"s_waitcnt vmcnt({A.vm_after([f'B{k}'])}) lgkmcnt(15)" if k >= 4 else "s_waitcnt lgkmcnt(15)")
        for g in range(60):
            nu, T = g // 6, g % 6
            d = acc2(nu, T)
            A(mf(d, ar(AF + 4*nu), vr(bfr(c, T)), "0" if k == 0 else d))
            A.emit(pre[g])
    assert NA in (2, 4) and cfg.sigstep < 2 and cfg.obsteps <= cfg.sigb <= 4 and cfg.keep
    for k in range(13):
        step(k)
        if k == 1: stamp(4)
        if k == 3: stamp(36)
        if k == 11: stamp(32)
    TMP = bfr(0, 0)
    def x_reads(r): return [f"ds_read_b128 {vr(TMP + 4*T)}, v{20 + r % 2} offset:{T*1024}" for T in range(6)]
    def x_writes(r): return [f"ds_write_b128 v{16 + r % 2}, {ar(24*r + 4*T)} offset:{T*1024}" for T in range(6)]
    def flush(r, pk=False):
        w = []
        for p in range(3):
            ob = KEEP + 24*r + 8*p
            if pk: w += [f"v_pk_add_f32 v[{ob+z}:{ob+z+1}], v[{ob+z}:{ob+z+1}], v[{TMP+8*p+z}:{TMP+8*p+z+1}]" for z in range(0, 8, 2)]
            else: w += [f"v_add_f32 v{ob+z}, v{ob+z}, v{TMP+8*p+z}" for z in range(8)]
            w += [f"v_cvt_pk_bf16_f32 v{ob+z}, v{ob+2*z}, v{ob+2*z+1}" for z in range(4)]
            w.append(("ST", f"buffer_store_dwordx4 {vr(ob)}, v32, s[12:15], s52 offen offset:{p*1024} {cfg.pst}"))
        w.append(("SA", "s_add_u32 s52, s52, 3072"))
        return w
    A("s_waitcnt lgkmcnt(0)")
    for r in range(5):
        pre = [[] for _ in range(36)]
        ra = ax_reads(2*r + 1); pre[0] += ra[:2]; pre[1] += ra[2:]
        if r < 4:
            rb = ax_reads(2*r + 2); pre[18] += rb[:2]; pre[19] += rb[2:]
        for T, w in enumerate(x_writes(r)): pre[cfg.xw0 + T*cfg.xwsp].append(w)
        work = []
        if r:
            xr = x_reads(r - 1)
            for k in range(3): pre[2 + k] += xr[2*k:2*k+2]
            work = flush(r - 1)
        pre[8].append("s_waitcnt lgkmcnt(0)")
        gaps = [g for g in range(8, 35) if g == 8 or not pre[g]]
        for gi, g in enumerate(gaps):
            left = len(gaps) - gi
            cost = sum(2 if isinstance(x, tuple) and x[0] == "ST" else 0 if isinstance(x, tuple) else 1 for x in work)
            budget = max(2, -(-cost // left)); n = 0
            while work and n < budget:
                it = work[0]
                if isinstance(it, tuple):
                    if it[0] == "ST" and n > 0 and left > 1: break
                    pre[g].append(it[1]); n += 2 if it[0] == "ST" else 0
                else: pre[g].append(it); n += 1
                work.pop(0)
        for it in work: pre[34].append(it[1] if isinstance(it, tuple) else it)
        pre[35] += ["s_waitcnt lgkmcnt(0)", "s_barrier"]
        g = 0
        for pos in (2*r, 2*r + 1):
            nu = GR[pos]
            for T in range(6):
                for c in (1, 2, 3):
                    d = acc2(nu, T)
                    A(mf(d, ar(AF + 4*nu) if c == 1 else ar(ax(pos, c)), vr(bfr(1, T)) if c == 1 else bx(c, T), d))
                    A.emit(pre[g]); g += 1
    stamp()
    A.emit(x_reads(4))
    A("s_waitcnt lgkmcnt(0)")
    for it in flush(4, True): A(it[1] if isinstance(it, tuple) else it)
    if cfg.keep:
        A("s_cmp_lg_u32 s20, s28\ns_cbranch_scc1 L_nokeep")
        for m in range(15): A(f"ds_write_b128 v32, {vr(KEEP + 8*m)} offset:{32768 + m*1024}")
        A("L_nokeep:")
        A("s_mov_b32 s14, 0x40000")
    A("s_mul_i32 s34, s27, 192\ns_and_b32 s35, s28, 1\ns_mul_i32 s35, s35, 96\ns_add_u32 s34, s34, s35\ns_lshl_b32 s35, s20, 5\ns_add_u32 s34, s34, s35\ns_mul_i32 s34, s34, 2560")
    A("s_mul_i32 s35, s25, 1280\ns_add_u32 s34, s34, s35\ns_mul_i32 s35, s23, 320\ns_add_u32 s34, s34, s35\ns_lshr_b32 s35, s28, 1\ns_mul_i32 s35, s35, 160\ns_add_u32 s34, s34, s35")
    A("s_add_u32 s16, s48, s34\ns_addc_u32 s17, s49, 0\ns_sub_u32 s18, 3932160, s34\ns_mov_b32 s19, 0x20000")
    A("s_lshl_b32 s52, s28, 16\ns_lshl_b32 s35, s20, 10\ns_add_u32 s52, s52, s35")
    if cfg.keep:
        for i in range(1, 4): A(f"s_add_u32 s34, s28, {i}\ns_and_b32 s34, s34, 3\ns_lshl_b32 s34, s34, 14\ns_add_u32 s{88+i}, s52, s34")
        A("v_add_u32 v16, s35, v32")
    else:
        for i in range(4): A(f"s_add_u32 s{88+i}, s52, {i*16384}")
    A("v_add_u32 v17, 6144, v32\nv_add_u32 v20, 12288, v32")
    stamp(2)
    A("s_waitcnt vmcnt(0) lgkmcnt(0)")
    A("s_barrier")
    stamp(2)
    signal("v15", "v22", "s100", "s42")
    if cfg.keep:
        for nu in range(5): A(f"ds_read_b128 {vr(40 + 16*nu)}, v16 offset:{32768 + nu*3072}")
    A("s_mov_b32 s98, 0")
    poll("s100", "s58", "0x80000", "s42", "0x100010")
    A("s_barrier")
    stamp(2)
    A("s_cmp_eq_u32 s20, 3\ns_cbranch_scc1 L_end")
    NS = 3 if cfg.keep else 4
    for nu in range(5):
        for src in range(4 - NS, 4):
            A(f"buffer_load_dwordx4 {vr(40 + 16*nu + 4*src)}, v{(32, 17, 20)[nu // 2]}, s[12:15], s{88+src} offen offset:{(nu % 2)*3072} {cfg.pld}")
    A("s_mov_b32 s55, 40960")
    A("s_mov_b32 s34, 0xffff0000")
    for nu in range(5):
        A(f"s_waitcnt vmcnt({NS*(4 - nu) + 2*nu}) lgkmcnt(0)")
        b = 40 + 16*nu; lo = 128;
        for k in range(16): A(f"v_lshlrev_b32 v{lo+k}, 16, v{b+k}")
        for k in range(16): A(f"v_and_b32 v{b+k}, s34, v{b+k}")
        for base in (lo, b):
            for z in range(2):
                A(f"v_pk_add_f32 v[{base+2*z}:{base+2*z+1}], v[{base+2*z}:{base+2*z+1}], v[{base+4+2*z}:{base+5+2*z}]")
                A(f"v_pk_add_f32 v[{base+8+2*z}:{base+9+2*z}], v[{base+8+2*z}:{base+9+2*z}], v[{base+12+2*z}:{base+13+2*z}]")
        for base in (lo, b):
            for z in range(2):
                A(f"v_pk_add_f32 v[{base+2*z}:{base+2*z+1}], v[{base+2*z}:{base+2*z+1}], v[{base+8+2*z}:{base+9+2*z}]")
        for z in range(4): A(f"v_cvt_pk_bf16_f32 v{b+4+z}, v{lo+z}, v{b+z}")
        A(f"buffer_store_dwordx2 {vr(b+4, 2)}, v34, s[16:19], 0 offen offset:{nu*32} {cfg.outst}")
        A(f"buffer_store_dwordx2 {vr(b+6, 2)}, v34, s[16:19], s55 offen offset:{nu*32} {cfg.outst}")
    stamp.finish()
    A("L_end:\ns_endpgm")

    A("L_fallback:")
    A("s_waitcnt vmcnt(0) lgkmcnt(0)")
    A("s_mov_b32 s4, s36\ns_mov_b32 s5, s37\ns_mov_b32 s6, 0x40000\ns_mov_b32 s7, 0x20000")
    A("s_mov_b32 s8, s38\ns_mov_b32 s9, s39\ns_mov_b32 s10, 0x40000\ns_mov_b32 s11, 0x20000")
    A("s_lshl_b32 s52, s20, 13\ns_add_u32 s52, s52, 131072")
    A("v_xor_b32 v58, v3, v4")
    A("v_lshlrev_b32 v59, 1, v4\nv_xor_b32 v59, v3, v59")
    A("v_lshlrev_b32 v60, 8, v4")
    for n in range(4):
        A(f"v_xor_b32 v61, {4*n}, v58")
        A(f"v_lshl_add_u32 v{40+n}, v61, 4, v60")
    for n in range(2):
        A(f"v_xor_b32 v61, {8*n}, v59")
        A(f"v_lshl_add_u32 v{44+n}, v61, 4, v60")
    A("s_sub_u32 s34, s52, s46")
    for c in range(4): A(f"v_add_u32 v{20+c}, s34, v{20+c}")
    A("s_sub_u32 s34, s52, s47")
    for dt in range(8): A(f"v_add_u32 v{24+dt}, s34, v{24+dt}")
    for i in range(192): A(f"v_accvgpr_write_b32 a{i}, 0")
    for k in range(24): A(f"v_mov_b32 v{L+k}, 0")
    A("s_mov_b32 s60, 0")
    A("L_fb_loop:")
    for isv in range(2):
        for n in range(8):
            A(f"s_add_u32 m0, s52, {n*1024}")
            A(f"s_add_u32 s55, s60, {n*1024}")
            A(f"buffer_load_dwordx4 v{(44 + (n & 1)) if isv else (40 + (n & 3))}, s[{8 if isv else 4}:{11 if isv else 7}], s55 offen lds")
        A("s_waitcnt vmcnt(0)")
        if isv:
            for dt in range(8):
                for e in range(2): A(v_read(0, dt, e))
        else:
            for kt in range(2):
                for c in range(4): A(k_read(0, kt, c))
        A("s_waitcnt lgkmcnt(0)")
    R0, R1 = 52, 53
    for t in range(3):
        for m in qk_mfmas(t, 0): A(m)
        A("s_nop 7")
        for Tl in range(2):
            T = 2*t + Tl; s0 = S[0] + 8*Tl
            A(f"v_max3_f32 v{R0}, v{s0}, v{s0+1}, v{s0+2}")
            A(f"v_max3_f32 v{R0}, v{R0}, v{s0+3}, v{s0+4}")
            A(f"v_max3_f32 v{R0}, v{R0}, v{s0+5}, v{s0+6}")
            A(f"v_max3_f32 v{R0}, v{R0}, v{s0+7}, 0")
            A(f"v_mov_b32 v{R1}, v{R0}\ns_nop 1\nv_permlane16_swap_b32 v{R0}, v{R1}\nv_max_f32 v{R0}, v{R0}, v{R1}")
            A(f"v_mov_b32 v{R1}, v{R0}\ns_nop 1\nv_permlane32_swap_b32 v{R0}, v{R1}\nv_max_f32 v{R0}, v{R0}, v{R1}")
            A(f"v_exp_f32 v{R1}, -v{R0}")
            for k in range(8): A(f"v_sub_f32 v{s0+k}, v{s0+k}, v{R0}")
            for k in range(4): A(f"v_sub_f32 v{NEGM+4*T+k}, v{NEGM+4*T+k}, v{R0}")
            for k in range(4): A(f"v_mul_f32 v{L+4*T+k}, v{L+4*T+k}, v{R1}")
            for k in range(0, 32, 4):
                for q in range(4): A(f"v_accvgpr_read_b32 v{54+q}, a{32*T + k + q}")
                for q in range(4): A(f"v_mul_f32 v{54+q}, v{54+q}, v{R1}")
                for q in range(4): A(f"v_accvgpr_write_b32 a{32*T + k + q}, v{54+q}")
        for e in range(16): A(EX(0, e))
        A("s_nop 0")
        for k in range(8): A(CV(0, k))
        A("s_nop 1")
        for m in pv_mfmas(t, 0): A(m)
    A("s_add_u32 s60, s60, 8192\ns_cmp_lt_u32 s60, 0x40000\ns_cbranch_scc1 L_fb_loop")
    A("s_nop 7")
    A("s_branch L_epi")

def gen(cfg):
    A = Asm()
    A("; @launch grid=(256,1,1) block=(256,1,1) lds=163840")
    A('.amdgcn_target "amdgcn-amd-amdhsa--gfx950"\n.text')
    gen_kernel(A, cfg)
    A('.section .rodata,"a"\n.p2align 6')
    A(f".amdhsa_kernel {NAME}_kernel\n  .amdhsa_next_free_vgpr 512\n  .amdhsa_next_free_sgpr 102\n"
      "  .amdhsa_accum_offset 256\n  .amdhsa_group_segment_fixed_size 0\n  .amdhsa_kernarg_size 104\n"
      "  .amdhsa_user_sgpr_count 2\n  .amdhsa_user_sgpr_kernarg_segment_ptr 1\n"
      "  .amdhsa_system_sgpr_workgroup_id_x 1\n.end_amdhsa_kernel")
    return A.text()

if __name__ == "__main__":
    cfg = Cfg()
    for a in sys.argv[2:]:
        k, v = a.split("=")
        old = getattr(cfg, k)
        setattr(cfg, k, type(old)(int(v)) if isinstance(old, (bool, int)) else v.replace('+', ' '))
    open(sys.argv[1], "w").write(gen(cfg))
```

```python
import sys, struct, math
NAME = "concat_heads__mha_block_cached__gqa_block_cached__near_ridge"
def f32bits(x): return struct.unpack("<I", struct.pack("<f", x))[0]

class Cfg:
    stamps = 0
    kv_flags = "sc1 nt"; xld = ''; wqld = ''; pfl = 'nt'
    ost = 'sc1'; old = 'sc1'; wold = ''; pst = 'sc1'; pld = 'sc1'; wopfl = ''; outst = ''
    wopf = 4
    force_fb = False
    thr_log2 = 40
    cpf = 1
    xwpf = 0
    qchain = 1
    qdsp = 3
    rot = 2
    rotd = 16
    wrot = 0
    wsg = 7
    acq = 0
    psleep = 2
    rescue = 64
    lag = 8
    qrot = 2
    cpf2 = 0
    ramp = 0
    dpos = -5
    wpat = '5'
    win = 1
    xp = 0
    nearly = 2
    keep = 1
    tlb = 1
    swin = 0
    swin2 = 0
    swk = 4
    obsteps = 2
    sigb = 3
    xw0 = 20
    xwsp = 2
    p2x = 0
    w5it = 0
    wramp = '777733'
    kvq = 2
    early = 0
    barg = '70,50,30,10'
    slabst = 0
    ssk = 0
    ss0 = 0
    ssr = 0
    ssn = 1
    sparse1 = 1
    pvord = 1
    wlate = 0
    wmode = 3
    stride = 1
    kvpf = 0
    kvpfl = ''
    kvpf0 = 0
    kvpf1 = 7
    pat = 3
    sigstep = 0
    no_dma = False; no_bar = False; q_nodma = False

class Asm:
    def __init__(s): s.l = []; s.vm = []
    def __call__(s, x): s.l.append(x)
    def vmem(s, x, tag): s.l.append(x); s.vm.append(tag)
    def vm_after(s, tags):
        last = -1
        for i, t in enumerate(s.vm):
            if t in tags: last = i
        assert last >= 0, tags
        return min(63, len(s.vm) - 1 - last)
    def emit(s, items):
        for it in items:
            if isinstance(it, tuple): s.vmem(it[0], it[1])
            elif callable(it): it()
            else: s(it)
    def text(s): return "\n".join(s.l) + "\n"

def mf(d, a, b, c): return f"v_mfma_f32_16x16x32_bf16 {d}, {a}, {b}, {c}"
def vr(b, n=4): return f"v[{b}:{b+n-1}]" if n > 1 else f"v{b}"
def ar(b, n=4): return f"a[{b}:{b+n-1}]" if n > 1 else f"a{b}"
STAMP_BASE = 64 << 20
PBASE = 32 << 20
MBOX = 30 << 20

class Stamper:
    def __init__(s, A, cfg): s.A = A; s.cfg = cfg; s.n = 0
    def __call__(s, mode=47):
        if s.cfg.stamps & mode:
            s.A(f"s_memrealtime s[{64+4*s.n}:{65+4*s.n}]\ns_memtime s[{66+4*s.n}:{67+4*s.n}]"); s.n += 1
    def finish(s):
        A = s.A
        if not s.cfg.stamps: return
        A("s_waitcnt vmcnt(0)")
        s(63)
        assert s.n <= 7
        A("s_waitcnt lgkmcnt(0)")
        A(f"s_add_u32 s44, s44, {STAMP_BASE}\ns_addc_u32 s45, s45, 0\ns_mov_b32 s46, 0x100000\ns_mov_b32 s47, 0x20000")
        A("s_lshl_b32 s34, s2, 2\ns_add_u32 s34, s34, s20\ns_lshl_b32 s34, s34, 6")
        A("v_mov_b32 v1, s34")
        A(f"v_mov_b32 v2, {s.n}\nv_mov_b32 v3, s59\nbuffer_store_dwordx2 v[2:3], v1, s[44:47], 0 offen offset:56\ns_nop 1")
        for k in range(s.n):
            A(f"v_mov_b32 v2, s{64+4*k}\nv_mov_b32 v3, s{66+4*k}")
            A(f"buffer_store_dwordx2 v[2:3], v1, s[44:47], 0 offen offset:{8*k}")
            A("s_nop 1")

XBUF = [114688, 139264]
WSLOT = [2, 0, 1]

def gen_kernel(A, cfg):
    K1 = NAME + "_kernel"
    A(f".globl {K1}\n.p2align 8\n.type {K1},@function\n{K1}:")
    A("s_cmp_ge_u32 s2, 256\ns_cbranch_scc1 L_end")
    stamp = Stamper(A, cfg)
    stamp(63)
    A("s_bfe_u32 s25, s2, 0x10002")
    A("s_mul_i32 s28, s25, 40")
    A("s_add_u32 s62, s0, s28\ns_addc_u32 s63, s1, 0")
    A("s_load_dwordx4 s[36:39], s[62:63], 0")
    A("s_load_dwordx4 s[40:43], s[62:63], 16")
    A("s_load_dwordx2 s[44:45], s[0:1], 96")
    A("s_load_dwordx2 s[92:93], s[62:63], 32")
    if cfg.cpf:
        A("s_getpc_b64 s[88:89]")
        A("L_pc:")
        A("s_mov_b32 s90, L_end - L_pc\ns_mov_b32 s91, 0x20000")
        A("v_lshlrev_b32 v54, 7, v0")
        A.vmem("buffer_load_dword v56, v54, s[88:91], 0 offen", "CPF")
    A("s_lshr_b32 s24, s2, 3")
    A("s_and_b32 s28, s2, 3")
    A("s_and_b32 s23, s24, 3")
    A("s_lshl_b32 s26, s28, 2\ns_add_u32 s26, s26, s23")
    A("s_lshr_b32 s27, s24, 2")
    A("v_lshrrev_b32 v1, 6, v0")
    A("v_and_b32 v2, 63, v0")
    A("v_readfirstlane_b32 s20, v1")
    A("v_and_b32 v3, 15, v2\nv_lshrrev_b32 v4, 4, v2")
    A("v_lshrrev_b32 v10, 3, v2\nv_and_b32 v11, 7, v2")
    A("v_xor_b32 v13, v11, v4")
    A("v_mul_u32_u24 v14, 1280, v10")
    A("v_lshl_add_u32 v58, v13, 4, v14")
    A("v_xor_b32 v13, 4, v13")
    A("v_lshl_add_u32 v59, v13, 4, v14")
    A("v_add_u32 v59, 9216, v59")
    A("v_add_u32 v60, 18432, v58\nv_add_u32 v61, 18432, v59")
    A("v_lshlrev_b32 v10, 2, v4\nv_xor_b32 v10, v3, v10")
    A("v_lshlrev_b32 v11, 13, v4")
    A("v_lshl_add_u32 v6, v10, 4, v11")
    for n in range(1, 4): A(f"v_add_u32 v{6+n}, {n*31744}, v6")
    A("s_lshr_b32 s21, s20, 1\ns_and_b32 s22, s20, 1")
    A("s_lshl_b32 s29, s26, 1\ns_add_u32 s29, s29, s21")
    A("s_lshl_b32 s46, s21, 16")
    A("s_mul_i32 s48, s20, 6144")
    A("s_lshl_b32 s54, s22, 13\ns_add_u32 s54, s54, s46")
    A("s_mul_i32 s34, s27, 245760\ns_mul_i32 s49, s20, 61440")
    A("s_lshl_b32 s35, s29, 8\ns_lshl_b32 s53, s22, 18")
    A("s_waitcnt lgkmcnt(0)")
    A("s_add_u32 s4, s36, s34\ns_addc_u32 s5, s37, 0\ns_mov_b32 s6, 245760\ns_mov_b32 s7, 0x20000")
    A("s_add_u32 s8, s42, s35\ns_addc_u32 s9, s43, 0\ns_sub_u32 s10, 5242880, s35\ns_mov_b32 s11, 0x20000")
    if cfg.qrot == 2: A("s_add_u32 s34, s27, s23\ns_and_b32 s34, s34, 1\ns_mul_i32 s34, s34, 5")
    elif cfg.qrot == 3: A("s_add_u32 s34, s27, s23\ns_and_b32 s34, s34, 3\ns_mul_i32 s34, s34, 5\ns_lshr_b32 s34, s34, 1")
    elif cfg.qrot:
        A("s_mul_i32 s34, s27, 5\ns_mul_i32 s35, s23, 10\ns_add_u32 s34, s34, s35\ns_lshr_b32 s34, s34, 2")
        A("s_cmp_ge_u32 s34, 10\ns_cselect_b32 s35, 10, 0\ns_sub_u32 s34, s34, s35")
    else: A("s_mov_b32 s34, 0")
    A("s_lshl_b32 s50, s34, 7\ns_add_u32 s50, s50, s49\ns_add_u32 s96, s49, 1280")
    A("s_lshl_b32 s51, s34, 19\ns_add_u32 s51, s51, s53\ns_add_u32 s97, s53, 5242880")
    def dma_x(xi):
        r = []
        for n in range(6):
            if n % 4 == 0:
                r += [f"s_add_u32 m0, s48, {XBUF[xi % 2] + n*1024}", f"s_add_u32 s55, s50, {n*10240}"]
            r.append((f"buffer_load_dwordx4 v{58 + (n & 3)}, s[4:7], s55 offen offset:{(n & 3)*1024} {cfg.xld} lds", f"X{xi}"))
        r += ["s_add_u32 s50, s50, 128", "s_cmp_eq_u32 s50, s96\ns_cselect_b32 s50, s49, s50"]
        return r
    def dma_w(sg):
        r = []
        for n in range(8):
            if n % 4 == 0:
                r += [f"s_add_u32 m0, s54, {WSLOT[sg % 3]*16384 + n*1024}", f"s_add_u32 s55, s51, {n*4*8192}"]
            r.append((f"buffer_load_dwordx4 v{6 + (n & 3)}, s[8:11], s55 offen offset:{(n & 3)*1024} {cfg.wqld} lds", f"W{sg}"))
        r += ["s_add_u32 s51, s51, 0x80000", "s_cmp_eq_u32 s51, s97\ns_cselect_b32 s51, s53, s51"]
        return r
    def dma_kv(step, nmax=8):
        r = []
        for n in range(nmax):
            if n % 4 == 0:
                r += [f"s_add_u32 m0, s54, {(step % 4)*16384 + n*1024}", "s_and_b32 s55, s30, 0x3ffff", "s_add_u32 s30, s30, s101" if n else "s_add_u32 s30, s30, 4096"]
            r.append((f"buffer_load_dwordx4 v{16 + (n & 3)}, s[12:15], s55 offen offset:{(n & 3)*1024} {cfg.kv_flags} lds", f"KV{step}"))
        return r
    A.emit(dma_x(0)); A.emit(dma_w(0))
    A("s_lshl_b32 s34, s27, 5\ns_add_u32 s34, s34, s29\ns_lshl_b32 s34, s34, 18")
    A("s_add_u32 s36, s38, s34\ns_addc_u32 s37, s39, 0")
    A("s_add_u32 s38, s40, s34\ns_addc_u32 s39, s41, 0")
    A("s_cmp_eq_u32 s22, 1")
    A("s_cselect_b32 s12, s38, s36\ns_cselect_b32 s13, s39, s37")
    A("s_mov_b32 s14, 0x40000\ns_mov_b32 s15, 0x20000")
    A("s_cselect_b64 s[32:33], -1, 0")
    A("v_xor_b32 v11, v3, v4")
    A("v_lshlrev_b32 v10, 1, v4\nv_xor_b32 v10, v3, v10")
    A("v_lshlrev_b32 v12, 8, v4")
    for n in range(4):
        A(f"v_xor_b32 v13, {4*n}, v11")
        A(f"v_xor_b32 v14, {8*(n&1)}, v10")
        A("v_cndmask_b32 v13, v13, v14, s[32:33]")
        A(f"v_lshl_add_u32 v{16+n}, v13, 4, v12")
    A("v_lshlrev_b32 v12, 8, v3\nv_add_u32 v12, s46, v12")
    for c in range(4):
        A(f"v_xor_b32 v13, {4*c}, v11")
        A(f"v_lshl_add_u32 v{20+c}, v13, 4, v12")
    A("v_lshrrev_b32 v10, 2, v3\nv_lshl_add_u32 v11, v4, 2, v10")
    A("v_and_b32 v12, 7, v11")
    A("v_lshlrev_b32 v11, 8, v11")
    A("v_and_b32 v13, 3, v3\nv_lshl_add_u32 v11, v13, 3, v11")
    A("s_add_u32 s47, s46, 8192")
    A("v_add_u32 v11, s47, v11")
    for dt in range(8):
        A(f"v_xor_b32 v14, {dt}, v12")
        A(f"v_lshl_add_u32 v{24+dt}, v14, 5, v11")
    A("v_lshlrev_b32 v32, 4, v2\nv_add_u32 v33, 4096, v32")
    A(f"s_mul_i32 s34, s22, 12288\ns_add_u32 s34, s34, {XBUF[0]}")
    A("v_lshrrev_b32 v11, 1, v3\nv_xor_b32 v11, v4, v11")
    A("v_lshlrev_b32 v12, 7, v3\nv_add_u32 v12, s34, v12")
    for s in range(2):
        A(f"v_xor_b32 v14, {4*s}, v11")
        A(f"v_lshl_add_u32 v{52+s}, v14, 4, v12")
    A("v_lshl_add_u32 v11, v4, 3, v10\nv_lshlrev_b32 v11, 8, v11")
    A("v_lshl_add_u32 v11, v13, 4, v11")
    A("v_add_u32 v11, s46, v11")
    for c in range(4):
        A(f"v_xor_b32 v14, {c}, v10")
        A(f"v_lshl_add_u32 v{40+c}, v14, 6, v11")
    if cfg.kvpf:
        lam = cfg.kvpf; sh = lam.bit_length() - 1
        A(f"v_lshrrev_b32 v55, {sh}, v2\nv_lshlrev_b32 v55, 13, v55\nv_and_b32 v14, {lam-1}, v2\nv_lshl_add_u32 v55, v14, 7, v55")
        npf = lam // 2
        kvpf_list = [[f"s_mov_b32 s50, {k*(64//lam)*8192}", (f"buffer_load_dword v56, v55, s[12:15], s50 offen {cfg.kvpfl}", "PF")] for k in range(npf)]
        nsl = cfg.kvpf1 - cfg.kvpf0 + 1
    if cfg.sparse1:
        A("v_and_b32 v14, 3, v2\nv_cmp_eq_u32 vcc, 0, v14\nv_mov_b32 v14, 0x3f803f80\ns_nop 0")
        for k in range(4): A(f"v_cndmask_b32 v{48+k}, 0, v14, vcc")
    else:
        for k in range(4): A(f"v_mov_b32 v{48+k}, 0x3f803f80")
    A("v_lshl_add_u32 v45, v4, 4, s46")
    cs = f32bits(128 ** -0.5 * math.log2(math.e))
    A(f"v_mov_b32 v46, 0x{cs:08x}\nv_mov_b32 v47, 0x{cs:08x}")
    A(f"s_mov_b32 s31, 0x{f32bits(2.0 ** cfg.thr_log2):08x}")
    A("s_lshl_b32 s40, s25, 3\ns_add_u32 s40, s40, s27")
    A("s_lshl_b32 s34, s40, 5\ns_add_u32 s34, s34, s29\ns_lshl_b32 s34, s34, 1\ns_add_u32 s34, s34, s22\ns_mul_i32 s34, s34, 24576")
    A("s_add_u32 s16, s44, s34\ns_addc_u32 s17, s45, 0\ns_movk_i32 s18, 0x6000\ns_mov_b32 s19, 0x20000")
    A("s_mov_b32 s59, 0")
    if cfg.rot:
        if cfg.rot == 1:
            A("s_lshl_b32 s30, s2, 1\ns_add_u32 s30, s30, s21\ns_mul_i32 s34, s30, 0x9E3779B1\ns_lshr_b32 s30, s34, 27\ns_lshl_b32 s30, s30, 13")
        else:
            A(f"s_add_u32 s30, s2, 1\ns_mul_i32 s34, s30, 0x9E3779B1\ns_lshr_b32 s30, s34, 27\ns_mul_i32 s35, s21, {cfg.rotd}\ns_add_u32 s30, s30, s35\ns_lshl_b32 s30, s30, 13")
        if cfg.stride: A("s_bfe_u32 s101, s34, 0x40017\ns_lshl_b32 s101, s101, 14\ns_add_u32 s101, s101, 4096")
        else: A("s_movk_i32 s101, 0x1000")
    else:
        A("s_mov_b32 s30, 0\ns_movk_i32 s101, 0x1000")
    if cfg.cpf:
        A("s_mov_b32 s34, 0x8000")
        A.vmem("buffer_load_dword v56, v54, s[88:91], s34 offen", "CPF")
    if cfg.wmode == 3:
        A("s_lshl_b32 s34, s26, 3\ns_add_u32 s34, s34, s27\ns_mul_i32 s34, s34, 40960")
        A("s_add_u32 s88, s92, s34\ns_addc_u32 s89, s93, 0\ns_mov_b32 s90, 40960\ns_mov_b32 s91, 0x20000")
        A("v_add_u32 v55, 0x8000, v54")
    if not cfg.early: A.emit(dma_x(1)); A.emit(dma_w(1))

    ACC = 64
    def acc(T, dt): return ACC + 32 * T + 4 * dt
    def fa(dt, s): return 80 + 8 * dt + 4 * s
    def fb(p, T, s): return (144 if p == 0 else 192) + 8 * T + 4 * s
    def qa_reads(sg, dt):
        c, e = dt >> 1, dt & 1
        return [f"ds_read_b64_tr_b16 {ar(fa(dt, s) + 2*f, 2)}, v{40+c} offset:{WSLOT[sg % 3]*16384 + s*8192 + f*1024 + 8*e}"
                for s in range(2) for f in range(2)]
    def qb_read(sg, T, s):
        return f"ds_read_b128 {ar(fb(sg % 2, T, s))}, v{52 + s} offset:{(sg % 2)*24576 + T*2048}"
    A(f"s_waitcnt vmcnt({A.vm_after(['X0', 'W0'])})")
    A("s_barrier")
    for T in range(6):
        for s in range(2): A(qb_read(0, T, s))
    for dt in range(8):
        for r in qa_reads(0, dt): A(r)
    fill = [f"v_accvgpr_write_b32 a{i}, 0" for i in range(80)]
    pend = (dma_x(1) + dma_w(1) if cfg.early else []) + dma_w(2)
    BG = [int(x) for x in cfg.barg.split(",")] if cfg.early else [10]
    for sg in range(10):
        last = sg == 9
        slots = [[] for _ in range(96)]
        if not last:
            need = [f"W{sg+1}", f"X{sg+1}"]
            G = BG[min(sg, len(BG) - 1)]
            slots[G] = ["WAIT"]; slots[G + 1] = ["BAR"]
            if G > 11: slots[11] = ["s_waitcnt lgkmcnt(0)"]
            rl = [(11, r) for r in qa_reads(sg + 1, 0)]
            for T in range(6): rl += [(0, qb_read(sg + 1, T, 0)), (0, qb_read(sg + 1, T, 1))]
            for dt in range(1, 8): rl += [(12*dt + 11, r) for r in qa_reads(sg + 1, dt)]
            for g in range(G + 2, 96):
                k = 0
                while rl and rl[0][0] <= g and (k < 2 or g == 95):
                    slots[g].append(rl.pop(0)[1]); k += 1
            assert not rl
        else:
            fill += [f"v_accvgpr_write_b32 a{i}, 0" for i in range(144, 192)]
            for n in range(5):
                fill += [f"v_add_u32 v14, {64*n}, v2", "v_mul_u32_u24 v15, 3277, v14", "v_lshrrev_b32 v15, 16, v15",
                         "v_mul_u32_u24 v34, 20, v15", "v_sub_u32 v14, v14, v34", "v_bfe_u32 v34, v15, 2, 1", "v_lshlrev_b32 v34, 1, v34",
                         "v_xor_b32 v14, v14, v34", "v_mul_u32_u24 v15, 1280, v15", f"v_lshl_add_u32 v{5+n}, v14, 4, v15"]
                if 0 < n < 4: fill.append(f"v_subrev_u32 v{5+n}, {1024*n}, v{5+n}")
        if cfg.slabst:
            A(f"s_memrealtime s[60:61]\ns_waitcnt lgkmcnt(0)\nv_writelane_b32 v57, s60, {sg + 1}")
        A("s_waitcnt lgkmcnt(15)")
        order = [(T, s) for T in range(6) for s in range(2)] if cfg.qchain else [(T, s) for s in range(2) for T in range(6)]
        g = 0
        for dt in range(8):
            for T, s in order:
                d = vr(acc(T, dt))
                A(mf(d, ar(fa(dt, s)), ar(fb(sg % 2, T, s)), "0" if sg == 0 and s == 0 else d))
                used = 0
                for x in slots[g]:
                    if x == "WAIT": A(f"s_waitcnt vmcnt({A.vm_after(need)}) lgkmcnt(0)"); used = 2
                    elif x == "BAR":
                        A("s_barrier"); used = 2
                        if sg + 2 < 10: pend += dma_x(sg + 2)
                        if cfg.kvpf and cfg.kvpf0 <= sg <= cfg.kvpf1:
                            r = sg - cfg.kvpf0
                            for k in range(r * npf // nsl, (r + 1) * npf // nsl): pend += kvpf_list[k]
                        if sg + 3 < 10: pend += dma_w(sg + 3)
                        if cfg.wmode == 3 and sg == cfg.wsg:
                            pend += [(f"buffer_load_dword v56, v54, s[88:91], 0 offen {cfg.wopfl}", "KVPF"), (f"buffer_load_dword v56, v55, s[88:91], 0 offen {cfg.wopfl}", "KVPF")]
                        if sg == (7 if cfg.kvq == 2 else 8) and cfg.kvq: pend += dma_kv(0)
                        if sg == 8 and cfg.kvq == 2: pend += dma_kv(1)
                    else: A(x); used = 2
                if last and g == 11: A("s_waitcnt lgkmcnt(0)")
                if last and g % 12 == 11 and g < 95:
                    fill += [f"v_accvgpr_write_b32 a{i}, 0" for i in range(fa(dt, 0), fa(dt, 0) + 8)]
                if not used and pend:
                    if isinstance(pend[0], str): A(pend.pop(0))
                    elif g % (cfg.qdsp if sg >= len(BG) - 1 else 2) == 0:
                        it = pend.pop(0); used = 2
                        if cfg.q_nodma and not it[1].startswith("KV"): A.vm.append(it[1])
                        else: A.vmem(*it)
                if not used:
                    for _ in range(2):
                        if fill: A(fill.pop(0))
                g += 1
    assert not pend, len(pend)
    fill += [f"v_accvgpr_write_b32 a{i}, 0" for i in range(fa(7, 0), fa(7, 0) + 8)]
    A("s_barrier")
    stamp(1)
    if cfg.slabst:
        A(f"s_memrealtime s[60:61]\ns_waitcnt lgkmcnt(0)\nv_writelane_b32 v57, s60, 11\nv_writelane_b32 v57, s64, 0")
        A(f"s_add_u32 s88, s44, {STAMP_BASE + 0x80000}\ns_addc_u32 s89, s45, 0\ns_mov_b32 s90, 0x100000\ns_mov_b32 s91, 0x20000")
        A("s_lshl_b32 s34, s2, 10\nv_lshlrev_b32 v62, 2, v0")
        A.vmem("buffer_store_dword v57, v62, s[88:91], s34 offen", "ST")
        A("s_nop 3")
    A("s_load_dwordx4 s[48:51], s[0:1], 80")
    A("s_lshl_b32 s41, s40, 2\ns_add_u32 s42, s41, s23\ns_add_u32 s41, s41, s28")
    A(f"s_add_u32 s8, s44, {MBOX}\ns_addc_u32 s9, s45, 0\ns_mov_b32 s10, 0x8000\ns_mov_b32 s11, 0x20000")
    A("s_lshl_b32 s99, s41, 8\ns_lshl_b32 s100, s42, 8\ns_add_u32 s100, s100, 0x4000")
    A("v_mov_b32 v57, 0")
    A.vmem("buffer_load_dword v62, v57, s[8:11], s99 offen sc1", "SNAP")
    A.vmem("buffer_load_dword v63, v57, s[8:11], s100 offen sc1", "SNAP")
    for st in range(cfg.kvq, 2): A.emit(dma_kv(st))
    for z in fill: A(z)
    for k in range(96):
        A(f"v_pk_mul_f32 v[{ACC+2*k}:{ACC+2*k+1}], v[{ACC+2*k}:{ACC+2*k+1}], v[46:47]")
        if k >= 1: A(f"v_cvt_pk_bf16_f32 v{ACC+k-1}, v{ACC+2*k-2}, v{ACC+2*k-1}")
    A(f"v_cvt_pk_bf16_f32 v{ACC+95}, v{ACC+190}, v{ACC+191}")
    def qf(T, c): return ACC + 16 * T + 4 * c
    A("s_waitcnt lgkmcnt(0)")
    if cfg.tlb:
        A.vmem("buffer_load_dword v39, v57, s[16:19], 0 offen sc1", "TLB")
        A(f"s_lshl_b32 s34, s42, 18\ns_add_u32 s34, s34, {PBASE + 15360}")
        A("s_add_u32 s4, s44, s34\ns_addc_u32 s5, s45, 0\ns_movk_i32 s6, 0x100\ns_mov_b32 s7, 0x20000")
        A.vmem("buffer_load_dword v39, v57, s[4:7], 0 offen sc1", "TLB")
        A("s_mul_i32 s34, s27, 491520\ns_and_b32 s35, s28, 1\ns_mul_i32 s35, s35, 245760\ns_add_u32 s34, s34, s35\ns_mul_i32 s35, s20, 61440\ns_add_u32 s34, s34, s35")
        A("s_add_u32 s4, s48, s34\ns_addc_u32 s5, s49, 0")
        A.vmem("buffer_load_dword v39, v57, s[4:7], 0 offen sc1", "TLB")
        A("s_mov_b32 s4, s50\ns_mov_b32 s5, s51")
        A.vmem("buffer_load_dword v39, v57, s[4:7], 0 offen sc1", "TLB")

    S = [160, 176]; P = [192, 200]; NEGM = 208; L = 232; ONES = 48
    KF = 192; VF = 224
    def O(T, dt): return 32 * T + 4 * dt
    def k_read(st, kt, c): return f"ds_read_b128 {ar(KF + 16*kt + 4*c)}, v{20+c} offset:{st*16384 + kt*4096}"
    def v_read(st, dt, e): return f"ds_read_b64_tr_b16 {ar(VF + 4*dt + 2*e, 2)}, v{24+dt} offset:{st*16384 + e*4096}"
    def qk_mfmas(t, par):
        r = []
        for Tl in range(2):
            T = 2*t + Tl
            for kt in range(2):
                d = vr(S[par] + 8*Tl + 4*kt)
                for c in range(4):
                    r.append(mf(d, ar(KF + 16*kt + 4*c), vr(qf(T, c)), vr(NEGM + 4*T) if c == 0 else d))
        return r
    def pv_mfmas(t, par):
        r = []
        if cfg.pvord:
            for dt in range(8):
                for Tl in range(2):
                    T = 2*t + Tl
                    r.append(mf(ar(O(T, dt)), ar(VF + 4*dt), vr(P[par] + 4*Tl), ar(O(T, dt))))
            for Tl in range(2):
                T = 2*t + Tl
                r.append(mf(vr(L + 4*T), vr(ONES), vr(P[par] + 4*Tl), vr(L + 4*T)))
            return r
        for Tl in range(2):
            T = 2*t + Tl
            for dt in range(8):
                r.append(mf(ar(O(T, dt)), ar(VF + 4*dt), vr(P[par] + 4*Tl), ar(O(T, dt))))
            r.append(mf(vr(L + 4*T), vr(ONES), vr(P[par] + 4*Tl), vr(L + 4*T)))
        return r
    def EX(par, e): return f"v_exp_f32 v{S[par]+e}, v{S[par]+e}" if not cfg.xp & 1 else "s_nop 1"
    def CV(par, k): return f"v_cvt_pk_bf16_f32 v{P[par]+k}, v{S[par]+2*k}, v{S[par]+2*k+1}" if not cfg.xp & 2 else f"v_mov_b32 v{P[par]+k}, 0x3f803f80"
    A(f"s_waitcnt vmcnt({A.vm_after(['KV0'])})")
    A("s_barrier")
    for c in range(4): A(f"ds_read_b128 {vr(S[1] + 4*c)}, v45 offset:{64*c}")
    for kt in range(2):
        for c in range(4): A(k_read(0, kt, c))
    for k in range(24): A(f"v_mov_b32 v{L+k}, 0")
    A("s_waitcnt lgkmcnt(8)")
    for k in range(16): A(f"v_xor_b32 v{S[1]+k}, 0x80008000, v{S[1]+k}")
    A("s_nop 1")
    NST = (5 if cfg.win else 8)
    qend = 8 + cfg.lag + NST
    assert qend >= 16
    kv2 = dma_kv(2, min(8, qend - 16)); kv3 = dma_kv(3, max(0, qend - 24))
    gam = "v14"
    misc = ["v_and_b32 v14, 1, v4", "v_xor_b32 v15, 1, v14",
            "v_lshrrev_b32 v34, 2, v3", "v_lshl_add_u32 v34, v4, 2, v34", "v_mul_u32_u24 v34, 320, v34",
            "v_and_b32 v35, 3, v3", "v_lshl_add_u32 v34, v35, 3, v34", "v_add_u32 v34, s46, v34",
            "v_lshl_add_u32 v36, v14, 5, v34", "v_lshl_add_u32 v37, v15, 5, v34",
            "v_add_u32 v38, 128, v37", "v_add_u32 v39, 192, v36",
            "MASK",
            "v_cndmask_b32 v10, v36, v38, s[32:33]", "v_cndmask_b32 v11, v37, v39, s[32:33]",
            "v_cndmask_b32 v12, v38, v36, s[32:33]", "v_cndmask_b32 v13, v39, v37, s[32:33]",
            "v_mul_u32_u24 v34, 2560, v3", "v_lshl_add_u32 v34, v4, 3, v34",
            "v_lshlrev_b32 v35, 7, v0", "v_add_u32 v36, 0x8000, v35"]
    if cfg.wmode == 1:
        misc = misc[:-2] + ["v_mul_u32_u24 v35, 12, v1", "v_add_u32 v35, v35, v2", "v_lshlrev_b32 v35, 7, v35",
            "v_cmp_gt_u32 vcc, 12, v2", "v_mov_b32 v36, 0x100000", "s_nop 0", "v_cndmask_b32 v35, v36, v35, vcc", "s_mov_b32 s60, 0"]
    def misc_step():
        for _ in range(2):
            if misc:
                m = misc.pop(0)
                if m == "MASK": A("s_cmp_eq_u32 s21, 1\ns_cselect_b64 s[32:33], -1, 0")
                else: A(m)
    for T in range(6):
        for c in range(4):
            d = vr(NEGM + 4*T)
            A(mf(d, vr(S[1] + 4*c), vr(qf(T, c)), "0" if c == 0 else d))
            if kv2 and (isinstance(kv2[0], str) or c % 2 == 0): A.emit([kv2.pop(0)])
            else: misc_step()
    assert not kv2
    A("s_waitcnt lgkmcnt(0)")
    for k, m in enumerate(qk_mfmas(0, 0)):
        A(m)
        if kv3 and (isinstance(kv3[0], str) or k % 2 == 0): A.emit([kv3.pop(0)])
        else: misc_step()
    A.emit(kv3)
    while misc: misc_step()
    A("s_lshl_b32 s34, s26, 3\ns_add_u32 s34, s34, s27\ns_mul_i32 s34, s34, 40960")
    A("s_add_u32 s88, s92, s34\ns_addc_u32 s89, s93, 0\ns_mov_b32 s90, 40960\ns_mov_b32 s91, 0x20000")
    A("s_lshl_b32 s34, s28, 10\ns_lshl_b32 s35, s21, 7\ns_add_u32 s34, s34, s35\ns_lshl_b32 s35, s22, 4\ns_add_u32 s34, s34, s35")
    A("s_mul_i32 s34, s34, 1280\ns_mul_i32 s35, s23, 320\ns_add_u32 s34, s34, s35")
    A("s_add_u32 s92, s92, s34\ns_addc_u32 s93, s93, 0\ns_sub_u32 s94, 5242880, s34\ns_mov_b32 s95, 0x20000")
    if cfg.wmode == 2:
        A(f"buffer_load_dword v39, v35, s[88:91], 0 offen {cfg.wopfl}")
        A(f"buffer_load_dword v39, v36, s[88:91], 0 offen {cfg.wopfl}")
    for e in range(16): A(EX(0, e))
    for k in range(4): A(CV(0, k))
    A("s_mul_i32 s96, s23, 327680")
    A("s_mov_b32 s57, 7\ns_mov_b64 vcc, -1")
    if cfg.wramp: A(f"s_mov_b32 s61, 0x{cfg.wramp[::-1]}")
    if cfg.cpf2:
        tgt = "L_peel" if cfg.cpf2 == 2 else "L_epi"
        A("s_getpc_b64 s[4:5]\nL_pc2:")
        A(f"s_add_u32 s4, s4, {tgt} - L_pc2\ns_addc_u32 s5, s5, 0\ns_mov_b32 s6, L_end - {tgt}\ns_mov_b32 s7, 0x20000")
    if cfg.ssr:
        A(f"s_mul_i32 s61, s2, 0x9E3779B1\ns_lshr_b32 s61, s61, 16\ns_mul_i32 s61, s61, {cfg.ssr}\ns_lshr_b32 s61, s61, 16\ns_add_u32 s61, s61, {cfg.ss0}\ns_bfm_b32 s61, s61, 0")
    stamp(1)
    def w2_dma(c, sreg, tag, coff=1):
        r = []
        for n in range(5):
            if n == 0: r += [f"s_add_u32 m0, s54, {c*16384}", f"s_add_u32 s55, {sreg}, {c*40960*coff}"]
            if n == 4: r += [f"s_add_u32 m0, s54, {c*16384 + 4096}", "s_nop 0"]
            r.append((f"buffer_load_dwordx4 v{5+n}, s[92:95], s55 offen offset:{(n & 3)*1024} {cfg.wold} lds", tag))
        return r
    N = cfg.lag
    rq = []
    for q in range(8*29 + cfg.lag + NST, 256):
        if q % 4 == 0:
            rq += [f"s_add_u32 m0, s54, {((q >> 3) % 4)*16384 + (q & 4)*1024}", "s_and_b32 s55, s30, 0x3ffff",
                   "s_add_u32 s30, s30, s101" if q & 4 else "s_add_u32 s30, s30, 4096"]
        rq.append((f"buffer_load_dwordx4 v{16 + (q & 3)}, s[12:15], s55 offen offset:{(q & 3)*1024} {cfg.kv_flags} lds", f"KV{q >> 3}"))
    wq = [0, 1, 2, 3]
    def body(u, last):
        t, par, j = u % 3, u % 2, u // 3
        t1, par1 = (u + 1) % 3, (u + 1) % 2
        fin = last and u == 11
        kv_here = bool(rq) and cfg.ramp
        ms = qk_mfmas(t1, par1) + pv_mfmas(t, par)
        pre = [[] for _ in range(34)]
        val = [[] for _ in range(34)]
        val[0] = [CV(par, 4), CV(par, 5)]; val[1] = [CV(par, 6), CV(par, 7)]
        for e in range(16): val[16 + e] = [EX(par1, e)]
        val[32] = [CV(par1, 0), CV(par1, 1)]; val[33] = [CV(par1, 2), CV(par1, 3)]
        jj = (28 + j) if last else j
        iv = jj if t == 2 else jj - 1
        def q_of(i): return 8 * (iv + 2) + N + i
        def live(i): return (not last) or q_of(i) < 256
        def dma(i, g):
            q = q_of(i)
            if live(i):
                pre[g].append((f"buffer_load_dwordx4 v{16 + (q & 3)}, s[12:15], s55 offen offset:{(q & 3)*1024} {cfg.kv_flags} lds", f"KV{q >> 3}"))
        stn = (j + 1) % 4
        if t == 1:
            if not last:
                if cfg.ssr:
                    pre[3] += ["s_bitcmp1_b32 s61, 0"]
                    pre[4] += [f"s_cbranch_scc0 L_ss{u}", f"s_waitcnt vmcnt({cfg.ssn})", f"L_ss{u}:"]
                    pre[7] += ["s_lshr_b32 s61, s61, 1"]
                if cfg.ssk: pre[4] += [f"s_cbranch_vccz L_ss{u}", f"s_waitcnt vmcnt({cfg.ssn})", f"L_ss{u}:"]
                pre[5].append(f"s_waitcnt vmcnt({N})")
            elif j < 3: pre[5].append(lambda: A(f"s_waitcnt vmcnt({A.vm_after([f'KV{29+j}'])})"))
            pre[6].append("s_barrier")
            if not (last and j == 3):
                for kt in range(2):
                    for c in range(4): pre[8 + 4*kt + c].append(k_read(stn, kt, c))
                pre[33].append("s_waitcnt lgkmcnt(0)")
        def inc(q): return "s_add_u32 s30, s30, s101" if q & 4 else "s_add_u32 s30, s30, 4096"
        if cfg.win and not (last and cfg.ramp):
            assert N % 4 == 0
            sites = {1: [(-1, 7, 2), (0, 0, 18), (0, 1, 30)], 2: [(0, 2, 8), (0, 3, 20), (0, 4, 31)], 0: [(-1, 5, 11), (-1, 6, 24)]}[t]
            for off, i, g in sites:
                q = 8 * (jj + off + 2) + N + i
                if last and q >= 256: continue
                kv_here = True
                if q % 4 == 0:
                    pre[g - 3].append(f"s_add_u32 m0, s54, {((q >> 3) % 4)*16384 + (q & 4)*1024}")
                    pre[g - 2].append("s_and_b32 s55, s30, 0x3ffff")
                    pre[g + 1].append(inc(q))
                w = int(cfg.wpat[(8 * ((jj + off) % 4) + i) % len(cfg.wpat)])
                if cfg.wramp and not last:
                    cls = {0: 0, 4: 1, 2: 2, 6: 2}.get(i, 3)
                    pre[g - 1].append(f"s_bitcmp1_b32 s61, {cls}\ns_cbranch_scc0 L_w{u}_{i}\ns_waitcnt vmcnt(3)\nL_w{u}_{i}:")
                    if cfg.w5it: pre[g - 1].append(f"s_cbranch_vccz L_v{u}_{i}\ns_waitcnt vmcnt(4)\nL_v{u}_{i}:")
                pre[g - 1].append(f"s_waitcnt vmcnt({w - 1})")
                pre[g].append((f"buffer_load_dwordx4 v{16 + (q & 3)}, s[12:15], s55 offen offset:{(q & 3)*1024} {cfg.kv_flags} lds", f"KV{q >> 3}"))
        if t in (1, 2) and not (last and cfg.ramp) and not cfg.win:
            iv = jj
            g = (0 if N % 4 == 0 else 2) + cfg.dpos
            def put(gg, it):
                if t == 2 and gg >= 0: pre[gg].append(it)
                if t == 1 and gg < 0: pre[34 + gg].append(it)
            for i in range(8):
                q = 8 * (iv + 2) + N + i
                lv = (not last) or q < 256
                if q % 4 == 0:
                    if lv:
                        put(g, f"s_add_u32 m0, s54, {((q >> 3) % 4)*16384 + (q & 4)*1024}")
                        put(g + 1, "s_and_b32 s55, s30, 0x3ffff")
                        put(g + 1, inc(q))
                    g += 2
                if lv: put(g, (f"buffer_load_dwordx4 v{16 + (q & 3)}, s[12:15], s55 offen offset:{(q & 3)*1024} {cfg.kv_flags} lds", f"KV{q >> 3}"))
                g += 1 if i % 3 else 2
            assert g <= 33, g
            iv = jj if t == 2 else jj - 1
        if last and cfg.ramp and rq:
            gl = {0: list(range(10, 15)) + list(range(16, 32)), 1: [2, 3, 4, 7] + list(range(16, 32)), 2: list(range(2, 32))}[t]
            for g in gl:
                if not rq: break
                if isinstance(rq[0], tuple) and g >= 16 and g % 2: continue
                pre[g].append(rq.pop(0))
        if t == 0:
            for dt in range(8):
                pre[2 + dt] += [v_read(j % 4, dt, 0), v_read(j % 4, dt, 1)]
            pre[15].append("s_waitcnt lgkmcnt(0)")
        if last and ((not kv_here and not rq) if cfg.ramp else (not kv_here and u >= 2 + (16 - N) * 3 // 8)) and wq and wq[0] <= iv - 28 and t != 1 and u >= cfg.wlate:
            c = wq.pop(0)
            w = w2_dma(c, "s96", f"W{c}")
            gs = (0, 1, 2, 5, 8, 11, 12, 13, 14) if t == 2 else (0, 1, 10, 11, 12, 13, 16, 17, 18)
            if fin: gs = (16, 17, 18, 20, 22, 24, 25, 26, 27)
            for it, g in zip(w, gs): pre[g].append(it)
        if (cfg.cpf2 == 2 and not last and u == 6) or (cfg.cpf2 == 1 and last and u == 0):
            pre[13].append(("buffer_load_dword v39, v54, s[4:7], 0 offen", "PF"))
        if cfg.wmode == 1 and not last and u == 4:
            pre[7].append((f"buffer_load_dword v39, v35, s[88:91], s60 offen {cfg.wopfl}", "PF"))
            pre[16].append("s_add_u32 s60, s60, 6144")
        if cfg.wmode == 0 and cfg.wopf and last and u == cfg.wopf:
            assert t != 0
            pre[2].append((f"buffer_load_dword v39, v35, s[88:91], 0 offen {cfg.wopfl}", "PF"))
            pre[4].append((f"buffer_load_dword v39, v36, s[88:91], 0 offen {cfg.wopfl}", "PF"))
        if fin:
            for k in range(4, 8): A(CV(par, k))
            A("s_nop 0")
        for g in range(34):
            if fin and g < 16: continue
            A(ms[g])
            x = pre[g]
            if cfg.no_dma: x = [y for y in x if not isinstance(y, tuple)]
            A.emit(x)
            if not fin:
                for y in val[g]: A(y)
    A(".p2align 6")
    A("L_loop:")
    for u in range(12): body(u, False)
    if cfg.stamps & 16:
        A("s_memrealtime s[60:61]\ns_waitcnt lgkmcnt(0)")
        A("s_cmp_lt_u32 s57, 3\ns_cbranch_scc1 L_nosh")
        A("s_mov_b32 s68, s72\ns_mov_b32 s72, s76\ns_mov_b32 s76, s80\ns_mov_b32 s80, s84\ns_mov_b32 s84, s60")
        A("L_nosh:")
        stamp.n = 6
    if cfg.wramp: A("s_lshr_b32 s61, s61, 4")
    if cfg.w5it: A(f"s_cmp_gt_u32 s57, {8 - cfg.w5it}\ns_cselect_b64 vcc, -1, 0")
    if cfg.ssk: A(f"s_cmp_gt_u32 s57, {8 - cfg.ssk}\ns_cselect_b64 vcc, -1, 0")
    A("s_sub_u32 s57, s57, 1\ns_cmp_lg_u32 s57, 0\ns_cbranch_scc1 L_loop")
    A.vm = [f"KV{q >> 3}" for q in range(8*28, 8*29 + N + NST)]
    A("L_peel:")
    stamp(8)
    for u in range(12):
        body(u, True)
        if u in (4, 8): stamp(8)
    for c in wq: A.emit(w2_dma(c, "s96", f"W{c}"))
    stamp()
    A("v_readfirstlane_b32 s56, v62\nv_readfirstlane_b32 s58, v63")
    A("s_nop 5")
    A(f"v_cmp_nge_f32 vcc, s31, v{L}")
    for T in range(1, 6):
        A(f"v_cmp_nge_f32 s[34:35], s31, v{L + 4*T}")
        A("s_or_b64 vcc, vcc, s[34:35]")
    if cfg.force_fb: A("s_branch L_fallback")
    A("s_cbranch_vccnz L_fallback")
    A("L_epi:")
    BB = 40; KEEP = 136; AF = 192; AX = 232
    def bfr(c, T): return BB + 24 * c + 4 * T
    def acc2(nu, T): return vr(KEEP + 24*nu + 4*T) if nu < 5 else ar(24*(nu - 5) + 4*T)
    def b_loads(c, tag):
        return [(f"buffer_load_dwordx4 {vr(bfr(c, T))}, v{32 + T//4}, s[4:7], s{88+c} offen offset:{(T % 4)*1024} {cfg.old}", tag) for T in range(6)]
    def o_store(c, T, tag):
        return (f"buffer_store_dwordx4 {vr(bfr(c, T))}, v{32 + T//4}, s[16:19], s52 offen offset:{(T % 4)*1024} {cfg.ost}", tag)
    def next_tile(c):
        return ["s_add_u32 s53, s62, s97\ns_lshr_b64 s[62:63], s[62:63], 4",
                "s_bfe_u32 s32, s53, 0x20002\ns_and_b32 s33, s53, 3",
                "s_lshl_b32 s34, s32, 3\ns_add_u32 s34, s34, s33",
                "s_mul_i32 s96, s34, 40960\ns_lshl_b32 s32, s32, 4",
                f"s_add_u32 s32, s32, s33\ns_mul_i32 s{88+c}, s32, 6144"]
    def a_reads(c, nu, dst=None):
        n5 = nu % 5
        reg = 10 + 2*(nu // 5) + (n5 & 1)
        d = AF + 4*nu if dst is None else dst
        return [f"ds_read_b64_tr_b16 {ar(d + 2*e, 2)}, v{reg} offset:{c*16384 + e*8192 + 64*(n5 >> 1)}" for e in range(2)]
    for T in range(6): A(f"v_rcp_f32 v{L + 4*T}, v{L + 4*T}")
    for T in range(6): A(f"v_mov_b32 v{L + 4*T + 1}, v{L + 4*T}")
    q = 0
    NA = cfg.nearly
    for c in range(4):
        if c < NA: A(f"s_movk_i32 s52, {c*6144}")
        for T in range(6):
            tb = KEEP + 8 * (q % 2); ob = bfr(c, T); q += 1
            for k in range(8): A(f"v_accvgpr_read_b32 v{tb+k}, a{O(T, 2*c) + k}")
            for k in range(4): A(f"v_pk_mul_f32 v[{tb+2*k}:{tb+2*k+1}], v[{tb+2*k}:{tb+2*k+1}], v[{L+4*T}:{L+4*T+1}]")
            for k in range(4): A(f"v_cvt_pk_bf16_f32 v{ob+k}, v{tb+2*k}, v{tb+2*k+1}")
            if c < NA:
                if cfg.swin: A(f"s_waitcnt vmcnt({cfg.swin - 1})")
                A.vmem(*o_store(c, T, "OA"))
        if c == 2:
            A(f"s_waitcnt vmcnt({A.vm_after(['W0'])})")
            A("s_barrier")
            for nu in range(10): A.emit(a_reads(0, nu))
    A("s_lshl_b32 s34, s40, 5\ns_lshl_b32 s35, s28, 3\ns_add_u32 s34, s34, s35\ns_add_u32 s34, s34, s21\ns_lshl_b32 s34, s34, 1\ns_add_u32 s34, s34, s22\ns_mul_i32 s34, s34, 24576")
    A(f"s_add_u32 s4, s44, s34\ns_addc_u32 s5, s45, 0\ns_mov_b32 s6, {3*98304 + 24576}\ns_mov_b32 s7, 0x20000")
    A(f"s_add_u32 s8, s44, {MBOX}\ns_addc_u32 s9, s45, 0\ns_mov_b32 s10, 0x8000\ns_mov_b32 s11, 0x20000")
    A("s_mov_b32 s36, s50\ns_mov_b32 s37, s51\ns_movk_i32 s38, 0x100\ns_mov_b32 s39, 0x20000")
    A("s_lshl_b32 s41, s41, 2\ns_lshl_b32 s97, s23, 2")
    tiles = [4*(1 + p) + c for p in range(3) for c in range(2)] + [4*(1 + p) + c for p in range(3) for c in (2, 3)]
    tbl = sum(t << (4*i) for i, t in enumerate(tiles))
    A(f"s_mov_b32 s62, 0x{tbl & 0xffffffff:x}\ns_mov_b32 s63, 0x{tbl >> 32:x}\ns_mov_b32 s98, 0")
    A("v_mov_b32 v14, 0\nv_mov_b32 v15, 1\nv_mov_b32 v18, 0x100\nv_mov_b32 v22, 0x10000")
    stamp(37)
    npoll = [0]
    def signal(vm, vd, mreg, sreg):
        k = npoll[0]; npoll[0] += 1
        A(f"s_cmp_lg_u32 s20, 1\ns_cbranch_scc1 L_sg{k}")
        A("s_mov_b64 exec, 1")
        A(f"buffer_atomic_add {vm}, v14, s[8:11], {mreg} offen")
        A(f"buffer_atomic_add {vd}, v14, s[36:39], {sreg} offen")
        A("s_mov_b64 exec, -1")
        A(f"L_sg{k}:")
    def poll(mreg, snap, mfield, sreg, field):
        k = npoll[0]; npoll[0] += 1
        A(f"s_cmp_lg_u32 s20, 0\ns_cbranch_scc1 L_pd{k}")
        A(f"s_bfe_u32 s34, s98, {mfield}\ns_cmp_eq_u32 s34, 4\ns_cbranch_scc1 L_pd{k}")
        A("s_mov_b32 s61, 0x40000")
        A(f"L_pl{k}:")
        A(f"buffer_load_dword v19, v14, s[8:11], {mreg} offen sc1")
        A("s_waitcnt vmcnt(0)")
        A("v_readfirstlane_b32 s98, v19")
        A("s_sub_u32 s61, s61, 1")
        A(f"s_sub_u32 s98, s98, {snap}")
        A(f"s_bfe_u32 s34, s98, {mfield}\ns_cmp_eq_u32 s34, 4\ns_cbranch_scc1 L_pd{k}")
        if cfg.stamps: A("s_add_u32 s59, s59, 1")
        A(f"s_sleep {cfg.psleep}")
        A(f"s_and_b32 s34, s61, {cfg.rescue - 1}\ns_cbranch_scc1 L_pl{k}")
        A(f"buffer_load_dword v19, v14, s[36:39], {sreg} offen sc1")
        A("s_waitcnt vmcnt(0)")
        A("v_readfirstlane_b32 s34, v19")
        A(f"s_cmp_eq_u32 s61, 0\ns_cbranch_scc1 L_pd{k}")
        A(f"s_bfe_u32 s34, s34, {field}")
        A(f"s_cmp_lt_u32 s34, 4\ns_cbranch_scc1 L_pl{k}")
        A(f"L_pd{k}:")
    def place(pre, seq, lo=7, hi=58):
        free = [g for g in range(lo, hi) if not pre[g]]
        nv = sum(isinstance(x, tuple) for x in seq)
        sp = max(1, (len(free) - (len(seq) - nv)) // max(nv, 1))
        k = 0
        for it in seq:
            pre[free[k]].append(it)
            k += sp if isinstance(it, tuple) else 1
    GR = [5, 0, 6, 1, 7, 2, 8, 3, 9, 4]
    def ax(pos, c): return AX + 8*(pos % 2) + 4*(c - 2)
    def ax_reads(pos): return a_reads(2, GR[pos], ax(pos, 2)) + a_reads(3, GR[pos], ax(pos, 3))
    BX = 120
    def bx(c, T): return ar(BX + 24*(c - 2) + 4*T)
    def bx_loads(c, tag):
        return [(f"buffer_load_dwordx4 {bx(c, T)}, v{32 + T//4}, s[4:7], s{88+c} offen offset:{(T % 4)*1024} {cfg.old}", tag) for T in range(6)]
    setup = [f"s_lshl_b32 s34, s42, 18\ns_add_u32 s34, s34, {PBASE}",
             "s_add_u32 s12, s44, s34\ns_addc_u32 s13, s45, 0",
             "s_cmp_eq_u32 s20, s28\ns_cselect_b32 s14, 0, 0x40000", "s_mov_b32 s15, 0x20000",
             "s_lshl_b32 s52, s20, 2\ns_add_u32 s52, s52, s28", "s_lshl_b32 s52, s52, 14\ns_lshl_b32 s42, s42, 2",
             "s_xor_b32 s34, s54, 0x10000\nv_add_u32 v16, s54, v32", "v_add_u32 v20, s34, v32\ns_lshl_b32 s34, s20, 13",
             "s_add_u32 s34, s34, 131072\ns_xor_b32 s35, s34, 0x4000", "v_add_u32 v17, s34, v32\nv_add_u32 v21, s35, v32"]
    obs = []
    for c in range(NA, 4): obs += [f"s_movk_i32 s52, {c*6144}"] + [o_store(c, T, "OB") for T in range(6)]
    def step(k):
        c = k % 4; cn = (c + 1) % 4
        pre = [[] for _ in range(60)]
        for nu in range(10):
            pre[6*nu + 5 + (1 if nu == 0 else 0)] += a_reads(cn, nu)
        seq = []
        if obs:
            n = -(-len(obs) // (cfg.obsteps - k))
            seq += obs[:n]; del obs[:n]
        if 2 <= k < 12: seq += b_loads((c + 2) % 4, f"B{k+2}")
        if k < 12: seq += next_tile(c) + w2_dma(c, "s96", f"W{k+4}", 0)
        if k in (10, 11): seq += bx_loads(c, f"B{k+4}")
        if k == 12: seq += setup
        need = [f"W{k+1}"] + (["OA"] if k == cfg.sigstep else []) + (["OB"] if k == cfg.sigb and NA < 4 else [])
        bar = [lambda: A(f"s_waitcnt vmcnt({A.vm_after(need)}) lgkmcnt(0)")]
        if k == 2: bar.append(lambda: poll("s99", "s56", "0x80000", "s41", "0x80000"))
        if k == 8: bar.append(lambda: poll("s99", "s56", "0x80008", "s41", "0x80008"))
        bar.append("s_barrier")
        if k == cfg.sigstep: bar.append(lambda: signal("v15", "v15", "s99", "s41"))
        if k == cfg.sigb: bar.append(lambda: signal("v18", "v18", "s99", "s41"))
        pre[4] += bar[:1]; pre[5] += bar[1:]
        if k == 12:
            pre[48].append("s_waitcnt vmcnt(0)"); pre[49].append("s_barrier")
            r0 = ax_reads(0); pre[50] += r0[:2]; pre[51] += r0[2:]
        place(pre, seq, 7, 58 if k < 12 else 46)
        if cfg.swin2 and k < cfg.swk:
            for g in range(1, 60):
                if any(isinstance(x, tuple) for x in pre[g]): pre[g].insert(0, f"s_waitcnt vmcnt({cfg.swin2 - 1})")
        A(f"s_waitcnt vmcnt({A.vm_after([f'B{k}'])}) lgkmcnt(15)" if k >= 4 else "s_waitcnt lgkmcnt(15)")
        for g in range(60):
            nu, T = g // 6, g % 6
            d = acc2(nu, T)
            A(mf(d, ar(AF + 4*nu), vr(bfr(c, T)), "0" if k == 0 else d))
            A.emit(pre[g])
    assert NA in (2, 4) and cfg.sigstep < 2 and cfg.obsteps <= cfg.sigb <= 4 and cfg.keep
    for k in range(13):
        step(k)
        if k == 1: stamp(4)
        if k == 3: stamp(36)
        if k == 11: stamp(32)
    TMP = bfr(0, 0)
    def x_reads(r): return [f"ds_read_b128 {vr(TMP + 4*T)}, v{20 + r % 2} offset:{T*1024}" for T in range(6)]
    def x_writes(r): return [f"ds_write_b128 v{16 + r % 2}, {ar(24*r + 4*T)} offset:{T*1024}" for T in range(6)]
    def flush(r, pk=False):
        w = []
        for p in range(3):
            ob = KEEP + 24*r + 8*p
            if pk: w += [f"v_pk_add_f32 v[{ob+z}:{ob+z+1}], v[{ob+z}:{ob+z+1}], v[{TMP+8*p+z}:{TMP+8*p+z+1}]" for z in range(0, 8, 2)]
            else: w += [f"v_add_f32 v{ob+z}, v{ob+z}, v{TMP+8*p+z}" for z in range(8)]
            w += [f"v_cvt_pk_bf16_f32 v{ob+z}, v{ob+2*z}, v{ob+2*z+1}" for z in range(4)]
            w.append(("ST", f"buffer_store_dwordx4 {vr(ob)}, v32, s[12:15], s52 offen offset:{p*1024} {cfg.pst}"))
        w.append(("SA", "s_add_u32 s52, s52, 3072"))
        return w
    A("s_waitcnt lgkmcnt(0)")
    for r in range(5):
        pre = [[] for _ in range(36)]
        ra = ax_reads(2*r + 1); pre[0] += ra[:2]; pre[1] += ra[2:]
        if r < 4:
            rb = ax_reads(2*r + 2); pre[18] += rb[:2]; pre[19] += rb[2:]
        for T, w in enumerate(x_writes(r)): pre[cfg.xw0 + T*cfg.xwsp].append(w)
        work = []
        if r:
            xr = x_reads(r - 1)
            for k in range(3): pre[2 + k] += xr[2*k:2*k+2]
            work = flush(r - 1)
        pre[8].append("s_waitcnt lgkmcnt(0)")
        gaps = [g for g in range(8, 35) if g == 8 or not pre[g]]
        for gi, g in enumerate(gaps):
            left = len(gaps) - gi
            cost = sum(2 if isinstance(x, tuple) and x[0] == "ST" else 0 if isinstance(x, tuple) else 1 for x in work)
            budget = max(2, -(-cost // left)); n = 0
            while work and n < budget:
                it = work[0]
                if isinstance(it, tuple):
                    if it[0] == "ST" and n > 0 and left > 1: break
                    pre[g].append(it[1]); n += 2 if it[0] == "ST" else 0
                else: pre[g].append(it); n += 1
                work.pop(0)
        for it in work: pre[34].append(it[1] if isinstance(it, tuple) else it)
        pre[35] += ["s_waitcnt lgkmcnt(0)", "s_barrier"]
        g = 0
        for pos in (2*r, 2*r + 1):
            nu = GR[pos]
            for T in range(6):
                for c in (1, 2, 3):
                    d = acc2(nu, T)
                    A(mf(d, ar(AF + 4*nu) if c == 1 else ar(ax(pos, c)), vr(bfr(1, T)) if c == 1 else bx(c, T), d))
                    A.emit(pre[g]); g += 1
    stamp()
    A.emit(x_reads(4))
    A("s_waitcnt lgkmcnt(0)")
    for it in flush(4, True): A(it[1] if isinstance(it, tuple) else it)
    if cfg.keep:
        A("s_cmp_lg_u32 s20, s28\ns_cbranch_scc1 L_nokeep")
        for m in range(15): A(f"ds_write_b128 v32, {vr(KEEP + 8*m)} offset:{32768 + m*1024}")
        A("L_nokeep:")
        A("s_mov_b32 s14, 0x40000")
    A("s_mul_i32 s34, s27, 192\ns_and_b32 s35, s28, 1\ns_mul_i32 s35, s35, 96\ns_add_u32 s34, s34, s35\ns_lshl_b32 s35, s20, 5\ns_add_u32 s34, s34, s35\ns_mul_i32 s34, s34, 2560")
    A("s_mul_i32 s35, s25, 1280\ns_add_u32 s34, s34, s35\ns_mul_i32 s35, s23, 320\ns_add_u32 s34, s34, s35\ns_lshr_b32 s35, s28, 1\ns_mul_i32 s35, s35, 160\ns_add_u32 s34, s34, s35")
    A("s_add_u32 s16, s48, s34\ns_addc_u32 s17, s49, 0\ns_sub_u32 s18, 3932160, s34\ns_mov_b32 s19, 0x20000")
    A("s_lshl_b32 s52, s28, 16\ns_lshl_b32 s35, s20, 10\ns_add_u32 s52, s52, s35")
    if cfg.keep:
        for i in range(1, 4): A(f"s_add_u32 s34, s28, {i}\ns_and_b32 s34, s34, 3\ns_lshl_b32 s34, s34, 14\ns_add_u32 s{88+i}, s52, s34")
        A("v_add_u32 v16, s35, v32")
    else:
        for i in range(4): A(f"s_add_u32 s{88+i}, s52, {i*16384}")
    A("v_add_u32 v17, 6144, v32\nv_add_u32 v20, 12288, v32")
    stamp(2)
    A("s_waitcnt vmcnt(0) lgkmcnt(0)")
    A("s_barrier")
    stamp(2)
    signal("v15", "v22", "s100", "s42")
    if cfg.keep:
        for nu in range(5): A(f"ds_read_b128 {vr(40 + 16*nu)}, v16 offset:{32768 + nu*3072}")
    A("s_mov_b32 s98, 0")
    poll("s100", "s58", "0x80000", "s42", "0x100010")
    A("s_barrier")
    stamp(2)
    A("s_cmp_eq_u32 s20, 3\ns_cbranch_scc1 L_end")
    NS = 3 if cfg.keep else 4
    for nu in range(5):
        for src in range(4 - NS, 4):
            A(f"buffer_load_dwordx4 {vr(40 + 16*nu + 4*src)}, v{(32, 17, 20)[nu // 2]}, s[12:15], s{88+src} offen offset:{(nu % 2)*3072} {cfg.pld}")
    A("s_mov_b32 s55, 40960")
    A("s_mov_b32 s34, 0xffff0000")
    for nu in range(5):
        A(f"s_waitcnt vmcnt({NS*(4 - nu) + 2*nu}) lgkmcnt(0)")
        b = 40 + 16*nu; lo = 128;
        for k in range(16): A(f"v_lshlrev_b32 v{lo+k}, 16, v{b+k}")
        for k in range(16): A(f"v_and_b32 v{b+k}, s34, v{b+k}")
        for base in (lo, b):
            for z in range(2):
                A(f"v_pk_add_f32 v[{base+2*z}:{base+2*z+1}], v[{base+2*z}:{base+2*z+1}], v[{base+4+2*z}:{base+5+2*z}]")
                A(f"v_pk_add_f32 v[{base+8+2*z}:{base+9+2*z}], v[{base+8+2*z}:{base+9+2*z}], v[{base+12+2*z}:{base+13+2*z}]")
        for base in (lo, b):
            for z in range(2):
                A(f"v_pk_add_f32 v[{base+2*z}:{base+2*z+1}], v[{base+2*z}:{base+2*z+1}], v[{base+8+2*z}:{base+9+2*z}]")
        for z in range(4): A(f"v_cvt_pk_bf16_f32 v{b+4+z}, v{lo+z}, v{b+z}")
        A(f"buffer_store_dwordx2 {vr(b+4, 2)}, v34, s[16:19], 0 offen offset:{nu*32} {cfg.outst}")
        A(f"buffer_store_dwordx2 {vr(b+6, 2)}, v34, s[16:19], s55 offen offset:{nu*32} {cfg.outst}")
    stamp.finish()
    A("L_end:\ns_endpgm")

    A("L_fallback:")
    A("s_waitcnt vmcnt(0) lgkmcnt(0)")
    A("s_mov_b32 s4, s36\ns_mov_b32 s5, s37\ns_mov_b32 s6, 0x40000\ns_mov_b32 s7, 0x20000")
    A("s_mov_b32 s8, s38\ns_mov_b32 s9, s39\ns_mov_b32 s10, 0x40000\ns_mov_b32 s11, 0x20000")
    A("s_lshl_b32 s52, s20, 13\ns_add_u32 s52, s52, 131072")
    A("v_xor_b32 v58, v3, v4")
    A("v_lshlrev_b32 v59, 1, v4\nv_xor_b32 v59, v3, v59")
    A("v_lshlrev_b32 v60, 8, v4")
    for n in range(4):
        A(f"v_xor_b32 v61, {4*n}, v58")
        A(f"v_lshl_add_u32 v{40+n}, v61, 4, v60")
    for n in range(2):
        A(f"v_xor_b32 v61, {8*n}, v59")
        A(f"v_lshl_add_u32 v{44+n}, v61, 4, v60")
    A("s_sub_u32 s34, s52, s46")
    for c in range(4): A(f"v_add_u32 v{20+c}, s34, v{20+c}")
    A("s_sub_u32 s34, s52, s47")
    for dt in range(8): A(f"v_add_u32 v{24+dt}, s34, v{24+dt}")
    for i in range(192): A(f"v_accvgpr_write_b32 a{i}, 0")
    for k in range(24): A(f"v_mov_b32 v{L+k}, 0")
    A("s_mov_b32 s60, 0")
    A("L_fb_loop:")
    for isv in range(2):
        for n in range(8):
            A(f"s_add_u32 m0, s52, {n*1024}")
            A(f"s_add_u32 s55, s60, {n*1024}")
            A(f"buffer_load_dwordx4 v{(44 + (n & 1)) if isv else (40 + (n & 3))}, s[{8 if isv else 4}:{11 if isv else 7}], s55 offen lds")
        A("s_waitcnt vmcnt(0)")
        if isv:
            for dt in range(8):
                for e in range(2): A(v_read(0, dt, e))
        else:
            for kt in range(2):
                for c in range(4): A(k_read(0, kt, c))
        A("s_waitcnt lgkmcnt(0)")
    R0, R1 = 52, 53
    for t in range(3):
        for m in qk_mfmas(t, 0): A(m)
        A("s_nop 7")
        for Tl in range(2):
            T = 2*t + Tl; s0 = S[0] + 8*Tl
            A(f"v_max3_f32 v{R0}, v{s0}, v{s0+1}, v{s0+2}")
            A(f"v_max3_f32 v{R0}, v{R0}, v{s0+3}, v{s0+4}")
            A(f"v_max3_f32 v{R0}, v{R0}, v{s0+5}, v{s0+6}")
            A(f"v_max3_f32 v{R0}, v{R0}, v{s0+7}, 0")
            A(f"v_mov_b32 v{R1}, v{R0}\ns_nop 1\nv_permlane16_swap_b32 v{R0}, v{R1}\nv_max_f32 v{R0}, v{R0}, v{R1}")
            A(f"v_mov_b32 v{R1}, v{R0}\ns_nop 1\nv_permlane32_swap_b32 v{R0}, v{R1}\nv_max_f32 v{R0}, v{R0}, v{R1}")
            A(f"v_exp_f32 v{R1}, -v{R0}")
            for k in range(8): A(f"v_sub_f32 v{s0+k}, v{s0+k}, v{R0}")
            for k in range(4): A(f"v_sub_f32 v{NEGM+4*T+k}, v{NEGM+4*T+k}, v{R0}")
            for k in range(4): A(f"v_mul_f32 v{L+4*T+k}, v{L+4*T+k}, v{R1}")
            for k in range(0, 32, 4):
                for q in range(4): A(f"v_accvgpr_read_b32 v{54+q}, a{32*T + k + q}")
                for q in range(4): A(f"v_mul_f32 v{54+q}, v{54+q}, v{R1}")
                for q in range(4): A(f"v_accvgpr_write_b32 a{32*T + k + q}, v{54+q}")
        for e in range(16): A(EX(0, e))
        A("s_nop 0")
        for k in range(8): A(CV(0, k))
        A("s_nop 1")
        for m in pv_mfmas(t, 0): A(m)
    A("s_add_u32 s60, s60, 8192\ns_cmp_lt_u32 s60, 0x40000\ns_cbranch_scc1 L_fb_loop")
    A("s_nop 7")
    A("s_branch L_epi")

def gen(cfg):
    A = Asm()
    A("; @launch grid=(256,1,1) block=(256,1,1) lds=163840")
    A('.amdgcn_target "amdgcn-amd-amdhsa--gfx950"\n.text')
    gen_kernel(A, cfg)
    A('.section .rodata,"a"\n.p2align 6')
    A(f".amdhsa_kernel {NAME}_kernel\n  .amdhsa_next_free_vgpr 512\n  .amdhsa_next_free_sgpr 102\n"
      "  .amdhsa_accum_offset 256\n  .amdhsa_group_segment_fixed_size 0\n  .amdhsa_kernarg_size 104\n"
      "  .amdhsa_user_sgpr_count 2\n  .amdhsa_user_sgpr_kernarg_segment_ptr 1\n"
      "  .amdhsa_system_sgpr_workgroup_id_x 1\n.end_amdhsa_kernel")
    return A.text()

if __name__ == "__main__":
    cfg = Cfg()
    for a in sys.argv[2:]:
        k, v = a.split("=")
        old = getattr(cfg, k)
        setattr(cfg, k, type(old)(int(v)) if isinstance(old, (bool, int)) else v.replace('+', ' '))
    open(sys.argv[1], "w").write(gen(cfg))
```

```python
import sys, struct, math
NAME = "concat_heads__mha_block_cached__gqa_block_cached__near_ridge"
def f32bits(x): return struct.unpack("<I", struct.pack("<f", x))[0]

class Cfg:
    stamps = 0
    kv_flags = "sc1 nt"; xld = ''; wqld = ''; pfl = 'nt'
    ost = 'sc1'; old = 'sc1'; wold = ''; pst = 'sc1'; pld = 'sc1'; wopfl = ''; outst = ''
    wopf = 4
    force_fb = False
    thr_log2 = 40
    cpf = 1
    xwpf = 0
    qchain = 1
    qdsp = 3
    rot = 2
    rotd = 16
    wrot = 0
    wsg = 7
    acq = 0
    psleep = 2
    rescue = 64
    lag = 8
    qrot = 2
    cpf2 = 0
    ramp = 0
    dpos = -5
    wpat = '5'
    win = 1
    xp = 0
    nearly = 2
    keep = 1
    tlb = 1
    swin = 0
    swin2 = 0
    swk = 4
    obsteps = 2
    sigb = 3
    xw0 = 20
    xwsp = 2
    p2x = 0
    w5it = 0
    wramp = '777733'
    kvq = 2
    early = 0
    barg = '70,50,30,10'
    slabst = 0
    ssk = 0
    ss0 = 0
    ssr = 0
    ssn = 1
    sparse1 = 1
    pvord = 1
    wlate = 0
    wmode = 3
    stride = 1
    kvpf = 0
    kvpfl = ''
    kvpf0 = 0
    kvpf1 = 7
    pat = 3
    sigstep = 0
    no_dma = False; no_bar = False; q_nodma = False

class Asm:
    def __init__(s): s.l = []; s.vm = []
    def __call__(s, x): s.l.append(x)
    def vmem(s, x, tag): s.l.append(x); s.vm.append(tag)
    def vm_after(s, tags):
        last = -1
        for i, t in enumerate(s.vm):
            if t in tags: last = i
        assert last >= 0, tags
        return min(63, len(s.vm) - 1 - last)
    def emit(s, items):
        for it in items:
            if isinstance(it, tuple): s.vmem(it[0], it[1])
            elif callable(it): it()
            else: s(it)
    def text(s): return "\n".join(s.l) + "\n"

def mf(d, a, b, c): return f"v_mfma_f32_16x16x32_bf16 {d}, {a}, {b}, {c}"
def vr(b, n=4): return f"v[{b}:{b+n-1}]" if n > 1 else f"v{b}"
def ar(b, n=4): return f"a[{b}:{b+n-1}]" if n > 1 else f"a{b}"
STAMP_BASE = 64 << 20
PBASE = 32 << 20
MBOX = 30 << 20

class Stamper:
    def __init__(s, A, cfg): s.A = A; s.cfg = cfg; s.n = 0
    def __call__(s, mode=47):
        if s.cfg.stamps & mode:
            s.A(f"s_memrealtime s[{64+4*s.n}:{65+4*s.n}]\ns_memtime s[{66+4*s.n}:{67+4*s.n}]"); s.n += 1
    def finish(s):
        A = s.A
        if not s.cfg.stamps: return
        A("s_waitcnt vmcnt(0)")
        s(63)
        assert s.n <= 7
        A("s_waitcnt lgkmcnt(0)")
        A(f"s_add_u32 s44, s44, {STAMP_BASE}\ns_addc_u32 s45, s45, 0\ns_mov_b32 s46, 0x100000\ns_mov_b32 s47, 0x20000")
        A("s_lshl_b32 s34, s2, 2\ns_add_u32 s34, s34, s20\ns_lshl_b32 s34, s34, 6")
        A("v_mov_b32 v1, s34")
        A(f"v_mov_b32 v2, {s.n}\nv_mov_b32 v3, s59\nbuffer_store_dwordx2 v[2:3], v1, s[44:47], 0 offen offset:56\ns_nop 1")
        for k in range(s.n):
            A(f"v_mov_b32 v2, s{64+4*k}\nv_mov_b32 v3, s{66+4*k}")
            A(f"buffer_store_dwordx2 v[2:3], v1, s[44:47], 0 offen offset:{8*k}")
            A("s_nop 1")

XBUF = [114688, 139264]
WSLOT = [2, 0, 1]

def gen_kernel(A, cfg):
    K1 = NAME + "_kernel"
    A(f".globl {K1}\n.p2align 8\n.type {K1},@function\n{K1}:")
    A("s_cmp_ge_u32 s2, 256\ns_cbranch_scc1 L_end")
    stamp = Stamper(A, cfg)
    stamp(63)
    A("s_bfe_u32 s25, s2, 0x10002")
    A("s_mul_i32 s28, s25, 40")
    A("s_add_u32 s62, s0, s28\ns_addc_u32 s63, s1, 0")
    A("s_load_dwordx4 s[36:39], s[62:63], 0")
    A("s_load_dwordx4 s[40:43], s[62:63], 16")
    A("s_load_dwordx2 s[44:45], s[0:1], 96")
    A("s_load_dwordx2 s[92:93], s[62:63], 32")
    if cfg.cpf:
        A("s_getpc_b64 s[88:89]")
        A("L_pc:")
        A("s_mov_b32 s90, L_end - L_pc\ns_mov_b32 s91, 0x20000")
        A("v_lshlrev_b32 v54, 7, v0")
        A.vmem("buffer_load_dword v56, v54, s[88:91], 0 offen", "CPF")
    A("s_lshr_b32 s24, s2, 3")
    A("s_and_b32 s28, s2, 3")
    A("s_and_b32 s23, s24, 3")
    A("s_lshl_b32 s26, s28, 2\ns_add_u32 s26, s26, s23")
    A("s_lshr_b32 s27, s24, 2")
    A("v_lshrrev_b32 v1, 6, v0")
    A("v_and_b32 v2, 63, v0")
    A("v_readfirstlane_b32 s20, v1")
    A("v_and_b32 v3, 15, v2\nv_lshrrev_b32 v4, 4, v2")
    A("v_lshrrev_b32 v10, 3, v2\nv_and_b32 v11, 7, v2")
    A("v_xor_b32 v13, v11, v4")
    A("v_mul_u32_u24 v14, 1280, v10")
    A("v_lshl_add_u32 v58, v13, 4, v14")
    A("v_xor_b32 v13, 4, v13")
    A("v_lshl_add_u32 v59, v13, 4, v14")
    A("v_add_u32 v59, 9216, v59")
    A("v_add_u32 v60, 18432, v58\nv_add_u32 v61, 18432, v59")
    A("v_lshlrev_b32 v10, 2, v4\nv_xor_b32 v10, v3, v10")
    A("v_lshlrev_b32 v11, 13, v4")
    A("v_lshl_add_u32 v6, v10, 4, v11")
    for n in range(1, 4): A(f"v_add_u32 v{6+n}, {n*31744}, v6")
    A("s_lshr_b32 s21, s20, 1\ns_and_b32 s22, s20, 1")
    A("s_lshl_b32 s29, s26, 1\ns_add_u32 s29, s29, s21")
    A("s_lshl_b32 s46, s21, 16")
    A("s_mul_i32 s48, s20, 6144")
    A("s_lshl_b32 s54, s22, 13\ns_add_u32 s54, s54, s46")
    A("s_mul_i32 s34, s27, 245760\ns_mul_i32 s49, s20, 61440")
    A("s_lshl_b32 s35, s29, 8\ns_lshl_b32 s53, s22, 18")
    A("s_waitcnt lgkmcnt(0)")
    A("s_add_u32 s4, s36, s34\ns_addc_u32 s5, s37, 0\ns_mov_b32 s6, 245760\ns_mov_b32 s7, 0x20000")
    A("s_add_u32 s8, s42, s35\ns_addc_u32 s9, s43, 0\ns_sub_u32 s10, 5242880, s35\ns_mov_b32 s11, 0x20000")
    if cfg.qrot == 2: A("s_add_u32 s34, s27, s23\ns_and_b32 s34, s34, 1\ns_mul_i32 s34, s34, 5")
    elif cfg.qrot == 3: A("s_add_u32 s34, s27, s23\ns_and_b32 s34, s34, 3\ns_mul_i32 s34, s34, 5\ns_lshr_b32 s34, s34, 1")
    elif cfg.qrot:
        A("s_mul_i32 s34, s27, 5\ns_mul_i32 s35, s23, 10\ns_add_u32 s34, s34, s35\ns_lshr_b32 s34, s34, 2")
        A("s_cmp_ge_u32 s34, 10\ns_cselect_b32 s35, 10, 0\ns_sub_u32 s34, s34, s35")
    else: A("s_mov_b32 s34, 0")
    A("s_lshl_b32 s50, s34, 7\ns_add_u32 s50, s50, s49\ns_add_u32 s96, s49, 1280")
    A("s_lshl_b32 s51, s34, 19\ns_add_u32 s51, s51, s53\ns_add_u32 s97, s53, 5242880")
    def dma_x(xi):
        r = []
        for n in range(6):
            if n % 4 == 0:
                r += [f"s_add_u32 m0, s48, {XBUF[xi % 2] + n*1024}", f"s_add_u32 s55, s50, {n*10240}"]
            r.append((f"buffer_load_dwordx4 v{58 + (n & 3)}, s[4:7], s55 offen offset:{(n & 3)*1024} {cfg.xld} lds", f"X{xi}"))
        r += ["s_add_u32 s50, s50, 128", "s_cmp_eq_u32 s50, s96\ns_cselect_b32 s50, s49, s50"]
        return r
    def dma_w(sg):
        r = []
        for n in range(8):
            if n % 4 == 0:
                r += [f"s_add_u32 m0, s54, {WSLOT[sg % 3]*16384 + n*1024}", f"s_add_u32 s55, s51, {n*4*8192}"]
            r.append((f"buffer_load_dwordx4 v{6 + (n & 3)}, s[8:11], s55 offen offset:{(n & 3)*1024} {cfg.wqld} lds", f"W{sg}"))
        r += ["s_add_u32 s51, s51, 0x80000", "s_cmp_eq_u32 s51, s97\ns_cselect_b32 s51, s53, s51"]
        return r
    def dma_kv(step, nmax=8):
        r = []
        for n in range(nmax):
            if n % 4 == 0:
                r += [f"s_add_u32 m0, s54, {(step % 4)*16384 + n*1024}", "s_and_b32 s55, s30, 0x3ffff", "s_add_u32 s30, s30, s101" if n else "s_add_u32 s30, s30, 4096"]
            r.append((f"buffer_load_dwordx4 v{16 + (n & 3)}, s[12:15], s55 offen offset:{(n & 3)*1024} {cfg.kv_flags} lds", f"KV{step}"))
        return r
    A.emit(dma_x(0)); A.emit(dma_w(0))
    A("s_lshl_b32 s34, s27, 5\ns_add_u32 s34, s34, s29\ns_lshl_b32 s34, s34, 18")
    A("s_add_u32 s36, s38, s34\ns_addc_u32 s37, s39, 0")
    A("s_add_u32 s38, s40, s34\ns_addc_u32 s39, s41, 0")
    A("s_cmp_eq_u32 s22, 1")
    A("s_cselect_b32 s12, s38, s36\ns_cselect_b32 s13, s39, s37")
    A("s_mov_b32 s14, 0x40000\ns_mov_b32 s15, 0x20000")
    A("s_cselect_b64 s[32:33], -1, 0")
    A("v_xor_b32 v11, v3, v4")
    A("v_lshlrev_b32 v10, 1, v4\nv_xor_b32 v10, v3, v10")
    A("v_lshlrev_b32 v12, 8, v4")
    for n in range(4):
        A(f"v_xor_b32 v13, {4*n}, v11")
        A(f"v_xor_b32 v14, {8*(n&1)}, v10")
        A("v_cndmask_b32 v13, v13, v14, s[32:33]")
        A(f"v_lshl_add_u32 v{16+n}, v13, 4, v12")
    A("v_lshlrev_b32 v12, 8, v3\nv_add_u32 v12, s46, v12")
    for c in range(4):
        A(f"v_xor_b32 v13, {4*c}, v11")
        A(f"v_lshl_add_u32 v{20+c}, v13, 4, v12")
    A("v_lshrrev_b32 v10, 2, v3\nv_lshl_add_u32 v11, v4, 2, v10")
    A("v_and_b32 v12, 7, v11")
    A("v_lshlrev_b32 v11, 8, v11")
    A("v_and_b32 v13, 3, v3\nv_lshl_add_u32 v11, v13, 3, v11")
    A("s_add_u32 s47, s46, 8192")
    A("v_add_u32 v11, s47, v11")
    for dt in range(8):
        A(f"v_xor_b32 v14, {dt}, v12")
        A(f"v_lshl_add_u32 v{24+dt}, v14, 5, v11")
    A("v_lshlrev_b32 v32, 4, v2\nv_add_u32 v33, 4096, v32")
    A(f"s_mul_i32 s34, s22, 12288\ns_add_u32 s34, s34, {XBUF[0]}")
    A("v_lshrrev_b32 v11, 1, v3\nv_xor_b32 v11, v4, v11")
    A("v_lshlrev_b32 v12, 7, v3\nv_add_u32 v12, s34, v12")
    for s in range(2):
        A(f"v_xor_b32 v14, {4*s}, v11")
        A(f"v_lshl_add_u32 v{52+s}, v14, 4, v12")
    A("v_lshl_add_u32 v11, v4, 3, v10\nv_lshlrev_b32 v11, 8, v11")
    A("v_lshl_add_u32 v11, v13, 4, v11")
    A("v_add_u32 v11, s46, v11")
    for c in range(4):
        A(f"v_xor_b32 v14, {c}, v10")
        A(f"v_lshl_add_u32 v{40+c}, v14, 6, v11")
    if cfg.kvpf:
        lam = cfg.kvpf; sh = lam.bit_length() - 1
        A(f"v_lshrrev_b32 v55, {sh}, v2\nv_lshlrev_b32 v55, 13, v55\nv_and_b32 v14, {lam-1}, v2\nv_lshl_add_u32 v55, v14, 7, v55")
        npf = lam // 2
        kvpf_list = [[f"s_mov_b32 s50, {k*(64//lam)*8192}", (f"buffer_load_dword v56, v55, s[12:15], s50 offen {cfg.kvpfl}", "PF")] for k in range(npf)]
        nsl = cfg.kvpf1 - cfg.kvpf0 + 1
    if cfg.sparse1:
        A("v_and_b32 v14, 3, v2\nv_cmp_eq_u32 vcc, 0, v14\nv_mov_b32 v14, 0x3f803f80\ns_nop 0")
        for k in range(4): A(f"v_cndmask_b32 v{48+k}, 0, v14, vcc")
    else:
        for k in range(4): A(f"v_mov_b32 v{48+k}, 0x3f803f80")
    A("v_lshl_add_u32 v45, v4, 4, s46")
    cs = f32bits(128 ** -0.5 * math.log2(math.e))
    A(f"v_mov_b32 v46, 0x{cs:08x}\nv_mov_b32 v47, 0x{cs:08x}")
    A(f"s_mov_b32 s31, 0x{f32bits(2.0 ** cfg.thr_log2):08x}")
    A("s_lshl_b32 s40, s25, 3\ns_add_u32 s40, s40, s27")
    A("s_lshl_b32 s34, s40, 5\ns_add_u32 s34, s34, s29\ns_lshl_b32 s34, s34, 1\ns_add_u32 s34, s34, s22\ns_mul_i32 s34, s34, 24576")
    A("s_add_u32 s16, s44, s34\ns_addc_u32 s17, s45, 0\ns_movk_i32 s18, 0x6000\ns_mov_b32 s19, 0x20000")
    A("s_mov_b32 s59, 0")
    if cfg.rot:
        if cfg.rot == 1:
            A("s_lshl_b32 s30, s2, 1\ns_add_u32 s30, s30, s21\ns_mul_i32 s34, s30, 0x9E3779B1\ns_lshr_b32 s30, s34, 27\ns_lshl_b32 s30, s30, 13")
        else:
            A(f"s_add_u32 s30, s2, 1\ns_mul_i32 s34, s30, 0x9E3779B1\ns_lshr_b32 s30, s34, 27\ns_mul_i32 s35, s21, {cfg.rotd}\ns_add_u32 s30, s30, s35\ns_lshl_b32 s30, s30, 13")
        if cfg.stride: A("s_bfe_u32 s101, s34, 0x40017\ns_lshl_b32 s101, s101, 14\ns_add_u32 s101, s101, 4096")
        else: A("s_movk_i32 s101, 0x1000")
    else:
        A("s_mov_b32 s30, 0\ns_movk_i32 s101, 0x1000")
    if cfg.cpf:
        A("s_mov_b32 s34, 0x8000")
        A.vmem("buffer_load_dword v56, v54, s[88:91], s34 offen", "CPF")
    if cfg.wmode == 3:
        A("s_lshl_b32 s34, s26, 3\ns_add_u32 s34, s34, s27\ns_mul_i32 s34, s34, 40960")
        A("s_add_u32 s88, s92, s34\ns_addc_u32 s89, s93, 0\ns_mov_b32 s90, 40960\ns_mov_b32 s91, 0x20000")
        A("v_add_u32 v55, 0x8000, v54")
    if not cfg.early: A.emit(dma_x(1)); A.emit(dma_w(1))

    ACC = 64
    def acc(T, dt): return ACC + 32 * T + 4 * dt
    def fa(dt, s): return 80 + 8 * dt + 4 * s
    def fb(p, T, s): return (144 if p == 0 else 192) + 8 * T + 4 * s
    def qa_reads(sg, dt):
        c, e = dt >> 1, dt & 1
        return [f"ds_read_b64_tr_b16 {ar(fa(dt, s) + 2*f, 2)}, v{40+c} offset:{WSLOT[sg % 3]*16384 + s*8192 + f*1024 + 8*e}"
                for s in range(2) for f in range(2)]
    def qb_read(sg, T, s):
        return f"ds_read_b128 {ar(fb(sg % 2, T, s))}, v{52 + s} offset:{(sg % 2)*24576 + T*2048}"
    A(f"s_waitcnt vmcnt({A.vm_after(['X0', 'W0'])})")
    A("s_barrier")
    for T in range(6):
        for s in range(2): A(qb_read(0, T, s))
    for dt in range(8):
        for r in qa_reads(0, dt): A(r)
    fill = [f"v_accvgpr_write_b32 a{i}, 0" for i in range(80)]
    pend = (dma_x(1) + dma_w(1) if cfg.early else []) + dma_w(2)
    BG = [int(x) for x in cfg.barg.split(",")] if cfg.early else [10]
    for sg in range(10):
        last = sg == 9
        slots = [[] for _ in range(96)]
        if not last:
            need = [f"W{sg+1}", f"X{sg+1}"]
            G = BG[min(sg, len(BG) - 1)]
            slots[G] = ["WAIT"]; slots[G + 1] = ["BAR"]
            if G > 11: slots[11] = ["s_waitcnt lgkmcnt(0)"]
            rl = [(11, r) for r in qa_reads(sg + 1, 0)]
            for T in range(6): rl += [(0, qb_read(sg + 1, T, 0)), (0, qb_read(sg + 1, T, 1))]
            for dt in range(1, 8): rl += [(12*dt + 11, r) for r in qa_reads(sg + 1, dt)]
            for g in range(G + 2, 96):
                k = 0
                while rl and rl[0][0] <= g and (k < 2 or g == 95):
                    slots[g].append(rl.pop(0)[1]); k += 1
            assert not rl
        else:
            fill += [f"v_accvgpr_write_b32 a{i}, 0" for i in range(144, 192)]
            for n in range(5):
                fill += [f"v_add_u32 v14, {64*n}, v2", "v_mul_u32_u24 v15, 3277, v14", "v_lshrrev_b32 v15, 16, v15",
                         "v_mul_u32_u24 v34, 20, v15", "v_sub_u32 v14, v14, v34", "v_bfe_u32 v34, v15, 2, 1", "v_lshlrev_b32 v34, 1, v34",
                         "v_xor_b32 v14, v14, v34", "v_mul_u32_u24 v15, 1280, v15", f"v_lshl_add_u32 v{5+n}, v14, 4, v15"]
                if 0 < n < 4: fill.append(f"v_subrev_u32 v{5+n}, {1024*n}, v{5+n}")
        if cfg.slabst:
            A(f"s_memrealtime s[60:61]\ns_waitcnt lgkmcnt(0)\nv_writelane_b32 v57, s60, {sg + 1}")
        A("s_waitcnt lgkmcnt(15)")
        order = [(T, s) for T in range(6) for s in range(2)] if cfg.qchain else [(T, s) for s in range(2) for T in range(6)]
        g = 0
        for dt in range(8):
            for T, s in order:
                d = vr(acc(T, dt))
                A(mf(d, ar(fa(dt, s)), ar(fb(sg % 2, T, s)), "0" if sg == 0 and s == 0 else d))
                used = 0
                for x in slots[g]:
                    if x == "WAIT": A(f"s_waitcnt vmcnt({A.vm_after(need)}) lgkmcnt(0)"); used = 2
                    elif x == "BAR":
                        A("s_barrier"); used = 2
                        if sg + 2 < 10: pend += dma_x(sg + 2)
                        if cfg.kvpf and cfg.kvpf0 <= sg <= cfg.kvpf1:
                            r = sg - cfg.kvpf0
                            for k in range(r * npf // nsl, (r + 1) * npf // nsl): pend += kvpf_list[k]
                        if sg + 3 < 10: pend += dma_w(sg + 3)
                        if cfg.wmode == 3 and sg == cfg.wsg:
                            pend += [(f"buffer_load_dword v56, v54, s[88:91], 0 offen {cfg.wopfl}", "KVPF"), (f"buffer_load_dword v56, v55, s[88:91], 0 offen {cfg.wopfl}", "KVPF")]
                        if sg == (7 if cfg.kvq == 2 else 8) and cfg.kvq: pend += dma_kv(0)
                        if sg == 8 and cfg.kvq == 2: pend += dma_kv(1)
                    else: A(x); used = 2
                if last and g == 11: A("s_waitcnt lgkmcnt(0)")
                if last and g % 12 == 11 and g < 95:
                    fill += [f"v_accvgpr_write_b32 a{i}, 0" for i in range(fa(dt, 0), fa(dt, 0) + 8)]
                if not used and pend:
                    if isinstance(pend[0], str): A(pend.pop(0))
                    elif g % (cfg.qdsp if sg >= len(BG) - 1 else 2) == 0:
                        it = pend.pop(0); used = 2
                        if cfg.q_nodma and not it[1].startswith("KV"): A.vm.append(it[1])
                        else: A.vmem(*it)
                if not used:
                    for _ in range(2):
                        if fill: A(fill.pop(0))
                g += 1
    assert not pend, len(pend)
    fill += [f"v_accvgpr_write_b32 a{i}, 0" for i in range(fa(7, 0), fa(7, 0) + 8)]
    A("s_barrier")
    stamp(1)
    if cfg.slabst:
        A(f"s_memrealtime s[60:61]\ns_waitcnt lgkmcnt(0)\nv_writelane_b32 v57, s60, 11\nv_writelane_b32 v57, s64, 0")
        A(f"s_add_u32 s88, s44, {STAMP_BASE + 0x80000}\ns_addc_u32 s89, s45, 0\ns_mov_b32 s90, 0x100000\ns_mov_b32 s91, 0x20000")
        A("s_lshl_b32 s34, s2, 10\nv_lshlrev_b32 v62, 2, v0")
        A.vmem("buffer_store_dword v57, v62, s[88:91], s34 offen", "ST")
        A("s_nop 3")
    A("s_load_dwordx4 s[48:51], s[0:1], 80")
    A("s_lshl_b32 s41, s40, 2\ns_add_u32 s42, s41, s23\ns_add_u32 s41, s41, s28")
    A(f"s_add_u32 s8, s44, {MBOX}\ns_addc_u32 s9, s45, 0\ns_mov_b32 s10, 0x8000\ns_mov_b32 s11, 0x20000")
    A("s_lshl_b32 s99, s41, 8\ns_lshl_b32 s100, s42, 8\ns_add_u32 s100, s100, 0x4000")
    A("v_mov_b32 v57, 0")
    A.vmem("buffer_load_dword v62, v57, s[8:11], s99 offen sc1", "SNAP")
    A.vmem("buffer_load_dword v63, v57, s[8:11], s100 offen sc1", "SNAP")
    for st in range(cfg.kvq, 2): A.emit(dma_kv(st))
    for z in fill: A(z)
    for k in range(96):
        A(f"v_pk_mul_f32 v[{ACC+2*k}:{ACC+2*k+1}], v[{ACC+2*k}:{ACC+2*k+1}], v[46:47]")
        if k >= 1: A(f"v_cvt_pk_bf16_f32 v{ACC+k-1}, v{ACC+2*k-2}, v{ACC+2*k-1}")
    A(f"v_cvt_pk_bf16_f32 v{ACC+95}, v{ACC+190}, v{ACC+191}")
    def qf(T, c): return ACC + 16 * T + 4 * c
    A("s_waitcnt lgkmcnt(0)")
    if cfg.tlb:
        A.vmem("buffer_load_dword v56, v57, s[16:19], 0 offen sc1", "TLB")
        A(f"s_lshl_b32 s34, s42, 18\ns_add_u32 s34, s34, {PBASE + 15360}")
        A("s_add_u32 s4, s44, s34\ns_addc_u32 s5, s45, 0\ns_movk_i32 s6, 0x100\ns_mov_b32 s7, 0x20000")
        A.vmem("buffer_load_dword v56, v57, s[4:7], 0 offen sc1", "TLB")
        A("s_mul_i32 s34, s27, 491520\ns_and_b32 s35, s28, 1\ns_mul_i32 s35, s35, 245760\ns_add_u32 s34, s34, s35\ns_mul_i32 s35, s20, 61440\ns_add_u32 s34, s34, s35")
        A("s_add_u32 s4, s48, s34\ns_addc_u32 s5, s49, 0")
        A.vmem("buffer_load_dword v56, v57, s[4:7], 0 offen sc1", "TLB")
        A("s_mov_b32 s4, s50\ns_mov_b32 s5, s51")
        A.vmem("buffer_load_dword v56, v57, s[4:7], 0 offen sc1", "TLB")

    S = [160, 176]; P = [192, 200]; NEGM = 208; L = 232; ONES = 48
    KF = 192; VF = 224
    def O(T, dt): return 32 * T + 4 * dt
    def k_read(st, kt, c): return f"ds_read_b128 {ar(KF + 16*kt + 4*c)}, v{20+c} offset:{st*16384 + kt*4096}"
    def v_read(st, dt, e): return f"ds_read_b64_tr_b16 {ar(VF + 4*dt + 2*e, 2)}, v{24+dt} offset:{st*16384 + e*4096}"
    def qk_mfmas(t, par):
        r = []
        for Tl in range(2):
            T = 2*t + Tl
            for kt in range(2):
                d = vr(S[par] + 8*Tl + 4*kt)
                for c in range(4):
                    r.append(mf(d, ar(KF + 16*kt + 4*c), vr(qf(T, c)), vr(NEGM + 4*T) if c == 0 else d))
        return r
    def pv_mfmas(t, par):
        r = []
        if cfg.pvord:
            for dt in range(8):
                for Tl in range(2):
                    T = 2*t + Tl
                    r.append(mf(ar(O(T, dt)), ar(VF + 4*dt), vr(P[par] + 4*Tl), ar(O(T, dt))))
            for Tl in range(2):
                T = 2*t + Tl
                r.append(mf(vr(L + 4*T), vr(ONES), vr(P[par] + 4*Tl), vr(L + 4*T)))
            return r
        for Tl in range(2):
            T = 2*t + Tl
            for dt in range(8):
                r.append(mf(ar(O(T, dt)), ar(VF + 4*dt), vr(P[par] + 4*Tl), ar(O(T, dt))))
            r.append(mf(vr(L + 4*T), vr(ONES), vr(P[par] + 4*Tl), vr(L + 4*T)))
        return r
    def EX(par, e): return f"v_exp_f32 v{S[par]+e}, v{S[par]+e}" if not cfg.xp & 1 else "s_nop 1"
    def CV(par, k): return f"v_cvt_pk_bf16_f32 v{P[par]+k}, v{S[par]+2*k}, v{S[par]+2*k+1}" if not cfg.xp & 2 else f"v_mov_b32 v{P[par]+k}, 0x3f803f80"
    A(f"s_waitcnt vmcnt({A.vm_after(['KV0'])})")
    A("s_barrier")
    for c in range(4): A(f"ds_read_b128 {vr(S[1] + 4*c)}, v45 offset:{64*c}")
    for kt in range(2):
        for c in range(4): A(k_read(0, kt, c))
    for k in range(24): A(f"v_mov_b32 v{L+k}, 0")
    A("s_waitcnt lgkmcnt(8)")
    for k in range(16): A(f"v_xor_b32 v{S[1]+k}, 0x80008000, v{S[1]+k}")
    A("s_nop 1")
    NST = (5 if cfg.win else 8)
    qend = 8 + cfg.lag + NST
    assert qend >= 16
    kv2 = dma_kv(2, min(8, qend - 16)); kv3 = dma_kv(3, max(0, qend - 24))
    gam = "v14"
    misc = ["v_and_b32 v14, 1, v4", "v_xor_b32 v15, 1, v14",
            "v_lshrrev_b32 v34, 2, v3", "v_lshl_add_u32 v34, v4, 2, v34", "v_mul_u32_u24 v34, 320, v34",
            "v_and_b32 v35, 3, v3", "v_lshl_add_u32 v34, v35, 3, v34", "v_add_u32 v34, s46, v34",
            "v_lshl_add_u32 v36, v14, 5, v34", "v_lshl_add_u32 v37, v15, 5, v34",
            "v_add_u32 v38, 128, v37", "v_add_u32 v39, 192, v36",
            "MASK",
            "v_cndmask_b32 v10, v36, v38, s[32:33]", "v_cndmask_b32 v11, v37, v39, s[32:33]",
            "v_cndmask_b32 v12, v38, v36, s[32:33]", "v_cndmask_b32 v13, v39, v37, s[32:33]",
            "v_mul_u32_u24 v34, 2560, v3", "v_lshl_add_u32 v34, v4, 3, v34",
            "v_lshlrev_b32 v35, 7, v0", "v_add_u32 v36, 0x8000, v35"]
    if cfg.wmode == 1:
        misc = misc[:-2] + ["v_mul_u32_u24 v35, 12, v1", "v_add_u32 v35, v35, v2", "v_lshlrev_b32 v35, 7, v35",
            "v_cmp_gt_u32 vcc, 12, v2", "v_mov_b32 v36, 0x100000", "s_nop 0", "v_cndmask_b32 v35, v36, v35, vcc", "s_mov_b32 s60, 0"]
    def misc_step():
        for _ in range(2):
            if misc:
                m = misc.pop(0)
                if m == "MASK": A("s_cmp_eq_u32 s21, 1\ns_cselect_b64 s[32:33], -1, 0")
                else: A(m)
    for T in range(6):
        for c in range(4):
            d = vr(NEGM + 4*T)
            A(mf(d, vr(S[1] + 4*c), vr(qf(T, c)), "0" if c == 0 else d))
            if kv2 and (isinstance(kv2[0], str) or c % 2 == 0): A.emit([kv2.pop(0)])
            else: misc_step()
    assert not kv2
    A("s_waitcnt lgkmcnt(0)")
    for k, m in enumerate(qk_mfmas(0, 0)):
        A(m)
        if kv3 and (isinstance(kv3[0], str) or k % 2 == 0): A.emit([kv3.pop(0)])
        else: misc_step()
    A.emit(kv3)
    while misc: misc_step()
    A("s_lshl_b32 s34, s26, 3\ns_add_u32 s34, s34, s27\ns_mul_i32 s34, s34, 40960")
    A("s_add_u32 s88, s92, s34\ns_addc_u32 s89, s93, 0\ns_mov_b32 s90, 40960\ns_mov_b32 s91, 0x20000")
    A("s_lshl_b32 s34, s28, 10\ns_lshl_b32 s35, s21, 7\ns_add_u32 s34, s34, s35\ns_lshl_b32 s35, s22, 4\ns_add_u32 s34, s34, s35")
    A("s_mul_i32 s34, s34, 1280\ns_mul_i32 s35, s23, 320\ns_add_u32 s34, s34, s35")
    A("s_add_u32 s92, s92, s34\ns_addc_u32 s93, s93, 0\ns_sub_u32 s94, 5242880, s34\ns_mov_b32 s95, 0x20000")
    if cfg.wmode == 2:
        A(f"buffer_load_dword v39, v35, s[88:91], 0 offen {cfg.wopfl}")
        A(f"buffer_load_dword v39, v36, s[88:91], 0 offen {cfg.wopfl}")
    for e in range(16): A(EX(0, e))
    for k in range(4): A(CV(0, k))
    A("s_mul_i32 s96, s23, 327680")
    A("s_mov_b32 s57, 7\ns_mov_b64 vcc, -1")
    if cfg.wramp: A(f"s_mov_b32 s61, 0x{cfg.wramp[::-1]}")
    if cfg.cpf2:
        tgt = "L_peel" if cfg.cpf2 == 2 else "L_epi"
        A("s_getpc_b64 s[4:5]\nL_pc2:")
        A(f"s_add_u32 s4, s4, {tgt} - L_pc2\ns_addc_u32 s5, s5, 0\ns_mov_b32 s6, L_end - {tgt}\ns_mov_b32 s7, 0x20000")
    if cfg.ssr:
        A(f"s_mul_i32 s61, s2, 0x9E3779B1\ns_lshr_b32 s61, s61, 16\ns_mul_i32 s61, s61, {cfg.ssr}\ns_lshr_b32 s61, s61, 16\ns_add_u32 s61, s61, {cfg.ss0}\ns_bfm_b32 s61, s61, 0")
    stamp(1)
    def w2_dma(c, sreg, tag, coff=1):
        r = []
        for n in range(5):
            if n == 0: r += [f"s_add_u32 m0, s54, {c*16384}", f"s_add_u32 s55, {sreg}, {c*40960*coff}"]
            if n == 4: r += [f"s_add_u32 m0, s54, {c*16384 + 4096}", "s_nop 0"]
            r.append((f"buffer_load_dwordx4 v{5+n}, s[92:95], s55 offen offset:{(n & 3)*1024} {cfg.wold} lds", tag))
        return r
    N = cfg.lag
    rq = []
    for q in range(8*29 + cfg.lag + NST, 256):
        if q % 4 == 0:
            rq += [f"s_add_u32 m0, s54, {((q >> 3) % 4)*16384 + (q & 4)*1024}", "s_and_b32 s55, s30, 0x3ffff",
                   "s_add_u32 s30, s30, s101" if q & 4 else "s_add_u32 s30, s30, 4096"]
        rq.append((f"buffer_load_dwordx4 v{16 + (q & 3)}, s[12:15], s55 offen offset:{(q & 3)*1024} {cfg.kv_flags} lds", f"KV{q >> 3}"))
    wq = [0, 1, 2, 3]
    def body(u, last):
        t, par, j = u % 3, u % 2, u // 3
        t1, par1 = (u + 1) % 3, (u + 1) % 2
        fin = last and u == 11
        kv_here = bool(rq) and cfg.ramp
        ms = qk_mfmas(t1, par1) + pv_mfmas(t, par)
        pre = [[] for _ in range(34)]
        val = [[] for _ in range(34)]
        val[0] = [CV(par, 4), CV(par, 5)]; val[1] = [CV(par, 6), CV(par, 7)]
        for e in range(16): val[16 + e] = [EX(par1, e)]
        val[32] = [CV(par1, 0), CV(par1, 1)]; val[33] = [CV(par1, 2), CV(par1, 3)]
        jj = (28 + j) if last else j
        iv = jj if t == 2 else jj - 1
        def q_of(i): return 8 * (iv + 2) + N + i
        def live(i): return (not last) or q_of(i) < 256
        def dma(i, g):
            q = q_of(i)
            if live(i):
                pre[g].append((f"buffer_load_dwordx4 v{16 + (q & 3)}, s[12:15], s55 offen offset:{(q & 3)*1024} {cfg.kv_flags} lds", f"KV{q >> 3}"))
        stn = (j + 1) % 4
        if t == 1:
            if not last:
                if cfg.ssr:
                    pre[3] += ["s_bitcmp1_b32 s61, 0"]
                    pre[4] += [f"s_cbranch_scc0 L_ss{u}", f"s_waitcnt vmcnt({cfg.ssn})", f"L_ss{u}:"]
                    pre[7] += ["s_lshr_b32 s61, s61, 1"]
                if cfg.ssk: pre[4] += [f"s_cbranch_vccz L_ss{u}", f"s_waitcnt vmcnt({cfg.ssn})", f"L_ss{u}:"]
                pre[5].append(f"s_waitcnt vmcnt({N})")
            elif j < 3: pre[5].append(lambda: A(f"s_waitcnt vmcnt({A.vm_after([f'KV{29+j}'])})"))
            pre[6].append("s_barrier")
            if not (last and j == 3):
                for kt in range(2):
                    for c in range(4): pre[8 + 4*kt + c].append(k_read(stn, kt, c))
                pre[33].append("s_waitcnt lgkmcnt(0)")
        def inc(q): return "s_add_u32 s30, s30, s101" if q & 4 else "s_add_u32 s30, s30, 4096"
        if cfg.win and not (last and cfg.ramp):
            assert N % 4 == 0
            sites = {1: [(-1, 7, 2), (0, 0, 18), (0, 1, 30)], 2: [(0, 2, 8), (0, 3, 20), (0, 4, 31)], 0: [(-1, 5, 11), (-1, 6, 24)]}[t]
            for off, i, g in sites:
                q = 8 * (jj + off + 2) + N + i
                if last and q >= 256: continue
                kv_here = True
                if q % 4 == 0:
                    pre[g - 3].append(f"s_add_u32 m0, s54, {((q >> 3) % 4)*16384 + (q & 4)*1024}")
                    pre[g - 2].append("s_and_b32 s55, s30, 0x3ffff")
                    pre[g + 1].append(inc(q))
                w = int(cfg.wpat[(8 * ((jj + off) % 4) + i) % len(cfg.wpat)])
                if cfg.wramp and not last:
                    cls = {0: 0, 4: 1, 2: 2, 6: 2}.get(i, 3)
                    pre[g - 1].append(f"s_bitcmp1_b32 s61, {cls}\ns_cbranch_scc0 L_w{u}_{i}\ns_waitcnt vmcnt(3)\nL_w{u}_{i}:")
                    if cfg.w5it: pre[g - 1].append(f"s_cbranch_vccz L_v{u}_{i}\ns_waitcnt vmcnt(4)\nL_v{u}_{i}:")
                pre[g - 1].append(f"s_waitcnt vmcnt({w - 1})")
                pre[g].append((f"buffer_load_dwordx4 v{16 + (q & 3)}, s[12:15], s55 offen offset:{(q & 3)*1024} {cfg.kv_flags} lds", f"KV{q >> 3}"))
        if t in (1, 2) and not (last and cfg.ramp) and not cfg.win:
            iv = jj
            g = (0 if N % 4 == 0 else 2) + cfg.dpos
            def put(gg, it):
                if t == 2 and gg >= 0: pre[gg].append(it)
                if t == 1 and gg < 0: pre[34 + gg].append(it)
            for i in range(8):
                q = 8 * (iv + 2) + N + i
                lv = (not last) or q < 256
                if q % 4 == 0:
                    if lv:
                        put(g, f"s_add_u32 m0, s54, {((q >> 3) % 4)*16384 + (q & 4)*1024}")
                        put(g + 1, "s_and_b32 s55, s30, 0x3ffff")
                        put(g + 1, inc(q))
                    g += 2
                if lv: put(g, (f"buffer_load_dwordx4 v{16 + (q & 3)}, s[12:15], s55 offen offset:{(q & 3)*1024} {cfg.kv_flags} lds", f"KV{q >> 3}"))
                g += 1 if i % 3 else 2
            assert g <= 33, g
            iv = jj if t == 2 else jj - 1
        if last and cfg.ramp and rq:
            gl = {0: list(range(10, 15)) + list(range(16, 32)), 1: [2, 3, 4, 7] + list(range(16, 32)), 2: list(range(2, 32))}[t]
            for g in gl:
                if not rq: break
                if isinstance(rq[0], tuple) and g >= 16 and g % 2: continue
                pre[g].append(rq.pop(0))
        if t == 0:
            for dt in range(8):
                pre[2 + dt] += [v_read(j % 4, dt, 0), v_read(j % 4, dt, 1)]
            pre[15].append("s_waitcnt lgkmcnt(0)")
        if last and ((not kv_here and not rq) if cfg.ramp else (not kv_here and u >= 2 + (16 - N) * 3 // 8)) and wq and wq[0] <= iv - 28 and t != 1 and u >= cfg.wlate:
            c = wq.pop(0)
            w = w2_dma(c, "s96", f"W{c}")
            gs = (0, 1, 2, 5, 8, 11, 12, 13, 14) if t == 2 else (0, 1, 10, 11, 12, 13, 16, 17, 18)
            if fin: gs = (16, 17, 18, 20, 22, 24, 25, 26, 27)
            for it, g in zip(w, gs): pre[g].append(it)
        if (cfg.cpf2 == 2 and not last and u == 6) or (cfg.cpf2 == 1 and last and u == 0):
            pre[13].append(("buffer_load_dword v39, v54, s[4:7], 0 offen", "PF"))
        if cfg.wmode == 1 and not last and u == 4:
            pre[7].append((f"buffer_load_dword v39, v35, s[88:91], s60 offen {cfg.wopfl}", "PF"))
            pre[16].append("s_add_u32 s60, s60, 6144")
        if cfg.wmode == 0 and cfg.wopf and last and u == cfg.wopf:
            assert t != 0
            pre[2].append((f"buffer_load_dword v39, v35, s[88:91], 0 offen {cfg.wopfl}", "PF"))
            pre[4].append((f"buffer_load_dword v39, v36, s[88:91], 0 offen {cfg.wopfl}", "PF"))
        if fin:
            for k in range(4, 8): A(CV(par, k))
            A("s_nop 0")
        for g in range(34):
            if fin and g < 16: continue
            A(ms[g])
            x = pre[g]
            if cfg.no_dma: x = [y for y in x if not isinstance(y, tuple)]
            A.emit(x)
            if not fin:
                for y in val[g]: A(y)
    A(".p2align 6")
    A("L_loop:")
    for u in range(12): body(u, False)
    if cfg.stamps & 16:
        A("s_memrealtime s[60:61]\ns_waitcnt lgkmcnt(0)")
        A("s_cmp_lt_u32 s57, 3\ns_cbranch_scc1 L_nosh")
        A("s_mov_b32 s68, s72\ns_mov_b32 s72, s76\ns_mov_b32 s76, s80\ns_mov_b32 s80, s84\ns_mov_b32 s84, s60")
        A("L_nosh:")
        stamp.n = 6
    if cfg.wramp: A("s_lshr_b32 s61, s61, 4")
    if cfg.w5it: A(f"s_cmp_gt_u32 s57, {8 - cfg.w5it}\ns_cselect_b64 vcc, -1, 0")
    if cfg.ssk: A(f"s_cmp_gt_u32 s57, {8 - cfg.ssk}\ns_cselect_b64 vcc, -1, 0")
    A("s_sub_u32 s57, s57, 1\ns_cmp_lg_u32 s57, 0\ns_cbranch_scc1 L_loop")
    A.vm = [f"KV{q >> 3}" for q in range(8*28, 8*29 + N + NST)]
    A("L_peel:")
    stamp(8)
    for u in range(12):
        body(u, True)
        if u in (4, 8): stamp(8)
    for c in wq: A.emit(w2_dma(c, "s96", f"W{c}"))
    stamp()
    A("v_readfirstlane_b32 s56, v62\nv_readfirstlane_b32 s58, v63")
    A("s_nop 5")
    A(f"v_cmp_nge_f32 vcc, s31, v{L}")
    for T in range(1, 6):
        A(f"v_cmp_nge_f32 s[34:35], s31, v{L + 4*T}")
        A("s_or_b64 vcc, vcc, s[34:35]")
    if cfg.force_fb: A("s_branch L_fallback")
    A("s_cbranch_vccnz L_fallback")
    A("L_epi:")
    BB = 40; KEEP = 136; AF = 192; AX = 232
    def bfr(c, T): return BB + 24 * c + 4 * T
    def acc2(nu, T): return vr(KEEP + 24*nu + 4*T) if nu < 5 else ar(24*(nu - 5) + 4*T)
    def b_loads(c, tag):
        return [(f"buffer_load_dwordx4 {vr(bfr(c, T))}, v{32 + T//4}, s[4:7], s{88+c} offen offset:{(T % 4)*1024} {cfg.old}", tag) for T in range(6)]
    def o_store(c, T, tag):
        return (f"buffer_store_dwordx4 {vr(bfr(c, T))}, v{32 + T//4}, s[16:19], s52 offen offset:{(T % 4)*1024} {cfg.ost}", tag)
    def next_tile(c):
        return ["s_add_u32 s53, s62, s97\ns_lshr_b64 s[62:63], s[62:63], 4",
                "s_bfe_u32 s32, s53, 0x20002\ns_and_b32 s33, s53, 3",
                "s_lshl_b32 s34, s32, 3\ns_add_u32 s34, s34, s33",
                "s_mul_i32 s96, s34, 40960\ns_lshl_b32 s32, s32, 4",
                f"s_add_u32 s32, s32, s33\ns_mul_i32 s{88+c}, s32, 6144"]
    def a_reads(c, nu, dst=None):
        n5 = nu % 5
        reg = 10 + 2*(nu // 5) + (n5 & 1)
        d = AF + 4*nu if dst is None else dst
        return [f"ds_read_b64_tr_b16 {ar(d + 2*e, 2)}, v{reg} offset:{c*16384 + e*8192 + 64*(n5 >> 1)}" for e in range(2)]
    for T in range(6): A(f"v_rcp_f32 v{L + 4*T}, v{L + 4*T}")
    for T in range(6): A(f"v_mov_b32 v{L + 4*T + 1}, v{L + 4*T}")
    q = 0
    NA = cfg.nearly
    for c in range(4):
        if c < NA: A(f"s_movk_i32 s52, {c*6144}")
        for T in range(6):
            tb = KEEP + 8 * (q % 2); ob = bfr(c, T); q += 1
            for k in range(8): A(f"v_accvgpr_read_b32 v{tb+k}, a{O(T, 2*c) + k}")
            for k in range(4): A(f"v_pk_mul_f32 v[{tb+2*k}:{tb+2*k+1}], v[{tb+2*k}:{tb+2*k+1}], v[{L+4*T}:{L+4*T+1}]")
            for k in range(4): A(f"v_cvt_pk_bf16_f32 v{ob+k}, v{tb+2*k}, v{tb+2*k+1}")
            if c < NA:
                if cfg.swin: A(f"s_waitcnt vmcnt({cfg.swin - 1})")
                A.vmem(*o_store(c, T, "OA"))
        if c == 2:
            A(f"s_waitcnt vmcnt({A.vm_after(['W0'])})")
            A("s_barrier")
            for nu in range(10): A.emit(a_reads(0, nu))
    A("s_lshl_b32 s34, s40, 5\ns_lshl_b32 s35, s28, 3\ns_add_u32 s34, s34, s35\ns_add_u32 s34, s34, s21\ns_lshl_b32 s34, s34, 1\ns_add_u32 s34, s34, s22\ns_mul_i32 s34, s34, 24576")
    A(f"s_add_u32 s4, s44, s34\ns_addc_u32 s5, s45, 0\ns_mov_b32 s6, {3*98304 + 24576}\ns_mov_b32 s7, 0x20000")
    A(f"s_add_u32 s8, s44, {MBOX}\ns_addc_u32 s9, s45, 0\ns_mov_b32 s10, 0x8000\ns_mov_b32 s11, 0x20000")
    A("s_mov_b32 s36, s50\ns_mov_b32 s37, s51\ns_movk_i32 s38, 0x100\ns_mov_b32 s39, 0x20000")
    A("s_lshl_b32 s41, s41, 2\ns_lshl_b32 s97, s23, 2")
    tiles = [4*(1 + p) + c for p in range(3) for c in range(2)] + [4*(1 + p) + c for p in range(3) for c in (2, 3)]
    tbl = sum(t << (4*i) for i, t in enumerate(tiles))
    A(f"s_mov_b32 s62, 0x{tbl & 0xffffffff:x}\ns_mov_b32 s63, 0x{tbl >> 32:x}\ns_mov_b32 s98, 0")
    A("v_mov_b32 v14, 0\nv_mov_b32 v15, 1\nv_mov_b32 v18, 0x100\nv_mov_b32 v22, 0x10000")
    stamp(37)
    npoll = [0]
    def signal(vm, vd, mreg, sreg):
        k = npoll[0]; npoll[0] += 1
        A(f"s_cmp_lg_u32 s20, 1\ns_cbranch_scc1 L_sg{k}")
        A("s_mov_b64 exec, 1")
        A(f"buffer_atomic_add {vm}, v14, s[8:11], {mreg} offen")
        A(f"buffer_atomic_add {vd}, v14, s[36:39], {sreg} offen")
        A("s_mov_b64 exec, -1")
        A(f"L_sg{k}:")
    def poll(mreg, snap, mfield, sreg, field):
        k = npoll[0]; npoll[0] += 1
        A(f"s_cmp_lg_u32 s20, 0\ns_cbranch_scc1 L_pd{k}")
        A(f"s_bfe_u32 s34, s98, {mfield}\ns_cmp_eq_u32 s34, 4\ns_cbranch_scc1 L_pd{k}")
        A("s_mov_b32 s61, 0x40000")
        A(f"L_pl{k}:")
        A(f"buffer_load_dword v19, v14, s[8:11], {mreg} offen sc1")
        A("s_waitcnt vmcnt(0)")
        A("v_readfirstlane_b32 s98, v19")
        A("s_sub_u32 s61, s61, 1")
        A(f"s_sub_u32 s98, s98, {snap}")
        A(f"s_bfe_u32 s34, s98, {mfield}\ns_cmp_eq_u32 s34, 4\ns_cbranch_scc1 L_pd{k}")
        if cfg.stamps: A("s_add_u32 s59, s59, 1")
        A(f"s_sleep {cfg.psleep}")
        A(f"s_and_b32 s34, s61, {cfg.rescue - 1}\ns_cbranch_scc1 L_pl{k}")
        A(f"buffer_load_dword v19, v14, s[36:39], {sreg} offen sc1")
        A("s_waitcnt vmcnt(0)")
        A("v_readfirstlane_b32 s34, v19")
        A(f"s_cmp_eq_u32 s61, 0\ns_cbranch_scc1 L_pd{k}")
        A(f"s_bfe_u32 s34, s34, {field}")
        A(f"s_cmp_lt_u32 s34, 4\ns_cbranch_scc1 L_pl{k}")
        A(f"L_pd{k}:")
    def place(pre, seq, lo=7, hi=58):
        free = [g for g in range(lo, hi) if not pre[g]]
        nv = sum(isinstance(x, tuple) for x in seq)
        sp = max(1, (len(free) - (len(seq) - nv)) // max(nv, 1))
        k = 0
        for it in seq:
            pre[free[k]].append(it)
            k += sp if isinstance(it, tuple) else 1
    GR = [5, 0, 6, 1, 7, 2, 8, 3, 9, 4]
    def ax(pos, c): return AX + 8*(pos % 2) + 4*(c - 2)
    def ax_reads(pos): return a_reads(2, GR[pos], ax(pos, 2)) + a_reads(3, GR[pos], ax(pos, 3))
    BX = 120
    def bx(c, T): return ar(BX + 24*(c - 2) + 4*T)
    def bx_loads(c, tag):
        return [(f"buffer_load_dwordx4 {bx(c, T)}, v{32 + T//4}, s[4:7], s{88+c} offen offset:{(T % 4)*1024} {cfg.old}", tag) for T in range(6)]
    setup = [f"s_lshl_b32 s34, s42, 18\ns_add_u32 s34, s34, {PBASE}",
             "s_add_u32 s12, s44, s34\ns_addc_u32 s13, s45, 0",
             "s_cmp_eq_u32 s20, s28\ns_cselect_b32 s14, 0, 0x40000", "s_mov_b32 s15, 0x20000",
             "s_lshl_b32 s52, s20, 2\ns_add_u32 s52, s52, s28", "s_lshl_b32 s52, s52, 14\ns_lshl_b32 s42, s42, 2",
             "s_xor_b32 s34, s54, 0x10000\nv_add_u32 v16, s54, v32", "v_add_u32 v20, s34, v32\ns_lshl_b32 s34, s20, 13",
             "s_add_u32 s34, s34, 131072\ns_xor_b32 s35, s34, 0x4000", "v_add_u32 v17, s34, v32\nv_add_u32 v21, s35, v32"]
    obs = []
    for c in range(NA, 4): obs += [f"s_movk_i32 s52, {c*6144}"] + [o_store(c, T, "OB") for T in range(6)]
    def step(k):
        c = k % 4; cn = (c + 1) % 4
        pre = [[] for _ in range(60)]
        for nu in range(10):
            pre[6*nu + 5 + (1 if nu == 0 else 0)] += a_reads(cn, nu)
        seq = []
        if obs:
            n = -(-len(obs) // (cfg.obsteps - k))
            seq += obs[:n]; del obs[:n]
        if 2 <= k < 12: seq += b_loads((c + 2) % 4, f"B{k+2}")
        if k < 12: seq += next_tile(c) + w2_dma(c, "s96", f"W{k+4}", 0)
        if k in (10, 11): seq += bx_loads(c, f"B{k+4}")
        if k == 12: seq += setup
        need = [f"W{k+1}"] + (["OA"] if k == cfg.sigstep else []) + (["OB"] if k == cfg.sigb and NA < 4 else [])
        bar = [lambda: A(f"s_waitcnt vmcnt({A.vm_after(need)}) lgkmcnt(0)")]
        if k == 2: bar.append(lambda: poll("s99", "s56", "0x80000", "s41", "0x80000"))
        if k == 8: bar.append(lambda: poll("s99", "s56", "0x80008", "s41", "0x80008"))
        bar.append("s_barrier")
        if k == cfg.sigstep: bar.append(lambda: signal("v15", "v15", "s99", "s41"))
        if k == cfg.sigb: bar.append(lambda: signal("v18", "v18", "s99", "s41"))
        pre[4] += bar[:1]; pre[5] += bar[1:]
        if k == 12:
            pre[48].append("s_waitcnt vmcnt(0)"); pre[49].append("s_barrier")
            r0 = ax_reads(0); pre[50] += r0[:2]; pre[51] += r0[2:]
        place(pre, seq, 7, 58 if k < 12 else 46)
        if cfg.swin2 and k < cfg.swk:
            for g in range(1, 60):
                if any(isinstance(x, tuple) for x in pre[g]): pre[g].insert(0, f"s_waitcnt vmcnt({cfg.swin2 - 1})")
        A(f"s_waitcnt vmcnt({A.vm_after([f'B{k}'])}) lgkmcnt(15)" if k >= 4 else "s_waitcnt lgkmcnt(15)")
        for g in range(60):
            nu, T = g // 6, g % 6
            d = acc2(nu, T)
            A(mf(d, ar(AF + 4*nu), vr(bfr(c, T)), "0" if k == 0 else d))
            A.emit(pre[g])
    assert NA in (2, 4) and cfg.sigstep < 2 and cfg.obsteps <= cfg.sigb <= 4 and cfg.keep
    for k in range(13):
        step(k)
        if k == 1: stamp(4)
        if k == 3: stamp(36)
        if k == 11: stamp(32)
    TMP = bfr(0, 0)
    def x_reads(r): return [f"ds_read_b128 {vr(TMP + 4*T)}, v{20 + r % 2} offset:{T*1024}" for T in range(6)]
    def x_writes(r): return [f"ds_write_b128 v{16 + r % 2}, {ar(24*r + 4*T)} offset:{T*1024}" for T in range(6)]
    def flush(r, pk=False):
        w = []
        for p in range(3):
            ob = KEEP + 24*r + 8*p
            if pk: w += [f"v_pk_add_f32 v[{ob+z}:{ob+z+1}], v[{ob+z}:{ob+z+1}], v[{TMP+8*p+z}:{TMP+8*p+z+1}]" for z in range(0, 8, 2)]
            else: w += [f"v_add_f32 v{ob+z}, v{ob+z}, v{TMP+8*p+z}" for z in range(8)]
            w += [f"v_cvt_pk_bf16_f32 v{ob+z}, v{ob+2*z}, v{ob+2*z+1}" for z in range(4)]
            w.append(("ST", f"buffer_store_dwordx4 {vr(ob)}, v32, s[12:15], s52 offen offset:{p*1024} {cfg.pst}"))
        w.append(("SA", "s_add_u32 s52, s52, 3072"))
        return w
    A("s_waitcnt lgkmcnt(0)")
    for r in range(5):
        pre = [[] for _ in range(36)]
        ra = ax_reads(2*r + 1); pre[0] += ra[:2]; pre[1] += ra[2:]
        if r < 4:
            rb = ax_reads(2*r + 2); pre[18] += rb[:2]; pre[19] += rb[2:]
        for T, w in enumerate(x_writes(r)): pre[cfg.xw0 + T*cfg.xwsp].append(w)
        work = []
        if r:
            xr = x_reads(r - 1)
            for k in range(3): pre[2 + k] += xr[2*k:2*k+2]
            work = flush(r - 1)
        pre[8].append("s_waitcnt lgkmcnt(0)")
        gaps = [g for g in range(8, 35) if g == 8 or not pre[g]]
        for gi, g in enumerate(gaps):
            left = len(gaps) - gi
            cost = sum(2 if isinstance(x, tuple) and x[0] == "ST" else 0 if isinstance(x, tuple) else 1 for x in work)
            budget = max(2, -(-cost // left)); n = 0
            while work and n < budget:
                it = work[0]
                if isinstance(it, tuple):
                    if it[0] == "ST" and n > 0 and left > 1: break
                    pre[g].append(it[1]); n += 2 if it[0] == "ST" else 0
                else: pre[g].append(it); n += 1
                work.pop(0)
        for it in work: pre[34].append(it[1] if isinstance(it, tuple) else it)
        pre[35] += ["s_waitcnt lgkmcnt(0)", "s_barrier"]
        g = 0
        for pos in (2*r, 2*r + 1):
            nu = GR[pos]
            for T in range(6):
                for c in (1, 2, 3):
                    d = acc2(nu, T)
                    A(mf(d, ar(AF + 4*nu) if c == 1 else ar(ax(pos, c)), vr(bfr(1, T)) if c == 1 else bx(c, T), d))
                    A.emit(pre[g]); g += 1
    stamp()
    A.emit(x_reads(4))
    A("s_waitcnt lgkmcnt(0)")
    for it in flush(4, True): A(it[1] if isinstance(it, tuple) else it)
    if cfg.keep:
        A("s_cmp_lg_u32 s20, s28\ns_cbranch_scc1 L_nokeep")
        for m in range(15): A(f"ds_write_b128 v32, {vr(KEEP + 8*m)} offset:{32768 + m*1024}")
        A("L_nokeep:")
        A("s_mov_b32 s14, 0x40000")
    A("s_mul_i32 s34, s27, 192\ns_and_b32 s35, s28, 1\ns_mul_i32 s35, s35, 96\ns_add_u32 s34, s34, s35\ns_lshl_b32 s35, s20, 5\ns_add_u32 s34, s34, s35\ns_mul_i32 s34, s34, 2560")
    A("s_mul_i32 s35, s25, 1280\ns_add_u32 s34, s34, s35\ns_mul_i32 s35, s23, 320\ns_add_u32 s34, s34, s35\ns_lshr_b32 s35, s28, 1\ns_mul_i32 s35, s35, 160\ns_add_u32 s34, s34, s35")
    A("s_add_u32 s16, s48, s34\ns_addc_u32 s17, s49, 0\ns_sub_u32 s18, 3932160, s34\ns_mov_b32 s19, 0x20000")
    A("s_lshl_b32 s52, s28, 16\ns_lshl_b32 s35, s20, 10\ns_add_u32 s52, s52, s35")
    if cfg.keep:
        for i in range(1, 4): A(f"s_add_u32 s34, s28, {i}\ns_and_b32 s34, s34, 3\ns_lshl_b32 s34, s34, 14\ns_add_u32 s{88+i}, s52, s34")
        A("v_add_u32 v16, s35, v32")
    else:
        for i in range(4): A(f"s_add_u32 s{88+i}, s52, {i*16384}")
    A("v_add_u32 v17, 6144, v32\nv_add_u32 v20, 12288, v32")
    stamp(2)
    A("s_waitcnt vmcnt(0) lgkmcnt(0)")
    A("s_barrier")
    stamp(2)
    signal("v15", "v22", "s100", "s42")
    if cfg.keep:
        for nu in range(5): A(f"ds_read_b128 {vr(40 + 16*nu)}, v16 offset:{32768 + nu*3072}")
    A("s_mov_b32 s98, 0")
    poll("s100", "s58", "0x80000", "s42", "0x100010")
    A("s_barrier")
    stamp(2)
    A("s_cmp_eq_u32 s20, 3\ns_cbranch_scc1 L_end")
    NS = 3 if cfg.keep else 4
    for nu in range(5):
        for src in range(4 - NS, 4):
            A(f"buffer_load_dwordx4 {vr(40 + 16*nu + 4*src)}, v{(32, 17, 20)[nu // 2]}, s[12:15], s{88+src} offen offset:{(nu % 2)*3072} {cfg.pld}")
    A("s_mov_b32 s55, 40960")
    A("s_mov_b32 s34, 0xffff0000")
    for nu in range(5):
        A(f"s_waitcnt vmcnt({NS*(4 - nu) + 2*nu}) lgkmcnt(0)")
        b = 40 + 16*nu; lo = 128;
        for k in range(16): A(f"v_lshlrev_b32 v{lo+k}, 16, v{b+k}")
        for k in range(16): A(f"v_and_b32 v{b+k}, s34, v{b+k}")
        for base in (lo, b):
            for z in range(2):
                A(f"v_pk_add_f32 v[{base+2*z}:{base+2*z+1}], v[{base+2*z}:{base+2*z+1}], v[{base+4+2*z}:{base+5+2*z}]")
                A(f"v_pk_add_f32 v[{base+8+2*z}:{base+9+2*z}], v[{base+8+2*z}:{base+9+2*z}], v[{base+12+2*z}:{base+13+2*z}]")
        for base in (lo, b):
            for z in range(2):
                A(f"v_pk_add_f32 v[{base+2*z}:{base+2*z+1}], v[{base+2*z}:{base+2*z+1}], v[{base+8+2*z}:{base+9+2*z}]")
        for z in range(4): A(f"v_cvt_pk_bf16_f32 v{b+4+z}, v{lo+z}, v{b+z}")
        A(f"buffer_store_dwordx2 {vr(b+4, 2)}, v34, s[16:19], 0 offen offset:{nu*32} {cfg.outst}")
        A(f"buffer_store_dwordx2 {vr(b+6, 2)}, v34, s[16:19], s55 offen offset:{nu*32} {cfg.outst}")
    stamp.finish()
    A("L_end:\ns_endpgm")

    A("L_fallback:")
    A("s_waitcnt vmcnt(0) lgkmcnt(0)")
    A("s_mov_b32 s4, s36\ns_mov_b32 s5, s37\ns_mov_b32 s6, 0x40000\ns_mov_b32 s7, 0x20000")
    A("s_mov_b32 s8, s38\ns_mov_b32 s9, s39\ns_mov_b32 s10, 0x40000\ns_mov_b32 s11, 0x20000")
    A("s_lshl_b32 s52, s20, 13\ns_add_u32 s52, s52, 131072")
    A("v_xor_b32 v58, v3, v4")
    A("v_lshlrev_b32 v59, 1, v4\nv_xor_b32 v59, v3, v59")
    A("v_lshlrev_b32 v60, 8, v4")
    for n in range(4):
        A(f"v_xor_b32 v61, {4*n}, v58")
        A(f"v_lshl_add_u32 v{40+n}, v61, 4, v60")
    for n in range(2):
        A(f"v_xor_b32 v61, {8*n}, v59")
        A(f"v_lshl_add_u32 v{44+n}, v61, 4, v60")
    A("s_sub_u32 s34, s52, s46")
    for c in range(4): A(f"v_add_u32 v{20+c}, s34, v{20+c}")
    A("s_sub_u32 s34, s52, s47")
    for dt in range(8): A(f"v_add_u32 v{24+dt}, s34, v{24+dt}")
    for i in range(192): A(f"v_accvgpr_write_b32 a{i}, 0")
    for k in range(24): A(f"v_mov_b32 v{L+k}, 0")
    A("s_mov_b32 s60, 0")
    A("L_fb_loop:")
    for isv in range(2):
        for n in range(8):
            A(f"s_add_u32 m0, s52, {n*1024}")
            A(f"s_add_u32 s55, s60, {n*1024}")
            A(f"buffer_load_dwordx4 v{(44 + (n & 1)) if isv else (40 + (n & 3))}, s[{8 if isv else 4}:{11 if isv else 7}], s55 offen lds")
        A("s_waitcnt vmcnt(0)")
        if isv:
            for dt in range(8):
                for e in range(2): A(v_read(0, dt, e))
        else:
            for kt in range(2):
                for c in range(4): A(k_read(0, kt, c))
        A("s_waitcnt lgkmcnt(0)")
    R0, R1 = 52, 53
    for t in range(3):
        for m in qk_mfmas(t, 0): A(m)
        A("s_nop 7")
        for Tl in range(2):
            T = 2*t + Tl; s0 = S[0] + 8*Tl
            A(f"v_max3_f32 v{R0}, v{s0}, v{s0+1}, v{s0+2}")
            A(f"v_max3_f32 v{R0}, v{R0}, v{s0+3}, v{s0+4}")
            A(f"v_max3_f32 v{R0}, v{R0}, v{s0+5}, v{s0+6}")
            A(f"v_max3_f32 v{R0}, v{R0}, v{s0+7}, 0")
            A(f"v_mov_b32 v{R1}, v{R0}\ns_nop 1\nv_permlane16_swap_b32 v{R0}, v{R1}\nv_max_f32 v{R0}, v{R0}, v{R1}")
            A(f"v_mov_b32 v{R1}, v{R0}\ns_nop 1\nv_permlane32_swap_b32 v{R0}, v{R1}\nv_max_f32 v{R0}, v{R0}, v{R1}")
            A(f"v_exp_f32 v{R1}, -v{R0}")
            for k in range(8): A(f"v_sub_f32 v{s0+k}, v{s0+k}, v{R0}")
            for k in range(4): A(f"v_sub_f32 v{NEGM+4*T+k}, v{NEGM+4*T+k}, v{R0}")
            for k in range(4): A(f"v_mul_f32 v{L+4*T+k}, v{L+4*T+k}, v{R1}")
            for k in range(0, 32, 4):
                for q in range(4): A(f"v_accvgpr_read_b32 v{54+q}, a{32*T + k + q}")
                for q in range(4): A(f"v_mul_f32 v{54+q}, v{54+q}, v{R1}")
                for q in range(4): A(f"v_accvgpr_write_b32 a{32*T + k + q}, v{54+q}")
        for e in range(16): A(EX(0, e))
        A("s_nop 0")
        for k in range(8): A(CV(0, k))
        A("s_nop 1")
        for m in pv_mfmas(t, 0): A(m)
    A("s_add_u32 s60, s60, 8192\ns_cmp_lt_u32 s60, 0x40000\ns_cbranch_scc1 L_fb_loop")
    A("s_nop 7")
    A("s_branch L_epi")

def gen(cfg):
    A = Asm()
    A("; @launch grid=(256,1,1) block=(256,1,1) lds=163840")
    A('.amdgcn_target "amdgcn-amd-amdhsa--gfx950"\n.text')
    gen_kernel(A, cfg)
    A('.section .rodata,"a"\n.p2align 6')
    A(f".amdhsa_kernel {NAME}_kernel\n  .amdhsa_next_free_vgpr 512\n  .amdhsa_next_free_sgpr 102\n"
      "  .amdhsa_accum_offset 256\n  .amdhsa_group_segment_fixed_size 0\n  .amdhsa_kernarg_size 104\n"
      "  .amdhsa_user_sgpr_count 2\n  .amdhsa_user_sgpr_kernarg_segment_ptr 1\n"
      "  .amdhsa_system_sgpr_workgroup_id_x 1\n.end_amdhsa_kernel")
    return A.text()

if __name__ == "__main__":
    cfg = Cfg()
    for a in sys.argv[2:]:
        k, v = a.split("=")
        old = getattr(cfg, k)
        setattr(cfg, k, type(old)(int(v)) if isinstance(old, (bool, int)) else v.replace('+', ' '))
    open(sys.argv[1], "w").write(gen(cfg))
```

```python
import sys, struct, math
NAME = "concat_heads__mha_block_cached__gqa_block_cached__near_ridge"
def f32bits(x): return struct.unpack("<I", struct.pack("<f", x))[0]

class Cfg:
    stamps = 0
    kv_flags = "sc1 nt"; xld = ''; wqld = ''; pfl = 'nt'
    ost = 'sc1'; old = 'sc1'; wold = ''; pst = 'sc1'; pld = 'sc1'; wopfl = ''; outst = ''
    wopf = 4
    force_fb = False
    thr_log2 = 64
    cpf = 1
    xwpf = 0
    qchain = 1
    qdsp = 3
    rot = 2
    rotd = 16
    wrot = 0
    wsg = 9
    wb0 = 3
    wbn = 4
    acq = 0
    psleep = 2
    rescue = 64
    lag = 8
    qrot = 2
    cpf2 = 0
    ramp = 0
    dpos = -5
    wpat = '5'
    win = 1
    xp = 0
    nearly = 2
    keep = 1
    tlb = 0
    pfb = 1
    kse = 0
    kve = 0
    swin = 0
    swin2 = 0
    swk = 4
    obsteps = 2
    sigb = 3
    xw0 = 20
    xwsp = 2
    p2x = 0
    w5it = 0
    wramp = '733311'
    kvq = 2
    early = 0
    barg = '70,50,30,10'
    slabst = 0
    ssk = 0
    ss0 = 0
    ssr = 0
    ssn = 1
    sparse1 = 1
    pvord = 1
    wlate = 0
    wmode = 3
    stride = 1
    kvpf = 0
    kvpfl = ''
    kvpf0 = 0
    kvpf1 = 7
    pat = 3
    sigstep = 0
    no_dma = False; no_bar = False; q_nodma = False

class Asm:
    def __init__(s): s.l = []; s.vm = []
    def __call__(s, x): s.l.append(x)
    def vmem(s, x, tag): s.l.append(x); s.vm.append(tag)
    def vm_after(s, tags):
        last = -1
        for i, t in enumerate(s.vm):
            if t in tags: last = i
        assert last >= 0, tags
        return min(63, len(s.vm) - 1 - last)
    def emit(s, items):
        for it in items:
            if isinstance(it, tuple): s.vmem(it[0], it[1])
            elif callable(it): it()
            else: s(it)
    def text(s): return "\n".join(s.l) + "\n"

def mf(d, a, b, c): return f"v_mfma_f32_16x16x32_bf16 {d}, {a}, {b}, {c}"
def vr(b, n=4): return f"v[{b}:{b+n-1}]" if n > 1 else f"v{b}"
def ar(b, n=4): return f"a[{b}:{b+n-1}]" if n > 1 else f"a{b}"
STAMP_BASE = 64 << 20
PBASE = 32 << 20
MBOX = 30 << 20

class Stamper:
    def __init__(s, A, cfg): s.A = A; s.cfg = cfg; s.n = 0
    def __call__(s, mode=47):
        if s.cfg.stamps & mode:
            s.A(f"s_memrealtime s[{64+4*s.n}:{65+4*s.n}]\ns_memtime s[{66+4*s.n}:{67+4*s.n}]"); s.n += 1
    def finish(s):
        A = s.A
        if not s.cfg.stamps: return
        A("s_waitcnt vmcnt(0)")
        s(63)
        assert s.n <= 7
        A("s_waitcnt lgkmcnt(0)")
        A(f"s_add_u32 s44, s44, {STAMP_BASE}\ns_addc_u32 s45, s45, 0\ns_mov_b32 s46, 0x100000\ns_mov_b32 s47, 0x20000")
        A("s_lshl_b32 s34, s2, 2\ns_add_u32 s34, s34, s20\ns_lshl_b32 s34, s34, 6")
        A("v_mov_b32 v1, s34")
        A(f"v_mov_b32 v2, {s.n}\nv_mov_b32 v3, s59\nbuffer_store_dwordx2 v[2:3], v1, s[44:47], 0 offen offset:56\ns_nop 1")
        for k in range(s.n):
            A(f"v_mov_b32 v2, s{64+4*k}\nv_mov_b32 v3, s{66+4*k}")
            A(f"buffer_store_dwordx2 v[2:3], v1, s[44:47], 0 offen offset:{8*k}")
            A("s_nop 1")

XBUF = [114688, 139264]
WSLOT = [2, 0, 1]

def gen_kernel(A, cfg):
    K1 = NAME + "_kernel"
    A(f".globl {K1}\n.p2align 8\n.type {K1},@function\n{K1}:")
    A("s_cmp_ge_u32 s2, 256\ns_cbranch_scc1 L_end")
    stamp = Stamper(A, cfg)
    stamp(63)
    A("s_bfe_u32 s25, s2, 0x10002")
    A("s_mul_i32 s28, s25, 40")
    A("s_add_u32 s62, s0, s28\ns_addc_u32 s63, s1, 0")
    A("s_load_dwordx4 s[36:39], s[62:63], 0")
    A("s_load_dwordx4 s[40:43], s[62:63], 16")
    A("s_load_dwordx2 s[44:45], s[0:1], 96")
    A("s_load_dwordx2 s[92:93], s[62:63], 32")
    if cfg.cpf:
        A("s_getpc_b64 s[88:89]")
        A("L_pc:")
        A("s_mov_b32 s90, L_end - L_pc\ns_mov_b32 s91, 0x20000")
        A("v_lshlrev_b32 v54, 7, v0")
        A.vmem("buffer_load_dword v56, v54, s[88:91], 0 offen", "CPF")
    A("s_lshr_b32 s24, s2, 3")
    A("s_and_b32 s28, s2, 3")
    A("s_and_b32 s23, s24, 3")
    A("s_lshl_b32 s26, s28, 2\ns_add_u32 s26, s26, s23")
    A("s_lshr_b32 s27, s24, 2")
    A("v_lshrrev_b32 v1, 6, v0")
    A("v_and_b32 v2, 63, v0")
    A("v_readfirstlane_b32 s20, v1")
    A("v_and_b32 v3, 15, v2\nv_lshrrev_b32 v4, 4, v2")
    A("v_lshrrev_b32 v10, 3, v2\nv_and_b32 v11, 7, v2")
    A("v_xor_b32 v13, v11, v4")
    A("v_mul_u32_u24 v14, 1280, v10")
    A("v_lshl_add_u32 v58, v13, 4, v14")
    A("v_xor_b32 v13, 4, v13")
    A("v_lshl_add_u32 v59, v13, 4, v14")
    A("v_add_u32 v59, 9216, v59")
    A("v_add_u32 v60, 18432, v58\nv_add_u32 v61, 18432, v59")
    A("v_lshlrev_b32 v10, 2, v4\nv_xor_b32 v10, v3, v10")
    A("v_lshlrev_b32 v11, 13, v4")
    A("v_lshl_add_u32 v6, v10, 4, v11")
    for n in range(1, 4): A(f"v_add_u32 v{6+n}, {n*31744}, v6")
    A("s_lshr_b32 s21, s20, 1\ns_and_b32 s22, s20, 1")
    A("s_lshl_b32 s29, s26, 1\ns_add_u32 s29, s29, s21")
    A("s_lshl_b32 s46, s21, 16")
    A("s_mul_i32 s48, s20, 6144")
    A("s_lshl_b32 s54, s22, 13\ns_add_u32 s54, s54, s46")
    A("s_mul_i32 s34, s27, 245760\ns_mul_i32 s49, s20, 61440")
    A("s_lshl_b32 s35, s29, 8\ns_lshl_b32 s53, s22, 18")
    A("s_waitcnt lgkmcnt(0)")
    A("s_add_u32 s4, s36, s34\ns_addc_u32 s5, s37, 0\ns_mov_b32 s6, 245760\ns_mov_b32 s7, 0x20000")
    A("s_add_u32 s8, s42, s35\ns_addc_u32 s9, s43, 0\ns_sub_u32 s10, 5242880, s35\ns_mov_b32 s11, 0x20000")
    if cfg.qrot == 2: A("s_add_u32 s34, s27, s23\ns_and_b32 s34, s34, 1\ns_mul_i32 s34, s34, 5")
    elif cfg.qrot == 3: A("s_add_u32 s34, s27, s23\ns_and_b32 s34, s34, 3\ns_mul_i32 s34, s34, 5\ns_lshr_b32 s34, s34, 1")
    elif cfg.qrot:
        A("s_mul_i32 s34, s27, 5\ns_mul_i32 s35, s23, 10\ns_add_u32 s34, s34, s35\ns_lshr_b32 s34, s34, 2")
        A("s_cmp_ge_u32 s34, 10\ns_cselect_b32 s35, 10, 0\ns_sub_u32 s34, s34, s35")
    else: A("s_mov_b32 s34, 0")
    A("s_lshl_b32 s50, s34, 7\ns_add_u32 s50, s50, s49\ns_add_u32 s96, s49, 1280")
    A("s_lshl_b32 s51, s34, 19\ns_add_u32 s51, s51, s53\ns_add_u32 s97, s53, 5242880")
    def dma_x(xi):
        r = []
        for n in range(6):
            if n % 4 == 0:
                r += [f"s_add_u32 m0, s48, {XBUF[xi % 2] + n*1024}", f"s_add_u32 s55, s50, {n*10240}"]
            r.append((f"buffer_load_dwordx4 v{58 + (n & 3)}, s[4:7], s55 offen offset:{(n & 3)*1024} {cfg.xld} lds", f"X{xi}"))
        r += ["s_add_u32 s50, s50, 128", "s_cmp_eq_u32 s50, s96\ns_cselect_b32 s50, s49, s50"]
        return r
    def dma_w(sg):
        r = []
        for n in range(8):
            if n % 4 == 0:
                r += [f"s_add_u32 m0, s54, {WSLOT[sg % 3]*16384 + n*1024}", f"s_add_u32 s55, s51, {n*4*8192}"]
            r.append((f"buffer_load_dwordx4 v{6 + (n & 3)}, s[8:11], s55 offen offset:{(n & 3)*1024} {cfg.wqld} lds", f"W{sg}"))
        r += ["s_add_u32 s51, s51, 0x80000", "s_cmp_eq_u32 s51, s97\ns_cselect_b32 s51, s53, s51"]
        return r
    def kmap(half):
        e = cfg.kse
        if e == 0: return "s_and_b32 s55, s30, 0x3ffff"
        hi = 0x3ffff & ~((1 << (13 + e)) - 1)
        r = f"s_bfe_u32 s35, s30, 0x{(e << 16) | 13:x}\ns_lshl_b32 s55, s35, 10"
        if hi: r += f"\ns_and_b32 s35, s30, 0x{hi:x}\ns_or_b32 s55, s55, s35"
        if half: r += f"\ns_or_b32 s55, s55, 0x{1 << (12 + e):x}"
        return r
    def dma_kv(step, nmax=8):
        r = []
        for n in range(nmax):
            if n % 4 == 0:
                r += [f"s_add_u32 m0, s54, {(step % 4)*16384 + n*1024}", kmap(n), "s_add_u32 s30, s30, s101" if n else "s_add_u32 s30, s30, 4096"]
            r.append((f"buffer_load_dwordx4 v{16 + (n & 3)}, s[12:15], s55 offen offset:{(n & 3)*1024} {cfg.kv_flags} lds", f"KV{step}"))
        return r
    A.emit(dma_x(0)); A.emit(dma_w(0))
    def xw_pf():
        return [(f"buffer_load_dword v56, v62, s[4:7], s58 offen", "PF"), (f"buffer_load_dword v56, v63, s[84:87], s60 offen", "PF"),
                "s_add_u32 s58, s58, 512", "s_add_u32 s60, s60, 0x200000"]
    if cfg.xwpf:
        assert not cfg.qrot and cfg.wmode != 4
        A("v_min_u32 v62, 47, v2\nv_mul_u32_u24 v62, 1280, v62")
        A("v_lshrrev_b32 v63, 2, v2\nv_min_u32 v63, 7, v63\nv_lshlrev_b32 v63, 16, v63\nv_and_b32 v14, 3, v2\nv_lshl_add_u32 v63, v14, 7, v63")
        A("s_mul_i32 s58, s23, 61440\ns_lshl_b32 s34, s20, 7\ns_add_u32 s58, s58, s34\ns_add_u32 s58, s58, 128")
        A("s_lshl_b32 s60, s20, 6\ns_add_u32 s60, s60, s27\ns_add_u32 s60, s60, 64\ns_lshl_b32 s60, s60, 13")
        A("s_lshl_b32 s34, s21, 8\ns_sub_u32 s84, s8, s34\ns_subb_u32 s85, s9, 0\ns_add_u32 s86, s10, s34\ns_mov_b32 s87, 0x20000")
        A.emit(xw_pf())
    A("s_lshl_b32 s34, s27, 5\ns_add_u32 s34, s34, s29\ns_lshl_b32 s34, s34, 18")
    A("s_add_u32 s36, s38, s34\ns_addc_u32 s37, s39, 0")
    A("s_add_u32 s38, s40, s34\ns_addc_u32 s39, s41, 0")
    A("s_cmp_eq_u32 s22, 1")
    A("s_cselect_b32 s12, s38, s36\ns_cselect_b32 s13, s39, s37")
    A("s_mov_b32 s14, 0x40000\ns_mov_b32 s15, 0x20000")
    A("s_cselect_b64 s[32:33], -1, 0")
    A("v_xor_b32 v11, v3, v4")
    A("v_lshlrev_b32 v10, 1, v4\nv_xor_b32 v10, v3, v10")
    A("v_lshlrev_b32 v12, 8, v4")
    for n in range(4):
        A(f"v_xor_b32 v13, {4*n}, v11")
        A(f"v_xor_b32 v14, {8*(n&1)}, v10")
        A("v_cndmask_b32 v13, v13, v14, s[32:33]")
        A(f"v_lshl_add_u32 v{16+n}, v13, 4, v12")
        if n and cfg.kse: A(f"v_add_u32 v{16+n}, {n * ((1024 << cfg.kse) - 1024)}, v{16+n}")
    A("v_lshlrev_b32 v12, 8, v3\nv_add_u32 v12, s46, v12")
    for c in range(4):
        A(f"v_xor_b32 v13, {4*c}, v11")
        A(f"v_lshl_add_u32 v{20+c}, v13, 4, v12")
    A("v_lshrrev_b32 v10, 2, v3\nv_lshl_add_u32 v11, v4, 2, v10")
    A("v_and_b32 v12, 7, v11")
    A("v_lshlrev_b32 v11, 8, v11")
    A("v_and_b32 v13, 3, v3\nv_lshl_add_u32 v11, v13, 3, v11")
    A("s_add_u32 s47, s46, 8192")
    A("v_add_u32 v11, s47, v11")
    for dt in range(8):
        A(f"v_xor_b32 v14, {dt}, v12")
        A(f"v_lshl_add_u32 v{24+dt}, v14, 5, v11")
    A("v_lshlrev_b32 v32, 4, v2\nv_add_u32 v33, 4096, v32")
    A(f"s_mul_i32 s34, s22, 12288\ns_add_u32 s34, s34, {XBUF[0]}")
    A("v_lshrrev_b32 v11, 1, v3\nv_xor_b32 v11, v4, v11")
    A("v_lshlrev_b32 v12, 7, v3\nv_add_u32 v12, s34, v12")
    for s in range(2):
        A(f"v_xor_b32 v14, {4*s}, v11")
        A(f"v_lshl_add_u32 v{52+s}, v14, 4, v12")
    A("v_lshl_add_u32 v11, v4, 3, v10\nv_lshlrev_b32 v11, 8, v11")
    A("v_lshl_add_u32 v11, v13, 4, v11")
    A("v_add_u32 v11, s46, v11")
    for c in range(4):
        A(f"v_xor_b32 v14, {c}, v10")
        A(f"v_lshl_add_u32 v{40+c}, v14, 6, v11")
    if cfg.kvpf:
        lam = cfg.kvpf; sh = lam.bit_length() - 1
        A(f"v_lshrrev_b32 v55, {sh}, v2\nv_lshlrev_b32 v55, 13, v55\nv_and_b32 v14, {lam-1}, v2\nv_lshl_add_u32 v55, v14, 7, v55")
        npf = lam // 2
        kvpf_list = [[f"s_mov_b32 s50, {k*(64//lam)*8192}", (f"buffer_load_dword v56, v55, s[12:15], s50 offen {cfg.kvpfl}", "PF")] for k in range(npf)]
        nsl = cfg.kvpf1 - cfg.kvpf0 + 1
    if cfg.sparse1:
        A("v_and_b32 v14, 3, v2\nv_cmp_eq_u32 vcc, 0, v14\nv_mov_b32 v14, 0x3f803f80\ns_nop 0")
        for k in range(4): A(f"v_cndmask_b32 v{48+k}, 0, v14, vcc")
    else:
        for k in range(4): A(f"v_mov_b32 v{48+k}, 0x3f803f80")
    A("v_lshl_add_u32 v45, v4, 4, s46")
    cs = f32bits(128 ** -0.5 * math.log2(math.e))
    A(f"v_mov_b32 v46, 0x{cs:08x}\nv_mov_b32 v47, 0x{cs:08x}")
    A(f"s_mov_b32 s31, 0x{f32bits(2.0 ** cfg.thr_log2):08x}")
    A("s_lshl_b32 s40, s25, 3\ns_add_u32 s40, s40, s27")
    A("s_lshl_b32 s34, s40, 5\ns_add_u32 s34, s34, s29\ns_lshl_b32 s34, s34, 1\ns_add_u32 s34, s34, s22\ns_mul_i32 s34, s34, 24576")
    A("s_add_u32 s16, s44, s34\ns_addc_u32 s17, s45, 0\ns_movk_i32 s18, 0x6000\ns_mov_b32 s19, 0x20000")
    A("s_mov_b32 s59, 0")
    if cfg.rot:
        if cfg.rot == 1:
            A("s_lshl_b32 s30, s2, 1\ns_add_u32 s30, s30, s21\ns_mul_i32 s34, s30, 0x9E3779B1\ns_lshr_b32 s30, s34, 27\ns_lshl_b32 s30, s30, 13")
        else:
            A(f"s_add_u32 s30, s2, 1\ns_mul_i32 s34, s30, 0x9E3779B1\ns_lshr_b32 s30, s34, 27\ns_mul_i32 s35, s21, {cfg.rotd}\ns_add_u32 s30, s30, s35\ns_lshl_b32 s30, s30, 13")
        if cfg.stride: A("s_bfe_u32 s101, s34, 0x40017\ns_lshl_b32 s101, s101, 14\ns_add_u32 s101, s101, 4096")
        else: A("s_movk_i32 s101, 0x1000")
    else:
        A("s_mov_b32 s30, 0\ns_movk_i32 s101, 0x1000")
    if cfg.cpf:
        A("s_mov_b32 s34, 0x8000")
        A.vmem("buffer_load_dword v56, v54, s[88:91], s34 offen", "CPF")
    if cfg.wmode in (3, 4):
        A("s_lshl_b32 s34, s26, 3\ns_add_u32 s34, s34, s27\ns_mul_i32 s34, s34, 40960")
        A("s_add_u32 s88, s92, s34\ns_addc_u32 s89, s93, 0\ns_mov_b32 s90, 40960\ns_mov_b32 s91, 0x20000")
        A("v_add_u32 v55, 0x8000, v54")
        if cfg.wmode == 4:
            per = 320 // (4 * cfg.wbn)
            A(f"v_mul_u32_u24 v55, {per}, v1\nv_add_u32 v55, v55, v2\nv_lshlrev_b32 v55, 7, v55\nv_cmp_gt_u32 vcc, {per}, v2\nv_mov_b32 v14, 0x100000\ns_nop 0\nv_cndmask_b32 v55, v14, v55, vcc")
    if not cfg.early: A.emit(dma_x(1)); A.emit(dma_w(1))

    ACC = 64
    def acc(T, dt): return ACC + 32 * T + 4 * dt
    def fa(dt, s): return 80 + 8 * dt + 4 * s
    def fb(p, T, s): return (144 if p == 0 else 192) + 8 * T + 4 * s
    def qa_reads(sg, dt):
        c, e = dt >> 1, dt & 1
        return [f"ds_read_b64_tr_b16 {ar(fa(dt, s) + 2*f, 2)}, v{40+c} offset:{WSLOT[sg % 3]*16384 + s*8192 + f*1024 + 8*e}"
                for s in range(2) for f in range(2)]
    def qb_read(sg, T, s):
        return f"ds_read_b128 {ar(fb(sg % 2, T, s))}, v{52 + s} offset:{(sg % 2)*24576 + T*2048}"
    A(f"s_waitcnt vmcnt({A.vm_after(['X0', 'W0'])})")
    A("s_barrier")
    for T in range(6):
        for s in range(2): A(qb_read(0, T, s))
    for dt in range(8):
        for r in qa_reads(0, dt): A(r)
    fill = [f"v_accvgpr_write_b32 a{i}, 0" for i in range(80)]
    pend = (dma_x(1) + dma_w(1) if cfg.early else []) + dma_w(2)
    NST = (5 if cfg.win else 8)
    qend = 8 + cfg.lag + NST
    PFW = [(f"buffer_load_dword v56, v54, s[88:91], 0 offen {cfg.wopfl}", "KVPF"), (f"buffer_load_dword v56, v55, s[88:91], 0 offen {cfg.wopfl}", "KVPF")]
    BG = [int(x) for x in cfg.barg.split(",")] if cfg.early else [10]
    for sg in range(10):
        last = sg == 9
        slots = [[] for _ in range(96)]
        if not last:
            need = [f"W{sg+1}", f"X{sg+1}"]
            G = BG[min(sg, len(BG) - 1)]
            slots[G] = ["WAIT"]; slots[G + 1] = ["BAR"]
            if G > 11: slots[11] = ["s_waitcnt lgkmcnt(0)"]
            rl = [(11, r) for r in qa_reads(sg + 1, 0)]
            for T in range(6): rl += [(0, qb_read(sg + 1, T, 0)), (0, qb_read(sg + 1, T, 1))]
            for dt in range(1, 8): rl += [(12*dt + 11, r) for r in qa_reads(sg + 1, dt)]
            for g in range(G + 2, 96):
                k = 0
                while rl and rl[0][0] <= g and (k < 2 or g == 95):
                    slots[g].append(rl.pop(0)[1]); k += 1
            assert not rl
        else:
            fill += [f"v_accvgpr_write_b32 a{i}, 0" for i in range(144, 192)]
            for n in range(5):
                fill += [f"v_add_u32 v14, {64*n}, v2", "v_mul_u32_u24 v15, 3277, v14", "v_lshrrev_b32 v15, 16, v15",
                         "v_mul_u32_u24 v34, 20, v15", "v_sub_u32 v14, v14, v34", "v_bfe_u32 v34, v15, 2, 1", "v_lshlrev_b32 v34, 1, v34",
                         "v_xor_b32 v14, v14, v34", "v_mul_u32_u24 v15, 1280, v15", f"v_lshl_add_u32 v{5+n}, v14, 4, v15"]
                if 0 < n < 4: fill.append(f"v_subrev_u32 v{5+n}, {1024*n}, v{5+n}")
        if cfg.slabst:
            A(f"s_memrealtime s[98:99]\ns_waitcnt lgkmcnt(0)\nv_writelane_b32 v57, s98, {sg + 1}")
        A("s_waitcnt lgkmcnt(15)")
        order = [(T, s) for T in range(6) for s in range(2)] if cfg.qchain else [(T, s) for s in range(2) for T in range(6)]
        g = 0
        for dt in range(8):
            for T, s in order:
                d = vr(acc(T, dt))
                A(mf(d, ar(fa(dt, s)), ar(fb(sg % 2, T, s)), "0" if sg == 0 and s == 0 else d))
                used = 0
                for x in slots[g]:
                    if x == "WAIT": A(f"s_waitcnt vmcnt({A.vm_after(need)}) lgkmcnt(0)"); used = 2
                    elif x == "BAR":
                        A("s_barrier"); used = 2
                        if sg + 2 < 10: pend += dma_x(sg + 2)
                        if cfg.kvpf and cfg.kvpf0 <= sg <= cfg.kvpf1:
                            r = sg - cfg.kvpf0
                            for k in range(r * npf // nsl, (r + 1) * npf // nsl): pend += kvpf_list[k]
                        if sg + 3 < 10: pend += dma_w(sg + 3)
                        if cfg.xwpf and sg in (cfg.pfb, cfg.pfb + 3): pend += xw_pf()
                        if cfg.wmode == 4 and cfg.wb0 <= sg < cfg.wb0 + cfg.wbn:
                            pend += [f"s_mov_b32 s60, {(sg - cfg.wb0) * (40960 // cfg.wbn)}", (f"buffer_load_dword v56, v55, s[88:91], s60 offen {cfg.wopfl}", "KVPF")]
                        if cfg.wmode == 3 and sg == cfg.wsg:
                            pend += PFW
                        if sg == (7 if cfg.kvq == 2 else 8) and cfg.kvq: pend += dma_kv(0)
                        if sg == 8 and cfg.kvq == 2: pend += dma_kv(1)
                    else: A(x); used = 2
                if last and g == 11:
                    A("s_waitcnt lgkmcnt(0)")
                    if cfg.kve:
                        A("s_barrier"); used = 2
                        pend += dma_kv(2, min(8, qend - 16)) + dma_kv(3, max(0, qend - 24))
                    if cfg.wmode == 3 and cfg.wsg == 9: pend += PFW
                if last and g % 12 == 11 and g < 95:
                    fill += [f"v_accvgpr_write_b32 a{i}, 0" for i in range(fa(dt, 0), fa(dt, 0) + 8)]
                if not used and pend:
                    if isinstance(pend[0], str): A(pend.pop(0))
                    elif g % (cfg.qdsp if sg >= len(BG) - 1 else 2) == 0:
                        it = pend.pop(0); used = 2
                        if cfg.q_nodma and not it[1].startswith("KV"): A.vm.append(it[1])
                        else: A.vmem(*it)
                if not used:
                    for _ in range(2):
                        if fill: A(fill.pop(0))
                g += 1
    assert not pend, len(pend)
    fill += [f"v_accvgpr_write_b32 a{i}, 0" for i in range(fa(7, 0), fa(7, 0) + 8)]
    if not cfg.kve: A("s_barrier")
    stamp(1)
    if cfg.slabst:
        A(f"s_memrealtime s[60:61]\ns_waitcnt lgkmcnt(0)\nv_writelane_b32 v57, s60, 11\nv_writelane_b32 v57, s64, 0")
        A(f"s_add_u32 s88, s44, {STAMP_BASE + 0x80000}\ns_addc_u32 s89, s45, 0\ns_mov_b32 s90, 0x100000\ns_mov_b32 s91, 0x20000")
        A("s_lshl_b32 s34, s2, 10\nv_lshlrev_b32 v62, 2, v0")
        A.vmem("buffer_store_dword v57, v62, s[88:91], s34 offen", "ST")
        A("s_nop 3")
    A("s_load_dwordx4 s[48:51], s[0:1], 80")
    A("s_lshl_b32 s41, s40, 2\ns_add_u32 s42, s41, s23\ns_add_u32 s41, s41, s28")
    A(f"s_add_u32 s8, s44, {MBOX}\ns_addc_u32 s9, s45, 0\ns_mov_b32 s10, 0x8000\ns_mov_b32 s11, 0x20000")
    A("s_lshl_b32 s99, s41, 8\ns_lshl_b32 s100, s42, 8\ns_add_u32 s100, s100, 0x4000")
    A("v_mov_b32 v57, 0")
    A.vmem("buffer_load_dword v62, v57, s[8:11], s99 offen sc1", "SNAP")
    A.vmem("buffer_load_dword v63, v57, s[8:11], s100 offen sc1", "SNAP")
    for st in range(cfg.kvq, 2): A.emit(dma_kv(st))
    for z in fill: A(z)
    for k in range(96):
        A(f"v_pk_mul_f32 v[{ACC+2*k}:{ACC+2*k+1}], v[{ACC+2*k}:{ACC+2*k+1}], v[46:47]")
        if k >= 1: A(f"v_cvt_pk_bf16_f32 v{ACC+k-1}, v{ACC+2*k-2}, v{ACC+2*k-1}")
    A(f"v_cvt_pk_bf16_f32 v{ACC+95}, v{ACC+190}, v{ACC+191}")
    def qf(T, c): return ACC + 16 * T + 4 * c
    A("s_waitcnt lgkmcnt(0)")
    if cfg.tlb:
        A.vmem("buffer_load_dword v56, v57, s[16:19], 0 offen sc1", "TLB")
        A(f"s_lshl_b32 s34, s42, 18\ns_add_u32 s34, s34, {PBASE + 15360}")
        A("s_add_u32 s4, s44, s34\ns_addc_u32 s5, s45, 0\ns_movk_i32 s6, 0x100\ns_mov_b32 s7, 0x20000")
        A.vmem("buffer_load_dword v56, v57, s[4:7], 0 offen sc1", "TLB")
        A("s_mul_i32 s34, s27, 491520\ns_and_b32 s35, s28, 1\ns_mul_i32 s35, s35, 245760\ns_add_u32 s34, s34, s35\ns_mul_i32 s35, s20, 61440\ns_add_u32 s34, s34, s35")
        A("s_add_u32 s4, s48, s34\ns_addc_u32 s5, s49, 0")
        A.vmem("buffer_load_dword v56, v57, s[4:7], 0 offen sc1", "TLB")
        A("s_mov_b32 s4, s50\ns_mov_b32 s5, s51")
        A.vmem("buffer_load_dword v56, v57, s[4:7], 0 offen sc1", "TLB")

    S = [160, 176]; P = [192, 200]; NEGM = 208; L = 232; ONES = 48
    KF = 192; VF = 224
    def O(T, dt): return 32 * T + 4 * dt
    def k_read(st, kt, c): return f"ds_read_b128 {ar(KF + 16*kt + 4*c)}, v{20+c} offset:{st*16384 + kt*4096}"
    def v_read(st, dt, e): return f"ds_read_b64_tr_b16 {ar(VF + 4*dt + 2*e, 2)}, v{24+dt} offset:{st*16384 + e*4096}"
    def qk_mfmas(t, par):
        r = []
        for Tl in range(2):
            T = 2*t + Tl
            for kt in range(2):
                d = vr(S[par] + 8*Tl + 4*kt)
                for c in range(4):
                    r.append(mf(d, ar(KF + 16*kt + 4*c), vr(qf(T, c)), vr(NEGM + 4*T) if c == 0 else d))
        return r
    def pv_mfmas(t, par):
        r = []
        if cfg.pvord:
            for dt in range(8):
                for Tl in range(2):
                    T = 2*t + Tl
                    r.append(mf(ar(O(T, dt)), ar(VF + 4*dt), vr(P[par] + 4*Tl), ar(O(T, dt))))
            for Tl in range(2):
                T = 2*t + Tl
                r.append(mf(vr(L + 4*T), vr(ONES), vr(P[par] + 4*Tl), vr(L + 4*T)))
            return r
        for Tl in range(2):
            T = 2*t + Tl
            for dt in range(8):
                r.append(mf(ar(O(T, dt)), ar(VF + 4*dt), vr(P[par] + 4*Tl), ar(O(T, dt))))
            r.append(mf(vr(L + 4*T), vr(ONES), vr(P[par] + 4*Tl), vr(L + 4*T)))
        return r
    def EX(par, e): return f"v_exp_f32 v{S[par]+e}, v{S[par]+e}" if not cfg.xp & 1 else "s_nop 1"
    def CV(par, k): return f"v_cvt_pk_bf16_f32 v{P[par]+k}, v{S[par]+2*k}, v{S[par]+2*k+1}" if not cfg.xp & 2 else f"v_mov_b32 v{P[par]+k}, 0x3f803f80"
    A(f"s_waitcnt vmcnt({A.vm_after(['KV0'])})")
    A("s_barrier")
    for c in range(4): A(f"ds_read_b128 {vr(S[1] + 4*c)}, v45 offset:{64*c}")
    for kt in range(2):
        for c in range(4): A(k_read(0, kt, c))
    for k in range(24): A(f"v_mov_b32 v{L+k}, 0")
    A("s_waitcnt lgkmcnt(8)")
    for k in range(16): A(f"v_xor_b32 v{S[1]+k}, 0x80008000, v{S[1]+k}")
    A("s_nop 1")
    if cfg.kve: kv2 = []; kv3 = []
    else: kv2 = dma_kv(2, min(8, qend - 16)); kv3 = dma_kv(3, max(0, qend - 24))
    gam = "v14"
    misc = ["v_and_b32 v14, 1, v4", "v_xor_b32 v15, 1, v14",
            "v_lshrrev_b32 v34, 2, v3", "v_lshl_add_u32 v34, v4, 2, v34", "v_mul_u32_u24 v34, 320, v34",
            "v_and_b32 v35, 3, v3", "v_lshl_add_u32 v34, v35, 3, v34", "v_add_u32 v34, s46, v34",
            "v_lshl_add_u32 v36, v14, 5, v34", "v_lshl_add_u32 v37, v15, 5, v34",
            "v_add_u32 v38, 128, v37", "v_add_u32 v39, 192, v36",
            "MASK",
            "v_cndmask_b32 v10, v36, v38, s[32:33]", "v_cndmask_b32 v11, v37, v39, s[32:33]",
            "v_cndmask_b32 v12, v38, v36, s[32:33]", "v_cndmask_b32 v13, v39, v37, s[32:33]",
            "v_mul_u32_u24 v34, 2560, v3", "v_lshl_add_u32 v34, v4, 3, v34",
            "v_lshlrev_b32 v35, 7, v0", "v_add_u32 v36, 0x8000, v35"]
    if cfg.wmode == 1:
        misc = misc[:-2] + ["v_mul_u32_u24 v35, 12, v1", "v_add_u32 v35, v35, v2", "v_lshlrev_b32 v35, 7, v35",
            "v_cmp_gt_u32 vcc, 12, v2", "v_mov_b32 v36, 0x100000", "s_nop 0", "v_cndmask_b32 v35, v36, v35, vcc", "s_mov_b32 s60, 0"]
    def misc_step():
        for _ in range(2):
            if misc:
                m = misc.pop(0)
                if m == "MASK": A("s_cmp_eq_u32 s21, 1\ns_cselect_b64 s[32:33], -1, 0")
                else: A(m)
    for T in range(6):
        for c in range(4):
            d = vr(NEGM + 4*T)
            A(mf(d, vr(S[1] + 4*c), vr(qf(T, c)), "0" if c == 0 else d))
            if kv2 and (isinstance(kv2[0], str) or c % 2 == 0): A.emit([kv2.pop(0)])
            else: misc_step()
    assert not kv2
    A("s_waitcnt lgkmcnt(0)")
    for k, m in enumerate(qk_mfmas(0, 0)):
        A(m)
        if kv3 and (isinstance(kv3[0], str) or k % 2 == 0): A.emit([kv3.pop(0)])
        else: misc_step()
    A.emit(kv3)
    while misc: misc_step()
    A("s_lshl_b32 s34, s26, 3\ns_add_u32 s34, s34, s27\ns_mul_i32 s34, s34, 40960")
    A("s_add_u32 s88, s92, s34\ns_addc_u32 s89, s93, 0\ns_mov_b32 s90, 40960\ns_mov_b32 s91, 0x20000")
    A("s_lshl_b32 s34, s28, 10\ns_lshl_b32 s35, s21, 7\ns_add_u32 s34, s34, s35\ns_lshl_b32 s35, s22, 4\ns_add_u32 s34, s34, s35")
    A("s_mul_i32 s34, s34, 1280\ns_mul_i32 s35, s23, 320\ns_add_u32 s34, s34, s35")
    A("s_add_u32 s92, s92, s34\ns_addc_u32 s93, s93, 0\ns_sub_u32 s94, 5242880, s34\ns_mov_b32 s95, 0x20000")
    if cfg.wmode == 2:
        A(f"buffer_load_dword v39, v35, s[88:91], 0 offen {cfg.wopfl}")
        A(f"buffer_load_dword v39, v36, s[88:91], 0 offen {cfg.wopfl}")
    for e in range(16): A(EX(0, e))
    for k in range(4): A(CV(0, k))
    A("s_mul_i32 s96, s23, 327680")
    A("s_mov_b32 s57, 7\ns_mov_b64 vcc, -1")
    if cfg.wramp: A(f"s_mov_b32 s61, 0x{cfg.wramp[::-1]}")
    if cfg.cpf2:
        tgt = "L_peel" if cfg.cpf2 == 2 else "L_epi"
        A("s_getpc_b64 s[4:5]\nL_pc2:")
        A(f"s_add_u32 s4, s4, {tgt} - L_pc2\ns_addc_u32 s5, s5, 0\ns_mov_b32 s6, L_end - {tgt}\ns_mov_b32 s7, 0x20000")
    if cfg.ssr:
        A(f"s_mul_i32 s61, s2, 0x9E3779B1\ns_lshr_b32 s61, s61, 16\ns_mul_i32 s61, s61, {cfg.ssr}\ns_lshr_b32 s61, s61, 16\ns_add_u32 s61, s61, {cfg.ss0}\ns_bfm_b32 s61, s61, 0")
    stamp(1)
    def w2_dma(c, sreg, tag, coff=1):
        r = []
        for n in range(5):
            if n == 0: r += [f"s_add_u32 m0, s54, {c*16384}", f"s_add_u32 s55, {sreg}, {c*40960*coff}"]
            if n == 4: r += [f"s_add_u32 m0, s54, {c*16384 + 4096}", "s_nop 0"]
            r.append((f"buffer_load_dwordx4 v{5+n}, s[92:95], s55 offen offset:{(n & 3)*1024} {cfg.wold} lds", tag))
        return r
    N = cfg.lag
    rq = []
    for q in range(8*29 + cfg.lag + NST, 256):
        if q % 4 == 0:
            rq += [f"s_add_u32 m0, s54, {((q >> 3) % 4)*16384 + (q & 4)*1024}", "s_and_b32 s55, s30, 0x3ffff",
                   "s_add_u32 s30, s30, s101" if q & 4 else "s_add_u32 s30, s30, 4096"]
        rq.append((f"buffer_load_dwordx4 v{16 + (q & 3)}, s[12:15], s55 offen offset:{(q & 3)*1024} {cfg.kv_flags} lds", f"KV{q >> 3}"))
    wq = [0, 1, 2, 3]
    def body(u, last):
        t, par, j = u % 3, u % 2, u // 3
        t1, par1 = (u + 1) % 3, (u + 1) % 2
        fin = last and u == 11
        kv_here = bool(rq) and cfg.ramp
        ms = qk_mfmas(t1, par1) + pv_mfmas(t, par)
        pre = [[] for _ in range(34)]
        val = [[] for _ in range(34)]
        val[0] = [CV(par, 4), CV(par, 5)]; val[1] = [CV(par, 6), CV(par, 7)]
        for e in range(16): val[16 + e] = [EX(par1, e)]
        val[32] = [CV(par1, 0), CV(par1, 1)]; val[33] = [CV(par1, 2), CV(par1, 3)]
        jj = (28 + j) if last else j
        iv = jj if t == 2 else jj - 1
        def q_of(i): return 8 * (iv + 2) + N + i
        def live(i): return (not last) or q_of(i) < 256
        def dma(i, g):
            q = q_of(i)
            if live(i):
                pre[g].append((f"buffer_load_dwordx4 v{16 + (q & 3)}, s[12:15], s55 offen offset:{(q & 3)*1024} {cfg.kv_flags} lds", f"KV{q >> 3}"))
        stn = (j + 1) % 4
        if t == 1:
            if not last:
                if cfg.ssr:
                    pre[3] += ["s_bitcmp1_b32 s61, 0"]
                    pre[4] += [f"s_cbranch_scc0 L_ss{u}", f"s_waitcnt vmcnt({cfg.ssn})", f"L_ss{u}:"]
                    pre[7] += ["s_lshr_b32 s61, s61, 1"]
                if cfg.ssk: pre[4] += [f"s_cbranch_vccz L_ss{u}", f"s_waitcnt vmcnt({cfg.ssn})", f"L_ss{u}:"]
                pre[5].append(f"s_waitcnt vmcnt({N})")
            elif j < 3: pre[5].append(lambda: A(f"s_waitcnt vmcnt({A.vm_after([f'KV{29+j}'])})"))
            pre[6].append("s_barrier")
            if not (last and j == 3):
                for kt in range(2):
                    for c in range(4): pre[8 + 4*kt + c].append(k_read(stn, kt, c))
                pre[33].append("s_waitcnt lgkmcnt(0)")
        def inc(q): return "s_add_u32 s30, s30, s101" if q & 4 else "s_add_u32 s30, s30, 4096"
        if cfg.win and not (last and cfg.ramp):
            assert N % 4 == 0
            sites = {1: [(-1, 7, 2), (0, 0, 18), (0, 1, 30)], 2: [(0, 2, 8), (0, 3, 20), (0, 4, 31)], 0: [(-1, 5, 11), (-1, 6, 24)]}[t]
            for off, i, g in sites:
                q = 8 * (jj + off + 2) + N + i
                if last and q >= 256: continue
                kv_here = True
                if q % 4 == 0:
                    pre[g - 3].append(f"s_add_u32 m0, s54, {((q >> 3) % 4)*16384 + (q & 4)*1024}")
                    pre[g - 2].append(kmap(q & 4))
                    pre[g + 1].append(inc(q))
                w = int(cfg.wpat[(8 * ((jj + off) % 4) + i) % len(cfg.wpat)])
                if cfg.wramp and not last:
                    cls = {0: 0, 4: 1, 2: 2, 6: 2}.get(i, 3)
                    pre[g - 1].append(f"s_bitcmp1_b32 s61, {cls}\ns_cbranch_scc0 L_w{u}_{i}\ns_waitcnt vmcnt(3)\nL_w{u}_{i}:")
                    if cfg.w5it: pre[g - 1].append(f"s_cbranch_vccz L_v{u}_{i}\ns_waitcnt vmcnt(4)\nL_v{u}_{i}:")
                pre[g - 1].append(f"s_waitcnt vmcnt({w - 1})")
                pre[g].append((f"buffer_load_dwordx4 v{16 + (q & 3)}, s[12:15], s55 offen offset:{(q & 3)*1024} {cfg.kv_flags} lds", f"KV{q >> 3}"))
        if t in (1, 2) and not (last and cfg.ramp) and not cfg.win:
            iv = jj
            g = (0 if N % 4 == 0 else 2) + cfg.dpos
            def put(gg, it):
                if t == 2 and gg >= 0: pre[gg].append(it)
                if t == 1 and gg < 0: pre[34 + gg].append(it)
            for i in range(8):
                q = 8 * (iv + 2) + N + i
                lv = (not last) or q < 256
                if q % 4 == 0:
                    if lv:
                        put(g, f"s_add_u32 m0, s54, {((q >> 3) % 4)*16384 + (q & 4)*1024}")
                        put(g + 1, "s_and_b32 s55, s30, 0x3ffff")
                        put(g + 1, inc(q))
                    g += 2
                if lv: put(g, (f"buffer_load_dwordx4 v{16 + (q & 3)}, s[12:15], s55 offen offset:{(q & 3)*1024} {cfg.kv_flags} lds", f"KV{q >> 3}"))
                g += 1 if i % 3 else 2
            assert g <= 33, g
            iv = jj if t == 2 else jj - 1
        if last and cfg.ramp and rq:
            gl = {0: list(range(10, 15)) + list(range(16, 32)), 1: [2, 3, 4, 7] + list(range(16, 32)), 2: list(range(2, 32))}[t]
            for g in gl:
                if not rq: break
                if isinstance(rq[0], tuple) and g >= 16 and g % 2: continue
                pre[g].append(rq.pop(0))
        if t == 0:
            for dt in range(8):
                pre[2 + dt] += [v_read(j % 4, dt, 0), v_read(j % 4, dt, 1)]
            pre[15].append("s_waitcnt lgkmcnt(0)")
        if last and ((not kv_here and not rq) if cfg.ramp else (not kv_here and u >= 2 + (16 - N) * 3 // 8)) and wq and wq[0] <= iv - 28 and t != 1 and u >= cfg.wlate:
            c = wq.pop(0)
            w = w2_dma(c, "s96", f"W{c}")
            gs = (0, 1, 2, 5, 8, 11, 12, 13, 14) if t == 2 else (0, 1, 10, 11, 12, 13, 16, 17, 18)
            if fin: gs = (16, 17, 18, 20, 22, 24, 25, 26, 27)
            for it, g in zip(w, gs): pre[g].append(it)
        if (cfg.cpf2 == 2 and not last and u == 6) or (cfg.cpf2 == 1 and last and u == 0):
            pre[13].append(("buffer_load_dword v39, v54, s[4:7], 0 offen", "PF"))
        if cfg.wmode == 1 and not last and u == 4:
            pre[7].append((f"buffer_load_dword v39, v35, s[88:91], s60 offen {cfg.wopfl}", "PF"))
            pre[16].append("s_add_u32 s60, s60, 6144")
        if cfg.wmode == 0 and cfg.wopf and last and u == cfg.wopf:
            assert t != 0
            pre[2].append((f"buffer_load_dword v39, v35, s[88:91], 0 offen {cfg.wopfl}", "PF"))
            pre[4].append((f"buffer_load_dword v39, v36, s[88:91], 0 offen {cfg.wopfl}", "PF"))
        if fin:
            for k in range(4, 8): A(CV(par, k))
            A("s_nop 0")
        for g in range(34):
            if fin and g < 16: continue
            A(ms[g])
            x = pre[g]
            if cfg.no_dma: x = [y for y in x if not isinstance(y, tuple)]
            A.emit(x)
            if not fin:
                for y in val[g]: A(y)
    A(".p2align 6")
    A("L_loop:")
    for u in range(12): body(u, False)
    if cfg.stamps & 16:
        A("s_memrealtime s[60:61]\ns_waitcnt lgkmcnt(0)")
        A("s_cmp_lt_u32 s57, 3\ns_cbranch_scc1 L_nosh")
        A("s_mov_b32 s68, s72\ns_mov_b32 s72, s76\ns_mov_b32 s76, s80\ns_mov_b32 s80, s84\ns_mov_b32 s84, s60")
        A("L_nosh:")
        stamp.n = 6
    if cfg.wramp: A("s_lshr_b32 s61, s61, 4")
    if cfg.w5it: A(f"s_cmp_gt_u32 s57, {8 - cfg.w5it}\ns_cselect_b64 vcc, -1, 0")
    if cfg.ssk: A(f"s_cmp_gt_u32 s57, {8 - cfg.ssk}\ns_cselect_b64 vcc, -1, 0")
    A("s_sub_u32 s57, s57, 1\ns_cmp_lg_u32 s57, 0\ns_cbranch_scc1 L_loop")
    A.vm = [f"KV{q >> 3}" for q in range(8*28, 8*29 + N + NST)]
    A("L_peel:")
    stamp(8)
    for u in range(12):
        body(u, True)
        if u in (4, 8): stamp(8)
    for c in wq: A.emit(w2_dma(c, "s96", f"W{c}"))
    stamp()
    A("v_readfirstlane_b32 s56, v62\nv_readfirstlane_b32 s58, v63")
    A("s_nop 5")
    A(f"v_cmp_nge_f32 vcc, s31, v{L}")
    for T in range(1, 6):
        A(f"v_cmp_nge_f32 s[34:35], s31, v{L + 4*T}")
        A("s_or_b64 vcc, vcc, s[34:35]")
    if cfg.force_fb: A("s_branch L_fallback")
    A("s_cbranch_vccnz L_fallback")
    A("L_epi:")
    BB = 40; KEEP = 136; AF = 192; AX = 232
    def bfr(c, T): return BB + 24 * c + 4 * T
    def acc2(nu, T): return vr(KEEP + 24*nu + 4*T) if nu < 5 else ar(24*(nu - 5) + 4*T)
    def b_loads(c, tag):
        return [(f"buffer_load_dwordx4 {vr(bfr(c, T))}, v{32 + T//4}, s[4:7], s{88+c} offen offset:{(T % 4)*1024} {cfg.old}", tag) for T in range(6)]
    def o_store(c, T, tag):
        return (f"buffer_store_dwordx4 {vr(bfr(c, T))}, v{32 + T//4}, s[16:19], s52 offen offset:{(T % 4)*1024} {cfg.ost}", tag)
    def next_tile(c):
        return ["s_add_u32 s53, s62, s97\ns_lshr_b64 s[62:63], s[62:63], 4",
                "s_bfe_u32 s32, s53, 0x20002\ns_and_b32 s33, s53, 3",
                "s_lshl_b32 s34, s32, 3\ns_add_u32 s34, s34, s33",
                "s_mul_i32 s96, s34, 40960\ns_lshl_b32 s32, s32, 4",
                f"s_add_u32 s32, s32, s33\ns_mul_i32 s{88+c}, s32, 6144"]
    def a_reads(c, nu, dst=None):
        n5 = nu % 5
        reg = 10 + 2*(nu // 5) + (n5 & 1)
        d = AF + 4*nu if dst is None else dst
        return [f"ds_read_b64_tr_b16 {ar(d + 2*e, 2)}, v{reg} offset:{c*16384 + e*8192 + 64*(n5 >> 1)}" for e in range(2)]
    for T in range(6): A(f"v_rcp_f32 v{L + 4*T}, v{L + 4*T}")
    for T in range(6): A(f"v_mov_b32 v{L + 4*T + 1}, v{L + 4*T}")
    q = 0
    NA = cfg.nearly
    for c in range(4):
        if c < NA: A(f"s_movk_i32 s52, {c*6144}")
        for T in range(6):
            tb = KEEP + 8 * (q % 2); ob = bfr(c, T); q += 1
            for k in range(8): A(f"v_accvgpr_read_b32 v{tb+k}, a{O(T, 2*c) + k}")
            for k in range(4): A(f"v_pk_mul_f32 v[{tb+2*k}:{tb+2*k+1}], v[{tb+2*k}:{tb+2*k+1}], v[{L+4*T}:{L+4*T+1}]")
            for k in range(4): A(f"v_cvt_pk_bf16_f32 v{ob+k}, v{tb+2*k}, v{tb+2*k+1}")
            if c < NA:
                if cfg.swin: A(f"s_waitcnt vmcnt({cfg.swin - 1})")
                A.vmem(*o_store(c, T, "OA"))
        if c == 2:
            A(f"s_waitcnt vmcnt({A.vm_after(['W0'])})")
            A("s_barrier")
            for nu in range(10): A.emit(a_reads(0, nu))
    A("s_lshl_b32 s34, s40, 5\ns_lshl_b32 s35, s28, 3\ns_add_u32 s34, s34, s35\ns_add_u32 s34, s34, s21\ns_lshl_b32 s34, s34, 1\ns_add_u32 s34, s34, s22\ns_mul_i32 s34, s34, 24576")
    A(f"s_add_u32 s4, s44, s34\ns_addc_u32 s5, s45, 0\ns_mov_b32 s6, {3*98304 + 24576}\ns_mov_b32 s7, 0x20000")
    A(f"s_add_u32 s8, s44, {MBOX}\ns_addc_u32 s9, s45, 0\ns_mov_b32 s10, 0x8000\ns_mov_b32 s11, 0x20000")
    A("s_mov_b32 s36, s50\ns_mov_b32 s37, s51\ns_movk_i32 s38, 0x100\ns_mov_b32 s39, 0x20000")
    A("s_lshl_b32 s41, s41, 2\ns_lshl_b32 s97, s23, 2")
    tiles = [4*(1 + p) + c for p in range(3) for c in range(2)] + [4*(1 + p) + c for p in range(3) for c in (2, 3)]
    tbl = sum(t << (4*i) for i, t in enumerate(tiles))
    A(f"s_mov_b32 s62, 0x{tbl & 0xffffffff:x}\ns_mov_b32 s63, 0x{tbl >> 32:x}\ns_mov_b32 s98, 0")
    A("v_mov_b32 v14, 0\nv_mov_b32 v15, 1\nv_mov_b32 v18, 0x100\nv_mov_b32 v22, 0x10000")
    stamp(37)
    npoll = [0]
    def signal(vm, vd, mreg, sreg):
        k = npoll[0]; npoll[0] += 1
        A(f"s_cmp_lg_u32 s20, 1\ns_cbranch_scc1 L_sg{k}")
        A("s_mov_b64 exec, 1")
        A(f"buffer_atomic_add {vm}, v14, s[8:11], {mreg} offen")
        A(f"buffer_atomic_add {vd}, v14, s[36:39], {sreg} offen")
        A("s_mov_b64 exec, -1")
        A(f"L_sg{k}:")
    def poll(mreg, snap, mfield, sreg, field):
        k = npoll[0]; npoll[0] += 1
        A(f"s_cmp_lg_u32 s20, 0\ns_cbranch_scc1 L_pd{k}")
        A(f"s_bfe_u32 s34, s98, {mfield}\ns_cmp_eq_u32 s34, 4\ns_cbranch_scc1 L_pd{k}")
        A("s_mov_b32 s61, 0x40000")
        A(f"L_pl{k}:")
        A(f"buffer_load_dword v19, v14, s[8:11], {mreg} offen sc1")
        A("s_waitcnt vmcnt(0)")
        A("v_readfirstlane_b32 s98, v19")
        A("s_sub_u32 s61, s61, 1")
        A(f"s_sub_u32 s98, s98, {snap}")
        A(f"s_bfe_u32 s34, s98, {mfield}\ns_cmp_eq_u32 s34, 4\ns_cbranch_scc1 L_pd{k}")
        if cfg.stamps: A("s_add_u32 s59, s59, 1")
        A(f"s_sleep {cfg.psleep}")
        A(f"s_and_b32 s34, s61, {cfg.rescue - 1}\ns_cbranch_scc1 L_pl{k}")
        A(f"buffer_load_dword v19, v14, s[36:39], {sreg} offen sc1")
        A("s_waitcnt vmcnt(0)")
        A("v_readfirstlane_b32 s34, v19")
        A(f"s_cmp_eq_u32 s61, 0\ns_cbranch_scc1 L_pd{k}")
        A(f"s_bfe_u32 s34, s34, {field}")
        A(f"s_cmp_lt_u32 s34, 4\ns_cbranch_scc1 L_pl{k}")
        A(f"L_pd{k}:")
    def place(pre, seq, lo=7, hi=58):
        free = [g for g in range(lo, hi) if not pre[g]]
        nv = sum(isinstance(x, tuple) for x in seq)
        sp = max(1, (len(free) - (len(seq) - nv)) // max(nv, 1))
        k = 0
        for it in seq:
            pre[free[k]].append(it)
            k += sp if isinstance(it, tuple) else 1
    GR = [5, 0, 6, 1, 7, 2, 8, 3, 9, 4]
    def ax(pos, c): return AX + 8*(pos % 2) + 4*(c - 2)
    def ax_reads(pos): return a_reads(2, GR[pos], ax(pos, 2)) + a_reads(3, GR[pos], ax(pos, 3))
    BX = 120
    def bx(c, T): return ar(BX + 24*(c - 2) + 4*T)
    def bx_loads(c, tag):
        return [(f"buffer_load_dwordx4 {bx(c, T)}, v{32 + T//4}, s[4:7], s{88+c} offen offset:{(T % 4)*1024} {cfg.old}", tag) for T in range(6)]
    setup = [f"s_lshl_b32 s34, s42, 18\ns_add_u32 s34, s34, {PBASE}",
             "s_add_u32 s12, s44, s34\ns_addc_u32 s13, s45, 0",
             "s_cmp_eq_u32 s20, s28\ns_cselect_b32 s14, 0, 0x40000", "s_mov_b32 s15, 0x20000",
             "s_lshl_b32 s52, s20, 2\ns_add_u32 s52, s52, s28", "s_lshl_b32 s52, s52, 14\ns_lshl_b32 s42, s42, 2",
             "s_xor_b32 s34, s54, 0x10000\nv_add_u32 v16, s54, v32", "v_add_u32 v20, s34, v32\ns_lshl_b32 s34, s20, 13",
             "s_add_u32 s34, s34, 131072\ns_xor_b32 s35, s34, 0x4000", "v_add_u32 v17, s34, v32\nv_add_u32 v21, s35, v32"]
    obs = []
    for c in range(NA, 4): obs += [f"s_movk_i32 s52, {c*6144}"] + [o_store(c, T, "OB") for T in range(6)]
    def step(k):
        c = k % 4; cn = (c + 1) % 4
        pre = [[] for _ in range(60)]
        for nu in range(10):
            pre[6*nu + 5 + (1 if nu == 0 else 0)] += a_reads(cn, nu)
        seq = []
        if obs:
            n = -(-len(obs) // (cfg.obsteps - k))
            seq += obs[:n]; del obs[:n]
        if 2 <= k < 12: seq += b_loads((c + 2) % 4, f"B{k+2}")
        if k < 12: seq += next_tile(c) + w2_dma(c, "s96", f"W{k+4}", 0)
        if k in (10, 11): seq += bx_loads(c, f"B{k+4}")
        if k == 12: seq += setup
        need = [f"W{k+1}"] + (["OA"] if k == cfg.sigstep else []) + (["OB"] if k == cfg.sigb and NA < 4 else [])
        bar = [lambda: A(f"s_waitcnt vmcnt({A.vm_after(need)}) lgkmcnt(0)")]
        if k == 2: bar.append(lambda: poll("s99", "s56", "0x80000", "s41", "0x80000"))
        if k == 8: bar.append(lambda: poll("s99", "s56", "0x80008", "s41", "0x80008"))
        bar.append("s_barrier")
        if k == cfg.sigstep: bar.append(lambda: signal("v15", "v15", "s99", "s41"))
        if k == cfg.sigb: bar.append(lambda: signal("v18", "v18", "s99", "s41"))
        pre[4] += bar[:1]; pre[5] += bar[1:]
        if k == 12:
            pre[48].append("s_waitcnt vmcnt(0)"); pre[49].append("s_barrier")
            r0 = ax_reads(0); pre[50] += r0[:2]; pre[51] += r0[2:]
        place(pre, seq, 7, 58 if k < 12 else 46)
        if cfg.swin2 and k < cfg.swk:
            for g in range(1, 60):
                if any(isinstance(x, tuple) for x in pre[g]): pre[g].insert(0, f"s_waitcnt vmcnt({cfg.swin2 - 1})")
        A(f"s_waitcnt vmcnt({A.vm_after([f'B{k}'])}) lgkmcnt(15)" if k >= 4 else "s_waitcnt lgkmcnt(15)")
        for g in range(60):
            nu, T = g // 6, g % 6
            d = acc2(nu, T)
            A(mf(d, ar(AF + 4*nu), vr(bfr(c, T)), "0" if k == 0 else d))
            A.emit(pre[g])
    assert NA in (2, 4) and cfg.sigstep < 2 and cfg.obsteps <= cfg.sigb <= 4 and cfg.keep
    for k in range(13):
        step(k)
        if k == 1: stamp(4)
        if k == 3: stamp(36)
        if k == 11: stamp(32)
    TMP = bfr(0, 0)
    def x_reads(r): return [f"ds_read_b128 {vr(TMP + 4*T)}, v{20 + r % 2} offset:{T*1024}" for T in range(6)]
    def x_writes(r): return [f"ds_write_b128 v{16 + r % 2}, {ar(24*r + 4*T)} offset:{T*1024}" for T in range(6)]
    def flush(r, pk=False):
        w = []
        for p in range(3):
            ob = KEEP + 24*r + 8*p
            if pk: w += [f"v_pk_add_f32 v[{ob+z}:{ob+z+1}], v[{ob+z}:{ob+z+1}], v[{TMP+8*p+z}:{TMP+8*p+z+1}]" for z in range(0, 8, 2)]
            else: w += [f"v_add_f32 v{ob+z}, v{ob+z}, v{TMP+8*p+z}" for z in range(8)]
            w += [f"v_cvt_pk_bf16_f32 v{ob+z}, v{ob+2*z}, v{ob+2*z+1}" for z in range(4)]
            w.append(("ST", f"buffer_store_dwordx4 {vr(ob)}, v32, s[12:15], s52 offen offset:{p*1024} {cfg.pst}"))
        w.append(("SA", "s_add_u32 s52, s52, 3072"))
        return w
    A("s_waitcnt lgkmcnt(0)")
    for r in range(5):
        pre = [[] for _ in range(36)]
        ra = ax_reads(2*r + 1); pre[0] += ra[:2]; pre[1] += ra[2:]
        if r < 4:
            rb = ax_reads(2*r + 2); pre[18] += rb[:2]; pre[19] += rb[2:]
        for T, w in enumerate(x_writes(r)): pre[cfg.xw0 + T*cfg.xwsp].append(w)
        work = []
        if r:
            xr = x_reads(r - 1)
            for k in range(3): pre[2 + k] += xr[2*k:2*k+2]
            work = flush(r - 1)
        pre[8].append("s_waitcnt lgkmcnt(0)")
        gaps = [g for g in range(8, 35) if g == 8 or not pre[g]]
        for gi, g in enumerate(gaps):
            left = len(gaps) - gi
            cost = sum(2 if isinstance(x, tuple) and x[0] == "ST" else 0 if isinstance(x, tuple) else 1 for x in work)
            budget = max(2, -(-cost // left)); n = 0
            while work and n < budget:
                it = work[0]
                if isinstance(it, tuple):
                    if it[0] == "ST" and n > 0 and left > 1: break
                    pre[g].append(it[1]); n += 2 if it[0] == "ST" else 0
                else: pre[g].append(it); n += 1
                work.pop(0)
        for it in work: pre[34].append(it[1] if isinstance(it, tuple) else it)
        pre[35] += ["s_waitcnt lgkmcnt(0)", "s_barrier"]
        g = 0
        for pos in (2*r, 2*r + 1):
            nu = GR[pos]
            for T in range(6):
                for c in (1, 2, 3):
                    d = acc2(nu, T)
                    A(mf(d, ar(AF + 4*nu) if c == 1 else ar(ax(pos, c)), vr(bfr(1, T)) if c == 1 else bx(c, T), d))
                    A.emit(pre[g]); g += 1
    stamp()
    A.emit(x_reads(4))
    A("s_waitcnt lgkmcnt(0)")
    for it in flush(4, True): A(it[1] if isinstance(it, tuple) else it)
    if cfg.keep:
        A("s_cmp_lg_u32 s20, s28\ns_cbranch_scc1 L_nokeep")
        for m in range(15): A(f"ds_write_b128 v32, {vr(KEEP + 8*m)} offset:{32768 + m*1024}")
        A("L_nokeep:")
        A("s_mov_b32 s14, 0x40000")
    A("s_mul_i32 s34, s27, 192\ns_and_b32 s35, s28, 1\ns_mul_i32 s35, s35, 96\ns_add_u32 s34, s34, s35\ns_lshl_b32 s35, s20, 5\ns_add_u32 s34, s34, s35\ns_mul_i32 s34, s34, 2560")
    A("s_mul_i32 s35, s25, 1280\ns_add_u32 s34, s34, s35\ns_mul_i32 s35, s23, 320\ns_add_u32 s34, s34, s35\ns_lshr_b32 s35, s28, 1\ns_mul_i32 s35, s35, 160\ns_add_u32 s34, s34, s35")
    A("s_add_u32 s16, s48, s34\ns_addc_u32 s17, s49, 0\ns_sub_u32 s18, 3932160, s34\ns_mov_b32 s19, 0x20000")
    A("s_lshl_b32 s52, s28, 16\ns_lshl_b32 s35, s20, 10\ns_add_u32 s52, s52, s35")
    if cfg.keep:
        for i in range(1, 4): A(f"s_add_u32 s34, s28, {i}\ns_and_b32 s34, s34, 3\ns_lshl_b32 s34, s34, 14\ns_add_u32 s{88+i}, s52, s34")
        A("v_add_u32 v16, s35, v32")
    else:
        for i in range(4): A(f"s_add_u32 s{88+i}, s52, {i*16384}")
    A("v_add_u32 v17, 6144, v32\nv_add_u32 v20, 12288, v32")
    stamp(2)
    A("s_waitcnt vmcnt(0) lgkmcnt(0)")
    A("s_barrier")
    stamp(2)
    signal("v15", "v22", "s100", "s42")
    if cfg.keep:
        for nu in range(5): A(f"ds_read_b128 {vr(40 + 16*nu)}, v16 offset:{32768 + nu*3072}")
    A("s_mov_b32 s98, 0")
    poll("s100", "s58", "0x80000", "s42", "0x100010")
    A("s_barrier")
    stamp(2)
    A("s_cmp_eq_u32 s20, 3\ns_cbranch_scc1 L_end")
    NS = 3 if cfg.keep else 4
    for nu in range(5):
        for src in range(4 - NS, 4):
            A(f"buffer_load_dwordx4 {vr(40 + 16*nu + 4*src)}, v{(32, 17, 20)[nu // 2]}, s[12:15], s{88+src} offen offset:{(nu % 2)*3072} {cfg.pld}")
    A("s_mov_b32 s55, 40960")
    A("s_mov_b32 s34, 0xffff0000")
    for nu in range(5):
        A(f"s_waitcnt vmcnt({NS*(4 - nu) + 2*nu}) lgkmcnt(0)")
        b = 40 + 16*nu; lo = 128;
        for k in range(16): A(f"v_lshlrev_b32 v{lo+k}, 16, v{b+k}")
        for k in range(16): A(f"v_and_b32 v{b+k}, s34, v{b+k}")
        for base in (lo, b):
            for z in range(2):
                A(f"v_pk_add_f32 v[{base+2*z}:{base+2*z+1}], v[{base+2*z}:{base+2*z+1}], v[{base+4+2*z}:{base+5+2*z}]")
                A(f"v_pk_add_f32 v[{base+8+2*z}:{base+9+2*z}], v[{base+8+2*z}:{base+9+2*z}], v[{base+12+2*z}:{base+13+2*z}]")
        for base in (lo, b):
            for z in range(2):
                A(f"v_pk_add_f32 v[{base+2*z}:{base+2*z+1}], v[{base+2*z}:{base+2*z+1}], v[{base+8+2*z}:{base+9+2*z}]")
        for z in range(4): A(f"v_cvt_pk_bf16_f32 v{b+4+z}, v{lo+z}, v{b+z}")
        A(f"buffer_store_dwordx2 {vr(b+4, 2)}, v34, s[16:19], 0 offen offset:{nu*32} {cfg.outst}")
        A(f"buffer_store_dwordx2 {vr(b+6, 2)}, v34, s[16:19], s55 offen offset:{nu*32} {cfg.outst}")
    stamp.finish()
    A("L_end:\ns_endpgm")

    A("L_fallback:")
    A("s_waitcnt vmcnt(0) lgkmcnt(0)")
    A("s_mov_b32 s4, s36\ns_mov_b32 s5, s37\ns_mov_b32 s6, 0x40000\ns_mov_b32 s7, 0x20000")
    A("s_mov_b32 s8, s38\ns_mov_b32 s9, s39\ns_mov_b32 s10, 0x40000\ns_mov_b32 s11, 0x20000")
    A("s_lshl_b32 s52, s20, 13\ns_add_u32 s52, s52, 131072")
    A("v_xor_b32 v58, v3, v4")
    A("v_lshlrev_b32 v59, 1, v4\nv_xor_b32 v59, v3, v59")
    A("v_lshlrev_b32 v60, 8, v4")
    for n in range(4):
        A(f"v_xor_b32 v61, {4*n}, v58")
        A(f"v_lshl_add_u32 v{40+n}, v61, 4, v60")
    for n in range(2):
        A(f"v_xor_b32 v61, {8*n}, v59")
        A(f"v_lshl_add_u32 v{44+n}, v61, 4, v60")
    A("s_sub_u32 s34, s52, s46")
    for c in range(4): A(f"v_add_u32 v{20+c}, s34, v{20+c}")
    A("s_sub_u32 s34, s52, s47")
    for dt in range(8): A(f"v_add_u32 v{24+dt}, s34, v{24+dt}")
    for i in range(192): A(f"v_accvgpr_write_b32 a{i}, 0")
    for k in range(24): A(f"v_mov_b32 v{L+k}, 0")
    A("s_mov_b32 s60, 0")
    A("L_fb_loop:")
    for isv in range(2):
        for n in range(8):
            A(f"s_add_u32 m0, s52, {n*1024}")
            A(f"s_add_u32 s55, s60, {n*1024}")
            A(f"buffer_load_dwordx4 v{(44 + (n & 1)) if isv else (40 + (n & 3))}, s[{8 if isv else 4}:{11 if isv else 7}], s55 offen lds")
        A("s_waitcnt vmcnt(0)")
        if isv:
            for dt in range(8):
                for e in range(2): A(v_read(0, dt, e))
        else:
            for kt in range(2):
                for c in range(4): A(k_read(0, kt, c))
        A("s_waitcnt lgkmcnt(0)")
    R0, R1 = 52, 53
    for t in range(3):
        for m in qk_mfmas(t, 0): A(m)
        A("s_nop 7")
        for Tl in range(2):
            T = 2*t + Tl; s0 = S[0] + 8*Tl
            A(f"v_max3_f32 v{R0}, v{s0}, v{s0+1}, v{s0+2}")
            A(f"v_max3_f32 v{R0}, v{R0}, v{s0+3}, v{s0+4}")
            A(f"v_max3_f32 v{R0}, v{R0}, v{s0+5}, v{s0+6}")
            A(f"v_max3_f32 v{R0}, v{R0}, v{s0+7}, 0")
            A(f"v_mov_b32 v{R1}, v{R0}\ns_nop 1\nv_permlane16_swap_b32 v{R0}, v{R1}\nv_max_f32 v{R0}, v{R0}, v{R1}")
            A(f"v_mov_b32 v{R1}, v{R0}\ns_nop 1\nv_permlane32_swap_b32 v{R0}, v{R1}\nv_max_f32 v{R0}, v{R0}, v{R1}")
            A(f"v_exp_f32 v{R1}, -v{R0}")
            for k in range(8): A(f"v_sub_f32 v{s0+k}, v{s0+k}, v{R0}")
            for k in range(4): A(f"v_sub_f32 v{NEGM+4*T+k}, v{NEGM+4*T+k}, v{R0}")
            for k in range(4): A(f"v_mul_f32 v{L+4*T+k}, v{L+4*T+k}, v{R1}")
            for k in range(0, 32, 4):
                for q in range(4): A(f"v_accvgpr_read_b32 v{54+q}, a{32*T + k + q}")
                for q in range(4): A(f"v_mul_f32 v{54+q}, v{54+q}, v{R1}")
                for q in range(4): A(f"v_accvgpr_write_b32 a{32*T + k + q}, v{54+q}")
        for e in range(16): A(EX(0, e))
        A("s_nop 0")
        for k in range(8): A(CV(0, k))
        A("s_nop 1")
        for m in pv_mfmas(t, 0): A(m)
    A("s_add_u32 s60, s60, 8192\ns_cmp_lt_u32 s60, 0x40000\ns_cbranch_scc1 L_fb_loop")
    A("s_nop 7")
    A("s_branch L_epi")

def gen(cfg):
    A = Asm()
    A("; @launch grid=(256,1,1) block=(256,1,1) lds=163840")
    A('.amdgcn_target "amdgcn-amd-amdhsa--gfx950"\n.text')
    gen_kernel(A, cfg)
    A('.section .rodata,"a"\n.p2align 6')
    A(f".amdhsa_kernel {NAME}_kernel\n  .amdhsa_next_free_vgpr 512\n  .amdhsa_next_free_sgpr 102\n"
      "  .amdhsa_accum_offset 256\n  .amdhsa_group_segment_fixed_size 0\n  .amdhsa_kernarg_size 104\n"
      "  .amdhsa_user_sgpr_count 2\n  .amdhsa_user_sgpr_kernarg_segment_ptr 1\n"
      "  .amdhsa_system_sgpr_workgroup_id_x 1\n.end_amdhsa_kernel")
    return A.text()

if __name__ == "__main__":
    cfg = Cfg()
    for a in sys.argv[2:]:
        k, v = a.split("=")
        old = getattr(cfg, k)
        setattr(cfg, k, type(old)(int(v)) if isinstance(old, (bool, int)) else v.replace('+', ' '))
    open(sys.argv[1], "w").write(gen(cfg))
```

```python
import sys, struct, math
NAME = "concat_heads__mha_block_cached__gqa_block_cached__near_ridge"
def f32bits(x): return struct.unpack("<I", struct.pack("<f", x))[0]

class Cfg:
    stamps = 0
    kv_flags = "sc1 nt"; xld = ''; wqld = ''; pfl = 'nt'
    ost = 'sc1'; old = 'sc1'; wold = ''; pst = 'sc1'; pld = 'sc1'; wopfl = ''; outst = ''
    wopf = 4
    force_fb = False
    thr_log2 = 64
    cpf = 1
    xwpf = 0
    qchain = 1
    qdsp = 3
    rot = 2
    rotd = 16
    wrot = 0
    wsg = 9
    wb0 = 3
    wbn = 4
    acq = 0
    psleep = 2
    rescue = 64
    lag = 8
    qrot = 2
    cpf2 = 0
    ramp = 0
    dpos = -5
    wpat = '5'
    win = 1
    xp = 0
    nearly = 2
    keep = 1
    tlb = 0
    pfb = 1
    kse = 0
    kve = 0
    swin = 0
    swin2 = 0
    swk = 4
    obsteps = 2
    sigb = 3
    pollk = 2
    ebar = 2
    xw0 = 20
    xwsp = 2
    p2x = 0
    w5it = 0
    wramp = '733311'
    kvq = 2
    early = 0
    barg = '70,50,30,10'
    slabst = 0
    ssk = 0
    ss0 = 0
    ssr = 0
    ssn = 1
    sparse1 = 1
    pvord = 1
    wlate = 0
    wmode = 3
    stride = 1
    kvpf = 0
    kvpfl = ''
    kvpf0 = 0
    kvpf1 = 7
    pat = 3
    sigstep = 0
    no_dma = False; no_bar = False; q_nodma = False

class Asm:
    def __init__(s): s.l = []; s.vm = []
    def __call__(s, x): s.l.append(x)
    def vmem(s, x, tag): s.l.append(x); s.vm.append(tag)
    def vm_after(s, tags):
        last = -1
        for i, t in enumerate(s.vm):
            if t in tags: last = i
        assert last >= 0, tags
        return min(63, len(s.vm) - 1 - last)
    def emit(s, items):
        for it in items:
            if isinstance(it, tuple): s.vmem(it[0], it[1])
            elif callable(it): it()
            else: s(it)
    def text(s): return "\n".join(s.l) + "\n"

def mf(d, a, b, c): return f"v_mfma_f32_16x16x32_bf16 {d}, {a}, {b}, {c}"
def vr(b, n=4): return f"v[{b}:{b+n-1}]" if n > 1 else f"v{b}"
def ar(b, n=4): return f"a[{b}:{b+n-1}]" if n > 1 else f"a{b}"
STAMP_BASE = 64 << 20
PBASE = 32 << 20
MBOX = 30 << 20

class Stamper:
    def __init__(s, A, cfg): s.A = A; s.cfg = cfg; s.n = 0
    def __call__(s, mode=47):
        if s.cfg.stamps & mode:
            s.A(f"s_memrealtime s[{64+4*s.n}:{65+4*s.n}]\ns_memtime s[{66+4*s.n}:{67+4*s.n}]"); s.n += 1
    def finish(s):
        A = s.A
        if not s.cfg.stamps: return
        A("s_waitcnt vmcnt(0)")
        s(63)
        assert s.n <= 7
        A("s_waitcnt lgkmcnt(0)")
        A(f"s_add_u32 s44, s44, {STAMP_BASE}\ns_addc_u32 s45, s45, 0\ns_mov_b32 s46, 0x100000\ns_mov_b32 s47, 0x20000")
        A("s_lshl_b32 s34, s2, 2\ns_add_u32 s34, s34, s20\ns_lshl_b32 s34, s34, 6")
        A("v_mov_b32 v1, s34")
        A(f"v_mov_b32 v2, {s.n}\nv_mov_b32 v3, s59\nbuffer_store_dwordx2 v[2:3], v1, s[44:47], 0 offen offset:56\ns_nop 1")
        for k in range(s.n):
            A(f"v_mov_b32 v2, s{64+4*k}\nv_mov_b32 v3, s{66+4*k}")
            A(f"buffer_store_dwordx2 v[2:3], v1, s[44:47], 0 offen offset:{8*k}")
            A("s_nop 1")

XBUF = [114688, 139264]
WSLOT = [2, 0, 1]

def gen_kernel(A, cfg):
    K1 = NAME + "_kernel"
    A(f".globl {K1}\n.p2align 8\n.type {K1},@function\n{K1}:")
    A("s_cmp_ge_u32 s2, 256\ns_cbranch_scc1 L_end")
    stamp = Stamper(A, cfg)
    stamp(63)
    A("s_bfe_u32 s25, s2, 0x10002")
    A("s_mul_i32 s28, s25, 40")
    A("s_add_u32 s62, s0, s28\ns_addc_u32 s63, s1, 0")
    A("s_load_dwordx4 s[36:39], s[62:63], 0")
    A("s_load_dwordx4 s[40:43], s[62:63], 16")
    A("s_load_dwordx2 s[44:45], s[0:1], 96")
    A("s_load_dwordx2 s[92:93], s[62:63], 32")
    if cfg.cpf:
        A("s_getpc_b64 s[88:89]")
        A("L_pc:")
        A("s_mov_b32 s90, L_end - L_pc\ns_mov_b32 s91, 0x20000")
        A("v_lshlrev_b32 v54, 7, v0")
        A.vmem("buffer_load_dword v56, v54, s[88:91], 0 offen", "CPF")
    A("s_lshr_b32 s24, s2, 3")
    A("s_and_b32 s28, s2, 3")
    A("s_and_b32 s23, s24, 3")
    A("s_lshl_b32 s26, s28, 2\ns_add_u32 s26, s26, s23")
    A("s_lshr_b32 s27, s24, 2")
    A("v_lshrrev_b32 v1, 6, v0")
    A("v_and_b32 v2, 63, v0")
    A("v_readfirstlane_b32 s20, v1")
    A("v_and_b32 v3, 15, v2\nv_lshrrev_b32 v4, 4, v2")
    A("v_lshrrev_b32 v10, 3, v2\nv_and_b32 v11, 7, v2")
    A("v_xor_b32 v13, v11, v4")
    A("v_mul_u32_u24 v14, 1280, v10")
    A("v_lshl_add_u32 v58, v13, 4, v14")
    A("v_xor_b32 v13, 4, v13")
    A("v_lshl_add_u32 v59, v13, 4, v14")
    A("v_add_u32 v59, 9216, v59")
    A("v_add_u32 v60, 18432, v58\nv_add_u32 v61, 18432, v59")
    A("v_lshlrev_b32 v10, 2, v4\nv_xor_b32 v10, v3, v10")
    A("v_lshlrev_b32 v11, 13, v4")
    A("v_lshl_add_u32 v6, v10, 4, v11")
    for n in range(1, 4): A(f"v_add_u32 v{6+n}, {n*31744}, v6")
    A("s_lshr_b32 s21, s20, 1\ns_and_b32 s22, s20, 1")
    A("s_lshl_b32 s29, s26, 1\ns_add_u32 s29, s29, s21")
    A("s_lshl_b32 s46, s21, 16")
    A("s_mul_i32 s48, s20, 6144")
    A("s_lshl_b32 s54, s22, 13\ns_add_u32 s54, s54, s46")
    A("s_mul_i32 s34, s27, 245760\ns_mul_i32 s49, s20, 61440")
    A("s_lshl_b32 s35, s29, 8\ns_lshl_b32 s53, s22, 18")
    A("s_waitcnt lgkmcnt(0)")
    A("s_add_u32 s4, s36, s34\ns_addc_u32 s5, s37, 0\ns_mov_b32 s6, 245760\ns_mov_b32 s7, 0x20000")
    A("s_add_u32 s8, s42, s35\ns_addc_u32 s9, s43, 0\ns_sub_u32 s10, 5242880, s35\ns_mov_b32 s11, 0x20000")
    if cfg.qrot == 2: A("s_add_u32 s34, s27, s23\ns_and_b32 s34, s34, 1\ns_mul_i32 s34, s34, 5")
    elif cfg.qrot == 3: A("s_add_u32 s34, s27, s23\ns_and_b32 s34, s34, 3\ns_mul_i32 s34, s34, 5\ns_lshr_b32 s34, s34, 1")
    elif cfg.qrot:
        A("s_mul_i32 s34, s27, 5\ns_mul_i32 s35, s23, 10\ns_add_u32 s34, s34, s35\ns_lshr_b32 s34, s34, 2")
        A("s_cmp_ge_u32 s34, 10\ns_cselect_b32 s35, 10, 0\ns_sub_u32 s34, s34, s35")
    else: A("s_mov_b32 s34, 0")
    A("s_lshl_b32 s50, s34, 7\ns_add_u32 s50, s50, s49\ns_add_u32 s96, s49, 1280")
    A("s_lshl_b32 s51, s34, 19\ns_add_u32 s51, s51, s53\ns_add_u32 s97, s53, 5242880")
    def dma_x(xi):
        r = []
        for n in range(6):
            if n % 4 == 0:
                r += [f"s_add_u32 m0, s48, {XBUF[xi % 2] + n*1024}", f"s_add_u32 s55, s50, {n*10240}"]
            r.append((f"buffer_load_dwordx4 v{58 + (n & 3)}, s[4:7], s55 offen offset:{(n & 3)*1024} {cfg.xld} lds", f"X{xi}"))
        r += ["s_add_u32 s50, s50, 128", "s_cmp_eq_u32 s50, s96\ns_cselect_b32 s50, s49, s50"]
        return r
    def dma_w(sg):
        r = []
        for n in range(8):
            if n % 4 == 0:
                r += [f"s_add_u32 m0, s54, {WSLOT[sg % 3]*16384 + n*1024}", f"s_add_u32 s55, s51, {n*4*8192}"]
            r.append((f"buffer_load_dwordx4 v{6 + (n & 3)}, s[8:11], s55 offen offset:{(n & 3)*1024} {cfg.wqld} lds", f"W{sg}"))
        r += ["s_add_u32 s51, s51, 0x80000", "s_cmp_eq_u32 s51, s97\ns_cselect_b32 s51, s53, s51"]
        return r
    def kmap(half):
        e = cfg.kse
        if e == 0: return "s_and_b32 s55, s30, 0x3ffff"
        hi = 0x3ffff & ~((1 << (13 + e)) - 1)
        r = f"s_bfe_u32 s35, s30, 0x{(e << 16) | 13:x}\ns_lshl_b32 s55, s35, 10"
        if hi: r += f"\ns_and_b32 s35, s30, 0x{hi:x}\ns_or_b32 s55, s55, s35"
        if half: r += f"\ns_or_b32 s55, s55, 0x{1 << (12 + e):x}"
        return r
    def dma_kv(step, nmax=8):
        r = []
        for n in range(nmax):
            if n % 4 == 0:
                r += [f"s_add_u32 m0, s54, {(step % 4)*16384 + n*1024}", kmap(n), "s_add_u32 s30, s30, s101" if n else "s_add_u32 s30, s30, 4096"]
            r.append((f"buffer_load_dwordx4 v{16 + (n & 3)}, s[12:15], s55 offen offset:{(n & 3)*1024} {cfg.kv_flags} lds", f"KV{step}"))
        return r
    A.emit(dma_x(0)); A.emit(dma_w(0))
    def xw_pf():
        return [(f"buffer_load_dword v56, v62, s[4:7], s58 offen", "PF"), (f"buffer_load_dword v56, v63, s[84:87], s60 offen", "PF"),
                "s_add_u32 s58, s58, 512", "s_add_u32 s60, s60, 0x200000"]
    if cfg.xwpf:
        assert not cfg.qrot and cfg.wmode != 4
        A("v_min_u32 v62, 47, v2\nv_mul_u32_u24 v62, 1280, v62")
        A("v_lshrrev_b32 v63, 2, v2\nv_min_u32 v63, 7, v63\nv_lshlrev_b32 v63, 16, v63\nv_and_b32 v14, 3, v2\nv_lshl_add_u32 v63, v14, 7, v63")
        A("s_mul_i32 s58, s23, 61440\ns_lshl_b32 s34, s20, 7\ns_add_u32 s58, s58, s34\ns_add_u32 s58, s58, 128")
        A("s_lshl_b32 s60, s20, 6\ns_add_u32 s60, s60, s27\ns_add_u32 s60, s60, 64\ns_lshl_b32 s60, s60, 13")
        A("s_lshl_b32 s34, s21, 8\ns_sub_u32 s84, s8, s34\ns_subb_u32 s85, s9, 0\ns_add_u32 s86, s10, s34\ns_mov_b32 s87, 0x20000")
        A.emit(xw_pf())
    A("s_lshl_b32 s34, s27, 5\ns_add_u32 s34, s34, s29\ns_lshl_b32 s34, s34, 18")
    A("s_add_u32 s36, s38, s34\ns_addc_u32 s37, s39, 0")
    A("s_add_u32 s38, s40, s34\ns_addc_u32 s39, s41, 0")
    A("s_cmp_eq_u32 s22, 1")
    A("s_cselect_b32 s12, s38, s36\ns_cselect_b32 s13, s39, s37")
    A("s_mov_b32 s14, 0x40000\ns_mov_b32 s15, 0x20000")
    A("s_cselect_b64 s[32:33], -1, 0")
    A("v_xor_b32 v11, v3, v4")
    A("v_lshlrev_b32 v10, 1, v4\nv_xor_b32 v10, v3, v10")
    A("v_lshlrev_b32 v12, 8, v4")
    for n in range(4):
        A(f"v_xor_b32 v13, {4*n}, v11")
        A(f"v_xor_b32 v14, {8*(n&1)}, v10")
        A("v_cndmask_b32 v13, v13, v14, s[32:33]")
        A(f"v_lshl_add_u32 v{16+n}, v13, 4, v12")
        if n and cfg.kse: A(f"v_add_u32 v{16+n}, {n * ((1024 << cfg.kse) - 1024)}, v{16+n}")
    A("v_lshlrev_b32 v12, 8, v3\nv_add_u32 v12, s46, v12")
    for c in range(4):
        A(f"v_xor_b32 v13, {4*c}, v11")
        A(f"v_lshl_add_u32 v{20+c}, v13, 4, v12")
    A("v_lshrrev_b32 v10, 2, v3\nv_lshl_add_u32 v11, v4, 2, v10")
    A("v_and_b32 v12, 7, v11")
    A("v_lshlrev_b32 v11, 8, v11")
    A("v_and_b32 v13, 3, v3\nv_lshl_add_u32 v11, v13, 3, v11")
    A("s_add_u32 s47, s46, 8192")
    A("v_add_u32 v11, s47, v11")
    for dt in range(8):
        A(f"v_xor_b32 v14, {dt}, v12")
        A(f"v_lshl_add_u32 v{24+dt}, v14, 5, v11")
    A("v_lshlrev_b32 v32, 4, v2\nv_add_u32 v33, 4096, v32")
    A(f"s_mul_i32 s34, s22, 12288\ns_add_u32 s34, s34, {XBUF[0]}")
    A("v_lshrrev_b32 v11, 1, v3\nv_xor_b32 v11, v4, v11")
    A("v_lshlrev_b32 v12, 7, v3\nv_add_u32 v12, s34, v12")
    for s in range(2):
        A(f"v_xor_b32 v14, {4*s}, v11")
        A(f"v_lshl_add_u32 v{52+s}, v14, 4, v12")
    A("v_lshl_add_u32 v11, v4, 3, v10\nv_lshlrev_b32 v11, 8, v11")
    A("v_lshl_add_u32 v11, v13, 4, v11")
    A("v_add_u32 v11, s46, v11")
    for c in range(4):
        A(f"v_xor_b32 v14, {c}, v10")
        A(f"v_lshl_add_u32 v{40+c}, v14, 6, v11")
    if cfg.kvpf:
        lam = cfg.kvpf; sh = lam.bit_length() - 1
        A(f"v_lshrrev_b32 v55, {sh}, v2\nv_lshlrev_b32 v55, 13, v55\nv_and_b32 v14, {lam-1}, v2\nv_lshl_add_u32 v55, v14, 7, v55")
        npf = lam // 2
        kvpf_list = [[f"s_mov_b32 s50, {k*(64//lam)*8192}", (f"buffer_load_dword v56, v55, s[12:15], s50 offen {cfg.kvpfl}", "PF")] for k in range(npf)]
        nsl = cfg.kvpf1 - cfg.kvpf0 + 1
    if cfg.sparse1:
        A("v_and_b32 v14, 3, v2\nv_cmp_eq_u32 vcc, 0, v14\nv_mov_b32 v14, 0x3f803f80\ns_nop 0")
        for k in range(4): A(f"v_cndmask_b32 v{48+k}, 0, v14, vcc")
    else:
        for k in range(4): A(f"v_mov_b32 v{48+k}, 0x3f803f80")
    A("v_lshl_add_u32 v45, v4, 4, s46")
    cs = f32bits(128 ** -0.5 * math.log2(math.e))
    A(f"v_mov_b32 v46, 0x{cs:08x}\nv_mov_b32 v47, 0x{cs:08x}")
    A(f"s_mov_b32 s31, 0x{f32bits(2.0 ** cfg.thr_log2):08x}")
    A("s_lshl_b32 s40, s25, 3\ns_add_u32 s40, s40, s27")
    A("s_lshl_b32 s34, s40, 5\ns_add_u32 s34, s34, s29\ns_lshl_b32 s34, s34, 1\ns_add_u32 s34, s34, s22\ns_mul_i32 s34, s34, 24576")
    A("s_add_u32 s16, s44, s34\ns_addc_u32 s17, s45, 0\ns_movk_i32 s18, 0x6000\ns_mov_b32 s19, 0x20000")
    A("s_mov_b32 s59, 0")
    if cfg.rot:
        if cfg.rot == 1:
            A("s_lshl_b32 s30, s2, 1\ns_add_u32 s30, s30, s21\ns_mul_i32 s34, s30, 0x9E3779B1\ns_lshr_b32 s30, s34, 27\ns_lshl_b32 s30, s30, 13")
        else:
            A(f"s_add_u32 s30, s2, 1\ns_mul_i32 s34, s30, 0x9E3779B1\ns_lshr_b32 s30, s34, 27\ns_mul_i32 s35, s21, {cfg.rotd}\ns_add_u32 s30, s30, s35\ns_lshl_b32 s30, s30, 13")
        if cfg.stride: A("s_bfe_u32 s101, s34, 0x40017\ns_lshl_b32 s101, s101, 14\ns_add_u32 s101, s101, 4096")
        else: A("s_movk_i32 s101, 0x1000")
    else:
        A("s_mov_b32 s30, 0\ns_movk_i32 s101, 0x1000")
    if cfg.cpf:
        A("s_mov_b32 s34, 0x8000")
        A.vmem("buffer_load_dword v56, v54, s[88:91], s34 offen", "CPF")
    if cfg.wmode in (3, 4):
        A("s_lshl_b32 s34, s26, 3\ns_add_u32 s34, s34, s27\ns_mul_i32 s34, s34, 40960")
        A("s_add_u32 s88, s92, s34\ns_addc_u32 s89, s93, 0\ns_mov_b32 s90, 40960\ns_mov_b32 s91, 0x20000")
        A("v_add_u32 v55, 0x8000, v54")
        if cfg.wmode == 4:
            per = 320 // (4 * cfg.wbn)
            A(f"v_mul_u32_u24 v55, {per}, v1\nv_add_u32 v55, v55, v2\nv_lshlrev_b32 v55, 7, v55\nv_cmp_gt_u32 vcc, {per}, v2\nv_mov_b32 v14, 0x100000\ns_nop 0\nv_cndmask_b32 v55, v14, v55, vcc")
    if not cfg.early: A.emit(dma_x(1)); A.emit(dma_w(1))

    ACC = 64
    def acc(T, dt): return ACC + 32 * T + 4 * dt
    def fa(dt, s): return 80 + 8 * dt + 4 * s
    def fb(p, T, s): return (144 if p == 0 else 192) + 8 * T + 4 * s
    def qa_reads(sg, dt):
        c, e = dt >> 1, dt & 1
        return [f"ds_read_b64_tr_b16 {ar(fa(dt, s) + 2*f, 2)}, v{40+c} offset:{WSLOT[sg % 3]*16384 + s*8192 + f*1024 + 8*e}"
                for s in range(2) for f in range(2)]
    def qb_read(sg, T, s):
        return f"ds_read_b128 {ar(fb(sg % 2, T, s))}, v{52 + s} offset:{(sg % 2)*24576 + T*2048}"
    A(f"s_waitcnt vmcnt({A.vm_after(['X0', 'W0'])})")
    A("s_barrier")
    for T in range(6):
        for s in range(2): A(qb_read(0, T, s))
    for dt in range(8):
        for r in qa_reads(0, dt): A(r)
    fill = [f"v_accvgpr_write_b32 a{i}, 0" for i in range(80)]
    pend = (dma_x(1) + dma_w(1) if cfg.early else []) + dma_w(2)
    NST = (5 if cfg.win else 8)
    qend = 8 + cfg.lag + NST
    PFW = [(f"buffer_load_dword v56, v54, s[88:91], 0 offen {cfg.wopfl}", "KVPF"), (f"buffer_load_dword v56, v55, s[88:91], 0 offen {cfg.wopfl}", "KVPF")]
    BG = [int(x) for x in cfg.barg.split(",")] if cfg.early else [10]
    for sg in range(10):
        last = sg == 9
        slots = [[] for _ in range(96)]
        if not last:
            need = [f"W{sg+1}", f"X{sg+1}"]
            G = BG[min(sg, len(BG) - 1)]
            slots[G] = ["WAIT"]; slots[G + 1] = ["BAR"]
            if G > 11: slots[11] = ["s_waitcnt lgkmcnt(0)"]
            rl = [(11, r) for r in qa_reads(sg + 1, 0)]
            for T in range(6): rl += [(0, qb_read(sg + 1, T, 0)), (0, qb_read(sg + 1, T, 1))]
            for dt in range(1, 8): rl += [(12*dt + 11, r) for r in qa_reads(sg + 1, dt)]
            for g in range(G + 2, 96):
                k = 0
                while rl and rl[0][0] <= g and (k < 2 or g == 95):
                    slots[g].append(rl.pop(0)[1]); k += 1
            assert not rl
        else:
            fill += [f"v_accvgpr_write_b32 a{i}, 0" for i in range(144, 192)]
            for n in range(5):
                fill += [f"v_add_u32 v14, {64*n}, v2", "v_mul_u32_u24 v15, 3277, v14", "v_lshrrev_b32 v15, 16, v15",
                         "v_mul_u32_u24 v34, 20, v15", "v_sub_u32 v14, v14, v34", "v_bfe_u32 v34, v15, 2, 1", "v_lshlrev_b32 v34, 1, v34",
                         "v_xor_b32 v14, v14, v34", "v_mul_u32_u24 v15, 1280, v15", f"v_lshl_add_u32 v{5+n}, v14, 4, v15"]
                if 0 < n < 4: fill.append(f"v_subrev_u32 v{5+n}, {1024*n}, v{5+n}")
        if cfg.slabst:
            A(f"s_memrealtime s[98:99]\ns_waitcnt lgkmcnt(0)\nv_writelane_b32 v57, s98, {sg + 1}")
        A("s_waitcnt lgkmcnt(15)")
        order = [(T, s) for T in range(6) for s in range(2)] if cfg.qchain else [(T, s) for s in range(2) for T in range(6)]
        g = 0
        for dt in range(8):
            for T, s in order:
                d = vr(acc(T, dt))
                A(mf(d, ar(fa(dt, s)), ar(fb(sg % 2, T, s)), "0" if sg == 0 and s == 0 else d))
                used = 0
                for x in slots[g]:
                    if x == "WAIT": A(f"s_waitcnt vmcnt({A.vm_after(need)}) lgkmcnt(0)"); used = 2
                    elif x == "BAR":
                        A("s_barrier"); used = 2
                        if sg + 2 < 10: pend += dma_x(sg + 2)
                        if cfg.kvpf and cfg.kvpf0 <= sg <= cfg.kvpf1:
                            r = sg - cfg.kvpf0
                            for k in range(r * npf // nsl, (r + 1) * npf // nsl): pend += kvpf_list[k]
                        if sg + 3 < 10: pend += dma_w(sg + 3)
                        if cfg.xwpf and sg in (cfg.pfb, cfg.pfb + 3): pend += xw_pf()
                        if cfg.wmode == 4 and cfg.wb0 <= sg < cfg.wb0 + cfg.wbn:
                            pend += [f"s_mov_b32 s60, {(sg - cfg.wb0) * (40960 // cfg.wbn)}", (f"buffer_load_dword v56, v55, s[88:91], s60 offen {cfg.wopfl}", "KVPF")]
                        if cfg.wmode == 3 and sg == cfg.wsg:
                            pend += PFW
                        if sg == (7 if cfg.kvq == 2 else 8) and cfg.kvq: pend += dma_kv(0)
                        if sg == 8 and cfg.kvq == 2: pend += dma_kv(1)
                    else: A(x); used = 2
                if last and g == 11:
                    A("s_waitcnt lgkmcnt(0)")
                    if cfg.kve:
                        A("s_barrier"); used = 2
                        pend += dma_kv(2, min(8, qend - 16)) + dma_kv(3, max(0, qend - 24))
                    if cfg.wmode == 3 and cfg.wsg == 9: pend += PFW
                if last and g % 12 == 11 and g < 95:
                    fill += [f"v_accvgpr_write_b32 a{i}, 0" for i in range(fa(dt, 0), fa(dt, 0) + 8)]
                if not used and pend:
                    if isinstance(pend[0], str): A(pend.pop(0))
                    elif g % (cfg.qdsp if sg >= len(BG) - 1 else 2) == 0:
                        it = pend.pop(0); used = 2
                        if cfg.q_nodma and not it[1].startswith("KV"): A.vm.append(it[1])
                        else: A.vmem(*it)
                if not used:
                    for _ in range(2):
                        if fill: A(fill.pop(0))
                g += 1
    assert not pend, len(pend)
    fill += [f"v_accvgpr_write_b32 a{i}, 0" for i in range(fa(7, 0), fa(7, 0) + 8)]
    if not cfg.kve: A("s_barrier")
    stamp(1)
    if cfg.slabst:
        A(f"s_memrealtime s[60:61]\ns_waitcnt lgkmcnt(0)\nv_writelane_b32 v57, s60, 11\nv_writelane_b32 v57, s64, 0")
        A(f"s_add_u32 s88, s44, {STAMP_BASE + 0x80000}\ns_addc_u32 s89, s45, 0\ns_mov_b32 s90, 0x100000\ns_mov_b32 s91, 0x20000")
        A("s_lshl_b32 s34, s2, 10\nv_lshlrev_b32 v62, 2, v0")
        A.vmem("buffer_store_dword v57, v62, s[88:91], s34 offen", "ST")
        A("s_nop 3")
    A("s_load_dwordx4 s[48:51], s[0:1], 80")
    A("s_lshl_b32 s41, s40, 2\ns_add_u32 s42, s41, s23\ns_add_u32 s41, s41, s28")
    A(f"s_add_u32 s8, s44, {MBOX}\ns_addc_u32 s9, s45, 0\ns_mov_b32 s10, 0x8000\ns_mov_b32 s11, 0x20000")
    A("s_lshl_b32 s99, s41, 8\ns_lshl_b32 s100, s42, 8\ns_add_u32 s100, s100, 0x4000")
    A("v_mov_b32 v57, 0")
    A.vmem("buffer_load_dword v62, v57, s[8:11], s99 offen sc1", "SNAP")
    A.vmem("buffer_load_dword v63, v57, s[8:11], s100 offen sc1", "SNAP")
    for st in range(cfg.kvq, 2): A.emit(dma_kv(st))
    for z in fill: A(z)
    for k in range(96):
        A(f"v_pk_mul_f32 v[{ACC+2*k}:{ACC+2*k+1}], v[{ACC+2*k}:{ACC+2*k+1}], v[46:47]")
        if k >= 1: A(f"v_cvt_pk_bf16_f32 v{ACC+k-1}, v{ACC+2*k-2}, v{ACC+2*k-1}")
    A(f"v_cvt_pk_bf16_f32 v{ACC+95}, v{ACC+190}, v{ACC+191}")
    def qf(T, c): return ACC + 16 * T + 4 * c
    A("s_waitcnt lgkmcnt(0)")
    if cfg.tlb:
        A.vmem("buffer_load_dword v56, v57, s[16:19], 0 offen sc1", "TLB")
        A(f"s_lshl_b32 s34, s42, 18\ns_add_u32 s34, s34, {PBASE + 15360}")
        A("s_add_u32 s4, s44, s34\ns_addc_u32 s5, s45, 0\ns_movk_i32 s6, 0x100\ns_mov_b32 s7, 0x20000")
        A.vmem("buffer_load_dword v56, v57, s[4:7], 0 offen sc1", "TLB")
        A("s_mul_i32 s34, s27, 491520\ns_and_b32 s35, s28, 1\ns_mul_i32 s35, s35, 245760\ns_add_u32 s34, s34, s35\ns_mul_i32 s35, s20, 61440\ns_add_u32 s34, s34, s35")
        A("s_add_u32 s4, s48, s34\ns_addc_u32 s5, s49, 0")
        A.vmem("buffer_load_dword v56, v57, s[4:7], 0 offen sc1", "TLB")
        A("s_mov_b32 s4, s50\ns_mov_b32 s5, s51")
        A.vmem("buffer_load_dword v56, v57, s[4:7], 0 offen sc1", "TLB")

    S = [160, 176]; P = [192, 200]; NEGM = 208; L = 232; ONES = 48
    KF = 192; VF = 224
    def O(T, dt): return 32 * T + 4 * dt
    def k_read(st, kt, c): return f"ds_read_b128 {ar(KF + 16*kt + 4*c)}, v{20+c} offset:{st*16384 + kt*4096}"
    def v_read(st, dt, e): return f"ds_read_b64_tr_b16 {ar(VF + 4*dt + 2*e, 2)}, v{24+dt} offset:{st*16384 + e*4096}"
    def qk_mfmas(t, par):
        r = []
        for Tl in range(2):
            T = 2*t + Tl
            for kt in range(2):
                d = vr(S[par] + 8*Tl + 4*kt)
                for c in range(4):
                    r.append(mf(d, ar(KF + 16*kt + 4*c), vr(qf(T, c)), vr(NEGM + 4*T) if c == 0 else d))
        return r
    def pv_mfmas(t, par):
        r = []
        if cfg.pvord:
            for dt in range(8):
                for Tl in range(2):
                    T = 2*t + Tl
                    r.append(mf(ar(O(T, dt)), ar(VF + 4*dt), vr(P[par] + 4*Tl), ar(O(T, dt))))
            for Tl in range(2):
                T = 2*t + Tl
                r.append(mf(vr(L + 4*T), vr(ONES), vr(P[par] + 4*Tl), vr(L + 4*T)))
            return r
        for Tl in range(2):
            T = 2*t + Tl
            for dt in range(8):
                r.append(mf(ar(O(T, dt)), ar(VF + 4*dt), vr(P[par] + 4*Tl), ar(O(T, dt))))
            r.append(mf(vr(L + 4*T), vr(ONES), vr(P[par] + 4*Tl), vr(L + 4*T)))
        return r
    def EX(par, e): return f"v_exp_f32 v{S[par]+e}, v{S[par]+e}" if not cfg.xp & 1 else "s_nop 1"
    def CV(par, k): return f"v_cvt_pk_bf16_f32 v{P[par]+k}, v{S[par]+2*k}, v{S[par]+2*k+1}" if not cfg.xp & 2 else f"v_mov_b32 v{P[par]+k}, 0x3f803f80"
    A(f"s_waitcnt vmcnt({A.vm_after(['KV0'])})")
    A("s_barrier")
    for c in range(4): A(f"ds_read_b128 {vr(S[1] + 4*c)}, v45 offset:{64*c}")
    for kt in range(2):
        for c in range(4): A(k_read(0, kt, c))
    for k in range(24): A(f"v_mov_b32 v{L+k}, 0")
    A("s_waitcnt lgkmcnt(8)")
    for k in range(16): A(f"v_xor_b32 v{S[1]+k}, 0x80008000, v{S[1]+k}")
    A("s_nop 1")
    if cfg.kve: kv2 = []; kv3 = []
    else: kv2 = dma_kv(2, min(8, qend - 16)); kv3 = dma_kv(3, max(0, qend - 24))
    gam = "v14"
    misc = ["v_and_b32 v14, 1, v4", "v_xor_b32 v15, 1, v14",
            "v_lshrrev_b32 v34, 2, v3", "v_lshl_add_u32 v34, v4, 2, v34", "v_mul_u32_u24 v34, 320, v34",
            "v_and_b32 v35, 3, v3", "v_lshl_add_u32 v34, v35, 3, v34", "v_add_u32 v34, s46, v34",
            "v_lshl_add_u32 v36, v14, 5, v34", "v_lshl_add_u32 v37, v15, 5, v34",
            "v_add_u32 v38, 128, v37", "v_add_u32 v39, 192, v36",
            "MASK",
            "v_cndmask_b32 v10, v36, v38, s[32:33]", "v_cndmask_b32 v11, v37, v39, s[32:33]",
            "v_cndmask_b32 v12, v38, v36, s[32:33]", "v_cndmask_b32 v13, v39, v37, s[32:33]",
            "v_mul_u32_u24 v34, 2560, v3", "v_lshl_add_u32 v34, v4, 3, v34",
            "v_lshlrev_b32 v35, 7, v0", "v_add_u32 v36, 0x8000, v35"]
    if cfg.wmode == 1:
        misc = misc[:-2] + ["v_mul_u32_u24 v35, 12, v1", "v_add_u32 v35, v35, v2", "v_lshlrev_b32 v35, 7, v35",
            "v_cmp_gt_u32 vcc, 12, v2", "v_mov_b32 v36, 0x100000", "s_nop 0", "v_cndmask_b32 v35, v36, v35, vcc", "s_mov_b32 s60, 0"]
    def misc_step():
        for _ in range(2):
            if misc:
                m = misc.pop(0)
                if m == "MASK": A("s_cmp_eq_u32 s21, 1\ns_cselect_b64 s[32:33], -1, 0")
                else: A(m)
    for T in range(6):
        for c in range(4):
            d = vr(NEGM + 4*T)
            A(mf(d, vr(S[1] + 4*c), vr(qf(T, c)), "0" if c == 0 else d))
            if kv2 and (isinstance(kv2[0], str) or c % 2 == 0): A.emit([kv2.pop(0)])
            else: misc_step()
    assert not kv2
    A("s_waitcnt lgkmcnt(0)")
    for k, m in enumerate(qk_mfmas(0, 0)):
        A(m)
        if kv3 and (isinstance(kv3[0], str) or k % 2 == 0): A.emit([kv3.pop(0)])
        else: misc_step()
    A.emit(kv3)
    while misc: misc_step()
    A("s_lshl_b32 s34, s26, 3\ns_add_u32 s34, s34, s27\ns_mul_i32 s34, s34, 40960")
    A("s_add_u32 s88, s92, s34\ns_addc_u32 s89, s93, 0\ns_mov_b32 s90, 40960\ns_mov_b32 s91, 0x20000")
    A("s_lshl_b32 s34, s28, 10\ns_lshl_b32 s35, s21, 7\ns_add_u32 s34, s34, s35\ns_lshl_b32 s35, s22, 4\ns_add_u32 s34, s34, s35")
    A("s_mul_i32 s34, s34, 1280\ns_mul_i32 s35, s23, 320\ns_add_u32 s34, s34, s35")
    A("s_add_u32 s92, s92, s34\ns_addc_u32 s93, s93, 0\ns_sub_u32 s94, 5242880, s34\ns_mov_b32 s95, 0x20000")
    if cfg.wmode == 2:
        A(f"buffer_load_dword v39, v35, s[88:91], 0 offen {cfg.wopfl}")
        A(f"buffer_load_dword v39, v36, s[88:91], 0 offen {cfg.wopfl}")
    for e in range(16): A(EX(0, e))
    for k in range(4): A(CV(0, k))
    A("s_mul_i32 s96, s23, 327680")
    A("s_mov_b32 s57, 7\ns_mov_b64 vcc, -1")
    if cfg.wramp: A(f"s_mov_b32 s61, 0x{cfg.wramp[::-1]}")
    if cfg.cpf2:
        tgt = "L_peel" if cfg.cpf2 == 2 else "L_epi"
        A("s_getpc_b64 s[4:5]\nL_pc2:")
        A(f"s_add_u32 s4, s4, {tgt} - L_pc2\ns_addc_u32 s5, s5, 0\ns_mov_b32 s6, L_end - {tgt}\ns_mov_b32 s7, 0x20000")
    if cfg.ssr:
        A(f"s_mul_i32 s61, s2, 0x9E3779B1\ns_lshr_b32 s61, s61, 16\ns_mul_i32 s61, s61, {cfg.ssr}\ns_lshr_b32 s61, s61, 16\ns_add_u32 s61, s61, {cfg.ss0}\ns_bfm_b32 s61, s61, 0")
    stamp(1)
    def w2_dma(c, sreg, tag, coff=1):
        r = []
        for n in range(5):
            if n == 0: r += [f"s_add_u32 m0, s54, {c*16384}", f"s_add_u32 s55, {sreg}, {c*40960*coff}"]
            if n == 4: r += [f"s_add_u32 m0, s54, {c*16384 + 4096}", "s_nop 0"]
            r.append((f"buffer_load_dwordx4 v{5+n}, s[92:95], s55 offen offset:{(n & 3)*1024} {cfg.wold} lds", tag))
        return r
    N = cfg.lag
    rq = []
    for q in range(8*29 + cfg.lag + NST, 256):
        if q % 4 == 0:
            rq += [f"s_add_u32 m0, s54, {((q >> 3) % 4)*16384 + (q & 4)*1024}", "s_and_b32 s55, s30, 0x3ffff",
                   "s_add_u32 s30, s30, s101" if q & 4 else "s_add_u32 s30, s30, 4096"]
        rq.append((f"buffer_load_dwordx4 v{16 + (q & 3)}, s[12:15], s55 offen offset:{(q & 3)*1024} {cfg.kv_flags} lds", f"KV{q >> 3}"))
    wq = [0, 1, 2, 3]
    def body(u, last):
        t, par, j = u % 3, u % 2, u // 3
        t1, par1 = (u + 1) % 3, (u + 1) % 2
        fin = last and u == 11
        kv_here = bool(rq) and cfg.ramp
        ms = qk_mfmas(t1, par1) + pv_mfmas(t, par)
        pre = [[] for _ in range(34)]
        val = [[] for _ in range(34)]
        val[0] = [CV(par, 4), CV(par, 5)]; val[1] = [CV(par, 6), CV(par, 7)]
        for e in range(16): val[16 + e] = [EX(par1, e)]
        val[32] = [CV(par1, 0), CV(par1, 1)]; val[33] = [CV(par1, 2), CV(par1, 3)]
        jj = (28 + j) if last else j
        iv = jj if t == 2 else jj - 1
        def q_of(i): return 8 * (iv + 2) + N + i
        def live(i): return (not last) or q_of(i) < 256
        def dma(i, g):
            q = q_of(i)
            if live(i):
                pre[g].append((f"buffer_load_dwordx4 v{16 + (q & 3)}, s[12:15], s55 offen offset:{(q & 3)*1024} {cfg.kv_flags} lds", f"KV{q >> 3}"))
        stn = (j + 1) % 4
        if t == 1:
            if not last:
                if cfg.ssr:
                    pre[3] += ["s_bitcmp1_b32 s61, 0"]
                    pre[4] += [f"s_cbranch_scc0 L_ss{u}", f"s_waitcnt vmcnt({cfg.ssn})", f"L_ss{u}:"]
                    pre[7] += ["s_lshr_b32 s61, s61, 1"]
                if cfg.ssk: pre[4] += [f"s_cbranch_vccz L_ss{u}", f"s_waitcnt vmcnt({cfg.ssn})", f"L_ss{u}:"]
                pre[5].append(f"s_waitcnt vmcnt({N})")
            elif j < 3: pre[5].append(lambda: A(f"s_waitcnt vmcnt({A.vm_after([f'KV{29+j}'])})"))
            pre[6].append("s_barrier")
            if not (last and j == 3):
                for kt in range(2):
                    for c in range(4): pre[8 + 4*kt + c].append(k_read(stn, kt, c))
                pre[33].append("s_waitcnt lgkmcnt(0)")
        def inc(q): return "s_add_u32 s30, s30, s101" if q & 4 else "s_add_u32 s30, s30, 4096"
        if cfg.win and not (last and cfg.ramp):
            assert N % 4 == 0
            sites = {1: [(-1, 7, 2), (0, 0, 18), (0, 1, 30)], 2: [(0, 2, 8), (0, 3, 20), (0, 4, 31)], 0: [(-1, 5, 11), (-1, 6, 24)]}[t]
            for off, i, g in sites:
                q = 8 * (jj + off + 2) + N + i
                if last and q >= 256: continue
                kv_here = True
                if q % 4 == 0:
                    pre[g - 3].append(f"s_add_u32 m0, s54, {((q >> 3) % 4)*16384 + (q & 4)*1024}")
                    pre[g - 2].append(kmap(q & 4))
                    pre[g + 1].append(inc(q))
                w = int(cfg.wpat[(8 * ((jj + off) % 4) + i) % len(cfg.wpat)])
                if cfg.wramp and not last:
                    cls = {0: 0, 4: 1, 2: 2, 6: 2}.get(i, 3)
                    pre[g - 1].append(f"s_bitcmp1_b32 s61, {cls}\ns_cbranch_scc0 L_w{u}_{i}\ns_waitcnt vmcnt(3)\nL_w{u}_{i}:")
                    if cfg.w5it: pre[g - 1].append(f"s_cbranch_vccz L_v{u}_{i}\ns_waitcnt vmcnt(4)\nL_v{u}_{i}:")
                pre[g - 1].append(f"s_waitcnt vmcnt({w - 1})")
                pre[g].append((f"buffer_load_dwordx4 v{16 + (q & 3)}, s[12:15], s55 offen offset:{(q & 3)*1024} {cfg.kv_flags} lds", f"KV{q >> 3}"))
        if t in (1, 2) and not (last and cfg.ramp) and not cfg.win:
            iv = jj
            g = (0 if N % 4 == 0 else 2) + cfg.dpos
            def put(gg, it):
                if t == 2 and gg >= 0: pre[gg].append(it)
                if t == 1 and gg < 0: pre[34 + gg].append(it)
            for i in range(8):
                q = 8 * (iv + 2) + N + i
                lv = (not last) or q < 256
                if q % 4 == 0:
                    if lv:
                        put(g, f"s_add_u32 m0, s54, {((q >> 3) % 4)*16384 + (q & 4)*1024}")
                        put(g + 1, "s_and_b32 s55, s30, 0x3ffff")
                        put(g + 1, inc(q))
                    g += 2
                if lv: put(g, (f"buffer_load_dwordx4 v{16 + (q & 3)}, s[12:15], s55 offen offset:{(q & 3)*1024} {cfg.kv_flags} lds", f"KV{q >> 3}"))
                g += 1 if i % 3 else 2
            assert g <= 33, g
            iv = jj if t == 2 else jj - 1
        if last and cfg.ramp and rq:
            gl = {0: list(range(10, 15)) + list(range(16, 32)), 1: [2, 3, 4, 7] + list(range(16, 32)), 2: list(range(2, 32))}[t]
            for g in gl:
                if not rq: break
                if isinstance(rq[0], tuple) and g >= 16 and g % 2: continue
                pre[g].append(rq.pop(0))
        if t == 0:
            for dt in range(8):
                pre[2 + dt] += [v_read(j % 4, dt, 0), v_read(j % 4, dt, 1)]
            pre[15].append("s_waitcnt lgkmcnt(0)")
        if last and ((not kv_here and not rq) if cfg.ramp else (not kv_here and u >= 2 + (16 - N) * 3 // 8)) and wq and wq[0] <= iv - 28 and t != 1 and u >= cfg.wlate:
            c = wq.pop(0)
            w = w2_dma(c, "s96", f"W{c}")
            gs = (0, 1, 2, 5, 8, 11, 12, 13, 14) if t == 2 else (0, 1, 10, 11, 12, 13, 16, 17, 18)
            if fin: gs = (16, 17, 18, 20, 22, 24, 25, 26, 27)
            for it, g in zip(w, gs): pre[g].append(it)
        if (cfg.cpf2 == 2 and not last and u == 6) or (cfg.cpf2 == 1 and last and u == 0):
            pre[13].append(("buffer_load_dword v39, v54, s[4:7], 0 offen", "PF"))
        if cfg.wmode == 1 and not last and u == 4:
            pre[7].append((f"buffer_load_dword v39, v35, s[88:91], s60 offen {cfg.wopfl}", "PF"))
            pre[16].append("s_add_u32 s60, s60, 6144")
        if cfg.wmode == 0 and cfg.wopf and last and u == cfg.wopf:
            assert t != 0
            pre[2].append((f"buffer_load_dword v39, v35, s[88:91], 0 offen {cfg.wopfl}", "PF"))
            pre[4].append((f"buffer_load_dword v39, v36, s[88:91], 0 offen {cfg.wopfl}", "PF"))
        if fin:
            for k in range(4, 8): A(CV(par, k))
            A("s_nop 0")
        for g in range(34):
            if fin and g < 16: continue
            A(ms[g])
            x = pre[g]
            if cfg.no_dma: x = [y for y in x if not isinstance(y, tuple)]
            A.emit(x)
            if not fin:
                for y in val[g]: A(y)
    A(".p2align 6")
    A("L_loop:")
    for u in range(12): body(u, False)
    if cfg.stamps & 16:
        A("s_memrealtime s[60:61]\ns_waitcnt lgkmcnt(0)")
        A("s_cmp_lt_u32 s57, 3\ns_cbranch_scc1 L_nosh")
        A("s_mov_b32 s68, s72\ns_mov_b32 s72, s76\ns_mov_b32 s76, s80\ns_mov_b32 s80, s84\ns_mov_b32 s84, s60")
        A("L_nosh:")
        stamp.n = 6
    if cfg.wramp: A("s_lshr_b32 s61, s61, 4")
    if cfg.w5it: A(f"s_cmp_gt_u32 s57, {8 - cfg.w5it}\ns_cselect_b64 vcc, -1, 0")
    if cfg.ssk: A(f"s_cmp_gt_u32 s57, {8 - cfg.ssk}\ns_cselect_b64 vcc, -1, 0")
    A("s_sub_u32 s57, s57, 1\ns_cmp_lg_u32 s57, 0\ns_cbranch_scc1 L_loop")
    A.vm = [f"KV{q >> 3}" for q in range(8*28, 8*29 + N + NST)]
    A("L_peel:")
    stamp(8)
    for u in range(12):
        body(u, True)
        if u in (4, 8): stamp(8)
    for c in wq: A.emit(w2_dma(c, "s96", f"W{c}"))
    stamp()
    A("v_readfirstlane_b32 s56, v62\nv_readfirstlane_b32 s58, v63")
    A("s_nop 5")
    A(f"v_cmp_nge_f32 vcc, s31, v{L}")
    for T in range(1, 6):
        A(f"v_cmp_nge_f32 s[34:35], s31, v{L + 4*T}")
        A("s_or_b64 vcc, vcc, s[34:35]")
    if cfg.force_fb: A("s_branch L_fallback")
    A("s_cbranch_vccnz L_fallback")
    A("L_epi:")
    BB = 40; KEEP = 136; AF = 192; AX = 232
    def bfr(c, T): return BB + 24 * c + 4 * T
    def acc2(nu, T): return vr(KEEP + 24*nu + 4*T) if nu < 5 else ar(24*(nu - 5) + 4*T)
    def b_loads(c, tag):
        return [(f"buffer_load_dwordx4 {vr(bfr(c, T))}, v{32 + T//4}, s[4:7], s{88+c} offen offset:{(T % 4)*1024} {cfg.old}", tag) for T in range(6)]
    def o_store(c, T, tag):
        return (f"buffer_store_dwordx4 {vr(bfr(c, T))}, v{32 + T//4}, s[16:19], s52 offen offset:{(T % 4)*1024} {cfg.ost}", tag)
    def next_tile(c):
        return ["s_add_u32 s53, s62, s97\ns_lshr_b64 s[62:63], s[62:63], 4",
                "s_bfe_u32 s32, s53, 0x20002\ns_and_b32 s33, s53, 3",
                "s_lshl_b32 s34, s32, 3\ns_add_u32 s34, s34, s33",
                "s_mul_i32 s96, s34, 40960\ns_lshl_b32 s32, s32, 4",
                f"s_add_u32 s32, s32, s33\ns_mul_i32 s{88+c}, s32, 6144"]
    def a_reads(c, nu, dst=None):
        n5 = nu % 5
        reg = 10 + 2*(nu // 5) + (n5 & 1)
        d = AF + 4*nu if dst is None else dst
        return [f"ds_read_b64_tr_b16 {ar(d + 2*e, 2)}, v{reg} offset:{c*16384 + e*8192 + 64*(n5 >> 1)}" for e in range(2)]
    A("s_lshl_b32 s34, s40, 5\ns_lshl_b32 s35, s28, 3\ns_add_u32 s34, s34, s35\ns_add_u32 s34, s34, s21\ns_lshl_b32 s34, s34, 1\ns_add_u32 s34, s34, s22\ns_mul_i32 s34, s34, 24576")
    A(f"s_add_u32 s4, s44, s34\ns_addc_u32 s5, s45, 0\ns_mov_b32 s6, {3*98304 + 24576}\ns_mov_b32 s7, 0x20000")
    A(f"s_add_u32 s8, s44, {MBOX}\ns_addc_u32 s9, s45, 0\ns_mov_b32 s10, 0x8000\ns_mov_b32 s11, 0x20000")
    A("s_mov_b32 s36, s50\ns_mov_b32 s37, s51\ns_movk_i32 s38, 0x100\ns_mov_b32 s39, 0x20000")
    A("s_lshl_b32 s41, s41, 2\ns_lshl_b32 s97, s23, 2")
    tiles = [4*(1 + p) + c for p in range(3) for c in range(2)] + [4*(1 + p) + c for p in range(3) for c in (2, 3)]
    tbl = sum(t << (4*i) for i, t in enumerate(tiles))
    A(f"s_mov_b32 s62, 0x{tbl & 0xffffffff:x}\ns_mov_b32 s63, 0x{tbl >> 32:x}\ns_mov_b32 s98, 0")
    A("v_mov_b32 v14, 0\nv_mov_b32 v15, 1\nv_mov_b32 v18, 0x100\nv_mov_b32 v22, 0x10000")
    npoll = [0]
    def signal(vm, vd, mreg, sreg):
        k = npoll[0]; npoll[0] += 1
        A(f"s_cmp_lg_u32 s20, 1\ns_cbranch_scc1 L_sg{k}")
        A("s_mov_b64 exec, 1")
        A(f"buffer_atomic_add {vm}, v14, s[8:11], {mreg} offen")
        A(f"buffer_atomic_add {vd}, v14, s[36:39], {sreg} offen")
        A("s_mov_b64 exec, -1")
        A(f"L_sg{k}:")
    def poll(mreg, snap, mfield, sreg, field):
        k = npoll[0]; npoll[0] += 1
        A(f"s_cmp_lg_u32 s20, 0\ns_cbranch_scc1 L_pd{k}")
        A(f"s_bfe_u32 s34, s98, {mfield}\ns_cmp_eq_u32 s34, 4\ns_cbranch_scc1 L_pd{k}")
        A("s_mov_b32 s61, 0x40000")
        A(f"L_pl{k}:")
        A(f"buffer_load_dword v19, v14, s[8:11], {mreg} offen sc1")
        A("s_waitcnt vmcnt(0)")
        A("v_readfirstlane_b32 s98, v19")
        A("s_sub_u32 s61, s61, 1")
        A(f"s_sub_u32 s98, s98, {snap}")
        A(f"s_bfe_u32 s34, s98, {mfield}\ns_cmp_eq_u32 s34, 4\ns_cbranch_scc1 L_pd{k}")
        if cfg.stamps: A("s_add_u32 s59, s59, 1")
        A(f"s_sleep {cfg.psleep}")
        A(f"s_and_b32 s34, s61, {cfg.rescue - 1}\ns_cbranch_scc1 L_pl{k}")
        A(f"buffer_load_dword v19, v14, s[36:39], {sreg} offen sc1")
        A("s_waitcnt vmcnt(0)")
        A("v_readfirstlane_b32 s34, v19")
        A(f"s_cmp_eq_u32 s61, 0\ns_cbranch_scc1 L_pd{k}")
        A(f"s_bfe_u32 s34, s34, {field}")
        A(f"s_cmp_lt_u32 s34, 4\ns_cbranch_scc1 L_pl{k}")
        A(f"L_pd{k}:")
    for T in range(6): A(f"v_rcp_f32 v{L + 4*T}, v{L + 4*T}")
    for T in range(6): A(f"v_mov_b32 v{L + 4*T + 1}, v{L + 4*T}")
    q = 0
    NA = cfg.nearly
    for c in range(4):
        if c < NA: A(f"s_movk_i32 s52, {c*6144}")
        for T in range(6):
            tb = KEEP + 8 * (q % 2); ob = bfr(c, T); q += 1
            for k in range(8): A(f"v_accvgpr_read_b32 v{tb+k}, a{O(T, 2*c) + k}")
            for k in range(4): A(f"v_pk_mul_f32 v[{tb+2*k}:{tb+2*k+1}], v[{tb+2*k}:{tb+2*k+1}], v[{L+4*T}:{L+4*T+1}]")
            for k in range(4): A(f"v_cvt_pk_bf16_f32 v{ob+k}, v{tb+2*k}, v{tb+2*k+1}")
            if c < NA:
                if cfg.swin: A(f"s_waitcnt vmcnt({cfg.swin - 1})")
                A.vmem(*o_store(c, T, "OA"))
        if c == cfg.ebar:
            A(f"s_waitcnt vmcnt({A.vm_after(['W0'] + (['OA'] if cfg.sigstep < 0 else []))})")
            A("s_barrier")
            if cfg.sigstep < 0: signal("v15", "v15", "s99", "s41")
            for nu in range(10): A.emit(a_reads(0, nu))
    stamp(37)
    def place(pre, seq, lo=7, hi=58):
        free = [g for g in range(lo, hi) if not pre[g]]
        nv = sum(isinstance(x, tuple) for x in seq)
        sp = max(1, (len(free) - (len(seq) - nv)) // max(nv, 1))
        k = 0
        for it in seq:
            pre[free[k]].append(it)
            k += sp if isinstance(it, tuple) else 1
    GR = [5, 0, 6, 1, 7, 2, 8, 3, 9, 4]
    def ax(pos, c): return AX + 8*(pos % 2) + 4*(c - 2)
    def ax_reads(pos): return a_reads(2, GR[pos], ax(pos, 2)) + a_reads(3, GR[pos], ax(pos, 3))
    BX = 120
    def bx(c, T): return ar(BX + 24*(c - 2) + 4*T)
    def bx_loads(c, tag):
        return [(f"buffer_load_dwordx4 {bx(c, T)}, v{32 + T//4}, s[4:7], s{88+c} offen offset:{(T % 4)*1024} {cfg.old}", tag) for T in range(6)]
    setup = [f"s_lshl_b32 s34, s42, 18\ns_add_u32 s34, s34, {PBASE}",
             "s_add_u32 s12, s44, s34\ns_addc_u32 s13, s45, 0",
             "s_cmp_eq_u32 s20, s28\ns_cselect_b32 s14, 0, 0x40000", "s_mov_b32 s15, 0x20000",
             "s_lshl_b32 s52, s20, 2\ns_add_u32 s52, s52, s28", "s_lshl_b32 s52, s52, 14\ns_lshl_b32 s42, s42, 2",
             "s_xor_b32 s34, s54, 0x10000\nv_add_u32 v16, s54, v32", "v_add_u32 v20, s34, v32\ns_lshl_b32 s34, s20, 13",
             "s_add_u32 s34, s34, 131072\ns_xor_b32 s35, s34, 0x4000", "v_add_u32 v17, s34, v32\nv_add_u32 v21, s35, v32"]
    obs = []
    for c in range(NA, 4): obs += [f"s_movk_i32 s52, {c*6144}"] + [o_store(c, T, "OB") for T in range(6)]
    def step(k):
        c = k % 4; cn = (c + 1) % 4
        pre = [[] for _ in range(60)]
        for nu in range(10):
            pre[6*nu + 5 + (1 if nu == 0 else 0)] += a_reads(cn, nu)
        seq = []
        if obs:
            n = -(-len(obs) // (cfg.obsteps - k))
            seq += obs[:n]; del obs[:n]
        if k == cfg.pollk:
            for kk in range(2, k): seq += b_loads((kk + 2) % 4, f"B{kk+2}")
        if cfg.pollk <= k < 12 and k >= 2: seq += b_loads((c + 2) % 4, f"B{k+2}")
        if k < 12: seq += next_tile(c) + w2_dma(c, "s96", f"W{k+4}", 0)
        if k in (10, 11): seq += bx_loads(c, f"B{k+4}")
        if k == 12: seq += setup
        need = [f"W{k+1}"] + (["OA"] if k == cfg.sigstep else []) + (["OB"] if k == cfg.sigb and NA < 4 else [])
        bar = [lambda: A(f"s_waitcnt vmcnt({A.vm_after(need)}) lgkmcnt(0)")]
        if k == cfg.pollk: bar.append(lambda: poll("s99", "s56", "0x80000", "s41", "0x80000"))
        if k == 8: bar.append(lambda: poll("s99", "s56", "0x80008", "s41", "0x80008"))
        bar.append("s_barrier")
        if k == cfg.sigstep: bar.append(lambda: signal("v15", "v15", "s99", "s41"))
        if k == cfg.sigb: bar.append(lambda: signal("v18", "v18", "s99", "s41"))
        pre[4] += bar[:1]; pre[5] += bar[1:]
        if k == 12:
            pre[48].append("s_waitcnt vmcnt(0)"); pre[49].append("s_barrier")
            r0 = ax_reads(0); pre[50] += r0[:2]; pre[51] += r0[2:]
        place(pre, seq, 7, 58 if k < 12 else 46)
        if cfg.swin2 and k < cfg.swk:
            for g in range(1, 60):
                if any(isinstance(x, tuple) for x in pre[g]): pre[g].insert(0, f"s_waitcnt vmcnt({cfg.swin2 - 1})")
        A(f"s_waitcnt vmcnt({A.vm_after([f'B{k}'])}) lgkmcnt(15)" if k >= 4 else "s_waitcnt lgkmcnt(15)")
        for g in range(60):
            nu, T = g // 6, g % 6
            d = acc2(nu, T)
            A(mf(d, ar(AF + 4*nu), vr(bfr(c, T)), "0" if k == 0 else d))
            A.emit(pre[g])
    assert NA in (2, 4) and cfg.sigstep < 2 and cfg.obsteps <= cfg.sigb <= 4 and cfg.keep
    for k in range(13):
        step(k)
        if k == 1: stamp(4)
        if k == 3: stamp(36)
        if k == 11: stamp(32)
    TMP = bfr(0, 0)
    def x_reads(r): return [f"ds_read_b128 {vr(TMP + 4*T)}, v{20 + r % 2} offset:{T*1024}" for T in range(6)]
    def x_writes(r): return [f"ds_write_b128 v{16 + r % 2}, {ar(24*r + 4*T)} offset:{T*1024}" for T in range(6)]
    def flush(r, pk=False):
        w = []
        for p in range(3):
            ob = KEEP + 24*r + 8*p
            if pk: w += [f"v_pk_add_f32 v[{ob+z}:{ob+z+1}], v[{ob+z}:{ob+z+1}], v[{TMP+8*p+z}:{TMP+8*p+z+1}]" for z in range(0, 8, 2)]
            else: w += [f"v_add_f32 v{ob+z}, v{ob+z}, v{TMP+8*p+z}" for z in range(8)]
            w += [f"v_cvt_pk_bf16_f32 v{ob+z}, v{ob+2*z}, v{ob+2*z+1}" for z in range(4)]
            w.append(("ST", f"buffer_store_dwordx4 {vr(ob)}, v32, s[12:15], s52 offen offset:{p*1024} {cfg.pst}"))
        w.append(("SA", "s_add_u32 s52, s52, 3072"))
        return w
    A("s_waitcnt lgkmcnt(0)")
    for r in range(5):
        pre = [[] for _ in range(36)]
        ra = ax_reads(2*r + 1); pre[0] += ra[:2]; pre[1] += ra[2:]
        if r < 4:
            rb = ax_reads(2*r + 2); pre[18] += rb[:2]; pre[19] += rb[2:]
        for T, w in enumerate(x_writes(r)): pre[cfg.xw0 + T*cfg.xwsp].append(w)
        work = []
        if r:
            xr = x_reads(r - 1)
            for k in range(3): pre[2 + k] += xr[2*k:2*k+2]
            work = flush(r - 1)
        pre[8].append("s_waitcnt lgkmcnt(0)")
        gaps = [g for g in range(8, 35) if g == 8 or not pre[g]]
        for gi, g in enumerate(gaps):
            left = len(gaps) - gi
            cost = sum(2 if isinstance(x, tuple) and x[0] == "ST" else 0 if isinstance(x, tuple) else 1 for x in work)
            budget = max(2, -(-cost // left)); n = 0
            while work and n < budget:
                it = work[0]
                if isinstance(it, tuple):
                    if it[0] == "ST" and n > 0 and left > 1: break
                    pre[g].append(it[1]); n += 2 if it[0] == "ST" else 0
                else: pre[g].append(it); n += 1
                work.pop(0)
        for it in work: pre[34].append(it[1] if isinstance(it, tuple) else it)
        pre[35] += ["s_waitcnt lgkmcnt(0)", "s_barrier"]
        g = 0
        for pos in (2*r, 2*r + 1):
            nu = GR[pos]
            for T in range(6):
                for c in (1, 2, 3):
                    d = acc2(nu, T)
                    A(mf(d, ar(AF + 4*nu) if c == 1 else ar(ax(pos, c)), vr(bfr(1, T)) if c == 1 else bx(c, T), d))
                    A.emit(pre[g]); g += 1
    stamp()
    A.emit(x_reads(4))
    A("s_waitcnt lgkmcnt(0)")
    for it in flush(4, True): A(it[1] if isinstance(it, tuple) else it)
    if cfg.keep:
        A("s_cmp_lg_u32 s20, s28\ns_cbranch_scc1 L_nokeep")
        for m in range(15): A(f"ds_write_b128 v32, {vr(KEEP + 8*m)} offset:{32768 + m*1024}")
        A("L_nokeep:")
        A("s_mov_b32 s14, 0x40000")
    A("s_mul_i32 s34, s27, 192\ns_and_b32 s35, s28, 1\ns_mul_i32 s35, s35, 96\ns_add_u32 s34, s34, s35\ns_lshl_b32 s35, s20, 5\ns_add_u32 s34, s34, s35\ns_mul_i32 s34, s34, 2560")
    A("s_mul_i32 s35, s25, 1280\ns_add_u32 s34, s34, s35\ns_mul_i32 s35, s23, 320\ns_add_u32 s34, s34, s35\ns_lshr_b32 s35, s28, 1\ns_mul_i32 s35, s35, 160\ns_add_u32 s34, s34, s35")
    A("s_add_u32 s16, s48, s34\ns_addc_u32 s17, s49, 0\ns_sub_u32 s18, 3932160, s34\ns_mov_b32 s19, 0x20000")
    A("s_lshl_b32 s52, s28, 16\ns_lshl_b32 s35, s20, 10\ns_add_u32 s52, s52, s35")
    if cfg.keep:
        for i in range(1, 4): A(f"s_add_u32 s34, s28, {i}\ns_and_b32 s34, s34, 3\ns_lshl_b32 s34, s34, 14\ns_add_u32 s{88+i}, s52, s34")
        A("v_add_u32 v16, s35, v32")
    else:
        for i in range(4): A(f"s_add_u32 s{88+i}, s52, {i*16384}")
    A("v_add_u32 v17, 6144, v32\nv_add_u32 v20, 12288, v32")
    stamp(2)
    A("s_waitcnt vmcnt(0) lgkmcnt(0)")
    A("s_barrier")
    stamp(2)
    signal("v15", "v22", "s100", "s42")
    if cfg.keep:
        for nu in range(5): A(f"ds_read_b128 {vr(40 + 16*nu)}, v16 offset:{32768 + nu*3072}")
    A("s_mov_b32 s98, 0")
    poll("s100", "s58", "0x80000", "s42", "0x100010")
    A("s_barrier")
    stamp(2)
    A("s_cmp_eq_u32 s20, 3\ns_cbranch_scc1 L_end")
    NS = 3 if cfg.keep else 4
    for nu in range(5):
        for src in range(4 - NS, 4):
            A(f"buffer_load_dwordx4 {vr(40 + 16*nu + 4*src)}, v{(32, 17, 20)[nu // 2]}, s[12:15], s{88+src} offen offset:{(nu % 2)*3072} {cfg.pld}")
    A("s_mov_b32 s55, 40960")
    A("s_mov_b32 s34, 0xffff0000")
    for nu in range(5):
        A(f"s_waitcnt vmcnt({NS*(4 - nu) + 2*nu}) lgkmcnt(0)")
        b = 40 + 16*nu; lo = 128;
        for k in range(16): A(f"v_lshlrev_b32 v{lo+k}, 16, v{b+k}")
        for k in range(16): A(f"v_and_b32 v{b+k}, s34, v{b+k}")
        for base in (lo, b):
            for z in range(2):
                A(f"v_pk_add_f32 v[{base+2*z}:{base+2*z+1}], v[{base+2*z}:{base+2*z+1}], v[{base+4+2*z}:{base+5+2*z}]")
                A(f"v_pk_add_f32 v[{base+8+2*z}:{base+9+2*z}], v[{base+8+2*z}:{base+9+2*z}], v[{base+12+2*z}:{base+13+2*z}]")
        for base in (lo, b):
            for z in range(2):
                A(f"v_pk_add_f32 v[{base+2*z}:{base+2*z+1}], v[{base+2*z}:{base+2*z+1}], v[{base+8+2*z}:{base+9+2*z}]")
        for z in range(4): A(f"v_cvt_pk_bf16_f32 v{b+4+z}, v{lo+z}, v{b+z}")
        A(f"buffer_store_dwordx2 {vr(b+4, 2)}, v34, s[16:19], 0 offen offset:{nu*32} {cfg.outst}")
        A(f"buffer_store_dwordx2 {vr(b+6, 2)}, v34, s[16:19], s55 offen offset:{nu*32} {cfg.outst}")
    stamp.finish()
    A("L_end:\ns_endpgm")

    A("L_fallback:")
    A("s_waitcnt vmcnt(0) lgkmcnt(0)")
    A("s_mov_b32 s4, s36\ns_mov_b32 s5, s37\ns_mov_b32 s6, 0x40000\ns_mov_b32 s7, 0x20000")
    A("s_mov_b32 s8, s38\ns_mov_b32 s9, s39\ns_mov_b32 s10, 0x40000\ns_mov_b32 s11, 0x20000")
    A("s_lshl_b32 s52, s20, 13\ns_add_u32 s52, s52, 131072")
    A("v_xor_b32 v58, v3, v4")
    A("v_lshlrev_b32 v59, 1, v4\nv_xor_b32 v59, v3, v59")
    A("v_lshlrev_b32 v60, 8, v4")
    for n in range(4):
        A(f"v_xor_b32 v61, {4*n}, v58")
        A(f"v_lshl_add_u32 v{40+n}, v61, 4, v60")
    for n in range(2):
        A(f"v_xor_b32 v61, {8*n}, v59")
        A(f"v_lshl_add_u32 v{44+n}, v61, 4, v60")
    A("s_sub_u32 s34, s52, s46")
    for c in range(4): A(f"v_add_u32 v{20+c}, s34, v{20+c}")
    A("s_sub_u32 s34, s52, s47")
    for dt in range(8): A(f"v_add_u32 v{24+dt}, s34, v{24+dt}")
    for i in range(192): A(f"v_accvgpr_write_b32 a{i}, 0")
    for k in range(24): A(f"v_mov_b32 v{L+k}, 0")
    A("s_mov_b32 s60, 0")
    A("L_fb_loop:")
    for isv in range(2):
        for n in range(8):
            A(f"s_add_u32 m0, s52, {n*1024}")
            A(f"s_add_u32 s55, s60, {n*1024}")
            A(f"buffer_load_dwordx4 v{(44 + (n & 1)) if isv else (40 + (n & 3))}, s[{8 if isv else 4}:{11 if isv else 7}], s55 offen lds")
        A("s_waitcnt vmcnt(0)")
        if isv:
            for dt in range(8):
                for e in range(2): A(v_read(0, dt, e))
        else:
            for kt in range(2):
                for c in range(4): A(k_read(0, kt, c))
        A("s_waitcnt lgkmcnt(0)")
    R0, R1 = 52, 53
    for t in range(3):
        for m in qk_mfmas(t, 0): A(m)
        A("s_nop 7")
        for Tl in range(2):
            T = 2*t + Tl; s0 = S[0] + 8*Tl
            A(f"v_max3_f32 v{R0}, v{s0}, v{s0+1}, v{s0+2}")
            A(f"v_max3_f32 v{R0}, v{R0}, v{s0+3}, v{s0+4}")
            A(f"v_max3_f32 v{R0}, v{R0}, v{s0+5}, v{s0+6}")
            A(f"v_max3_f32 v{R0}, v{R0}, v{s0+7}, 0")
            A(f"v_mov_b32 v{R1}, v{R0}\ns_nop 1\nv_permlane16_swap_b32 v{R0}, v{R1}\nv_max_f32 v{R0}, v{R0}, v{R1}")
            A(f"v_mov_b32 v{R1}, v{R0}\ns_nop 1\nv_permlane32_swap_b32 v{R0}, v{R1}\nv_max_f32 v{R0}, v{R0}, v{R1}")
            A(f"v_exp_f32 v{R1}, -v{R0}")
            for k in range(8): A(f"v_sub_f32 v{s0+k}, v{s0+k}, v{R0}")
            for k in range(4): A(f"v_sub_f32 v{NEGM+4*T+k}, v{NEGM+4*T+k}, v{R0}")
            for k in range(4): A(f"v_mul_f32 v{L+4*T+k}, v{L+4*T+k}, v{R1}")
            for k in range(0, 32, 4):
                for q in range(4): A(f"v_accvgpr_read_b32 v{54+q}, a{32*T + k + q}")
                for q in range(4): A(f"v_mul_f32 v{54+q}, v{54+q}, v{R1}")
                for q in range(4): A(f"v_accvgpr_write_b32 a{32*T + k + q}, v{54+q}")
        for e in range(16): A(EX(0, e))
        A("s_nop 0")
        for k in range(8): A(CV(0, k))
        A("s_nop 1")
        for m in pv_mfmas(t, 0): A(m)
    A("s_add_u32 s60, s60, 8192\ns_cmp_lt_u32 s60, 0x40000\ns_cbranch_scc1 L_fb_loop")
    A("s_nop 7")
    A("s_branch L_epi")

def gen(cfg):
    A = Asm()
    A("; @launch grid=(256,1,1) block=(256,1,1) lds=163840")
    A('.amdgcn_target "amdgcn-amd-amdhsa--gfx950"\n.text')
    gen_kernel(A, cfg)
    A('.section .rodata,"a"\n.p2align 6')
    A(f".amdhsa_kernel {NAME}_kernel\n  .amdhsa_next_free_vgpr 512\n  .amdhsa_next_free_sgpr 102\n"
      "  .amdhsa_accum_offset 256\n  .amdhsa_group_segment_fixed_size 0\n  .amdhsa_kernarg_size 104\n"
      "  .amdhsa_user_sgpr_count 2\n  .amdhsa_user_sgpr_kernarg_segment_ptr 1\n"
      "  .amdhsa_system_sgpr_workgroup_id_x 1\n.end_amdhsa_kernel")
    return A.text()

if __name__ == "__main__":
    cfg = Cfg()
    for a in sys.argv[2:]:
        k, v = a.split("=")
        old = getattr(cfg, k)
        setattr(cfg, k, type(old)(int(v)) if isinstance(old, (bool, int)) else v.replace('+', ' '))
    open(sys.argv[1], "w").write(gen(cfg))
```

```python
import sys, struct, math
NAME = "concat_heads__mha_block_cached__gqa_block_cached__near_ridge"
def f32bits(x): return struct.unpack("<I", struct.pack("<f", x))[0]

class Cfg:
    stamps = 0
    kv_flags = "sc1 nt"; xld = ''; wqld = ''; pfl = 'nt'
    ost = 'sc1'; old = 'sc1'; wold = ''; pst = 'sc1'; pld = 'sc1'; wopfl = ''; outst = ''
    wopf = 4
    force_fb = False
    thr_log2 = 64
    cpf = 1
    xwpf = 0
    qchain = 1
    qdsp = 3
    rot = 2
    rotd = 16
    wrot = 0
    wsg = 9
    wb0 = 3
    wbn = 4
    acq = 0
    psleep = 2
    rescue = 64
    lag = 8
    qrot = 2
    cpf2 = 0
    ramp = 0
    dpos = -5
    wpat = '5'
    win = 1
    xp = 0
    nearly = 2
    keep = 1
    tlb = 0
    pfb = 1
    kse = 0
    kve = 0
    swin = 0
    swin2 = 0
    swk = 4
    obsteps = 2
    sigb = 3
    sigc = 6
    osched = '3,3,4,4,4'
    obk0 = 2
    pollk = 2
    apoll = 1
    nost = 0
    apg = 20
    ebar = 2
    xw0 = 20
    xwsp = 2
    p2x = 0
    w5it = 0
    wramp = '733311'
    kvq = 2
    early = 0
    barg = '70,50,30,10'
    slabst = 0
    ssk = 0
    ss0 = 0
    ssr = 0
    ssn = 1
    sparse1 = 1
    pvord = 1
    wlate = 0
    wmode = 3
    stride = 1
    kvpf = 0
    kvpfl = ''
    kvpf0 = 0
    kvpf1 = 7
    pat = 3
    sigstep = 0
    no_dma = False; no_bar = False; q_nodma = False

class Asm:
    def __init__(s): s.l = []; s.vm = []
    def __call__(s, x): s.l.append(x)
    def vmem(s, x, tag): s.l.append(x); s.vm.append(tag)
    def vm_after(s, tags):
        last = -1
        for i, t in enumerate(s.vm):
            if t in tags: last = i
        assert last >= 0, tags
        return min(63, len(s.vm) - 1 - last)
    def emit(s, items):
        for it in items:
            if isinstance(it, tuple): s.vmem(it[0], it[1])
            elif callable(it): it()
            else: s(it)
    def text(s): return "\n".join(s.l) + "\n"

def mf(d, a, b, c): return f"v_mfma_f32_16x16x32_bf16 {d}, {a}, {b}, {c}"
def vr(b, n=4): return f"v[{b}:{b+n-1}]" if n > 1 else f"v{b}"
def ar(b, n=4): return f"a[{b}:{b+n-1}]" if n > 1 else f"a{b}"
STAMP_BASE = 64 << 20
PBASE = 32 << 20
MBOX = 30 << 20

class Stamper:
    def __init__(s, A, cfg): s.A = A; s.cfg = cfg; s.n = 0
    def __call__(s, mode=47):
        if s.cfg.stamps & mode:
            s.A(f"s_memrealtime s[{64+4*s.n}:{65+4*s.n}]\ns_memtime s[{66+4*s.n}:{67+4*s.n}]"); s.n += 1
    def finish(s):
        A = s.A
        if not s.cfg.stamps: return
        A("s_waitcnt vmcnt(0)")
        s(127)
        assert s.n <= 7
        A("s_waitcnt lgkmcnt(0)")
        A(f"s_add_u32 s44, s44, {STAMP_BASE}\ns_addc_u32 s45, s45, 0\ns_mov_b32 s46, 0x100000\ns_mov_b32 s47, 0x20000")
        A("s_lshl_b32 s34, s2, 2\ns_add_u32 s34, s34, s20\ns_lshl_b32 s34, s34, 6")
        A("v_mov_b32 v1, s34")
        A(f"v_mov_b32 v2, {s.n}\nv_mov_b32 v3, s59\nbuffer_store_dwordx2 v[2:3], v1, s[44:47], 0 offen offset:56\ns_nop 1")
        for k in range(s.n):
            A(f"v_mov_b32 v2, s{64+4*k}\nv_mov_b32 v3, s{66+4*k}")
            A(f"buffer_store_dwordx2 v[2:3], v1, s[44:47], 0 offen offset:{8*k}")
            A("s_nop 1")

XBUF = [114688, 139264]
WSLOT = [2, 0, 1]

def gen_kernel(A, cfg):
    K1 = NAME + "_kernel"
    A(f".globl {K1}\n.p2align 8\n.type {K1},@function\n{K1}:")
    A("s_cmp_ge_u32 s2, 256\ns_cbranch_scc1 L_end")
    stamp = Stamper(A, cfg)
    stamp(127)
    A("s_bfe_u32 s25, s2, 0x10002")
    A("s_mul_i32 s28, s25, 40")
    A("s_add_u32 s62, s0, s28\ns_addc_u32 s63, s1, 0")
    A("s_load_dwordx4 s[36:39], s[62:63], 0")
    A("s_load_dwordx4 s[40:43], s[62:63], 16")
    A("s_load_dwordx2 s[44:45], s[0:1], 96")
    A("s_load_dwordx2 s[92:93], s[62:63], 32")
    if cfg.cpf:
        A("s_getpc_b64 s[88:89]")
        A("L_pc:")
        A("s_mov_b32 s90, L_end - L_pc\ns_mov_b32 s91, 0x20000")
        A("v_lshlrev_b32 v54, 7, v0")
        A.vmem("buffer_load_dword v56, v54, s[88:91], 0 offen", "CPF")
    A("s_lshr_b32 s24, s2, 3")
    A("s_and_b32 s28, s2, 3")
    A("s_and_b32 s23, s24, 3")
    A("s_lshl_b32 s26, s28, 2\ns_add_u32 s26, s26, s23")
    A("s_lshr_b32 s27, s24, 2")
    A("v_lshrrev_b32 v1, 6, v0")
    A("v_and_b32 v2, 63, v0")
    A("v_readfirstlane_b32 s20, v1")
    A("v_and_b32 v3, 15, v2\nv_lshrrev_b32 v4, 4, v2")
    A("v_lshrrev_b32 v10, 3, v2\nv_and_b32 v11, 7, v2")
    A("v_xor_b32 v13, v11, v4")
    A("v_mul_u32_u24 v14, 1280, v10")
    A("v_lshl_add_u32 v58, v13, 4, v14")
    A("v_xor_b32 v13, 4, v13")
    A("v_lshl_add_u32 v59, v13, 4, v14")
    A("v_add_u32 v59, 9216, v59")
    A("v_add_u32 v60, 18432, v58\nv_add_u32 v61, 18432, v59")
    A("v_lshlrev_b32 v10, 2, v4\nv_xor_b32 v10, v3, v10")
    A("v_lshlrev_b32 v11, 13, v4")
    A("v_lshl_add_u32 v6, v10, 4, v11")
    for n in range(1, 4): A(f"v_add_u32 v{6+n}, {n*31744}, v6")
    A("s_lshr_b32 s21, s20, 1\ns_and_b32 s22, s20, 1")
    A("s_lshl_b32 s29, s26, 1\ns_add_u32 s29, s29, s21")
    A("s_lshl_b32 s46, s21, 16")
    A("s_mul_i32 s48, s20, 6144")
    A("s_lshl_b32 s54, s22, 13\ns_add_u32 s54, s54, s46")
    A("s_mul_i32 s34, s27, 245760\ns_mul_i32 s49, s20, 61440")
    A("s_lshl_b32 s35, s29, 8\ns_lshl_b32 s53, s22, 18")
    A("s_waitcnt lgkmcnt(0)")
    A("s_add_u32 s4, s36, s34\ns_addc_u32 s5, s37, 0\ns_mov_b32 s6, 245760\ns_mov_b32 s7, 0x20000")
    A("s_add_u32 s8, s42, s35\ns_addc_u32 s9, s43, 0\ns_sub_u32 s10, 5242880, s35\ns_mov_b32 s11, 0x20000")
    if cfg.qrot == 2: A("s_add_u32 s34, s27, s23\ns_and_b32 s34, s34, 1\ns_mul_i32 s34, s34, 5")
    elif cfg.qrot == 3: A("s_add_u32 s34, s27, s23\ns_and_b32 s34, s34, 3\ns_mul_i32 s34, s34, 5\ns_lshr_b32 s34, s34, 1")
    elif cfg.qrot:
        A("s_mul_i32 s34, s27, 5\ns_mul_i32 s35, s23, 10\ns_add_u32 s34, s34, s35\ns_lshr_b32 s34, s34, 2")
        A("s_cmp_ge_u32 s34, 10\ns_cselect_b32 s35, 10, 0\ns_sub_u32 s34, s34, s35")
    else: A("s_mov_b32 s34, 0")
    A("s_lshl_b32 s50, s34, 7\ns_add_u32 s50, s50, s49\ns_add_u32 s96, s49, 1280")
    A("s_lshl_b32 s51, s34, 19\ns_add_u32 s51, s51, s53\ns_add_u32 s97, s53, 5242880")
    def dma_x(xi):
        r = []
        for n in range(6):
            if n % 4 == 0:
                r += [f"s_add_u32 m0, s48, {XBUF[xi % 2] + n*1024}", f"s_add_u32 s55, s50, {n*10240}"]
            r.append((f"buffer_load_dwordx4 v{58 + (n & 3)}, s[4:7], s55 offen offset:{(n & 3)*1024} {cfg.xld} lds", f"X{xi}"))
        r += ["s_add_u32 s50, s50, 128", "s_cmp_eq_u32 s50, s96\ns_cselect_b32 s50, s49, s50"]
        return r
    def dma_w(sg):
        r = []
        for n in range(8):
            if n % 4 == 0:
                r += [f"s_add_u32 m0, s54, {WSLOT[sg % 3]*16384 + n*1024}", f"s_add_u32 s55, s51, {n*4*8192}"]
            r.append((f"buffer_load_dwordx4 v{6 + (n & 3)}, s[8:11], s55 offen offset:{(n & 3)*1024} {cfg.wqld} lds", f"W{sg}"))
        r += ["s_add_u32 s51, s51, 0x80000", "s_cmp_eq_u32 s51, s97\ns_cselect_b32 s51, s53, s51"]
        return r
    def kmap(half):
        e = cfg.kse
        if e == 0: return "s_and_b32 s55, s30, 0x3ffff"
        hi = 0x3ffff & ~((1 << (13 + e)) - 1)
        r = f"s_bfe_u32 s35, s30, 0x{(e << 16) | 13:x}\ns_lshl_b32 s55, s35, 10"
        if hi: r += f"\ns_and_b32 s35, s30, 0x{hi:x}\ns_or_b32 s55, s55, s35"
        if half: r += f"\ns_or_b32 s55, s55, 0x{1 << (12 + e):x}"
        return r
    def dma_kv(step, nmax=8):
        r = []
        for n in range(nmax):
            if n % 4 == 0:
                r += [f"s_add_u32 m0, s54, {(step % 4)*16384 + n*1024}", kmap(n), "s_add_u32 s30, s30, s101" if n else "s_add_u32 s30, s30, 4096"]
            r.append((f"buffer_load_dwordx4 v{16 + (n & 3)}, s[12:15], s55 offen offset:{(n & 3)*1024} {cfg.kv_flags} lds", f"KV{step}"))
        return r
    A.emit(dma_x(0)); A.emit(dma_w(0))
    def xw_pf():
        return [(f"buffer_load_dword v56, v62, s[4:7], s58 offen", "PF"), (f"buffer_load_dword v56, v63, s[84:87], s60 offen", "PF"),
                "s_add_u32 s58, s58, 512", "s_add_u32 s60, s60, 0x200000"]
    if cfg.xwpf:
        assert not cfg.qrot and cfg.wmode != 4
        A("v_min_u32 v62, 47, v2\nv_mul_u32_u24 v62, 1280, v62")
        A("v_lshrrev_b32 v63, 2, v2\nv_min_u32 v63, 7, v63\nv_lshlrev_b32 v63, 16, v63\nv_and_b32 v14, 3, v2\nv_lshl_add_u32 v63, v14, 7, v63")
        A("s_mul_i32 s58, s23, 61440\ns_lshl_b32 s34, s20, 7\ns_add_u32 s58, s58, s34\ns_add_u32 s58, s58, 128")
        A("s_lshl_b32 s60, s20, 6\ns_add_u32 s60, s60, s27\ns_add_u32 s60, s60, 64\ns_lshl_b32 s60, s60, 13")
        A("s_lshl_b32 s34, s21, 8\ns_sub_u32 s84, s8, s34\ns_subb_u32 s85, s9, 0\ns_add_u32 s86, s10, s34\ns_mov_b32 s87, 0x20000")
        A.emit(xw_pf())
    A("s_lshl_b32 s34, s27, 5\ns_add_u32 s34, s34, s29\ns_lshl_b32 s34, s34, 18")
    A("s_add_u32 s36, s38, s34\ns_addc_u32 s37, s39, 0")
    A("s_add_u32 s38, s40, s34\ns_addc_u32 s39, s41, 0")
    A("s_cmp_eq_u32 s22, 1")
    A("s_cselect_b32 s12, s38, s36\ns_cselect_b32 s13, s39, s37")
    A("s_mov_b32 s14, 0x40000\ns_mov_b32 s15, 0x20000")
    A("s_cselect_b64 s[32:33], -1, 0")
    A("v_xor_b32 v11, v3, v4")
    A("v_lshlrev_b32 v10, 1, v4\nv_xor_b32 v10, v3, v10")
    A("v_lshlrev_b32 v12, 8, v4")
    for n in range(4):
        A(f"v_xor_b32 v13, {4*n}, v11")
        A(f"v_xor_b32 v14, {8*(n&1)}, v10")
        A("v_cndmask_b32 v13, v13, v14, s[32:33]")
        A(f"v_lshl_add_u32 v{16+n}, v13, 4, v12")
        if n and cfg.kse: A(f"v_add_u32 v{16+n}, {n * ((1024 << cfg.kse) - 1024)}, v{16+n}")
    A("v_lshlrev_b32 v12, 8, v3\nv_add_u32 v12, s46, v12")
    for c in range(4):
        A(f"v_xor_b32 v13, {4*c}, v11")
        A(f"v_lshl_add_u32 v{20+c}, v13, 4, v12")
    A("v_lshrrev_b32 v10, 2, v3\nv_lshl_add_u32 v11, v4, 2, v10")
    A("v_and_b32 v12, 7, v11")
    A("v_lshlrev_b32 v11, 8, v11")
    A("v_and_b32 v13, 3, v3\nv_lshl_add_u32 v11, v13, 3, v11")
    A("s_add_u32 s47, s46, 8192")
    A("v_add_u32 v11, s47, v11")
    for dt in range(8):
        A(f"v_xor_b32 v14, {dt}, v12")
        A(f"v_lshl_add_u32 v{24+dt}, v14, 5, v11")
    A("v_lshlrev_b32 v32, 4, v2\nv_add_u32 v33, 4096, v32")
    A(f"s_mul_i32 s34, s22, 12288\ns_add_u32 s34, s34, {XBUF[0]}")
    A("v_lshrrev_b32 v11, 1, v3\nv_xor_b32 v11, v4, v11")
    A("v_lshlrev_b32 v12, 7, v3\nv_add_u32 v12, s34, v12")
    for s in range(2):
        A(f"v_xor_b32 v14, {4*s}, v11")
        A(f"v_lshl_add_u32 v{52+s}, v14, 4, v12")
    A("v_lshl_add_u32 v11, v4, 3, v10\nv_lshlrev_b32 v11, 8, v11")
    A("v_lshl_add_u32 v11, v13, 4, v11")
    A("v_add_u32 v11, s46, v11")
    for c in range(4):
        A(f"v_xor_b32 v14, {c}, v10")
        A(f"v_lshl_add_u32 v{40+c}, v14, 6, v11")
    if cfg.kvpf:
        lam = cfg.kvpf; sh = lam.bit_length() - 1
        A(f"v_lshrrev_b32 v55, {sh}, v2\nv_lshlrev_b32 v55, 13, v55\nv_and_b32 v14, {lam-1}, v2\nv_lshl_add_u32 v55, v14, 7, v55")
        npf = lam // 2
        kvpf_list = [[f"s_mov_b32 s50, {k*(64//lam)*8192}", (f"buffer_load_dword v56, v55, s[12:15], s50 offen {cfg.kvpfl}", "PF")] for k in range(npf)]
        nsl = cfg.kvpf1 - cfg.kvpf0 + 1
    if cfg.sparse1:
        A("v_and_b32 v14, 3, v2\nv_cmp_eq_u32 vcc, 0, v14\nv_mov_b32 v14, 0x3f803f80\ns_nop 0")
        for k in range(4): A(f"v_cndmask_b32 v{48+k}, 0, v14, vcc")
    else:
        for k in range(4): A(f"v_mov_b32 v{48+k}, 0x3f803f80")
    A("v_lshl_add_u32 v45, v4, 4, s46")
    cs = f32bits(128 ** -0.5 * math.log2(math.e))
    A(f"v_mov_b32 v46, 0x{cs:08x}\nv_mov_b32 v47, 0x{cs:08x}")
    A(f"s_mov_b32 s31, 0x{f32bits(2.0 ** cfg.thr_log2):08x}")
    A("s_lshl_b32 s40, s25, 3\ns_add_u32 s40, s40, s27")
    A("s_lshl_b32 s34, s40, 5\ns_add_u32 s34, s34, s29\ns_lshl_b32 s34, s34, 1\ns_add_u32 s34, s34, s22\ns_mul_i32 s34, s34, 24576")
    A("s_add_u32 s16, s44, s34\ns_addc_u32 s17, s45, 0\ns_movk_i32 s18, 0x6000\ns_mov_b32 s19, 0x20000")
    A("s_mov_b32 s59, 0")
    if cfg.rot:
        if cfg.rot == 1:
            A("s_lshl_b32 s30, s2, 1\ns_add_u32 s30, s30, s21\ns_mul_i32 s34, s30, 0x9E3779B1\ns_lshr_b32 s30, s34, 27\ns_lshl_b32 s30, s30, 13")
        else:
            A(f"s_add_u32 s30, s2, 1\ns_mul_i32 s34, s30, 0x9E3779B1\ns_lshr_b32 s30, s34, 27\ns_mul_i32 s35, s21, {cfg.rotd}\ns_add_u32 s30, s30, s35\ns_lshl_b32 s30, s30, 13")
        if cfg.stride: A("s_bfe_u32 s101, s34, 0x40017\ns_lshl_b32 s101, s101, 14\ns_add_u32 s101, s101, 4096")
        else: A("s_movk_i32 s101, 0x1000")
    else:
        A("s_mov_b32 s30, 0\ns_movk_i32 s101, 0x1000")
    if cfg.cpf:
        A("s_mov_b32 s34, 0x8000")
        A.vmem("buffer_load_dword v56, v54, s[88:91], s34 offen", "CPF")
    if cfg.wmode in (3, 4):
        A("s_lshl_b32 s34, s26, 3\ns_add_u32 s34, s34, s27\ns_mul_i32 s34, s34, 40960")
        A("s_add_u32 s88, s92, s34\ns_addc_u32 s89, s93, 0\ns_mov_b32 s90, 40960\ns_mov_b32 s91, 0x20000")
        A("v_add_u32 v55, 0x8000, v54")
        if cfg.wmode == 4:
            per = 320 // (4 * cfg.wbn)
            A(f"v_mul_u32_u24 v55, {per}, v1\nv_add_u32 v55, v55, v2\nv_lshlrev_b32 v55, 7, v55\nv_cmp_gt_u32 vcc, {per}, v2\nv_mov_b32 v14, 0x100000\ns_nop 0\nv_cndmask_b32 v55, v14, v55, vcc")
    if not cfg.early: A.emit(dma_x(1)); A.emit(dma_w(1))

    ACC = 64
    def acc(T, dt): return ACC + 32 * T + 4 * dt
    def fa(dt, s): return 80 + 8 * dt + 4 * s
    def fb(p, T, s): return (144 if p == 0 else 192) + 8 * T + 4 * s
    def qa_reads(sg, dt):
        c, e = dt >> 1, dt & 1
        return [f"ds_read_b64_tr_b16 {ar(fa(dt, s) + 2*f, 2)}, v{40+c} offset:{WSLOT[sg % 3]*16384 + s*8192 + f*1024 + 8*e}"
                for s in range(2) for f in range(2)]
    def qb_read(sg, T, s):
        return f"ds_read_b128 {ar(fb(sg % 2, T, s))}, v{52 + s} offset:{(sg % 2)*24576 + T*2048}"
    A(f"s_waitcnt vmcnt({A.vm_after(['X0', 'W0'])})")
    A("s_barrier")
    for T in range(6):
        for s in range(2): A(qb_read(0, T, s))
    for dt in range(8):
        for r in qa_reads(0, dt): A(r)
    fill = [f"v_accvgpr_write_b32 a{i}, 0" for i in range(80)]
    pend = (dma_x(1) + dma_w(1) if cfg.early else []) + dma_w(2)
    NST = (5 if cfg.win else 8)
    qend = 8 + cfg.lag + NST
    PFW = [(f"buffer_load_dword v56, v54, s[88:91], 0 offen {cfg.wopfl}", "KVPF"), (f"buffer_load_dword v56, v55, s[88:91], 0 offen {cfg.wopfl}", "KVPF")]
    BG = [int(x) for x in cfg.barg.split(",")] if cfg.early else [10]
    for sg in range(10):
        last = sg == 9
        slots = [[] for _ in range(96)]
        if not last:
            need = [f"W{sg+1}", f"X{sg+1}"]
            G = BG[min(sg, len(BG) - 1)]
            slots[G] = ["WAIT"]; slots[G + 1] = ["BAR"]
            if G > 11: slots[11] = ["s_waitcnt lgkmcnt(0)"]
            rl = [(11, r) for r in qa_reads(sg + 1, 0)]
            for T in range(6): rl += [(0, qb_read(sg + 1, T, 0)), (0, qb_read(sg + 1, T, 1))]
            for dt in range(1, 8): rl += [(12*dt + 11, r) for r in qa_reads(sg + 1, dt)]
            for g in range(G + 2, 96):
                k = 0
                while rl and rl[0][0] <= g and (k < 2 or g == 95):
                    slots[g].append(rl.pop(0)[1]); k += 1
            assert not rl
        else:
            fill += [f"v_accvgpr_write_b32 a{i}, 0" for i in range(144, 192)]
            for n in range(5):
                fill += [f"v_add_u32 v14, {64*n}, v2", "v_mul_u32_u24 v15, 3277, v14", "v_lshrrev_b32 v15, 16, v15",
                         "v_mul_u32_u24 v34, 20, v15", "v_sub_u32 v14, v14, v34", "v_bfe_u32 v34, v15, 2, 1", "v_lshlrev_b32 v34, 1, v34",
                         "v_xor_b32 v14, v14, v34", "v_mul_u32_u24 v15, 1280, v15", f"v_lshl_add_u32 v{5+n}, v14, 4, v15"]
                if 0 < n < 4: fill.append(f"v_subrev_u32 v{5+n}, {1024*n}, v{5+n}")
        if cfg.slabst:
            A(f"s_memrealtime s[98:99]\ns_waitcnt lgkmcnt(0)\nv_writelane_b32 v57, s98, {sg + 1}")
        A("s_waitcnt lgkmcnt(15)")
        order = [(T, s) for T in range(6) for s in range(2)] if cfg.qchain else [(T, s) for s in range(2) for T in range(6)]
        g = 0
        for dt in range(8):
            for T, s in order:
                d = vr(acc(T, dt))
                A(mf(d, ar(fa(dt, s)), ar(fb(sg % 2, T, s)), "0" if sg == 0 and s == 0 else d))
                used = 0
                for x in slots[g]:
                    if x == "WAIT": A(f"s_waitcnt vmcnt({A.vm_after(need)}) lgkmcnt(0)"); used = 2
                    elif x == "BAR":
                        A("s_barrier"); used = 2
                        if sg + 2 < 10: pend += dma_x(sg + 2)
                        if cfg.kvpf and cfg.kvpf0 <= sg <= cfg.kvpf1:
                            r = sg - cfg.kvpf0
                            for k in range(r * npf // nsl, (r + 1) * npf // nsl): pend += kvpf_list[k]
                        if sg + 3 < 10: pend += dma_w(sg + 3)
                        if cfg.xwpf and sg in (cfg.pfb, cfg.pfb + 3): pend += xw_pf()
                        if cfg.wmode == 4 and cfg.wb0 <= sg < cfg.wb0 + cfg.wbn:
                            pend += [f"s_mov_b32 s60, {(sg - cfg.wb0) * (40960 // cfg.wbn)}", (f"buffer_load_dword v56, v55, s[88:91], s60 offen {cfg.wopfl}", "KVPF")]
                        if cfg.wmode == 3 and sg == cfg.wsg:
                            pend += PFW
                        if sg == (7 if cfg.kvq == 2 else 8) and cfg.kvq: pend += dma_kv(0)
                        if sg == 8 and cfg.kvq == 2: pend += dma_kv(1)
                    else: A(x); used = 2
                if last and g == 11:
                    A("s_waitcnt lgkmcnt(0)")
                    if cfg.kve:
                        A("s_barrier"); used = 2
                        pend += dma_kv(2, min(8, qend - 16)) + dma_kv(3, max(0, qend - 24))
                    if cfg.wmode == 3 and cfg.wsg == 9: pend += PFW
                if last and g % 12 == 11 and g < 95:
                    fill += [f"v_accvgpr_write_b32 a{i}, 0" for i in range(fa(dt, 0), fa(dt, 0) + 8)]
                if not used and pend:
                    if isinstance(pend[0], str): A(pend.pop(0))
                    elif g % (cfg.qdsp if sg >= len(BG) - 1 else 2) == 0:
                        it = pend.pop(0); used = 2
                        if cfg.q_nodma and not it[1].startswith("KV"): A.vm.append(it[1])
                        else: A.vmem(*it)
                if not used:
                    for _ in range(2):
                        if fill: A(fill.pop(0))
                g += 1
    assert not pend, len(pend)
    fill += [f"v_accvgpr_write_b32 a{i}, 0" for i in range(fa(7, 0), fa(7, 0) + 8)]
    if not cfg.kve: A("s_barrier")
    stamp(1)
    if cfg.slabst:
        A(f"s_memrealtime s[60:61]\ns_waitcnt lgkmcnt(0)\nv_writelane_b32 v57, s60, 11\nv_writelane_b32 v57, s64, 0")
        A(f"s_add_u32 s88, s44, {STAMP_BASE + 0x80000}\ns_addc_u32 s89, s45, 0\ns_mov_b32 s90, 0x100000\ns_mov_b32 s91, 0x20000")
        A("s_lshl_b32 s34, s2, 10\nv_lshlrev_b32 v62, 2, v0")
        A.vmem("buffer_store_dword v57, v62, s[88:91], s34 offen", "ST")
        A("s_nop 3")
    A("s_load_dwordx4 s[48:51], s[0:1], 80")
    A("s_lshl_b32 s41, s40, 2\ns_add_u32 s42, s41, s23\ns_add_u32 s41, s41, s28")
    A(f"s_add_u32 s8, s44, {MBOX}\ns_addc_u32 s9, s45, 0\ns_mov_b32 s10, 0x8000\ns_mov_b32 s11, 0x20000")
    A("s_lshl_b32 s99, s41, 8\ns_lshl_b32 s100, s42, 8\ns_add_u32 s100, s100, 0x4000")
    A("v_mov_b32 v57, 0")
    A.vmem("buffer_load_dword v62, v57, s[8:11], s99 offen sc1", "SNAP")
    A.vmem("buffer_load_dword v63, v57, s[8:11], s100 offen sc1", "SNAP")
    for st in range(cfg.kvq, 2): A.emit(dma_kv(st))
    for z in fill: A(z)
    for k in range(96):
        A(f"v_pk_mul_f32 v[{ACC+2*k}:{ACC+2*k+1}], v[{ACC+2*k}:{ACC+2*k+1}], v[46:47]")
        if k >= 1: A(f"v_cvt_pk_bf16_f32 v{ACC+k-1}, v{ACC+2*k-2}, v{ACC+2*k-1}")
    A(f"v_cvt_pk_bf16_f32 v{ACC+95}, v{ACC+190}, v{ACC+191}")
    def qf(T, c): return ACC + 16 * T + 4 * c
    A("s_waitcnt lgkmcnt(0)")
    if cfg.tlb:
        A.vmem("buffer_load_dword v56, v57, s[16:19], 0 offen sc1", "TLB")
        A(f"s_lshl_b32 s34, s42, 18\ns_add_u32 s34, s34, {PBASE + 15360}")
        A("s_add_u32 s4, s44, s34\ns_addc_u32 s5, s45, 0\ns_movk_i32 s6, 0x100\ns_mov_b32 s7, 0x20000")
        A.vmem("buffer_load_dword v56, v57, s[4:7], 0 offen sc1", "TLB")
        A("s_mul_i32 s34, s27, 491520\ns_and_b32 s35, s28, 1\ns_mul_i32 s35, s35, 245760\ns_add_u32 s34, s34, s35\ns_mul_i32 s35, s20, 61440\ns_add_u32 s34, s34, s35")
        A("s_add_u32 s4, s48, s34\ns_addc_u32 s5, s49, 0")
        A.vmem("buffer_load_dword v56, v57, s[4:7], 0 offen sc1", "TLB")
        A("s_mov_b32 s4, s50\ns_mov_b32 s5, s51")
        A.vmem("buffer_load_dword v56, v57, s[4:7], 0 offen sc1", "TLB")

    S = [160, 176]; P = [192, 200]; NEGM = 208; L = 232; ONES = 48
    KF = 192; VF = 224
    def O(T, dt): return 32 * T + 4 * dt
    def k_read(st, kt, c): return f"ds_read_b128 {ar(KF + 16*kt + 4*c)}, v{20+c} offset:{st*16384 + kt*4096}"
    def v_read(st, dt, e): return f"ds_read_b64_tr_b16 {ar(VF + 4*dt + 2*e, 2)}, v{24+dt} offset:{st*16384 + e*4096}"
    def qk_mfmas(t, par):
        r = []
        for Tl in range(2):
            T = 2*t + Tl
            for kt in range(2):
                d = vr(S[par] + 8*Tl + 4*kt)
                for c in range(4):
                    r.append(mf(d, ar(KF + 16*kt + 4*c), vr(qf(T, c)), vr(NEGM + 4*T) if c == 0 else d))
        return r
    def pv_mfmas(t, par):
        r = []
        if cfg.pvord:
            for dt in range(8):
                for Tl in range(2):
                    T = 2*t + Tl
                    r.append(mf(ar(O(T, dt)), ar(VF + 4*dt), vr(P[par] + 4*Tl), ar(O(T, dt))))
            for Tl in range(2):
                T = 2*t + Tl
                r.append(mf(vr(L + 4*T), vr(ONES), vr(P[par] + 4*Tl), vr(L + 4*T)))
            return r
        for Tl in range(2):
            T = 2*t + Tl
            for dt in range(8):
                r.append(mf(ar(O(T, dt)), ar(VF + 4*dt), vr(P[par] + 4*Tl), ar(O(T, dt))))
            r.append(mf(vr(L + 4*T), vr(ONES), vr(P[par] + 4*Tl), vr(L + 4*T)))
        return r
    def EX(par, e): return f"v_exp_f32 v{S[par]+e}, v{S[par]+e}" if not cfg.xp & 1 else "s_nop 1"
    def CV(par, k): return f"v_cvt_pk_bf16_f32 v{P[par]+k}, v{S[par]+2*k}, v{S[par]+2*k+1}" if not cfg.xp & 2 else f"v_mov_b32 v{P[par]+k}, 0x3f803f80"
    A(f"s_waitcnt vmcnt({A.vm_after(['KV0'])})")
    A("s_barrier")
    for c in range(4): A(f"ds_read_b128 {vr(S[1] + 4*c)}, v45 offset:{64*c}")
    for kt in range(2):
        for c in range(4): A(k_read(0, kt, c))
    for k in range(24): A(f"v_mov_b32 v{L+k}, 0")
    A("s_waitcnt lgkmcnt(8)")
    for k in range(16): A(f"v_xor_b32 v{S[1]+k}, 0x80008000, v{S[1]+k}")
    A("s_nop 1")
    if cfg.kve: kv2 = []; kv3 = []
    else: kv2 = dma_kv(2, min(8, qend - 16)); kv3 = dma_kv(3, max(0, qend - 24))
    gam = "v14"
    misc = ["v_and_b32 v14, 1, v4", "v_xor_b32 v15, 1, v14",
            "v_lshrrev_b32 v34, 2, v3", "v_lshl_add_u32 v34, v4, 2, v34", "v_mul_u32_u24 v34, 320, v34",
            "v_and_b32 v35, 3, v3", "v_lshl_add_u32 v34, v35, 3, v34", "v_add_u32 v34, s46, v34",
            "v_lshl_add_u32 v36, v14, 5, v34", "v_lshl_add_u32 v37, v15, 5, v34",
            "v_add_u32 v38, 128, v37", "v_add_u32 v39, 192, v36",
            "MASK",
            "v_cndmask_b32 v10, v36, v38, s[32:33]", "v_cndmask_b32 v11, v37, v39, s[32:33]",
            "v_cndmask_b32 v12, v38, v36, s[32:33]", "v_cndmask_b32 v13, v39, v37, s[32:33]",
            "v_mul_u32_u24 v34, 2560, v3", "v_lshl_add_u32 v34, v4, 3, v34",
            "v_lshlrev_b32 v35, 7, v0", "v_add_u32 v36, 0x8000, v35"]
    if cfg.wmode == 1:
        misc = misc[:-2] + ["v_mul_u32_u24 v35, 12, v1", "v_add_u32 v35, v35, v2", "v_lshlrev_b32 v35, 7, v35",
            "v_cmp_gt_u32 vcc, 12, v2", "v_mov_b32 v36, 0x100000", "s_nop 0", "v_cndmask_b32 v35, v36, v35, vcc", "s_mov_b32 s60, 0"]
    def misc_step():
        for _ in range(2):
            if misc:
                m = misc.pop(0)
                if m == "MASK": A("s_cmp_eq_u32 s21, 1\ns_cselect_b64 s[32:33], -1, 0")
                else: A(m)
    for T in range(6):
        for c in range(4):
            d = vr(NEGM + 4*T)
            A(mf(d, vr(S[1] + 4*c), vr(qf(T, c)), "0" if c == 0 else d))
            if kv2 and (isinstance(kv2[0], str) or c % 2 == 0): A.emit([kv2.pop(0)])
            else: misc_step()
    assert not kv2
    A("s_waitcnt lgkmcnt(0)")
    for k, m in enumerate(qk_mfmas(0, 0)):
        A(m)
        if kv3 and (isinstance(kv3[0], str) or k % 2 == 0): A.emit([kv3.pop(0)])
        else: misc_step()
    A.emit(kv3)
    while misc: misc_step()
    A("s_lshl_b32 s34, s26, 3\ns_add_u32 s34, s34, s27\ns_mul_i32 s34, s34, 40960")
    A("s_add_u32 s88, s92, s34\ns_addc_u32 s89, s93, 0\ns_mov_b32 s90, 40960\ns_mov_b32 s91, 0x20000")
    A("s_lshl_b32 s34, s28, 10\ns_lshl_b32 s35, s21, 7\ns_add_u32 s34, s34, s35\ns_lshl_b32 s35, s22, 4\ns_add_u32 s34, s34, s35")
    A("s_mul_i32 s34, s34, 1280\ns_mul_i32 s35, s23, 320\ns_add_u32 s34, s34, s35")
    A("s_add_u32 s92, s92, s34\ns_addc_u32 s93, s93, 0\ns_sub_u32 s94, 5242880, s34\ns_mov_b32 s95, 0x20000")
    if cfg.wmode == 2:
        A(f"buffer_load_dword v39, v35, s[88:91], 0 offen {cfg.wopfl}")
        A(f"buffer_load_dword v39, v36, s[88:91], 0 offen {cfg.wopfl}")
    for e in range(16): A(EX(0, e))
    for k in range(4): A(CV(0, k))
    A("s_mul_i32 s96, s23, 327680")
    A("s_mov_b32 s57, 7\ns_mov_b64 vcc, -1")
    if cfg.wramp: A(f"s_mov_b32 s61, 0x{cfg.wramp[::-1]}")
    if cfg.cpf2:
        tgt = "L_peel" if cfg.cpf2 == 2 else "L_epi"
        A("s_getpc_b64 s[4:5]\nL_pc2:")
        A(f"s_add_u32 s4, s4, {tgt} - L_pc2\ns_addc_u32 s5, s5, 0\ns_mov_b32 s6, L_end - {tgt}\ns_mov_b32 s7, 0x20000")
    if cfg.ssr:
        A(f"s_mul_i32 s61, s2, 0x9E3779B1\ns_lshr_b32 s61, s61, 16\ns_mul_i32 s61, s61, {cfg.ssr}\ns_lshr_b32 s61, s61, 16\ns_add_u32 s61, s61, {cfg.ss0}\ns_bfm_b32 s61, s61, 0")
    stamp(1)
    def w2_dma(c, sreg, tag, coff=1):
        r = []
        for n in range(5):
            if n == 0: r += [f"s_add_u32 m0, s54, {c*16384}", f"s_add_u32 s55, {sreg}, {c*40960*coff}"]
            if n == 4: r += [f"s_add_u32 m0, s54, {c*16384 + 4096}", "s_nop 0"]
            r.append((f"buffer_load_dwordx4 v{5+n}, s[92:95], s55 offen offset:{(n & 3)*1024} {cfg.wold} lds", tag))
        return r
    N = cfg.lag
    rq = []
    for q in range(8*29 + cfg.lag + NST, 256):
        if q % 4 == 0:
            rq += [f"s_add_u32 m0, s54, {((q >> 3) % 4)*16384 + (q & 4)*1024}", "s_and_b32 s55, s30, 0x3ffff",
                   "s_add_u32 s30, s30, s101" if q & 4 else "s_add_u32 s30, s30, 4096"]
        rq.append((f"buffer_load_dwordx4 v{16 + (q & 3)}, s[12:15], s55 offen offset:{(q & 3)*1024} {cfg.kv_flags} lds", f"KV{q >> 3}"))
    wq = [0, 1, 2, 3]
    def body(u, last):
        t, par, j = u % 3, u % 2, u // 3
        t1, par1 = (u + 1) % 3, (u + 1) % 2
        fin = last and u == 11
        kv_here = bool(rq) and cfg.ramp
        ms = qk_mfmas(t1, par1) + pv_mfmas(t, par)
        pre = [[] for _ in range(34)]
        val = [[] for _ in range(34)]
        val[0] = [CV(par, 4), CV(par, 5)]; val[1] = [CV(par, 6), CV(par, 7)]
        for e in range(16): val[16 + e] = [EX(par1, e)]
        val[32] = [CV(par1, 0), CV(par1, 1)]; val[33] = [CV(par1, 2), CV(par1, 3)]
        jj = (28 + j) if last else j
        iv = jj if t == 2 else jj - 1
        def q_of(i): return 8 * (iv + 2) + N + i
        def live(i): return (not last) or q_of(i) < 256
        def dma(i, g):
            q = q_of(i)
            if live(i):
                pre[g].append((f"buffer_load_dwordx4 v{16 + (q & 3)}, s[12:15], s55 offen offset:{(q & 3)*1024} {cfg.kv_flags} lds", f"KV{q >> 3}"))
        stn = (j + 1) % 4
        if t == 1:
            if not last:
                if cfg.ssr:
                    pre[3] += ["s_bitcmp1_b32 s61, 0"]
                    pre[4] += [f"s_cbranch_scc0 L_ss{u}", f"s_waitcnt vmcnt({cfg.ssn})", f"L_ss{u}:"]
                    pre[7] += ["s_lshr_b32 s61, s61, 1"]
                if cfg.ssk: pre[4] += [f"s_cbranch_vccz L_ss{u}", f"s_waitcnt vmcnt({cfg.ssn})", f"L_ss{u}:"]
                pre[5].append(f"s_waitcnt vmcnt({N})")
            elif j < 3: pre[5].append(lambda: A(f"s_waitcnt vmcnt({A.vm_after([f'KV{29+j}'])})"))
            pre[6].append("s_barrier")
            if not (last and j == 3):
                for kt in range(2):
                    for c in range(4): pre[8 + 4*kt + c].append(k_read(stn, kt, c))
                pre[33].append("s_waitcnt lgkmcnt(0)")
        def inc(q): return "s_add_u32 s30, s30, s101" if q & 4 else "s_add_u32 s30, s30, 4096"
        if cfg.win and not (last and cfg.ramp):
            assert N % 4 == 0
            sites = {1: [(-1, 7, 2), (0, 0, 18), (0, 1, 30)], 2: [(0, 2, 8), (0, 3, 20), (0, 4, 31)], 0: [(-1, 5, 11), (-1, 6, 24)]}[t]
            for off, i, g in sites:
                q = 8 * (jj + off + 2) + N + i
                if last and q >= 256: continue
                kv_here = True
                if q % 4 == 0:
                    pre[g - 3].append(f"s_add_u32 m0, s54, {((q >> 3) % 4)*16384 + (q & 4)*1024}")
                    pre[g - 2].append(kmap(q & 4))
                    pre[g + 1].append(inc(q))
                w = int(cfg.wpat[(8 * ((jj + off) % 4) + i) % len(cfg.wpat)])
                if cfg.wramp and not last:
                    cls = {0: 0, 4: 1, 2: 2, 6: 2}.get(i, 3)
                    pre[g - 1].append(f"s_bitcmp1_b32 s61, {cls}\ns_cbranch_scc0 L_w{u}_{i}\ns_waitcnt vmcnt(3)\nL_w{u}_{i}:")
                    if cfg.w5it: pre[g - 1].append(f"s_cbranch_vccz L_v{u}_{i}\ns_waitcnt vmcnt(4)\nL_v{u}_{i}:")
                pre[g - 1].append(f"s_waitcnt vmcnt({w - 1})")
                pre[g].append((f"buffer_load_dwordx4 v{16 + (q & 3)}, s[12:15], s55 offen offset:{(q & 3)*1024} {cfg.kv_flags} lds", f"KV{q >> 3}"))
        if t in (1, 2) and not (last and cfg.ramp) and not cfg.win:
            iv = jj
            g = (0 if N % 4 == 0 else 2) + cfg.dpos
            def put(gg, it):
                if t == 2 and gg >= 0: pre[gg].append(it)
                if t == 1 and gg < 0: pre[34 + gg].append(it)
            for i in range(8):
                q = 8 * (iv + 2) + N + i
                lv = (not last) or q < 256
                if q % 4 == 0:
                    if lv:
                        put(g, f"s_add_u32 m0, s54, {((q >> 3) % 4)*16384 + (q & 4)*1024}")
                        put(g + 1, "s_and_b32 s55, s30, 0x3ffff")
                        put(g + 1, inc(q))
                    g += 2
                if lv: put(g, (f"buffer_load_dwordx4 v{16 + (q & 3)}, s[12:15], s55 offen offset:{(q & 3)*1024} {cfg.kv_flags} lds", f"KV{q >> 3}"))
                g += 1 if i % 3 else 2
            assert g <= 33, g
            iv = jj if t == 2 else jj - 1
        if last and cfg.ramp and rq:
            gl = {0: list(range(10, 15)) + list(range(16, 32)), 1: [2, 3, 4, 7] + list(range(16, 32)), 2: list(range(2, 32))}[t]
            for g in gl:
                if not rq: break
                if isinstance(rq[0], tuple) and g >= 16 and g % 2: continue
                pre[g].append(rq.pop(0))
        if t == 0:
            for dt in range(8):
                pre[2 + dt] += [v_read(j % 4, dt, 0), v_read(j % 4, dt, 1)]
            pre[15].append("s_waitcnt lgkmcnt(0)")
        if last and ((not kv_here and not rq) if cfg.ramp else (not kv_here and u >= 2 + (16 - N) * 3 // 8)) and wq and wq[0] <= iv - 28 and t != 1 and u >= cfg.wlate:
            c = wq.pop(0)
            w = w2_dma(c, "s96", f"W{c}")
            gs = (0, 1, 2, 5, 8, 11, 12, 13, 14) if t == 2 else (0, 1, 10, 11, 12, 13, 16, 17, 18)
            if fin: gs = (16, 17, 18, 20, 22, 24, 25, 26, 27)
            for it, g in zip(w, gs): pre[g].append(it)
        if (cfg.cpf2 == 2 and not last and u == 6) or (cfg.cpf2 == 1 and last and u == 0):
            pre[13].append(("buffer_load_dword v39, v54, s[4:7], 0 offen", "PF"))
        if cfg.wmode == 1 and not last and u == 4:
            pre[7].append((f"buffer_load_dword v39, v35, s[88:91], s60 offen {cfg.wopfl}", "PF"))
            pre[16].append("s_add_u32 s60, s60, 6144")
        if cfg.wmode == 0 and cfg.wopf and last and u == cfg.wopf:
            assert t != 0
            pre[2].append((f"buffer_load_dword v39, v35, s[88:91], 0 offen {cfg.wopfl}", "PF"))
            pre[4].append((f"buffer_load_dword v39, v36, s[88:91], 0 offen {cfg.wopfl}", "PF"))
        if fin:
            for k in range(4, 8): A(CV(par, k))
            A("s_nop 0")
        for g in range(34):
            if fin and g < 16: continue
            A(ms[g])
            x = pre[g]
            if cfg.no_dma: x = [y for y in x if not isinstance(y, tuple)]
            A.emit(x)
            if not fin:
                for y in val[g]: A(y)
    A(".p2align 6")
    A("L_loop:")
    for u in range(12): body(u, False)
    if cfg.stamps & 16:
        A("s_memrealtime s[60:61]\ns_waitcnt lgkmcnt(0)")
        A("s_cmp_lt_u32 s57, 3\ns_cbranch_scc1 L_nosh")
        A("s_mov_b32 s68, s72\ns_mov_b32 s72, s76\ns_mov_b32 s76, s80\ns_mov_b32 s80, s84\ns_mov_b32 s84, s60")
        A("L_nosh:")
        stamp.n = 6
    if cfg.wramp: A("s_lshr_b32 s61, s61, 4")
    if cfg.w5it: A(f"s_cmp_gt_u32 s57, {8 - cfg.w5it}\ns_cselect_b64 vcc, -1, 0")
    if cfg.ssk: A(f"s_cmp_gt_u32 s57, {8 - cfg.ssk}\ns_cselect_b64 vcc, -1, 0")
    A("s_sub_u32 s57, s57, 1\ns_cmp_lg_u32 s57, 0\ns_cbranch_scc1 L_loop")
    A.vm = [f"KV{q >> 3}" for q in range(8*28, 8*29 + N + NST)]
    A("L_peel:")
    stamp(8)
    for u in range(12):
        body(u, True)
        if u in (4, 8): stamp(8)
    for c in wq: A.emit(w2_dma(c, "s96", f"W{c}"))
    stamp()
    A("v_readfirstlane_b32 s56, v62\nv_readfirstlane_b32 s58, v63")
    A("s_nop 5")
    A(f"v_cmp_nge_f32 vcc, s31, v{L}")
    for T in range(1, 6):
        A(f"v_cmp_nge_f32 s[34:35], s31, v{L + 4*T}")
        A("s_or_b64 vcc, vcc, s[34:35]")
    if cfg.force_fb: A("s_branch L_fallback")
    A("s_cbranch_vccnz L_fallback")
    A("L_epi:")
    BB = 40; KEEP = 136; AF = 192; AX = 232
    def bfr(c, T): return BB + 24 * c + 4 * T
    def acc2(nu, T): return vr(KEEP + 24*nu + 4*T) if nu < 5 else ar(24*(nu - 5) + 4*T)
    def b_loads(c, tag):
        return [(f"buffer_load_dwordx4 {vr(bfr(c, T))}, v{32 + T//4}, s[4:7], s{88+c} offen offset:{(T % 4)*1024} {cfg.old}", tag) for T in range(6)]
    def o_store(c, T, tag):
        return (f"buffer_store_dwordx4 {vr(bfr(c, T))}, v{32 + T//4}, s[16:19], s52 offen offset:{(T % 4)*1024} {cfg.ost}", tag)
    def next_tile(c):
        return ["s_add_u32 s53, s62, s97\ns_lshr_b64 s[62:63], s[62:63], 4",
                "s_bfe_u32 s32, s53, 0x20002\ns_and_b32 s33, s53, 3",
                "s_lshl_b32 s34, s32, 3\ns_add_u32 s34, s34, s33",
                "s_mul_i32 s96, s34, 40960\ns_lshl_b32 s32, s32, 4",
                f"s_add_u32 s32, s32, s33\ns_mul_i32 s{88+c}, s32, 6144"]
    def a_reads(c, nu, dst=None):
        n5 = nu % 5
        reg = 10 + 2*(nu // 5) + (n5 & 1)
        d = AF + 4*nu if dst is None else dst
        return [f"ds_read_b64_tr_b16 {ar(d + 2*e, 2)}, v{reg} offset:{c*16384 + e*8192 + 64*(n5 >> 1)}" for e in range(2)]
    A("s_lshl_b32 s34, s40, 5\ns_lshl_b32 s35, s28, 3\ns_add_u32 s34, s34, s35\ns_add_u32 s34, s34, s21\ns_lshl_b32 s34, s34, 1\ns_add_u32 s34, s34, s22\ns_mul_i32 s34, s34, 24576")
    A(f"s_add_u32 s4, s44, s34\ns_addc_u32 s5, s45, 0\ns_mov_b32 s6, {3*98304 + 24576}\ns_mov_b32 s7, 0x20000")
    A(f"s_add_u32 s8, s44, {MBOX}\ns_addc_u32 s9, s45, 0\ns_mov_b32 s10, 0x8000\ns_mov_b32 s11, 0x20000")
    A("s_mov_b32 s36, s50\ns_mov_b32 s37, s51\ns_movk_i32 s38, 0x100\ns_mov_b32 s39, 0x20000")
    A("s_lshl_b32 s41, s41, 2\ns_lshl_b32 s97, s23, 2")
    tiles = [4*(1 + p) + c for c in range(4) for p in range(3)]
    tbl = sum(t << (4*i) for i, t in enumerate(tiles))
    A(f"s_mov_b32 s62, 0x{tbl & 0xffffffff:x}\ns_mov_b32 s63, 0x{tbl >> 32:x}\ns_mov_b32 s98, 0")
    A("v_mov_b32 v14, 0\nv_mov_b32 v15, 1\nv_mov_b32 v18, 0x100\nv_mov_b32 v22, 0x10000\nv_mov_b32 v23, 16")
    npoll = [0]
    def signal(vm, vd, mreg, sreg):
        k = npoll[0]; npoll[0] += 1
        A(f"s_cmp_lg_u32 s20, 1\ns_cbranch_scc1 L_sg{k}")
        A("s_mov_b64 exec, 1")
        A(f"buffer_atomic_add {vm}, v14, s[8:11], {mreg} offen")
        A(f"buffer_atomic_add {vd}, v14, s[36:39], {sreg} offen")
        A("s_mov_b64 exec, -1")
        A(f"L_sg{k}:")
    def poll(mreg, snap, mfield, sreg, field):
        k = npoll[0]; npoll[0] += 1
        A(f"s_cmp_lg_u32 s20, 0\ns_cbranch_scc1 L_pd{k}")
        A(f"s_bfe_u32 s34, s98, {mfield}\ns_cmp_eq_u32 s34, 4\ns_cbranch_scc1 L_pd{k}")
        A("s_mov_b32 s61, 0x40000")
        A(f"L_pl{k}:")
        A(f"buffer_load_dword v19, v14, s[8:11], {mreg} offen sc1")
        A("s_waitcnt vmcnt(0)")
        A("v_readfirstlane_b32 s98, v19")
        A("s_sub_u32 s61, s61, 1")
        A(f"s_sub_u32 s98, s98, {snap}")
        A(f"s_bfe_u32 s34, s98, {mfield}\ns_cmp_eq_u32 s34, 4\ns_cbranch_scc1 L_pd{k}")
        if cfg.stamps: A("s_add_u32 s59, s59, 1")
        A(f"s_sleep {cfg.psleep}")
        A(f"s_and_b32 s34, s61, {cfg.rescue - 1}\ns_cbranch_scc1 L_pl{k}")
        A(f"buffer_load_dword v19, v14, s[36:39], {sreg} offen sc1")
        A("s_waitcnt vmcnt(0)")
        A("v_readfirstlane_b32 s34, v19")
        A(f"s_cmp_eq_u32 s61, 0\ns_cbranch_scc1 L_pd{k}")
        A(f"s_bfe_u32 s34, s34, {field}")
        A(f"s_cmp_lt_u32 s34, 4\ns_cbranch_scc1 L_pl{k}")
        A(f"L_pd{k}:")
    for T in range(6): A(f"v_rcp_f32 v{L + 4*T}, v{L + 4*T}")
    for T in range(6): A(f"v_mov_b32 v{L + 4*T + 1}, v{L + 4*T}")
    q = 0
    NA = 1
    for c in range(4):
        if c < NA: A(f"s_movk_i32 s52, {c*6144}")
        for T in range(6):
            tb = KEEP + 8 * (q % 2); ob = bfr(c, T); q += 1
            for k in range(8): A(f"v_accvgpr_read_b32 v{tb+k}, a{O(T, 2*c) + k}")
            for k in range(4): A(f"v_pk_mul_f32 v[{tb+2*k}:{tb+2*k+1}], v[{tb+2*k}:{tb+2*k+1}], v[{L+4*T}:{L+4*T+1}]")
            for k in range(4): A(f"v_cvt_pk_bf16_f32 v{ob+k}, v{tb+2*k}, v{tb+2*k+1}")
            if c < NA:
                if cfg.swin: A(f"s_waitcnt vmcnt({cfg.swin - 1})")
                A.vmem(*o_store(c, T, "OA"))
        if c == cfg.ebar:
            A(f"s_waitcnt vmcnt({A.vm_after(['W0'] + (['OA'] if cfg.sigstep < 0 else []))})")
            A("s_barrier")
            if cfg.sigstep < 0: signal("v15", "v15", "s99", "s41")
            for nu in range(10): A.emit(a_reads(0, nu))
    stamp(101)
    def place(pre, seq, lo=7, hi=58):
        free = [g for g in range(lo, hi) if not pre[g]]
        nv = sum(isinstance(x, tuple) for x in seq)
        sp = max(1, (len(free) - (len(seq) - nv)) // max(nv, 1))
        k = 0
        for it in seq:
            pre[free[k]].append(it)
            k += sp if isinstance(it, tuple) else 1
    GR = [5, 0, 6, 1, 7, 2, 8, 3, 9, 4]
    def ax(pos, c): return AX + 8*(pos % 2) + 4*(c - 2)
    def ax_reads(pos): return a_reads(2, GR[pos], ax(pos, 2)) + a_reads(3, GR[pos], ax(pos, 3))
    BX = 120
    def bx(c, T): return ar(BX + 24*(c - 2) + 4*T)
    def bx_loads(c, tag):
        return [(f"buffer_load_dwordx4 {bx(c, T)}, v{32 + T//4}, s[4:7], s{88+c} offen offset:{(T % 4)*1024} {cfg.old}", tag) for T in range(6)]
    setup = [f"s_lshl_b32 s34, s42, 18\ns_add_u32 s34, s34, {PBASE}",
             "s_add_u32 s12, s44, s34\ns_addc_u32 s13, s45, 0",
             "s_cmp_eq_u32 s20, s28\ns_cselect_b32 s14, 0, 0x40000", "s_mov_b32 s15, 0x20000",
             "s_lshl_b32 s52, s20, 2\ns_add_u32 s52, s52, s28", "s_lshl_b32 s52, s52, 14\ns_lshl_b32 s42, s42, 2",
             "s_xor_b32 s34, s54, 0x10000\nv_add_u32 v16, s54, v32", "v_add_u32 v20, s34, v32\ns_lshl_b32 s34, s20, 13",
             "s_add_u32 s34, s34, 131072\ns_xor_b32 s35, s34, 0x4000", "v_add_u32 v17, s34, v32\nv_add_u32 v21, s35, v32"]
    sched = [int(x) for x in cfg.osched.split(",")]
    assert sum(sched) == 18
    obs = [(c, T) for c in (1, 2, 3) for T in range(6)]
    SIG = {cfg.sigstep: ("OA", "v15"), cfg.sigb: ("O1", "v23"), cfg.sigc: ("O3", "v18")}
    POLL = {2: "0x40000", 5: "0x40004", 8: "0x40008"}
    def step(k):
        c = k % 4; cn = (c + 1) % 4
        pre = [[] for _ in range(60)]
        for nu in range(10):
            pre[6*nu + 5 + (1 if nu == 0 else 0)] += a_reads(cn, nu)
        seq = []
        if 2 <= k < 12: seq += b_loads((c + 2) % 4, f"B{k+2}")
        if k < 12: seq += next_tile(c) + w2_dma(c, "s96", f"W{k+4}", 0)
        if k in (10, 11): seq += bx_loads(c, f"B{k+4}")
        if k == 12: seq += setup
        if k < len(sched) and sched[k]:
            n = sched[k]
            for i in range(n):
                cc, T = obs.pop(0)
                assert k < cc + 2, (k, cc)
                g = 2 + (i * 56) // n
                while pre[g] or pre[g - 1] or g in (4, 5, 6): g += 1
                if T == 0: pre[g - 1].append(f"s_movk_i32 s52, {cc*6144}")
                pre[g].append(o_store(cc, T, f"O{cc}"))
        if cfg.apoll and k + 1 in POLL:
            g = cfg.apg
            while pre[g]: g += 1
            pre[g].append(("buffer_load_dword v19, v14, s[8:11], s99 offen sc1", f"PL{k+1}"))
        need = ([f"PL{k}"] if cfg.apoll and k in POLL else []) + [f"W{k+1}"] + ([SIG[k][0]] if k in SIG else [])
        bar = [lambda: A(f"s_waitcnt vmcnt({A.vm_after(need)}) lgkmcnt(0)")]
        if cfg.apoll and k in POLL: bar.append("v_readfirstlane_b32 s98, v19\ns_nop 0\ns_sub_u32 s98, s98, s56")
        if k in POLL: bar.append(lambda: poll("s99", "s56", POLL[k], "s41", POLL[k]))
        bar.append("s_barrier")
        if k in SIG: bar.append(lambda: signal(SIG[k][1], SIG[k][1], "s99", "s41"))
        pre[4] += bar[:1]; pre[5] += bar[1:]
        if k == 12:
            pre[48].append("s_waitcnt vmcnt(0)"); pre[49].append("s_barrier")
            r0 = ax_reads(0); pre[50] += r0[:2]; pre[51] += r0[2:]
        place(pre, seq, 7, 58 if k < 12 else 46)
        if cfg.swin2 and k < cfg.swk:
            for g in range(1, 60):
                if any(isinstance(x, tuple) for x in pre[g]): pre[g].insert(0, f"s_waitcnt vmcnt({cfg.swin2 - 1})")
        A(f"s_waitcnt vmcnt({A.vm_after([f'B{k}'])}) lgkmcnt(15)" if k >= 4 else "s_waitcnt lgkmcnt(15)")
        for g in range(60):
            nu, T = g // 6, g % 6
            d = acc2(nu, T)
            A(mf(d, ar(AF + 4*nu), vr(bfr(c, T)), "0" if k == 0 else d))
            A.emit(pre[g])
    assert cfg.keep
    for k in range(13):
        step(k)
        if k == 1: stamp(4)
        if k < 4: stamp(64)
        if k == 3: stamp(36)
        if k == 11: stamp(32)
    TMP = bfr(0, 0)
    def x_reads(r): return [f"ds_read_b128 {vr(TMP + 4*T)}, v{20 + r % 2} offset:{T*1024}" for T in range(6)]
    def x_writes(r): return [f"ds_write_b128 v{16 + r % 2}, {ar(24*r + 4*T)} offset:{T*1024}" for T in range(6)]
    def flush(r, pk=False):
        w = []
        for p in range(3):
            ob = KEEP + 24*r + 8*p
            if pk: w += [f"v_pk_add_f32 v[{ob+z}:{ob+z+1}], v[{ob+z}:{ob+z+1}], v[{TMP+8*p+z}:{TMP+8*p+z+1}]" for z in range(0, 8, 2)]
            else: w += [f"v_add_f32 v{ob+z}, v{ob+z}, v{TMP+8*p+z}" for z in range(8)]
            w += [f"v_cvt_pk_bf16_f32 v{ob+z}, v{ob+2*z}, v{ob+2*z+1}" for z in range(4)]
            w.append(("ST", f"buffer_store_dwordx4 {vr(ob)}, v32, s[12:15], s52 offen offset:{p*1024} {cfg.pst}"))
        w.append(("SA", "s_add_u32 s52, s52, 3072"))
        return w
    A("s_waitcnt lgkmcnt(0)")
    for r in range(5):
        pre = [[] for _ in range(36)]
        ra = ax_reads(2*r + 1); pre[0] += ra[:2]; pre[1] += ra[2:]
        if r < 4:
            rb = ax_reads(2*r + 2); pre[18] += rb[:2]; pre[19] += rb[2:]
        for T, w in enumerate(x_writes(r)): pre[cfg.xw0 + T*cfg.xwsp].append(w)
        work = []
        if r:
            xr = x_reads(r - 1)
            for k in range(3): pre[2 + k] += xr[2*k:2*k+2]
            work = flush(r - 1)
        pre[8].append("s_waitcnt lgkmcnt(0)")
        gaps = [g for g in range(8, 35) if g == 8 or not pre[g]]
        for gi, g in enumerate(gaps):
            left = len(gaps) - gi
            cost = sum(2 if isinstance(x, tuple) and x[0] == "ST" else 0 if isinstance(x, tuple) else 1 for x in work)
            budget = max(2, -(-cost // left)); n = 0
            while work and n < budget:
                it = work[0]
                if isinstance(it, tuple):
                    if it[0] == "ST" and n > 0 and left > 1: break
                    pre[g].append(it[1]); n += 2 if it[0] == "ST" else 0
                else: pre[g].append(it); n += 1
                work.pop(0)
        for it in work: pre[34].append(it[1] if isinstance(it, tuple) else it)
        pre[35] += ["s_waitcnt lgkmcnt(0)", "s_barrier"]
        g = 0
        for pos in (2*r, 2*r + 1):
            nu = GR[pos]
            for T in range(6):
                for c in (1, 2, 3):
                    d = acc2(nu, T)
                    A(mf(d, ar(AF + 4*nu) if c == 1 else ar(ax(pos, c)), vr(bfr(1, T)) if c == 1 else bx(c, T), d))
                    A.emit(pre[g]); g += 1
    stamp()
    A.emit(x_reads(4))
    A("s_waitcnt lgkmcnt(0)")
    for it in flush(4, True): A(it[1] if isinstance(it, tuple) else it)
    if cfg.keep:
        A("s_cmp_lg_u32 s20, s28\ns_cbranch_scc1 L_nokeep")
        for m in range(15): A(f"ds_write_b128 v32, {vr(KEEP + 8*m)} offset:{32768 + m*1024}")
        A("L_nokeep:")
        A("s_mov_b32 s14, 0x40000")
    A("s_mul_i32 s34, s27, 192\ns_and_b32 s35, s28, 1\ns_mul_i32 s35, s35, 96\ns_add_u32 s34, s34, s35\ns_lshl_b32 s35, s20, 5\ns_add_u32 s34, s34, s35\ns_mul_i32 s34, s34, 2560")
    A("s_mul_i32 s35, s25, 1280\ns_add_u32 s34, s34, s35\ns_mul_i32 s35, s23, 320\ns_add_u32 s34, s34, s35\ns_lshr_b32 s35, s28, 1\ns_mul_i32 s35, s35, 160\ns_add_u32 s34, s34, s35")
    A("s_add_u32 s16, s48, s34\ns_addc_u32 s17, s49, 0\ns_sub_u32 s18, 3932160, s34\ns_mov_b32 s19, 0x20000")
    A("s_lshl_b32 s52, s28, 16\ns_lshl_b32 s35, s20, 10\ns_add_u32 s52, s52, s35")
    if cfg.keep:
        for i in range(1, 4): A(f"s_add_u32 s34, s28, {i}\ns_and_b32 s34, s34, 3\ns_lshl_b32 s34, s34, 14\ns_add_u32 s{88+i}, s52, s34")
        A("v_add_u32 v16, s35, v32")
    else:
        for i in range(4): A(f"s_add_u32 s{88+i}, s52, {i*16384}")
    A("v_add_u32 v17, 6144, v32\nv_add_u32 v20, 12288, v32")
    stamp(2)
    A("s_waitcnt vmcnt(0) lgkmcnt(0)")
    A("s_barrier")
    stamp(2)
    signal("v15", "v22", "s100", "s42")
    if cfg.keep:
        for nu in range(5): A(f"ds_read_b128 {vr(40 + 16*nu)}, v16 offset:{32768 + nu*3072}")
    A("s_mov_b32 s98, 0")
    poll("s100", "s58", "0x80000", "s42", "0x100010")
    A("s_barrier")
    stamp(2)
    A("s_cmp_eq_u32 s20, 3\ns_cbranch_scc1 L_end")
    NS = 3 if cfg.keep else 4
    for nu in range(5):
        for src in range(4 - NS, 4):
            A(f"buffer_load_dwordx4 {vr(40 + 16*nu + 4*src)}, v{(32, 17, 20)[nu // 2]}, s[12:15], s{88+src} offen offset:{(nu % 2)*3072} {cfg.pld}")
    A("s_mov_b32 s55, 40960")
    A("s_mov_b32 s34, 0xffff0000")
    for nu in range(5):
        A(f"s_waitcnt vmcnt({NS*(4 - nu) + 2*nu}) lgkmcnt(0)")
        b = 40 + 16*nu; lo = 128;
        for k in range(16): A(f"v_lshlrev_b32 v{lo+k}, 16, v{b+k}")
        for k in range(16): A(f"v_and_b32 v{b+k}, s34, v{b+k}")
        for base in (lo, b):
            for z in range(2):
                A(f"v_pk_add_f32 v[{base+2*z}:{base+2*z+1}], v[{base+2*z}:{base+2*z+1}], v[{base+4+2*z}:{base+5+2*z}]")
                A(f"v_pk_add_f32 v[{base+8+2*z}:{base+9+2*z}], v[{base+8+2*z}:{base+9+2*z}], v[{base+12+2*z}:{base+13+2*z}]")
        for base in (lo, b):
            for z in range(2):
                A(f"v_pk_add_f32 v[{base+2*z}:{base+2*z+1}], v[{base+2*z}:{base+2*z+1}], v[{base+8+2*z}:{base+9+2*z}]")
        for z in range(4): A(f"v_cvt_pk_bf16_f32 v{b+4+z}, v{lo+z}, v{b+z}")
        A(f"buffer_store_dwordx2 {vr(b+4, 2)}, v34, s[16:19], 0 offen offset:{nu*32} {cfg.outst}")
        A(f"buffer_store_dwordx2 {vr(b+6, 2)}, v34, s[16:19], s55 offen offset:{nu*32} {cfg.outst}")
    stamp.finish()
    A("L_end:\ns_endpgm")

    A("L_fallback:")
    A("s_waitcnt vmcnt(0) lgkmcnt(0)")
    A("s_mov_b32 s4, s36\ns_mov_b32 s5, s37\ns_mov_b32 s6, 0x40000\ns_mov_b32 s7, 0x20000")
    A("s_mov_b32 s8, s38\ns_mov_b32 s9, s39\ns_mov_b32 s10, 0x40000\ns_mov_b32 s11, 0x20000")
    A("s_lshl_b32 s52, s20, 13\ns_add_u32 s52, s52, 131072")
    A("v_xor_b32 v58, v3, v4")
    A("v_lshlrev_b32 v59, 1, v4\nv_xor_b32 v59, v3, v59")
    A("v_lshlrev_b32 v60, 8, v4")
    for n in range(4):
        A(f"v_xor_b32 v61, {4*n}, v58")
        A(f"v_lshl_add_u32 v{40+n}, v61, 4, v60")
    for n in range(2):
        A(f"v_xor_b32 v61, {8*n}, v59")
        A(f"v_lshl_add_u32 v{44+n}, v61, 4, v60")
    A("s_sub_u32 s34, s52, s46")
    for c in range(4): A(f"v_add_u32 v{20+c}, s34, v{20+c}")
    A("s_sub_u32 s34, s52, s47")
    for dt in range(8): A(f"v_add_u32 v{24+dt}, s34, v{24+dt}")
    for i in range(192): A(f"v_accvgpr_write_b32 a{i}, 0")
    for k in range(24): A(f"v_mov_b32 v{L+k}, 0")
    A("s_mov_b32 s60, 0")
    A("L_fb_loop:")
    for isv in range(2):
        for n in range(8):
            A(f"s_add_u32 m0, s52, {n*1024}")
            A(f"s_add_u32 s55, s60, {n*1024}")
            A(f"buffer_load_dwordx4 v{(44 + (n & 1)) if isv else (40 + (n & 3))}, s[{8 if isv else 4}:{11 if isv else 7}], s55 offen lds")
        A("s_waitcnt vmcnt(0)")
        if isv:
            for dt in range(8):
                for e in range(2): A(v_read(0, dt, e))
        else:
            for kt in range(2):
                for c in range(4): A(k_read(0, kt, c))
        A("s_waitcnt lgkmcnt(0)")
    R0, R1 = 52, 53
    for t in range(3):
        for m in qk_mfmas(t, 0): A(m)
        A("s_nop 7")
        for Tl in range(2):
            T = 2*t + Tl; s0 = S[0] + 8*Tl
            A(f"v_max3_f32 v{R0}, v{s0}, v{s0+1}, v{s0+2}")
            A(f"v_max3_f32 v{R0}, v{R0}, v{s0+3}, v{s0+4}")
            A(f"v_max3_f32 v{R0}, v{R0}, v{s0+5}, v{s0+6}")
            A(f"v_max3_f32 v{R0}, v{R0}, v{s0+7}, 0")
            A(f"v_mov_b32 v{R1}, v{R0}\ns_nop 1\nv_permlane16_swap_b32 v{R0}, v{R1}\nv_max_f32 v{R0}, v{R0}, v{R1}")
            A(f"v_mov_b32 v{R1}, v{R0}\ns_nop 1\nv_permlane32_swap_b32 v{R0}, v{R1}\nv_max_f32 v{R0}, v{R0}, v{R1}")
            A(f"v_exp_f32 v{R1}, -v{R0}")
            for k in range(8): A(f"v_sub_f32 v{s0+k}, v{s0+k}, v{R0}")
            for k in range(4): A(f"v_sub_f32 v{NEGM+4*T+k}, v{NEGM+4*T+k}, v{R0}")
            for k in range(4): A(f"v_mul_f32 v{L+4*T+k}, v{L+4*T+k}, v{R1}")
            for k in range(0, 32, 4):
                for q in range(4): A(f"v_accvgpr_read_b32 v{54+q}, a{32*T + k + q}")
                for q in range(4): A(f"v_mul_f32 v{54+q}, v{54+q}, v{R1}")
                for q in range(4): A(f"v_accvgpr_write_b32 a{32*T + k + q}, v{54+q}")
        for e in range(16): A(EX(0, e))
        A("s_nop 0")
        for k in range(8): A(CV(0, k))
        A("s_nop 1")
        for m in pv_mfmas(t, 0): A(m)
    A("s_add_u32 s60, s60, 8192\ns_cmp_lt_u32 s60, 0x40000\ns_cbranch_scc1 L_fb_loop")
    A("s_nop 7")
    A("s_branch L_epi")

def gen(cfg):
    A = Asm()
    A("; @launch grid=(256,1,1) block=(256,1,1) lds=163840")
    A('.amdgcn_target "amdgcn-amd-amdhsa--gfx950"\n.text')
    gen_kernel(A, cfg)
    A('.section .rodata,"a"\n.p2align 6')
    A(f".amdhsa_kernel {NAME}_kernel\n  .amdhsa_next_free_vgpr 512\n  .amdhsa_next_free_sgpr 102\n"
      "  .amdhsa_accum_offset 256\n  .amdhsa_group_segment_fixed_size 0\n  .amdhsa_kernarg_size 104\n"
      "  .amdhsa_user_sgpr_count 2\n  .amdhsa_user_sgpr_kernarg_segment_ptr 1\n"
      "  .amdhsa_system_sgpr_workgroup_id_x 1\n.end_amdhsa_kernel")
    return A.text()

if __name__ == "__main__":
    cfg = Cfg()
    for a in sys.argv[2:]:
        k, v = a.split("=")
        old = getattr(cfg, k)
        setattr(cfg, k, type(old)(int(v)) if isinstance(old, (bool, int)) else v.replace('+', ' '))
    open(sys.argv[1], "w").write(gen(cfg))
```

```python
import sys, struct, math
NAME = "concat_heads__mha_block_cached__gqa_block_cached__near_ridge"
def f32bits(x): return struct.unpack("<I", struct.pack("<f", x))[0]

class Cfg:
    stamps = 0
    kv_flags = "sc1 nt"; xld = ''; wqld = ''; pfl = 'nt'
    ost = 'sc1'; old = 'sc1'; wold = ''; pst = 'sc1'; pld = 'sc1'; wopfl = ''; outst = ''
    wopf = 4
    force_fb = False
    thr_log2 = 64
    cpf = 1
    xwpf = 0
    qchain = 1
    qdsp = 3
    rot = 2
    rotd = 16
    wrot = 0
    wsg = 9
    wb0 = 3
    wbn = 4
    acq = 0
    psleep = 2
    rescue = 64
    lag = 8
    qrot = 2
    cpf2 = 0
    ramp = 0
    dpos = -5
    wpat = '5'
    win = 1
    xp = 0
    nearly = 2
    keep = 1
    tlb = 0
    pfb = 1
    kse = 0
    kve = 0
    swin = 0
    swin2 = 0
    swk = 4
    obsteps = 2
    sigb = 3
    sigc = 6
    re_ = 3
    epg = 33
    osched = '3,3,4,4,4'
    obk0 = 2
    pollk = 2
    apoll = 1
    nost = 0
    apg = 20
    ebar = 2
    xw0 = 20
    xwsp = 2
    p2x = 0
    w5it = 0
    wramp = '777733'
    kvq = 2
    early = 0
    barg = '70,50,30,10'
    slabst = 0
    ssk = 0
    ss0 = 0
    ssr = 0
    ssn = 1
    sparse1 = 1
    pvord = 1
    wlate = 0
    wmode = 3
    stride = 1
    kvpf = 0
    kvpfl = ''
    kvpf0 = 0
    kvpf1 = 7
    pat = 3
    sigstep = 0
    no_dma = False; no_bar = False; q_nodma = False

class Asm:
    def __init__(s): s.l = []; s.vm = []
    def __call__(s, x): s.l.append(x)
    def vmem(s, x, tag): s.l.append(x); s.vm.append(tag)
    def vm_after(s, tags):
        last = -1
        for i, t in enumerate(s.vm):
            if t in tags: last = i
        assert last >= 0, tags
        return min(63, len(s.vm) - 1 - last)
    def emit(s, items):
        for it in items:
            if isinstance(it, tuple): s.vmem(it[0], it[1])
            elif callable(it): it()
            else: s(it)
    def text(s): return "\n".join(s.l) + "\n"

def mf(d, a, b, c): return f"v_mfma_f32_16x16x32_bf16 {d}, {a}, {b}, {c}"
def vr(b, n=4): return f"v[{b}:{b+n-1}]" if n > 1 else f"v{b}"
def ar(b, n=4): return f"a[{b}:{b+n-1}]" if n > 1 else f"a{b}"
STAMP_BASE = 64 << 20
PBASE = 32 << 20
MBOX = 30 << 20

class Stamper:
    def __init__(s, A, cfg): s.A = A; s.cfg = cfg; s.n = 0
    def __call__(s, mode=47):
        if s.cfg.stamps & mode:
            s.A(f"s_memrealtime s[{64+4*s.n}:{65+4*s.n}]\ns_memtime s[{66+4*s.n}:{67+4*s.n}]"); s.n += 1
    def finish(s):
        A = s.A
        if not s.cfg.stamps: return
        A("s_waitcnt vmcnt(0)")
        s(127)
        assert s.n <= 7
        A("s_waitcnt lgkmcnt(0)")
        A(f"s_add_u32 s44, s44, {STAMP_BASE}\ns_addc_u32 s45, s45, 0\ns_mov_b32 s46, 0x100000\ns_mov_b32 s47, 0x20000")
        A("s_lshl_b32 s34, s2, 2\ns_add_u32 s34, s34, s20\ns_lshl_b32 s34, s34, 6")
        A("v_mov_b32 v1, s34")
        A(f"v_mov_b32 v2, {s.n}\nv_mov_b32 v3, s59\nbuffer_store_dwordx2 v[2:3], v1, s[44:47], 0 offen offset:56\ns_nop 1")
        for k in range(s.n):
            A(f"v_mov_b32 v2, s{64+4*k}\nv_mov_b32 v3, s{66+4*k}")
            A(f"buffer_store_dwordx2 v[2:3], v1, s[44:47], 0 offen offset:{8*k}")
            A("s_nop 1")

XBUF = [114688, 139264]
WSLOT = [2, 0, 1]

def gen_kernel(A, cfg):
    K1 = NAME + "_kernel"
    A(f".globl {K1}\n.p2align 8\n.type {K1},@function\n{K1}:")
    A("s_cmp_ge_u32 s2, 256\ns_cbranch_scc1 L_end")
    stamp = Stamper(A, cfg)
    stamp(127)
    A("s_bfe_u32 s25, s2, 0x10002")
    A("s_mul_i32 s28, s25, 40")
    A("s_add_u32 s62, s0, s28\ns_addc_u32 s63, s1, 0")
    A("s_load_dwordx4 s[36:39], s[62:63], 0")
    A("s_load_dwordx4 s[40:43], s[62:63], 16")
    A("s_load_dwordx2 s[44:45], s[0:1], 96")
    A("s_load_dwordx2 s[92:93], s[62:63], 32")
    if cfg.cpf:
        A("s_getpc_b64 s[88:89]")
        A("L_pc:")
        A("s_mov_b32 s90, L_end - L_pc\ns_mov_b32 s91, 0x20000")
        A("v_lshlrev_b32 v54, 7, v0")
        A.vmem("buffer_load_dword v56, v54, s[88:91], 0 offen", "CPF")
    A("s_lshr_b32 s24, s2, 3")
    A("s_and_b32 s28, s2, 3")
    A("s_and_b32 s23, s24, 3")
    A("s_lshl_b32 s26, s28, 2\ns_add_u32 s26, s26, s23")
    A("s_lshr_b32 s27, s24, 2")
    A("v_lshrrev_b32 v1, 6, v0")
    A("v_and_b32 v2, 63, v0")
    A("v_readfirstlane_b32 s20, v1")
    A("v_and_b32 v3, 15, v2\nv_lshrrev_b32 v4, 4, v2")
    A("v_lshrrev_b32 v10, 3, v2\nv_and_b32 v11, 7, v2")
    A("v_xor_b32 v13, v11, v4")
    A("v_mul_u32_u24 v14, 1280, v10")
    A("v_lshl_add_u32 v58, v13, 4, v14")
    A("v_xor_b32 v13, 4, v13")
    A("v_lshl_add_u32 v59, v13, 4, v14")
    A("v_add_u32 v59, 9216, v59")
    A("v_add_u32 v60, 18432, v58\nv_add_u32 v61, 18432, v59")
    A("v_lshlrev_b32 v10, 2, v4\nv_xor_b32 v10, v3, v10")
    A("v_lshlrev_b32 v11, 13, v4")
    A("v_lshl_add_u32 v6, v10, 4, v11")
    for n in range(1, 4): A(f"v_add_u32 v{6+n}, {n*31744}, v6")
    A("s_lshr_b32 s21, s20, 1\ns_and_b32 s22, s20, 1")
    A("s_lshl_b32 s29, s26, 1\ns_add_u32 s29, s29, s21")
    A("s_lshl_b32 s46, s21, 16")
    A("s_mul_i32 s48, s20, 6144")
    A("s_lshl_b32 s54, s22, 13\ns_add_u32 s54, s54, s46")
    A("s_mul_i32 s34, s27, 245760\ns_mul_i32 s49, s20, 61440")
    A("s_lshl_b32 s35, s29, 8\ns_lshl_b32 s53, s22, 18")
    A("s_waitcnt lgkmcnt(0)")
    A("s_add_u32 s4, s36, s34\ns_addc_u32 s5, s37, 0\ns_mov_b32 s6, 245760\ns_mov_b32 s7, 0x20000")
    A("s_add_u32 s8, s42, s35\ns_addc_u32 s9, s43, 0\ns_sub_u32 s10, 5242880, s35\ns_mov_b32 s11, 0x20000")
    if cfg.qrot == 2: A("s_add_u32 s34, s27, s23\ns_and_b32 s34, s34, 1\ns_mul_i32 s34, s34, 5")
    elif cfg.qrot == 3: A("s_add_u32 s34, s27, s23\ns_and_b32 s34, s34, 3\ns_mul_i32 s34, s34, 5\ns_lshr_b32 s34, s34, 1")
    elif cfg.qrot:
        A("s_mul_i32 s34, s27, 5\ns_mul_i32 s35, s23, 10\ns_add_u32 s34, s34, s35\ns_lshr_b32 s34, s34, 2")
        A("s_cmp_ge_u32 s34, 10\ns_cselect_b32 s35, 10, 0\ns_sub_u32 s34, s34, s35")
    else: A("s_mov_b32 s34, 0")
    A("s_lshl_b32 s50, s34, 7\ns_add_u32 s50, s50, s49\ns_add_u32 s96, s49, 1280")
    A("s_lshl_b32 s51, s34, 19\ns_add_u32 s51, s51, s53\ns_add_u32 s97, s53, 5242880")
    def dma_x(xi):
        r = []
        for n in range(6):
            if n % 4 == 0:
                r += [f"s_add_u32 m0, s48, {XBUF[xi % 2] + n*1024}", f"s_add_u32 s55, s50, {n*10240}"]
            r.append((f"buffer_load_dwordx4 v{58 + (n & 3)}, s[4:7], s55 offen offset:{(n & 3)*1024} {cfg.xld} lds", f"X{xi}"))
        r += ["s_add_u32 s50, s50, 128", "s_cmp_eq_u32 s50, s96\ns_cselect_b32 s50, s49, s50"]
        return r
    def dma_w(sg):
        r = []
        for n in range(8):
            if n % 4 == 0:
                r += [f"s_add_u32 m0, s54, {WSLOT[sg % 3]*16384 + n*1024}", f"s_add_u32 s55, s51, {n*4*8192}"]
            r.append((f"buffer_load_dwordx4 v{6 + (n & 3)}, s[8:11], s55 offen offset:{(n & 3)*1024} {cfg.wqld} lds", f"W{sg}"))
        r += ["s_add_u32 s51, s51, 0x80000", "s_cmp_eq_u32 s51, s97\ns_cselect_b32 s51, s53, s51"]
        return r
    def kmap(half):
        e = cfg.kse
        if e == 0: return "s_and_b32 s55, s30, 0x3ffff"
        hi = 0x3ffff & ~((1 << (13 + e)) - 1)
        r = f"s_bfe_u32 s35, s30, 0x{(e << 16) | 13:x}\ns_lshl_b32 s55, s35, 10"
        if hi: r += f"\ns_and_b32 s35, s30, 0x{hi:x}\ns_or_b32 s55, s55, s35"
        if half: r += f"\ns_or_b32 s55, s55, 0x{1 << (12 + e):x}"
        return r
    def dma_kv(step, nmax=8):
        r = []
        for n in range(nmax):
            if n % 4 == 0:
                r += [f"s_add_u32 m0, s54, {(step % 4)*16384 + n*1024}", kmap(n), "s_add_u32 s30, s30, s101" if n else "s_add_u32 s30, s30, 4096"]
            r.append((f"buffer_load_dwordx4 v{16 + (n & 3)}, s[12:15], s55 offen offset:{(n & 3)*1024} {cfg.kv_flags} lds", f"KV{step}"))
        return r
    A.emit(dma_x(0)); A.emit(dma_w(0))
    def xw_pf():
        return [(f"buffer_load_dword v56, v62, s[4:7], s58 offen", "PF"), (f"buffer_load_dword v56, v63, s[84:87], s60 offen", "PF"),
                "s_add_u32 s58, s58, 512", "s_add_u32 s60, s60, 0x200000"]
    if cfg.xwpf:
        assert not cfg.qrot and cfg.wmode != 4
        A("v_min_u32 v62, 47, v2\nv_mul_u32_u24 v62, 1280, v62")
        A("v_lshrrev_b32 v63, 2, v2\nv_min_u32 v63, 7, v63\nv_lshlrev_b32 v63, 16, v63\nv_and_b32 v14, 3, v2\nv_lshl_add_u32 v63, v14, 7, v63")
        A("s_mul_i32 s58, s23, 61440\ns_lshl_b32 s34, s20, 7\ns_add_u32 s58, s58, s34\ns_add_u32 s58, s58, 128")
        A("s_lshl_b32 s60, s20, 6\ns_add_u32 s60, s60, s27\ns_add_u32 s60, s60, 64\ns_lshl_b32 s60, s60, 13")
        A("s_lshl_b32 s34, s21, 8\ns_sub_u32 s84, s8, s34\ns_subb_u32 s85, s9, 0\ns_add_u32 s86, s10, s34\ns_mov_b32 s87, 0x20000")
        A.emit(xw_pf())
    A("s_lshl_b32 s34, s27, 5\ns_add_u32 s34, s34, s29\ns_lshl_b32 s34, s34, 18")
    A("s_add_u32 s36, s38, s34\ns_addc_u32 s37, s39, 0")
    A("s_add_u32 s38, s40, s34\ns_addc_u32 s39, s41, 0")
    A("s_cmp_eq_u32 s22, 1")
    A("s_cselect_b32 s12, s38, s36\ns_cselect_b32 s13, s39, s37")
    A("s_mov_b32 s14, 0x40000\ns_mov_b32 s15, 0x20000")
    A("s_cselect_b64 s[32:33], -1, 0")
    A("v_xor_b32 v11, v3, v4")
    A("v_lshlrev_b32 v10, 1, v4\nv_xor_b32 v10, v3, v10")
    A("v_lshlrev_b32 v12, 8, v4")
    for n in range(4):
        A(f"v_xor_b32 v13, {4*n}, v11")
        A(f"v_xor_b32 v14, {8*(n&1)}, v10")
        A("v_cndmask_b32 v13, v13, v14, s[32:33]")
        A(f"v_lshl_add_u32 v{16+n}, v13, 4, v12")
        if n and cfg.kse: A(f"v_add_u32 v{16+n}, {n * ((1024 << cfg.kse) - 1024)}, v{16+n}")
    A("v_lshlrev_b32 v12, 8, v3\nv_add_u32 v12, s46, v12")
    for c in range(4):
        A(f"v_xor_b32 v13, {4*c}, v11")
        A(f"v_lshl_add_u32 v{20+c}, v13, 4, v12")
    A("v_lshrrev_b32 v10, 2, v3\nv_lshl_add_u32 v11, v4, 2, v10")
    A("v_and_b32 v12, 7, v11")
    A("v_lshlrev_b32 v11, 8, v11")
    A("v_and_b32 v13, 3, v3\nv_lshl_add_u32 v11, v13, 3, v11")
    A("s_add_u32 s47, s46, 8192")
    A("v_add_u32 v11, s47, v11")
    for dt in range(8):
        A(f"v_xor_b32 v14, {dt}, v12")
        A(f"v_lshl_add_u32 v{24+dt}, v14, 5, v11")
    A("v_lshlrev_b32 v32, 4, v2\nv_add_u32 v33, 4096, v32")
    A(f"s_mul_i32 s34, s22, 12288\ns_add_u32 s34, s34, {XBUF[0]}")
    A("v_lshrrev_b32 v11, 1, v3\nv_xor_b32 v11, v4, v11")
    A("v_lshlrev_b32 v12, 7, v3\nv_add_u32 v12, s34, v12")
    for s in range(2):
        A(f"v_xor_b32 v14, {4*s}, v11")
        A(f"v_lshl_add_u32 v{52+s}, v14, 4, v12")
    A("v_lshl_add_u32 v11, v4, 3, v10\nv_lshlrev_b32 v11, 8, v11")
    A("v_lshl_add_u32 v11, v13, 4, v11")
    A("v_add_u32 v11, s46, v11")
    for c in range(4):
        A(f"v_xor_b32 v14, {c}, v10")
        A(f"v_lshl_add_u32 v{40+c}, v14, 6, v11")
    if cfg.kvpf:
        lam = cfg.kvpf; sh = lam.bit_length() - 1
        A(f"v_lshrrev_b32 v55, {sh}, v2\nv_lshlrev_b32 v55, 13, v55\nv_and_b32 v14, {lam-1}, v2\nv_lshl_add_u32 v55, v14, 7, v55")
        npf = lam // 2
        kvpf_list = [[f"s_mov_b32 s50, {k*(64//lam)*8192}", (f"buffer_load_dword v56, v55, s[12:15], s50 offen {cfg.kvpfl}", "PF")] for k in range(npf)]
        nsl = cfg.kvpf1 - cfg.kvpf0 + 1
    if cfg.sparse1:
        A("v_and_b32 v14, 3, v2\nv_cmp_eq_u32 vcc, 0, v14\nv_mov_b32 v14, 0x3f803f80\ns_nop 0")
        for k in range(4): A(f"v_cndmask_b32 v{48+k}, 0, v14, vcc")
    else:
        for k in range(4): A(f"v_mov_b32 v{48+k}, 0x3f803f80")
    A("v_lshl_add_u32 v45, v4, 4, s46")
    cs = f32bits(128 ** -0.5 * math.log2(math.e))
    A(f"v_mov_b32 v46, 0x{cs:08x}\nv_mov_b32 v47, 0x{cs:08x}")
    A(f"s_mov_b32 s31, 0x{f32bits(2.0 ** cfg.thr_log2):08x}")
    A("s_lshl_b32 s40, s25, 3\ns_add_u32 s40, s40, s27")
    A("s_lshl_b32 s34, s40, 5\ns_add_u32 s34, s34, s29\ns_lshl_b32 s34, s34, 1\ns_add_u32 s34, s34, s22\ns_mul_i32 s34, s34, 24576")
    A("s_add_u32 s16, s44, s34\ns_addc_u32 s17, s45, 0\ns_movk_i32 s18, 0x6000\ns_mov_b32 s19, 0x20000")
    A("s_mov_b32 s59, 0")
    if cfg.rot:
        if cfg.rot == 1:
            A("s_lshl_b32 s30, s2, 1\ns_add_u32 s30, s30, s21\ns_mul_i32 s34, s30, 0x9E3779B1\ns_lshr_b32 s30, s34, 27\ns_lshl_b32 s30, s30, 13")
        else:
            A(f"s_add_u32 s30, s2, 1\ns_mul_i32 s34, s30, 0x9E3779B1\ns_lshr_b32 s30, s34, 27\ns_mul_i32 s35, s21, {cfg.rotd}\ns_add_u32 s30, s30, s35\ns_lshl_b32 s30, s30, 13")
        if cfg.stride: A("s_bfe_u32 s101, s34, 0x40017\ns_lshl_b32 s101, s101, 14\ns_add_u32 s101, s101, 4096")
        else: A("s_movk_i32 s101, 0x1000")
    else:
        A("s_mov_b32 s30, 0\ns_movk_i32 s101, 0x1000")
    if cfg.cpf:
        A("s_mov_b32 s34, 0x8000")
        A.vmem("buffer_load_dword v56, v54, s[88:91], s34 offen", "CPF")
    if cfg.wmode in (3, 4):
        A("s_lshl_b32 s34, s26, 3\ns_add_u32 s34, s34, s27\ns_mul_i32 s34, s34, 40960")
        A("s_add_u32 s88, s92, s34\ns_addc_u32 s89, s93, 0\ns_mov_b32 s90, 40960\ns_mov_b32 s91, 0x20000")
        A("v_add_u32 v55, 0x8000, v54")
        if cfg.wmode == 4:
            per = 320 // (4 * cfg.wbn)
            A(f"v_mul_u32_u24 v55, {per}, v1\nv_add_u32 v55, v55, v2\nv_lshlrev_b32 v55, 7, v55\nv_cmp_gt_u32 vcc, {per}, v2\nv_mov_b32 v14, 0x100000\ns_nop 0\nv_cndmask_b32 v55, v14, v55, vcc")
    if not cfg.early: A.emit(dma_x(1)); A.emit(dma_w(1))

    ACC = 64
    def acc(T, dt): return ACC + 32 * T + 4 * dt
    def fa(dt, s): return 80 + 8 * dt + 4 * s
    def fb(p, T, s): return (144 if p == 0 else 192) + 8 * T + 4 * s
    def qa_reads(sg, dt):
        c, e = dt >> 1, dt & 1
        return [f"ds_read_b64_tr_b16 {ar(fa(dt, s) + 2*f, 2)}, v{40+c} offset:{WSLOT[sg % 3]*16384 + s*8192 + f*1024 + 8*e}"
                for s in range(2) for f in range(2)]
    def qb_read(sg, T, s):
        return f"ds_read_b128 {ar(fb(sg % 2, T, s))}, v{52 + s} offset:{(sg % 2)*24576 + T*2048}"
    A(f"s_waitcnt vmcnt({A.vm_after(['X0', 'W0'])})")
    A("s_barrier")
    for T in range(6):
        for s in range(2): A(qb_read(0, T, s))
    for dt in range(8):
        for r in qa_reads(0, dt): A(r)
    fill = [f"v_accvgpr_write_b32 a{i}, 0" for i in range(80)]
    pend = (dma_x(1) + dma_w(1) if cfg.early else []) + dma_w(2)
    NST = (5 if cfg.win else 8)
    qend = 8 + cfg.lag + NST
    PFW = [(f"buffer_load_dword v56, v54, s[88:91], 0 offen {cfg.wopfl}", "KVPF"), (f"buffer_load_dword v56, v55, s[88:91], 0 offen {cfg.wopfl}", "KVPF")]
    BG = [int(x) for x in cfg.barg.split(",")] if cfg.early else [10]
    for sg in range(10):
        last = sg == 9
        slots = [[] for _ in range(96)]
        if not last:
            need = [f"W{sg+1}", f"X{sg+1}"]
            G = BG[min(sg, len(BG) - 1)]
            slots[G] = ["WAIT"]; slots[G + 1] = ["BAR"]
            if G > 11: slots[11] = ["s_waitcnt lgkmcnt(0)"]
            rl = [(11, r) for r in qa_reads(sg + 1, 0)]
            for T in range(6): rl += [(0, qb_read(sg + 1, T, 0)), (0, qb_read(sg + 1, T, 1))]
            for dt in range(1, 8): rl += [(12*dt + 11, r) for r in qa_reads(sg + 1, dt)]
            for g in range(G + 2, 96):
                k = 0
                while rl and rl[0][0] <= g and (k < 2 or g == 95):
                    slots[g].append(rl.pop(0)[1]); k += 1
            assert not rl
        else:
            fill += [f"v_accvgpr_write_b32 a{i}, 0" for i in range(144, 192)]
            for n in range(5):
                fill += [f"v_add_u32 v14, {64*n}, v2", "v_mul_u32_u24 v15, 3277, v14", "v_lshrrev_b32 v15, 16, v15",
                         "v_mul_u32_u24 v34, 20, v15", "v_sub_u32 v14, v14, v34", "v_bfe_u32 v34, v15, 2, 1", "v_lshlrev_b32 v34, 1, v34",
                         "v_xor_b32 v14, v14, v34", "v_mul_u32_u24 v15, 1280, v15", f"v_lshl_add_u32 v{5+n}, v14, 4, v15"]
                if 0 < n < 4: fill.append(f"v_subrev_u32 v{5+n}, {1024*n}, v{5+n}")
        if cfg.slabst:
            A(f"s_memrealtime s[98:99]\ns_waitcnt lgkmcnt(0)\nv_writelane_b32 v57, s98, {sg + 1}")
        A("s_waitcnt lgkmcnt(15)")
        order = [(T, s) for T in range(6) for s in range(2)] if cfg.qchain else [(T, s) for s in range(2) for T in range(6)]
        g = 0
        for dt in range(8):
            for T, s in order:
                d = vr(acc(T, dt))
                A(mf(d, ar(fa(dt, s)), ar(fb(sg % 2, T, s)), "0" if sg == 0 and s == 0 else d))
                used = 0
                for x in slots[g]:
                    if x == "WAIT": A(f"s_waitcnt vmcnt({A.vm_after(need)}) lgkmcnt(0)"); used = 2
                    elif x == "BAR":
                        A("s_barrier"); used = 2
                        if sg + 2 < 10: pend += dma_x(sg + 2)
                        if cfg.kvpf and cfg.kvpf0 <= sg <= cfg.kvpf1:
                            r = sg - cfg.kvpf0
                            for k in range(r * npf // nsl, (r + 1) * npf // nsl): pend += kvpf_list[k]
                        if sg + 3 < 10: pend += dma_w(sg + 3)
                        if cfg.xwpf and sg in (cfg.pfb, cfg.pfb + 3): pend += xw_pf()
                        if cfg.wmode == 4 and cfg.wb0 <= sg < cfg.wb0 + cfg.wbn:
                            pend += [f"s_mov_b32 s60, {(sg - cfg.wb0) * (40960 // cfg.wbn)}", (f"buffer_load_dword v56, v55, s[88:91], s60 offen {cfg.wopfl}", "KVPF")]
                        if cfg.wmode == 3 and sg == cfg.wsg:
                            pend += PFW
                        if sg == (7 if cfg.kvq == 2 else 8) and cfg.kvq: pend += dma_kv(0)
                        if sg == 8 and cfg.kvq == 2: pend += dma_kv(1)
                    else: A(x); used = 2
                if last and g == 11:
                    A("s_waitcnt lgkmcnt(0)")
                    if cfg.kve:
                        A("s_barrier"); used = 2
                        pend += dma_kv(2, min(8, qend - 16)) + dma_kv(3, max(0, qend - 24))
                    if cfg.wmode == 3 and cfg.wsg == 9: pend += PFW
                if last and g % 12 == 11 and g < 95:
                    fill += [f"v_accvgpr_write_b32 a{i}, 0" for i in range(fa(dt, 0), fa(dt, 0) + 8)]
                if not used and pend:
                    if isinstance(pend[0], str): A(pend.pop(0))
                    elif g % (cfg.qdsp if sg >= len(BG) - 1 else 2) == 0:
                        it = pend.pop(0); used = 2
                        if cfg.q_nodma and not it[1].startswith("KV"): A.vm.append(it[1])
                        else: A.vmem(*it)
                if not used:
                    for _ in range(2):
                        if fill: A(fill.pop(0))
                g += 1
    assert not pend, len(pend)
    fill += [f"v_accvgpr_write_b32 a{i}, 0" for i in range(fa(7, 0), fa(7, 0) + 8)]
    if not cfg.kve: A("s_barrier")
    stamp(1)
    if cfg.slabst:
        A(f"s_memrealtime s[60:61]\ns_waitcnt lgkmcnt(0)\nv_writelane_b32 v57, s60, 11\nv_writelane_b32 v57, s64, 0")
        A(f"s_add_u32 s88, s44, {STAMP_BASE + 0x80000}\ns_addc_u32 s89, s45, 0\ns_mov_b32 s90, 0x100000\ns_mov_b32 s91, 0x20000")
        A("s_lshl_b32 s34, s2, 10\nv_lshlrev_b32 v62, 2, v0")
        A.vmem("buffer_store_dword v57, v62, s[88:91], s34 offen", "ST")
        A("s_nop 3")
    A("s_load_dwordx4 s[48:51], s[0:1], 80")
    A("s_lshl_b32 s41, s40, 2\ns_add_u32 s42, s41, s23\ns_add_u32 s41, s41, s28")
    A(f"s_add_u32 s8, s44, {MBOX}\ns_addc_u32 s9, s45, 0\ns_mov_b32 s10, 0x8000\ns_mov_b32 s11, 0x20000")
    A("s_lshl_b32 s99, s41, 8\ns_lshl_b32 s100, s42, 8\ns_add_u32 s100, s100, 0x4000")
    A("v_mov_b32 v57, 0")
    A.vmem("buffer_load_dword v62, v57, s[8:11], s99 offen sc1", "SNAP")
    A.vmem("buffer_load_dword v63, v57, s[8:11], s100 offen sc1", "SNAP")
    for st in range(cfg.kvq, 2): A.emit(dma_kv(st))
    for z in fill: A(z)
    for k in range(96):
        A(f"v_pk_mul_f32 v[{ACC+2*k}:{ACC+2*k+1}], v[{ACC+2*k}:{ACC+2*k+1}], v[46:47]")
        if k >= 1: A(f"v_cvt_pk_bf16_f32 v{ACC+k-1}, v{ACC+2*k-2}, v{ACC+2*k-1}")
    A(f"v_cvt_pk_bf16_f32 v{ACC+95}, v{ACC+190}, v{ACC+191}")
    def qf(T, c): return ACC + 16 * T + 4 * c
    A("s_waitcnt lgkmcnt(0)")
    if cfg.tlb:
        A.vmem("buffer_load_dword v56, v57, s[16:19], 0 offen sc1", "TLB")
        A(f"s_lshl_b32 s34, s42, 18\ns_add_u32 s34, s34, {PBASE + 15360}")
        A("s_add_u32 s4, s44, s34\ns_addc_u32 s5, s45, 0\ns_movk_i32 s6, 0x100\ns_mov_b32 s7, 0x20000")
        A.vmem("buffer_load_dword v56, v57, s[4:7], 0 offen sc1", "TLB")
        A("s_mul_i32 s34, s27, 491520\ns_and_b32 s35, s28, 1\ns_mul_i32 s35, s35, 245760\ns_add_u32 s34, s34, s35\ns_mul_i32 s35, s20, 61440\ns_add_u32 s34, s34, s35")
        A("s_add_u32 s4, s48, s34\ns_addc_u32 s5, s49, 0")
        A.vmem("buffer_load_dword v56, v57, s[4:7], 0 offen sc1", "TLB")
        A("s_mov_b32 s4, s50\ns_mov_b32 s5, s51")
        A.vmem("buffer_load_dword v56, v57, s[4:7], 0 offen sc1", "TLB")

    S = [160, 176]; P = [192, 200]; NEGM = 208; L = 232; ONES = 48
    KF = 192; VF = 224
    def O(T, dt): return 32 * T + 4 * dt
    def k_read(st, kt, c): return f"ds_read_b128 {ar(KF + 16*kt + 4*c)}, v{20+c} offset:{st*16384 + kt*4096}"
    def v_read(st, dt, e): return f"ds_read_b64_tr_b16 {ar(VF + 4*dt + 2*e, 2)}, v{24+dt} offset:{st*16384 + e*4096}"
    def qk_mfmas(t, par):
        r = []
        for Tl in range(2):
            T = 2*t + Tl
            for kt in range(2):
                d = vr(S[par] + 8*Tl + 4*kt)
                for c in range(4):
                    r.append(mf(d, ar(KF + 16*kt + 4*c), vr(qf(T, c)), vr(NEGM + 4*T) if c == 0 else d))
        return r
    def pv_mfmas(t, par):
        r = []
        if cfg.pvord:
            for dt in range(8):
                for Tl in range(2):
                    T = 2*t + Tl
                    r.append(mf(ar(O(T, dt)), ar(VF + 4*dt), vr(P[par] + 4*Tl), ar(O(T, dt))))
            for Tl in range(2):
                T = 2*t + Tl
                r.append(mf(vr(L + 4*T), vr(ONES), vr(P[par] + 4*Tl), vr(L + 4*T)))
            return r
        for Tl in range(2):
            T = 2*t + Tl
            for dt in range(8):
                r.append(mf(ar(O(T, dt)), ar(VF + 4*dt), vr(P[par] + 4*Tl), ar(O(T, dt))))
            r.append(mf(vr(L + 4*T), vr(ONES), vr(P[par] + 4*Tl), vr(L + 4*T)))
        return r
    def EX(par, e): return f"v_exp_f32 v{S[par]+e}, v{S[par]+e}" if not cfg.xp & 1 else "s_nop 1"
    def CV(par, k): return f"v_cvt_pk_bf16_f32 v{P[par]+k}, v{S[par]+2*k}, v{S[par]+2*k+1}" if not cfg.xp & 2 else f"v_mov_b32 v{P[par]+k}, 0x3f803f80"
    A(f"s_waitcnt vmcnt({A.vm_after(['KV0'])})")
    A("s_barrier")
    for c in range(4): A(f"ds_read_b128 {vr(S[1] + 4*c)}, v45 offset:{64*c}")
    for kt in range(2):
        for c in range(4): A(k_read(0, kt, c))
    for k in range(24): A(f"v_mov_b32 v{L+k}, 0")
    A("s_waitcnt lgkmcnt(8)")
    for k in range(16): A(f"v_xor_b32 v{S[1]+k}, 0x80008000, v{S[1]+k}")
    A("s_nop 1")
    if cfg.kve: kv2 = []; kv3 = []
    else: kv2 = dma_kv(2, min(8, qend - 16)); kv3 = dma_kv(3, max(0, qend - 24))
    gam = "v14"
    misc = ["v_and_b32 v14, 1, v4", "v_xor_b32 v15, 1, v14",
            "v_lshrrev_b32 v34, 2, v3", "v_lshl_add_u32 v34, v4, 2, v34", "v_mul_u32_u24 v34, 320, v34",
            "v_and_b32 v35, 3, v3", "v_lshl_add_u32 v34, v35, 3, v34", "v_add_u32 v34, s46, v34",
            "v_lshl_add_u32 v36, v14, 5, v34", "v_lshl_add_u32 v37, v15, 5, v34",
            "v_add_u32 v38, 128, v37", "v_add_u32 v39, 192, v36",
            "MASK",
            "v_cndmask_b32 v10, v36, v38, s[32:33]", "v_cndmask_b32 v11, v37, v39, s[32:33]",
            "v_cndmask_b32 v12, v38, v36, s[32:33]", "v_cndmask_b32 v13, v39, v37, s[32:33]",
            "v_mul_u32_u24 v34, 2560, v3", "v_lshl_add_u32 v34, v4, 3, v34",
            "v_lshlrev_b32 v35, 7, v0", "v_add_u32 v36, 0x8000, v35"]
    if cfg.wmode == 1:
        misc = misc[:-2] + ["v_mul_u32_u24 v35, 12, v1", "v_add_u32 v35, v35, v2", "v_lshlrev_b32 v35, 7, v35",
            "v_cmp_gt_u32 vcc, 12, v2", "v_mov_b32 v36, 0x100000", "s_nop 0", "v_cndmask_b32 v35, v36, v35, vcc", "s_mov_b32 s60, 0"]
    def misc_step():
        for _ in range(2):
            if misc:
                m = misc.pop(0)
                if m == "MASK": A("s_cmp_eq_u32 s21, 1\ns_cselect_b64 s[32:33], -1, 0")
                else: A(m)
    for T in range(6):
        for c in range(4):
            d = vr(NEGM + 4*T)
            A(mf(d, vr(S[1] + 4*c), vr(qf(T, c)), "0" if c == 0 else d))
            if kv2 and (isinstance(kv2[0], str) or c % 2 == 0): A.emit([kv2.pop(0)])
            else: misc_step()
    assert not kv2
    A("s_waitcnt lgkmcnt(0)")
    for k, m in enumerate(qk_mfmas(0, 0)):
        A(m)
        if kv3 and (isinstance(kv3[0], str) or k % 2 == 0): A.emit([kv3.pop(0)])
        else: misc_step()
    A.emit(kv3)
    while misc: misc_step()
    A("s_lshl_b32 s34, s26, 3\ns_add_u32 s34, s34, s27\ns_mul_i32 s34, s34, 40960")
    A("s_add_u32 s88, s92, s34\ns_addc_u32 s89, s93, 0\ns_mov_b32 s90, 40960\ns_mov_b32 s91, 0x20000")
    A("s_lshl_b32 s34, s28, 10\ns_lshl_b32 s35, s21, 7\ns_add_u32 s34, s34, s35\ns_lshl_b32 s35, s22, 4\ns_add_u32 s34, s34, s35")
    A("s_mul_i32 s34, s34, 1280\ns_mul_i32 s35, s23, 320\ns_add_u32 s34, s34, s35")
    A("s_add_u32 s92, s92, s34\ns_addc_u32 s93, s93, 0\ns_sub_u32 s94, 5242880, s34\ns_mov_b32 s95, 0x20000")
    if cfg.wmode == 2:
        A(f"buffer_load_dword v39, v35, s[88:91], 0 offen {cfg.wopfl}")
        A(f"buffer_load_dword v39, v36, s[88:91], 0 offen {cfg.wopfl}")
    for e in range(16): A(EX(0, e))
    for k in range(4): A(CV(0, k))
    A("s_mul_i32 s96, s23, 327680")
    A("s_mov_b32 s57, 7\ns_mov_b64 vcc, -1")
    if cfg.wramp: A(f"s_mov_b32 s61, 0x{cfg.wramp[::-1]}")
    if cfg.cpf2:
        tgt = "L_peel" if cfg.cpf2 == 2 else "L_epi"
        A("s_getpc_b64 s[4:5]\nL_pc2:")
        A(f"s_add_u32 s4, s4, {tgt} - L_pc2\ns_addc_u32 s5, s5, 0\ns_mov_b32 s6, L_end - {tgt}\ns_mov_b32 s7, 0x20000")
    if cfg.ssr:
        A(f"s_mul_i32 s61, s2, 0x9E3779B1\ns_lshr_b32 s61, s61, 16\ns_mul_i32 s61, s61, {cfg.ssr}\ns_lshr_b32 s61, s61, 16\ns_add_u32 s61, s61, {cfg.ss0}\ns_bfm_b32 s61, s61, 0")
    stamp(1)
    def w2_dma(c, sreg, tag, coff=1):
        r = []
        for n in range(5):
            if n == 0: r += [f"s_add_u32 m0, s54, {c*16384}", f"s_add_u32 s55, {sreg}, {c*40960*coff}"]
            if n == 4: r += [f"s_add_u32 m0, s54, {c*16384 + 4096}", "s_nop 0"]
            r.append((f"buffer_load_dwordx4 v{5+n}, s[92:95], s55 offen offset:{(n & 3)*1024} {cfg.wold} lds", tag))
        return r
    N = cfg.lag
    rq = []
    for q in range(8*29 + cfg.lag + NST, 256):
        if q % 4 == 0:
            rq += [f"s_add_u32 m0, s54, {((q >> 3) % 4)*16384 + (q & 4)*1024}", "s_and_b32 s55, s30, 0x3ffff",
                   "s_add_u32 s30, s30, s101" if q & 4 else "s_add_u32 s30, s30, 4096"]
        rq.append((f"buffer_load_dwordx4 v{16 + (q & 3)}, s[12:15], s55 offen offset:{(q & 3)*1024} {cfg.kv_flags} lds", f"KV{q >> 3}"))
    wq = [0, 1, 2, 3]
    def body(u, last):
        t, par, j = u % 3, u % 2, u // 3
        t1, par1 = (u + 1) % 3, (u + 1) % 2
        fin = last and u == 11
        kv_here = bool(rq) and cfg.ramp
        ms = qk_mfmas(t1, par1) + pv_mfmas(t, par)
        pre = [[] for _ in range(34)]
        val = [[] for _ in range(34)]
        val[0] = [CV(par, 4), CV(par, 5)]; val[1] = [CV(par, 6), CV(par, 7)]
        for e in range(16): val[16 + e] = [EX(par1, e)]
        val[32] = [CV(par1, 0), CV(par1, 1)]; val[33] = [CV(par1, 2), CV(par1, 3)]
        jj = (28 + j) if last else j
        iv = jj if t == 2 else jj - 1
        def q_of(i): return 8 * (iv + 2) + N + i
        def live(i): return (not last) or q_of(i) < 256
        def dma(i, g):
            q = q_of(i)
            if live(i):
                pre[g].append((f"buffer_load_dwordx4 v{16 + (q & 3)}, s[12:15], s55 offen offset:{(q & 3)*1024} {cfg.kv_flags} lds", f"KV{q >> 3}"))
        stn = (j + 1) % 4
        if t == 1:
            if not last:
                if cfg.ssr:
                    pre[3] += ["s_bitcmp1_b32 s61, 0"]
                    pre[4] += [f"s_cbranch_scc0 L_ss{u}", f"s_waitcnt vmcnt({cfg.ssn})", f"L_ss{u}:"]
                    pre[7] += ["s_lshr_b32 s61, s61, 1"]
                if cfg.ssk: pre[4] += [f"s_cbranch_vccz L_ss{u}", f"s_waitcnt vmcnt({cfg.ssn})", f"L_ss{u}:"]
                pre[5].append(f"s_waitcnt vmcnt({N})")
            elif j < 3: pre[5].append(lambda: A(f"s_waitcnt vmcnt({A.vm_after([f'KV{29+j}'])})"))
            pre[6].append("s_barrier")
            if not (last and j == 3):
                for kt in range(2):
                    for c in range(4): pre[8 + 4*kt + c].append(k_read(stn, kt, c))
                pre[33].append("s_waitcnt lgkmcnt(0)")
        def inc(q): return "s_add_u32 s30, s30, s101" if q & 4 else "s_add_u32 s30, s30, 4096"
        if cfg.win and not (last and cfg.ramp):
            assert N % 4 == 0
            sites = {1: [(-1, 7, 2), (0, 0, 18), (0, 1, 30)], 2: [(0, 2, 8), (0, 3, 20), (0, 4, 31)], 0: [(-1, 5, 11), (-1, 6, 24)]}[t]
            for off, i, g in sites:
                q = 8 * (jj + off + 2) + N + i
                if last and q >= 256: continue
                kv_here = True
                if q % 4 == 0:
                    pre[g - 3].append(f"s_add_u32 m0, s54, {((q >> 3) % 4)*16384 + (q & 4)*1024}")
                    pre[g - 2].append(kmap(q & 4))
                    pre[g + 1].append(inc(q))
                w = int(cfg.wpat[(8 * ((jj + off) % 4) + i) % len(cfg.wpat)])
                if cfg.wramp and not last:
                    cls = {0: 0, 4: 1, 2: 2, 6: 2}.get(i, 3)
                    pre[g - 1].append(f"s_bitcmp1_b32 s61, {cls}\ns_cbranch_scc0 L_w{u}_{i}\ns_waitcnt vmcnt(3)\nL_w{u}_{i}:")
                    if cfg.w5it: pre[g - 1].append(f"s_cbranch_vccz L_v{u}_{i}\ns_waitcnt vmcnt(4)\nL_v{u}_{i}:")
                pre[g - 1].append(f"s_waitcnt vmcnt({w - 1})")
                pre[g].append((f"buffer_load_dwordx4 v{16 + (q & 3)}, s[12:15], s55 offen offset:{(q & 3)*1024} {cfg.kv_flags} lds", f"KV{q >> 3}"))
        if t in (1, 2) and not (last and cfg.ramp) and not cfg.win:
            iv = jj
            g = (0 if N % 4 == 0 else 2) + cfg.dpos
            def put(gg, it):
                if t == 2 and gg >= 0: pre[gg].append(it)
                if t == 1 and gg < 0: pre[34 + gg].append(it)
            for i in range(8):
                q = 8 * (iv + 2) + N + i
                lv = (not last) or q < 256
                if q % 4 == 0:
                    if lv:
                        put(g, f"s_add_u32 m0, s54, {((q >> 3) % 4)*16384 + (q & 4)*1024}")
                        put(g + 1, "s_and_b32 s55, s30, 0x3ffff")
                        put(g + 1, inc(q))
                    g += 2
                if lv: put(g, (f"buffer_load_dwordx4 v{16 + (q & 3)}, s[12:15], s55 offen offset:{(q & 3)*1024} {cfg.kv_flags} lds", f"KV{q >> 3}"))
                g += 1 if i % 3 else 2
            assert g <= 33, g
            iv = jj if t == 2 else jj - 1
        if last and cfg.ramp and rq:
            gl = {0: list(range(10, 15)) + list(range(16, 32)), 1: [2, 3, 4, 7] + list(range(16, 32)), 2: list(range(2, 32))}[t]
            for g in gl:
                if not rq: break
                if isinstance(rq[0], tuple) and g >= 16 and g % 2: continue
                pre[g].append(rq.pop(0))
        if t == 0:
            for dt in range(8):
                pre[2 + dt] += [v_read(j % 4, dt, 0), v_read(j % 4, dt, 1)]
            pre[15].append("s_waitcnt lgkmcnt(0)")
        if last and ((not kv_here and not rq) if cfg.ramp else (not kv_here and u >= 2 + (16 - N) * 3 // 8)) and wq and wq[0] <= iv - 28 and t != 1 and u >= cfg.wlate:
            c = wq.pop(0)
            w = w2_dma(c, "s96", f"W{c}")
            gs = (0, 1, 2, 5, 8, 11, 12, 13, 14) if t == 2 else (0, 1, 10, 11, 12, 13, 16, 17, 18)
            if fin: gs = (16, 17, 18, 20, 22, 24, 25, 26, 27)
            for it, g in zip(w, gs): pre[g].append(it)
        if (cfg.cpf2 == 2 and not last and u == 6) or (cfg.cpf2 == 1 and last and u == 0):
            pre[13].append(("buffer_load_dword v39, v54, s[4:7], 0 offen", "PF"))
        if cfg.wmode == 1 and not last and u == 4:
            pre[7].append((f"buffer_load_dword v39, v35, s[88:91], s60 offen {cfg.wopfl}", "PF"))
            pre[16].append("s_add_u32 s60, s60, 6144")
        if cfg.wmode == 0 and cfg.wopf and last and u == cfg.wopf:
            assert t != 0
            pre[2].append((f"buffer_load_dword v39, v35, s[88:91], 0 offen {cfg.wopfl}", "PF"))
            pre[4].append((f"buffer_load_dword v39, v36, s[88:91], 0 offen {cfg.wopfl}", "PF"))
        if fin:
            for k in range(4, 8): A(CV(par, k))
            A("s_nop 0")
        for g in range(34):
            if fin and g < 16: continue
            A(ms[g])
            x = pre[g]
            if cfg.no_dma: x = [y for y in x if not isinstance(y, tuple)]
            A.emit(x)
            if not fin:
                for y in val[g]: A(y)
    A(".p2align 6")
    A("L_loop:")
    for u in range(12): body(u, False)
    if cfg.stamps & 16:
        A("s_memrealtime s[60:61]\ns_waitcnt lgkmcnt(0)")
        A("s_cmp_lt_u32 s57, 3\ns_cbranch_scc1 L_nosh")
        A("s_mov_b32 s68, s72\ns_mov_b32 s72, s76\ns_mov_b32 s76, s80\ns_mov_b32 s80, s84\ns_mov_b32 s84, s60")
        A("L_nosh:")
        stamp.n = 6
    if cfg.wramp: A("s_lshr_b32 s61, s61, 4")
    if cfg.w5it: A(f"s_cmp_gt_u32 s57, {8 - cfg.w5it}\ns_cselect_b64 vcc, -1, 0")
    if cfg.ssk: A(f"s_cmp_gt_u32 s57, {8 - cfg.ssk}\ns_cselect_b64 vcc, -1, 0")
    A("s_sub_u32 s57, s57, 1\ns_cmp_lg_u32 s57, 0\ns_cbranch_scc1 L_loop")
    A.vm = [f"KV{q >> 3}" for q in range(8*28, 8*29 + N + NST)]
    A("L_peel:")
    stamp(8)
    for u in range(12):
        body(u, True)
        if u in (4, 8): stamp(8)
    for c in wq: A.emit(w2_dma(c, "s96", f"W{c}"))
    stamp()
    A("v_readfirstlane_b32 s56, v62\nv_readfirstlane_b32 s58, v63")
    A("s_nop 5")
    A(f"v_cmp_nge_f32 vcc, s31, v{L}")
    for T in range(1, 6):
        A(f"v_cmp_nge_f32 s[34:35], s31, v{L + 4*T}")
        A("s_or_b64 vcc, vcc, s[34:35]")
    if cfg.force_fb: A("s_branch L_fallback")
    A("s_cbranch_vccnz L_fallback")
    A("L_epi:")
    BB = 40; KEEP = 136; AF = 192; AX = 232
    def bfr(c, T): return BB + 24 * c + 4 * T
    def acc2(nu, T): return vr(KEEP + 24*nu + 4*T) if nu < 5 else ar(24*(nu - 5) + 4*T)
    def b_loads(c, tag):
        return [(f"buffer_load_dwordx4 {vr(bfr(c, T))}, v{32 + T//4}, s[4:7], s{88+c} offen offset:{(T % 4)*1024} {cfg.old}", tag) for T in range(6)]
    def o_store(c, T, tag):
        return (f"buffer_store_dwordx4 {vr(bfr(c, T))}, v{32 + T//4}, s[16:19], s52 offen offset:{(T % 4)*1024} {cfg.ost}", tag)
    def next_tile(c):
        return ["s_add_u32 s53, s62, s97\ns_lshr_b64 s[62:63], s[62:63], 4",
                "s_bfe_u32 s32, s53, 0x20002\ns_and_b32 s33, s53, 3",
                "s_lshl_b32 s34, s32, 3\ns_add_u32 s34, s34, s33",
                "s_mul_i32 s96, s34, 40960\ns_lshl_b32 s32, s32, 4",
                f"s_add_u32 s32, s32, s33\ns_mul_i32 s{88+c}, s32, 6144"]
    def a_reads(c, nu, dst=None):
        n5 = nu % 5
        reg = 10 + 2*(nu // 5) + (n5 & 1)
        d = AF + 4*nu if dst is None else dst
        return [f"ds_read_b64_tr_b16 {ar(d + 2*e, 2)}, v{reg} offset:{c*16384 + e*8192 + 64*(n5 >> 1)}" for e in range(2)]
    A("s_lshl_b32 s34, s40, 5\ns_lshl_b32 s35, s28, 3\ns_add_u32 s34, s34, s35\ns_add_u32 s34, s34, s21\ns_lshl_b32 s34, s34, 1\ns_add_u32 s34, s34, s22\ns_mul_i32 s34, s34, 24576")
    A(f"s_add_u32 s4, s44, s34\ns_addc_u32 s5, s45, 0\ns_mov_b32 s6, {3*98304 + 24576}\ns_mov_b32 s7, 0x20000")
    A(f"s_add_u32 s8, s44, {MBOX}\ns_addc_u32 s9, s45, 0\ns_mov_b32 s10, 0x8000\ns_mov_b32 s11, 0x20000")
    A("s_mov_b32 s36, s50\ns_mov_b32 s37, s51\ns_movk_i32 s38, 0x100\ns_mov_b32 s39, 0x20000")
    A("s_lshl_b32 s41, s41, 2\ns_lshl_b32 s97, s23, 2")
    tiles = [4*(1 + p) + c for c in range(4) for p in range(3)]
    tbl = sum(t << (4*i) for i, t in enumerate(tiles))
    A(f"s_mov_b32 s62, 0x{tbl & 0xffffffff:x}\ns_mov_b32 s63, 0x{tbl >> 32:x}\ns_mov_b32 s98, 0")
    A("v_mov_b32 v14, 0\nv_mov_b32 v15, 1\nv_mov_b32 v18, 0x100\nv_mov_b32 v22, 0x10000\nv_mov_b32 v23, 16\nv_mov_b32 v24, 0x100000")
    npoll = [0]
    def signal(vm, vd, mreg, sreg, wave=1):
        k = npoll[0]; npoll[0] += 1
        A(f"s_cmp_lg_u32 s20, {wave}\ns_cbranch_scc1 L_sg{k}")
        A("s_mov_b64 exec, 1")
        A(f"buffer_atomic_add {vm}, v14, s[8:11], {mreg} offen")
        A(f"buffer_atomic_add {vd}, v14, s[36:39], {sreg} offen")
        A("s_mov_b64 exec, -1")
        A(f"L_sg{k}:")
    def poll(mreg, snap, mfield, sreg, field, wave=0):
        k = npoll[0]; npoll[0] += 1
        if wave is not None: A(f"s_cmp_lg_u32 s20, {wave}\ns_cbranch_scc1 L_pd{k}")
        A(f"s_bfe_u32 s34, s98, {mfield}\ns_cmp_eq_u32 s34, 4\ns_cbranch_scc1 L_pd{k}")
        A("s_mov_b32 s61, 0x40000")
        A(f"L_pl{k}:")
        A(f"buffer_load_dword v19, v14, s[8:11], {mreg} offen sc1")
        A("s_waitcnt vmcnt(0)")
        A("v_readfirstlane_b32 s98, v19")
        A("s_sub_u32 s61, s61, 1")
        A(f"s_sub_u32 s98, s98, {snap}")
        A(f"s_bfe_u32 s34, s98, {mfield}\ns_cmp_eq_u32 s34, 4\ns_cbranch_scc1 L_pd{k}")
        if cfg.stamps: A("s_add_u32 s59, s59, 1")
        A(f"s_sleep {cfg.psleep}")
        A(f"s_and_b32 s34, s61, {cfg.rescue - 1}\ns_cbranch_scc1 L_pl{k}")
        A(f"buffer_load_dword v19, v14, s[36:39], {sreg} offen sc1")
        A("s_waitcnt vmcnt(0)")
        A("v_readfirstlane_b32 s34, v19")
        A(f"s_cmp_eq_u32 s61, 0\ns_cbranch_scc1 L_pd{k}")
        A(f"s_bfe_u32 s34, s34, {field}")
        A(f"s_cmp_lt_u32 s34, 4\ns_cbranch_scc1 L_pl{k}")
        A(f"L_pd{k}:")
    for T in range(6): A(f"v_rcp_f32 v{L + 4*T}, v{L + 4*T}")
    for T in range(6): A(f"v_mov_b32 v{L + 4*T + 1}, v{L + 4*T}")
    q = 0
    NA = 1
    for c in range(4):
        if c < NA: A(f"s_movk_i32 s52, {c*6144}")
        for T in range(6):
            tb = KEEP + 8 * (q % 2); ob = bfr(c, T); q += 1
            for k in range(8): A(f"v_accvgpr_read_b32 v{tb+k}, a{O(T, 2*c) + k}")
            for k in range(4): A(f"v_pk_mul_f32 v[{tb+2*k}:{tb+2*k+1}], v[{tb+2*k}:{tb+2*k+1}], v[{L+4*T}:{L+4*T+1}]")
            for k in range(4): A(f"v_cvt_pk_bf16_f32 v{ob+k}, v{tb+2*k}, v{tb+2*k+1}")
            if c < NA:
                if cfg.swin: A(f"s_waitcnt vmcnt({cfg.swin - 1})")
                A.vmem(*o_store(c, T, "OA"))
        if c == cfg.ebar:
            A(f"s_waitcnt vmcnt({A.vm_after(['W0'] + (['OA'] if cfg.sigstep < 0 else []))})")
            A("s_barrier")
            if cfg.sigstep < 0: signal("v15", "v15", "s99", "s41")
            for nu in range(10): A.emit(a_reads(0, nu))
    stamp(101)
    def place(pre, seq, lo=7, hi=58):
        free = [g for g in range(lo, hi) if not pre[g]]
        nv = sum(isinstance(x, tuple) for x in seq)
        sp = max(1, (len(free) - (len(seq) - nv)) // max(nv, 1))
        k = 0
        for it in seq:
            pre[free[k]].append(it)
            k += sp if isinstance(it, tuple) else 1
    GR = [5, 0, 6, 1, 7, 2, 8, 3, 9, 4]
    def ax(pos, c): return AX + 8*(pos % 2) + 4*(c - 2)
    def ax_reads(pos): return a_reads(2, GR[pos], ax(pos, 2)) + a_reads(3, GR[pos], ax(pos, 3))
    BX = 120
    def bx(c, T): return ar(BX + 24*(c - 2) + 4*T)
    def bx_loads(c, tag):
        return [(f"buffer_load_dwordx4 {bx(c, T)}, v{32 + T//4}, s[4:7], s{88+c} offen offset:{(T % 4)*1024} {cfg.old}", tag) for T in range(6)]
    setup = [f"s_lshl_b32 s34, s42, 18\ns_add_u32 s34, s34, {PBASE}",
             "s_add_u32 s12, s44, s34\ns_addc_u32 s13, s45, 0",
             "s_cmp_eq_u32 s20, s28\ns_cselect_b32 s14, 0, 0x40000", "s_mov_b32 s15, 0x20000",
             "s_lshl_b32 s52, s20, 2\ns_add_u32 s52, s52, s28", "s_lshl_b32 s52, s52, 14\ns_lshl_b32 s42, s42, 2",
             "s_xor_b32 s34, s54, 0x10000\nv_add_u32 v16, s54, v32", "v_add_u32 v20, s34, v32\ns_lshl_b32 s34, s20, 13",
             "s_add_u32 s34, s34, 131072\ns_xor_b32 s35, s34, 0x4000", "v_add_u32 v17, s34, v32\nv_add_u32 v21, s35, v32"]
    sched = [int(x) for x in cfg.osched.split(",")]
    assert sum(sched) == 18
    obs = [(c, T) for c in (1, 2, 3) for T in range(6)]
    SIG = {cfg.sigstep: ("OA", "v15"), cfg.sigb: ("O1", "v23"), cfg.sigc: ("O3", "v18")}
    POLL = {2: "0x40000", 5: "0x40004", 8: "0x40008"}
    def step(k):
        c = k % 4; cn = (c + 1) % 4
        pre = [[] for _ in range(60)]
        for nu in range(10):
            pre[6*nu + 5 + (1 if nu == 0 else 0)] += a_reads(cn, nu)
        seq = []
        if 2 <= k < 12: seq += b_loads((c + 2) % 4, f"B{k+2}")
        if k < 12: seq += next_tile(c) + w2_dma(c, "s96", f"W{k+4}", 0)
        if k in (10, 11): seq += bx_loads(c, f"B{k+4}")
        if k == 12: seq += setup
        if k < len(sched) and sched[k]:
            n = sched[k]
            for i in range(n):
                cc, T = obs.pop(0)
                assert k < cc + 2, (k, cc)
                g = 2 + (i * 56) // n
                while pre[g] or pre[g - 1] or g in (4, 5, 6): g += 1
                if T == 0: pre[g - 1].append(f"s_movk_i32 s52, {cc*6144}")
                pre[g].append(o_store(cc, T, f"O{cc}"))
        if cfg.apoll and k + 1 in POLL:
            g = cfg.apg
            while pre[g]: g += 1
            pre[g].append(("buffer_load_dword v19, v14, s[8:11], s99 offen sc1", f"PL{k+1}"))
        need = ([f"PL{k}"] if cfg.apoll and k in POLL else []) + [f"W{k+1}"] + ([SIG[k][0]] if k in SIG else [])
        bar = [lambda: A(f"s_waitcnt vmcnt({A.vm_after(need)}) lgkmcnt(0)")]
        if cfg.apoll and k in POLL: bar.append("v_readfirstlane_b32 s98, v19\ns_nop 0\ns_sub_u32 s98, s98, s56")
        if k in POLL: bar.append(lambda: poll("s99", "s56", POLL[k], "s41", POLL[k]))
        bar.append("s_barrier")
        if k in SIG: bar.append(lambda: signal(SIG[k][1], SIG[k][1], "s99", "s41"))
        pre[4] += bar[:1]; pre[5] += bar[1:]
        if k == 12:
            pre[48].append("s_waitcnt vmcnt(0)"); pre[49].append("s_barrier")
            r0 = ax_reads(0); pre[50] += r0[:2]; pre[51] += r0[2:]
        place(pre, seq, 7, 58 if k < 12 else 46)
        if cfg.swin2 and k < cfg.swk:
            for g in range(1, 60):
                if any(isinstance(x, tuple) for x in pre[g]): pre[g].insert(0, f"s_waitcnt vmcnt({cfg.swin2 - 1})")
        A(f"s_waitcnt vmcnt({A.vm_after([f'B{k}'])}) lgkmcnt(15)" if k >= 4 else "s_waitcnt lgkmcnt(15)")
        for g in range(60):
            nu, T = g // 6, g % 6
            d = acc2(nu, T)
            A(mf(d, ar(AF + 4*nu), vr(bfr(c, T)), "0" if k == 0 else d))
            A.emit(pre[g])
    assert cfg.keep
    for k in range(13):
        step(k)
        if k == 1: stamp(4)
        if k < 4: stamp(64)
        if k == 3: stamp(36)
        if k == 11: stamp(32)
    TMP = bfr(0, 0)
    def x_reads(r): return [f"ds_read_b128 {vr(TMP + 4*T)}, v{20 + r % 2} offset:{T*1024}" for T in range(6)]
    def x_writes(r): return [f"ds_write_b128 v{16 + r % 2}, {ar(24*r + 4*T)} offset:{T*1024}" for T in range(6)]
    def flush(r, pk=False):
        w = []
        for p in range(3):
            ob = KEEP + 24*r + 8*p
            if pk: w += [f"v_pk_add_f32 v[{ob+z}:{ob+z+1}], v[{ob+z}:{ob+z+1}], v[{TMP+8*p+z}:{TMP+8*p+z+1}]" for z in range(0, 8, 2)]
            else: w += [f"v_add_f32 v{ob+z}, v{ob+z}, v{TMP+8*p+z}" for z in range(8)]
            w += [f"v_cvt_pk_bf16_f32 v{ob+z}, v{ob+2*z}, v{ob+2*z+1}" for z in range(4)]
            w.append(("ST", f"buffer_store_dwordx4 {vr(ob)}, v32, s[12:15], s52 offen offset:{p*1024} {cfg.pst}"))
        w.append(("SA", "s_add_u32 s52, s52, 3072"))
        return w
    A("s_waitcnt lgkmcnt(0)")
    for r in range(5):
        pre = [[] for _ in range(36)]
        ra = ax_reads(2*r + 1); pre[0] += ra[:2]; pre[1] += ra[2:]
        if r < 4:
            rb = ax_reads(2*r + 2); pre[18] += rb[:2]; pre[19] += rb[2:]
        for T, w in enumerate(x_writes(r)): pre[cfg.xw0 + T*cfg.xwsp].append(w)
        if r == 4 and cfg.re_ < 4: pre[cfg.epg].append("buffer_load_dword v19, v14, s[8:11], s100 offen sc1")
        work = []
        if r:
            xr = x_reads(r - 1)
            for k in range(3): pre[2 + k] += xr[2*k:2*k+2]
            work = flush(r - 1)
        pre[8].append("s_waitcnt lgkmcnt(0)")
        gaps = [g for g in range(8, 35) if g == 8 or not pre[g]]
        for gi, g in enumerate(gaps):
            left = len(gaps) - gi
            cost = sum(2 if isinstance(x, tuple) and x[0] == "ST" else 0 if isinstance(x, tuple) else 1 for x in work)
            budget = max(2, -(-cost // left)); n = 0
            while work and n < budget:
                it = work[0]
                if isinstance(it, tuple):
                    if it[0] == "ST" and n > 0 and left > 1: break
                    pre[g].append(it[1]); n += 2 if it[0] == "ST" else 0
                else: pre[g].append(it); n += 1
                work.pop(0)
        for it in work: pre[34].append(it[1] if isinstance(it, tuple) else it)
        if r == cfg.re_: pre[35] += ["s_waitcnt vmcnt(3) lgkmcnt(0)", "s_barrier", lambda: signal("v23", "v24", "s100", "s42", 3)]
        else: pre[35] += ["s_waitcnt lgkmcnt(0)", "s_barrier"]
        g = 0
        for pos in (2*r, 2*r + 1):
            nu = GR[pos]
            for T in range(6):
                for c in (1, 2, 3):
                    d = acc2(nu, T)
                    A(mf(d, ar(AF + 4*nu) if c == 1 else ar(ax(pos, c)), vr(bfr(1, T)) if c == 1 else bx(c, T), d))
                    A.emit(pre[g]); g += 1
    stamp()
    A.emit(x_reads(4))
    A("s_waitcnt lgkmcnt(0)")
    for it in flush(4, True): A(it[1] if isinstance(it, tuple) else it)
    if cfg.keep:
        A("s_cmp_lg_u32 s20, s28\ns_cbranch_scc1 L_nokeep")
        for m in range(15): A(f"ds_write_b128 v32, {vr(KEEP + 8*m)} offset:{32768 + m*1024}")
        A("L_nokeep:")
        A("s_mov_b32 s14, 0x40000")
    A("s_mul_i32 s34, s27, 192\ns_and_b32 s35, s28, 1\ns_mul_i32 s35, s35, 96\ns_add_u32 s34, s34, s35\ns_lshl_b32 s35, s20, 5\ns_add_u32 s34, s34, s35\ns_mul_i32 s34, s34, 2560")
    A("s_mul_i32 s35, s25, 1280\ns_add_u32 s34, s34, s35\ns_mul_i32 s35, s23, 320\ns_add_u32 s34, s34, s35\ns_lshr_b32 s35, s28, 1\ns_mul_i32 s35, s35, 160\ns_add_u32 s34, s34, s35")
    A("s_add_u32 s16, s48, s34\ns_addc_u32 s17, s49, 0\ns_sub_u32 s18, 3932160, s34\ns_mov_b32 s19, 0x20000")
    A("s_lshl_b32 s52, s28, 16\ns_lshl_b32 s35, s20, 10\ns_add_u32 s52, s52, s35")
    if cfg.keep:
        for i in range(1, 4): A(f"s_add_u32 s34, s28, {i}\ns_and_b32 s34, s34, 3\ns_lshl_b32 s34, s34, 14\ns_add_u32 s{88+i}, s52, s34")
        A("v_add_u32 v16, s35, v32")
    else:
        for i in range(4): A(f"s_add_u32 s{88+i}, s52, {i*16384}")
    A("v_add_u32 v17, 6144, v32\nv_add_u32 v20, 12288, v32")
    stamp(2)
    A("s_waitcnt vmcnt(0) lgkmcnt(0)")
    A("s_barrier")
    stamp(2)
    A("v_readfirstlane_b32 s98, v19\ns_nop 0\ns_sub_u32 s98, s98, s58" if cfg.re_ < 4 else "s_mov_b32 s98, 0")
    A("s_cmp_lg_u32 s20, 3\ns_cbranch_scc1 L_fw")
    signal("v15", "v22", "s100", "s42", 3)
    poll("s100", "s58", "0x40000", "s42", "0x40010", None)
    A("s_barrier")
    A("s_endpgm")
    A("L_fw:")
    for nu in range(5): A(f"ds_read_b128 {vr(40 + 16*nu)}, v16 offset:{32768 + nu*3072}")
    A("s_mov_b32 s55, 40960")
    A("s_mov_b32 s33, 0xffff0000")
    def fin(nus):
        for nu in nus:
            for src in range(1, 4):
                A(f"buffer_load_dwordx4 {vr(40 + 16*nu + 4*src)}, v{(32, 17, 20)[nu // 2]}, s[12:15], s{88+src} offen offset:{(nu % 2)*3072} {cfg.pld}")
        for i, nu in enumerate(nus):
            A(f"s_waitcnt vmcnt({3*(len(nus) - 1 - i) + 2*i}) lgkmcnt(0)")
            b = 40 + 16*nu; lo = 128
            for k in range(16): A(f"v_lshlrev_b32 v{lo+k}, 16, v{b+k}")
            for k in range(16): A(f"v_and_b32 v{b+k}, s33, v{b+k}")
            for base in (lo, b):
                for z in range(2):
                    A(f"v_pk_add_f32 v[{base+2*z}:{base+2*z+1}], v[{base+2*z}:{base+2*z+1}], v[{base+4+2*z}:{base+5+2*z}]")
                    A(f"v_pk_add_f32 v[{base+8+2*z}:{base+9+2*z}], v[{base+8+2*z}:{base+9+2*z}], v[{base+12+2*z}:{base+13+2*z}]")
            for base in (lo, b):
                for z in range(2):
                    A(f"v_pk_add_f32 v[{base+2*z}:{base+2*z+1}], v[{base+2*z}:{base+2*z+1}], v[{base+8+2*z}:{base+9+2*z}]")
            for z in range(4): A(f"v_cvt_pk_bf16_f32 v{b+4+z}, v{lo+z}, v{b+z}")
            A(f"buffer_store_dwordx2 {vr(b+4, 2)}, v34, s[16:19], 0 offen offset:{nu*32} {cfg.outst}")
            A(f"buffer_store_dwordx2 {vr(b+6, 2)}, v34, s[16:19], s55 offen offset:{nu*32} {cfg.outst}")
    NE = cfg.re_ - 1 if cfg.re_ < 5 else 0
    if NE:
        poll("s100", "s58", "0x40004", "s42", "0x40014", None)
        fin(list(range(NE)))
    A("s_barrier")
    stamp(2)
    fin(list(range(NE, 5)))
    stamp.finish()
    A("L_end:\ns_endpgm")

    A("L_fallback:")
    A("s_waitcnt vmcnt(0) lgkmcnt(0)")
    A("s_mov_b32 s4, s36\ns_mov_b32 s5, s37\ns_mov_b32 s6, 0x40000\ns_mov_b32 s7, 0x20000")
    A("s_mov_b32 s8, s38\ns_mov_b32 s9, s39\ns_mov_b32 s10, 0x40000\ns_mov_b32 s11, 0x20000")
    A("s_lshl_b32 s52, s20, 13\ns_add_u32 s52, s52, 131072")
    A("v_xor_b32 v58, v3, v4")
    A("v_lshlrev_b32 v59, 1, v4\nv_xor_b32 v59, v3, v59")
    A("v_lshlrev_b32 v60, 8, v4")
    for n in range(4):
        A(f"v_xor_b32 v61, {4*n}, v58")
        A(f"v_lshl_add_u32 v{40+n}, v61, 4, v60")
    for n in range(2):
        A(f"v_xor_b32 v61, {8*n}, v59")
        A(f"v_lshl_add_u32 v{44+n}, v61, 4, v60")
    A("s_sub_u32 s34, s52, s46")
    for c in range(4): A(f"v_add_u32 v{20+c}, s34, v{20+c}")
    A("s_sub_u32 s34, s52, s47")
    for dt in range(8): A(f"v_add_u32 v{24+dt}, s34, v{24+dt}")
    for i in range(192): A(f"v_accvgpr_write_b32 a{i}, 0")
    for k in range(24): A(f"v_mov_b32 v{L+k}, 0")
    A("s_mov_b32 s60, 0")
    A("L_fb_loop:")
    for isv in range(2):
        for n in range(8):
            A(f"s_add_u32 m0, s52, {n*1024}")
            A(f"s_add_u32 s55, s60, {n*1024}")
            A(f"buffer_load_dwordx4 v{(44 + (n & 1)) if isv else (40 + (n & 3))}, s[{8 if isv else 4}:{11 if isv else 7}], s55 offen lds")
        A("s_waitcnt vmcnt(0)")
        if isv:
            for dt in range(8):
                for e in range(2): A(v_read(0, dt, e))
        else:
            for kt in range(2):
                for c in range(4): A(k_read(0, kt, c))
        A("s_waitcnt lgkmcnt(0)")
    R0, R1 = 52, 53
    for t in range(3):
        for m in qk_mfmas(t, 0): A(m)
        A("s_nop 7")
        for Tl in range(2):
            T = 2*t + Tl; s0 = S[0] + 8*Tl
            A(f"v_max3_f32 v{R0}, v{s0}, v{s0+1}, v{s0+2}")
            A(f"v_max3_f32 v{R0}, v{R0}, v{s0+3}, v{s0+4}")
            A(f"v_max3_f32 v{R0}, v{R0}, v{s0+5}, v{s0+6}")
            A(f"v_max3_f32 v{R0}, v{R0}, v{s0+7}, 0")
            A(f"v_mov_b32 v{R1}, v{R0}\ns_nop 1\nv_permlane16_swap_b32 v{R0}, v{R1}\nv_max_f32 v{R0}, v{R0}, v{R1}")
            A(f"v_mov_b32 v{R1}, v{R0}\ns_nop 1\nv_permlane32_swap_b32 v{R0}, v{R1}\nv_max_f32 v{R0}, v{R0}, v{R1}")
            A(f"v_exp_f32 v{R1}, -v{R0}")
            for k in range(8): A(f"v_sub_f32 v{s0+k}, v{s0+k}, v{R0}")
            for k in range(4): A(f"v_sub_f32 v{NEGM+4*T+k}, v{NEGM+4*T+k}, v{R0}")
            for k in range(4): A(f"v_mul_f32 v{L+4*T+k}, v{L+4*T+k}, v{R1}")
            for k in range(0, 32, 4):
                for q in range(4): A(f"v_accvgpr_read_b32 v{54+q}, a{32*T + k + q}")
                for q in range(4): A(f"v_mul_f32 v{54+q}, v{54+q}, v{R1}")
                for q in range(4): A(f"v_accvgpr_write_b32 a{32*T + k + q}, v{54+q}")
        for e in range(16): A(EX(0, e))
        A("s_nop 0")
        for k in range(8): A(CV(0, k))
        A("s_nop 1")
        for m in pv_mfmas(t, 0): A(m)
    A("s_add_u32 s60, s60, 8192\ns_cmp_lt_u32 s60, 0x40000\ns_cbranch_scc1 L_fb_loop")
    A("s_nop 7")
    A("s_branch L_epi")

def gen(cfg):
    A = Asm()
    A("""; Fused kernel (generated by the author's own script): Q projection -> attention -> output projection.
; kernarg: 0 A_x 8 A_k 16 A_v 24 A_wq 32 A_wo 40 B_x 48 B_k 56 B_v 64 B_wq 72 B_wo 80 out 88 debug 96 ws""")
    A("; @launch grid=(256,1,1) block=(256,1,1) lds=163840")
    A('.amdgcn_target "amdgcn-amd-amdhsa--gfx950"\n.text')
    gen_kernel(A, cfg)
    A('.section .rodata,"a"\n.p2align 6')
    A(f".amdhsa_kernel {NAME}_kernel\n  .amdhsa_next_free_vgpr 512\n  .amdhsa_next_free_sgpr 102\n"
      "  .amdhsa_accum_offset 256\n  .amdhsa_group_segment_fixed_size 0\n  .amdhsa_kernarg_size 104\n"
      "  .amdhsa_user_sgpr_count 2\n  .amdhsa_user_sgpr_kernarg_segment_ptr 1\n"
      "  .amdhsa_system_sgpr_workgroup_id_x 1\n.end_amdhsa_kernel")
    return A.text()

if __name__ == "__main__":
    cfg = Cfg()
    for a in sys.argv[2:]:
        k, v = a.split("=")
        old = getattr(cfg, k)
        setattr(cfg, k, type(old)(int(v)) if isinstance(old, (bool, int)) else v.replace('+', ' '))
    open(sys.argv[1], "w").write(gen(cfg))
```

```python
import sys, struct, math
NAME = "concat_heads__mha_block_cached__gqa_block_cached__near_ridge"
def f32bits(x): return struct.unpack("<I", struct.pack("<f", x))[0]

class Cfg:
    stamps = 0
    kv_flags = "sc1 nt"; xld = ''; wqld = ''; pfl = 'nt'
    ost = 'sc1'; old = 'sc1'; wold = ''; pst = 'sc1'; pld = 'sc1'; wopfl = ''; outst = ''
    wopf = 4
    force_fb = False
    thr_log2 = 64
    cpf = 1
    xwpf = 0
    qchain = 1
    qdsp = 3
    rot = 2
    rotd = 16
    wrot = 0
    wsg = 9
    wb0 = 3
    wbn = 4
    acq = 0
    psleep = 2
    rescue = 64
    lag = 8
    qrot = 2
    cpf2 = 0
    ramp = 0
    dpos = -5
    wpat = '5'
    win = 1
    xp = 0
    nearly = 2
    keep = 1
    tlb = 0
    pfb = 1
    kse = 0
    kve = 0
    swin = 0
    swin2 = 0
    swk = 4
    obsteps = 2
    sigb = 3
    sigc = 6
    re_ = 3
    epg = 33
    osched = '3,3,4,4,4'
    obk0 = 2
    pollk = 2
    apoll = 1
    nost = 0
    apg = 20
    ebar = 0
    lt0 = 84
    lt1 = 84
    pa = 2
    sk0 = 0
    xw0 = 20
    xwsp = 2
    p2x = 0
    w5it = 0
    wramp = '777733'
    kvq = 2
    early = 0
    barg = '70,50,30,10'
    slabst = 0
    ssk = 0
    ss0 = 0
    ssr = 0
    ssn = 1
    sparse1 = 1
    pvord = 1
    wlate = 0
    wmode = 3
    stride = 1
    kvpf = 0
    kvpfl = ''
    kvpf0 = 0
    kvpf1 = 7
    pat = 3
    sigstep = 0
    no_dma = False; no_bar = False; q_nodma = False

class Asm:
    def __init__(s): s.l = []; s.vm = []
    def __call__(s, x): s.l.append(x)
    def vmem(s, x, tag): s.l.append(x); s.vm.append(tag)
    def vm_after(s, tags):
        last = -1
        for i, t in enumerate(s.vm):
            if t in tags: last = i
        assert last >= 0, tags
        return min(63, len(s.vm) - 1 - last)
    def emit(s, items):
        for it in items:
            if isinstance(it, tuple): s.vmem(it[0], it[1])
            elif callable(it): it()
            else: s(it)
    def text(s): return "\n".join(s.l) + "\n"

def mf(d, a, b, c): return f"v_mfma_f32_16x16x32_bf16 {d}, {a}, {b}, {c}"
def vr(b, n=4): return f"v[{b}:{b+n-1}]" if n > 1 else f"v{b}"
def ar(b, n=4): return f"a[{b}:{b+n-1}]" if n > 1 else f"a{b}"
STAMP_BASE = 64 << 20
PBASE = 32 << 20
MBOX = 30 << 20

class Stamper:
    def __init__(s, A, cfg): s.A = A; s.cfg = cfg; s.n = 0
    def __call__(s, mode=47):
        if s.cfg.stamps & mode:
            s.A(f"s_memrealtime s[{64+4*s.n}:{65+4*s.n}]\ns_memtime s[{66+4*s.n}:{67+4*s.n}]"); s.n += 1
    def finish(s):
        A = s.A
        if not s.cfg.stamps: return
        A("s_waitcnt vmcnt(0)")
        s(255)
        assert s.n <= 7
        A("s_waitcnt lgkmcnt(0)")
        A(f"s_add_u32 s44, s44, {STAMP_BASE}\ns_addc_u32 s45, s45, 0\ns_mov_b32 s46, 0x100000\ns_mov_b32 s47, 0x20000")
        A("s_lshl_b32 s34, s2, 2\ns_add_u32 s34, s34, s20\ns_lshl_b32 s34, s34, 6")
        A("v_mov_b32 v1, s34")
        A(f"v_mov_b32 v2, {s.n}\nv_mov_b32 v3, s59\nbuffer_store_dwordx2 v[2:3], v1, s[44:47], 0 offen offset:56\ns_nop 1")
        for k in range(s.n):
            A(f"v_mov_b32 v2, s{64+4*k}\nv_mov_b32 v3, s{66+4*k}")
            A(f"buffer_store_dwordx2 v[2:3], v1, s[44:47], 0 offen offset:{8*k}")
            A("s_nop 1")

XBUF = [114688, 139264]
WSLOT = [2, 0, 1]

def gen_kernel(A, cfg):
    K1 = NAME + "_kernel"
    A(f".globl {K1}\n.p2align 8\n.type {K1},@function\n{K1}:")
    A("s_cmp_ge_u32 s2, 256\ns_cbranch_scc1 L_end")
    stamp = Stamper(A, cfg)
    stamp(255)
    A("s_bfe_u32 s25, s2, 0x10002")
    A("s_mul_i32 s28, s25, 40")
    A("s_add_u32 s62, s0, s28\ns_addc_u32 s63, s1, 0")
    A("s_load_dwordx4 s[36:39], s[62:63], 0")
    A("s_load_dwordx4 s[40:43], s[62:63], 16")
    A("s_load_dwordx2 s[44:45], s[0:1], 96")
    A("s_load_dwordx2 s[92:93], s[62:63], 32")
    if cfg.cpf:
        A("s_getpc_b64 s[88:89]")
        A("L_pc:")
        A("s_mov_b32 s90, L_end - L_pc\ns_mov_b32 s91, 0x20000")
        A("v_lshlrev_b32 v54, 7, v0")
        A.vmem("buffer_load_dword v56, v54, s[88:91], 0 offen", "CPF")
    A("s_lshr_b32 s24, s2, 3")
    A("s_and_b32 s28, s2, 3")
    A("s_and_b32 s23, s24, 3")
    A("s_lshl_b32 s26, s28, 2\ns_add_u32 s26, s26, s23")
    A("s_lshr_b32 s27, s24, 2")
    A("v_lshrrev_b32 v1, 6, v0")
    A("v_and_b32 v2, 63, v0")
    A("v_readfirstlane_b32 s20, v1")
    A("v_and_b32 v3, 15, v2\nv_lshrrev_b32 v4, 4, v2")
    A("v_lshrrev_b32 v10, 3, v2\nv_and_b32 v11, 7, v2")
    A("v_xor_b32 v13, v11, v4")
    A("v_mul_u32_u24 v14, 1280, v10")
    A("v_lshl_add_u32 v58, v13, 4, v14")
    A("v_xor_b32 v13, 4, v13")
    A("v_lshl_add_u32 v59, v13, 4, v14")
    A("v_add_u32 v59, 9216, v59")
    A("v_add_u32 v60, 18432, v58\nv_add_u32 v61, 18432, v59")
    A("v_lshlrev_b32 v10, 2, v4\nv_xor_b32 v10, v3, v10")
    A("v_lshlrev_b32 v11, 13, v4")
    A("v_lshl_add_u32 v6, v10, 4, v11")
    for n in range(1, 4): A(f"v_add_u32 v{6+n}, {n*31744}, v6")
    A("s_lshr_b32 s21, s20, 1\ns_and_b32 s22, s20, 1")
    A("s_lshl_b32 s29, s26, 1\ns_add_u32 s29, s29, s21")
    A("s_lshl_b32 s46, s21, 16")
    A("s_mul_i32 s48, s20, 6144")
    A("s_lshl_b32 s54, s22, 13\ns_add_u32 s54, s54, s46")
    A("s_mul_i32 s34, s27, 245760\ns_mul_i32 s49, s20, 61440")
    A("s_lshl_b32 s35, s29, 8\ns_lshl_b32 s53, s22, 18")
    A("s_waitcnt lgkmcnt(0)")
    A("s_add_u32 s4, s36, s34\ns_addc_u32 s5, s37, 0\ns_mov_b32 s6, 245760\ns_mov_b32 s7, 0x20000")
    A("s_add_u32 s8, s42, s35\ns_addc_u32 s9, s43, 0\ns_sub_u32 s10, 5242880, s35\ns_mov_b32 s11, 0x20000")
    if cfg.qrot == 2: A("s_add_u32 s34, s27, s23\ns_and_b32 s34, s34, 1\ns_mul_i32 s34, s34, 5")
    elif cfg.qrot == 3: A("s_add_u32 s34, s27, s23\ns_and_b32 s34, s34, 3\ns_mul_i32 s34, s34, 5\ns_lshr_b32 s34, s34, 1")
    elif cfg.qrot:
        A("s_mul_i32 s34, s27, 5\ns_mul_i32 s35, s23, 10\ns_add_u32 s34, s34, s35\ns_lshr_b32 s34, s34, 2")
        A("s_cmp_ge_u32 s34, 10\ns_cselect_b32 s35, 10, 0\ns_sub_u32 s34, s34, s35")
    else: A("s_mov_b32 s34, 0")
    A("s_lshl_b32 s50, s34, 7\ns_add_u32 s50, s50, s49\ns_add_u32 s96, s49, 1280")
    A("s_lshl_b32 s51, s34, 19\ns_add_u32 s51, s51, s53\ns_add_u32 s97, s53, 5242880")
    def dma_x(xi):
        r = []
        for n in range(6):
            if n % 4 == 0:
                r += [f"s_add_u32 m0, s48, {XBUF[xi % 2] + n*1024}", f"s_add_u32 s55, s50, {n*10240}"]
            r.append((f"buffer_load_dwordx4 v{58 + (n & 3)}, s[4:7], s55 offen offset:{(n & 3)*1024} {cfg.xld} lds", f"X{xi}"))
        r += ["s_add_u32 s50, s50, 128", "s_cmp_eq_u32 s50, s96\ns_cselect_b32 s50, s49, s50"]
        return r
    def dma_w(sg):
        r = []
        for n in range(8):
            if n % 4 == 0:
                r += [f"s_add_u32 m0, s54, {WSLOT[sg % 3]*16384 + n*1024}", f"s_add_u32 s55, s51, {n*4*8192}"]
            r.append((f"buffer_load_dwordx4 v{6 + (n & 3)}, s[8:11], s55 offen offset:{(n & 3)*1024} {cfg.wqld} lds", f"W{sg}"))
        r += ["s_add_u32 s51, s51, 0x80000", "s_cmp_eq_u32 s51, s97\ns_cselect_b32 s51, s53, s51"]
        return r
    def kmap(half):
        e = cfg.kse
        if e == 0: return "s_and_b32 s55, s30, 0x3ffff"
        hi = 0x3ffff & ~((1 << (13 + e)) - 1)
        r = f"s_bfe_u32 s35, s30, 0x{(e << 16) | 13:x}\ns_lshl_b32 s55, s35, 10"
        if hi: r += f"\ns_and_b32 s35, s30, 0x{hi:x}\ns_or_b32 s55, s55, s35"
        if half: r += f"\ns_or_b32 s55, s55, 0x{1 << (12 + e):x}"
        return r
    def dma_kv(step, nmax=8):
        r = []
        for n in range(nmax):
            if n % 4 == 0:
                r += [f"s_add_u32 m0, s54, {(step % 4)*16384 + n*1024}", kmap(n), "s_add_u32 s30, s30, s101" if n else "s_add_u32 s30, s30, 4096"]
            r.append((f"buffer_load_dwordx4 v{16 + (n & 3)}, s[12:15], s55 offen offset:{(n & 3)*1024} {cfg.kv_flags} lds", f"KV{step}"))
        return r
    A.emit(dma_x(0)); A.emit(dma_w(0))
    def xw_pf():
        return [(f"buffer_load_dword v56, v62, s[4:7], s58 offen", "PF"), (f"buffer_load_dword v56, v63, s[84:87], s60 offen", "PF"),
                "s_add_u32 s58, s58, 512", "s_add_u32 s60, s60, 0x200000"]
    if cfg.xwpf:
        assert not cfg.qrot and cfg.wmode != 4
        A("v_min_u32 v62, 47, v2\nv_mul_u32_u24 v62, 1280, v62")
        A("v_lshrrev_b32 v63, 2, v2\nv_min_u32 v63, 7, v63\nv_lshlrev_b32 v63, 16, v63\nv_and_b32 v14, 3, v2\nv_lshl_add_u32 v63, v14, 7, v63")
        A("s_mul_i32 s58, s23, 61440\ns_lshl_b32 s34, s20, 7\ns_add_u32 s58, s58, s34\ns_add_u32 s58, s58, 128")
        A("s_lshl_b32 s60, s20, 6\ns_add_u32 s60, s60, s27\ns_add_u32 s60, s60, 64\ns_lshl_b32 s60, s60, 13")
        A("s_lshl_b32 s34, s21, 8\ns_sub_u32 s84, s8, s34\ns_subb_u32 s85, s9, 0\ns_add_u32 s86, s10, s34\ns_mov_b32 s87, 0x20000")
        A.emit(xw_pf())
    A("s_lshl_b32 s34, s27, 5\ns_add_u32 s34, s34, s29\ns_lshl_b32 s34, s34, 18")
    A("s_add_u32 s36, s38, s34\ns_addc_u32 s37, s39, 0")
    A("s_add_u32 s38, s40, s34\ns_addc_u32 s39, s41, 0")
    A("s_cmp_eq_u32 s22, 1")
    A("s_cselect_b32 s12, s38, s36\ns_cselect_b32 s13, s39, s37")
    A("s_mov_b32 s14, 0x40000\ns_mov_b32 s15, 0x20000")
    A("s_cselect_b64 s[32:33], -1, 0")
    A("v_xor_b32 v11, v3, v4")
    A("v_lshlrev_b32 v10, 1, v4\nv_xor_b32 v10, v3, v10")
    A("v_lshlrev_b32 v12, 8, v4")
    for n in range(4):
        A(f"v_xor_b32 v13, {4*n}, v11")
        A(f"v_xor_b32 v14, {8*(n&1)}, v10")
        A("v_cndmask_b32 v13, v13, v14, s[32:33]")
        A(f"v_lshl_add_u32 v{16+n}, v13, 4, v12")
        if n and cfg.kse: A(f"v_add_u32 v{16+n}, {n * ((1024 << cfg.kse) - 1024)}, v{16+n}")
    A("v_lshlrev_b32 v12, 8, v3\nv_add_u32 v12, s46, v12")
    for c in range(4):
        A(f"v_xor_b32 v13, {4*c}, v11")
        A(f"v_lshl_add_u32 v{20+c}, v13, 4, v12")
    A("v_lshrrev_b32 v10, 2, v3\nv_lshl_add_u32 v11, v4, 2, v10")
    A("v_and_b32 v12, 7, v11")
    A("v_lshlrev_b32 v11, 8, v11")
    A("v_and_b32 v13, 3, v3\nv_lshl_add_u32 v11, v13, 3, v11")
    A("s_add_u32 s47, s46, 8192")
    A("v_add_u32 v11, s47, v11")
    for dt in range(8):
        A(f"v_xor_b32 v14, {dt}, v12")
        A(f"v_lshl_add_u32 v{24+dt}, v14, 5, v11")
    A("v_lshlrev_b32 v32, 4, v2\nv_add_u32 v33, 4096, v32")
    A(f"s_mul_i32 s34, s22, 12288\ns_add_u32 s34, s34, {XBUF[0]}")
    A("v_lshrrev_b32 v11, 1, v3\nv_xor_b32 v11, v4, v11")
    A("v_lshlrev_b32 v12, 7, v3\nv_add_u32 v12, s34, v12")
    for s in range(2):
        A(f"v_xor_b32 v14, {4*s}, v11")
        A(f"v_lshl_add_u32 v{52+s}, v14, 4, v12")
    A("v_lshl_add_u32 v11, v4, 3, v10\nv_lshlrev_b32 v11, 8, v11")
    A("v_lshl_add_u32 v11, v13, 4, v11")
    A("v_add_u32 v11, s46, v11")
    for c in range(4):
        A(f"v_xor_b32 v14, {c}, v10")
        A(f"v_lshl_add_u32 v{40+c}, v14, 6, v11")
    if cfg.kvpf:
        lam = cfg.kvpf; sh = lam.bit_length() - 1
        A(f"v_lshrrev_b32 v55, {sh}, v2\nv_lshlrev_b32 v55, 13, v55\nv_and_b32 v14, {lam-1}, v2\nv_lshl_add_u32 v55, v14, 7, v55")
        npf = lam // 2
        kvpf_list = [[f"s_mov_b32 s50, {k*(64//lam)*8192}", (f"buffer_load_dword v56, v55, s[12:15], s50 offen {cfg.kvpfl}", "PF")] for k in range(npf)]
        nsl = cfg.kvpf1 - cfg.kvpf0 + 1
    if cfg.sparse1:
        A("v_and_b32 v14, 3, v2\nv_cmp_eq_u32 vcc, 0, v14\nv_mov_b32 v14, 0x3f803f80\ns_nop 0")
        for k in range(4): A(f"v_cndmask_b32 v{48+k}, 0, v14, vcc")
    else:
        for k in range(4): A(f"v_mov_b32 v{48+k}, 0x3f803f80")
    A("v_lshl_add_u32 v45, v4, 4, s46")
    cs = f32bits(128 ** -0.5 * math.log2(math.e))
    A(f"v_mov_b32 v46, 0x{cs:08x}\nv_mov_b32 v47, 0x{cs:08x}")
    A(f"s_mov_b32 s31, 0x{f32bits(2.0 ** cfg.thr_log2):08x}")
    A("s_lshl_b32 s40, s25, 3\ns_add_u32 s40, s40, s27")
    A("s_lshl_b32 s34, s40, 5\ns_add_u32 s34, s34, s29\ns_lshl_b32 s34, s34, 1\ns_add_u32 s34, s34, s22\ns_mul_i32 s34, s34, 24576")
    A("s_add_u32 s16, s44, s34\ns_addc_u32 s17, s45, 0\ns_movk_i32 s18, 0x6000\ns_mov_b32 s19, 0x20000")
    A("s_mov_b32 s59, 0")
    if cfg.rot:
        if cfg.rot == 1:
            A("s_lshl_b32 s30, s2, 1\ns_add_u32 s30, s30, s21\ns_mul_i32 s34, s30, 0x9E3779B1\ns_lshr_b32 s30, s34, 27\ns_lshl_b32 s30, s30, 13")
        else:
            A(f"s_add_u32 s30, s2, 1\ns_mul_i32 s34, s30, 0x9E3779B1\ns_lshr_b32 s30, s34, 27\ns_mul_i32 s35, s21, {cfg.rotd}\ns_add_u32 s30, s30, s35\ns_lshl_b32 s30, s30, 13")
        if cfg.stride: A("s_bfe_u32 s101, s34, 0x40017\ns_lshl_b32 s101, s101, 14\ns_add_u32 s101, s101, 4096")
        else: A("s_movk_i32 s101, 0x1000")
    else:
        A("s_mov_b32 s30, 0\ns_movk_i32 s101, 0x1000")
    if cfg.cpf:
        A("s_mov_b32 s34, 0x8000")
        A.vmem("buffer_load_dword v56, v54, s[88:91], s34 offen", "CPF")
    if cfg.wmode in (3, 4):
        A("s_lshl_b32 s34, s26, 3\ns_add_u32 s34, s34, s27\ns_mul_i32 s34, s34, 40960")
        A("s_add_u32 s88, s92, s34\ns_addc_u32 s89, s93, 0\ns_mov_b32 s90, 40960\ns_mov_b32 s91, 0x20000")
        A("v_add_u32 v55, 0x8000, v54")
        if cfg.wmode == 4:
            per = 320 // (4 * cfg.wbn)
            A(f"v_mul_u32_u24 v55, {per}, v1\nv_add_u32 v55, v55, v2\nv_lshlrev_b32 v55, 7, v55\nv_cmp_gt_u32 vcc, {per}, v2\nv_mov_b32 v14, 0x100000\ns_nop 0\nv_cndmask_b32 v55, v14, v55, vcc")
    if not cfg.early: A.emit(dma_x(1)); A.emit(dma_w(1))

    ACC = 64
    def acc(T, dt): return ACC + 32 * T + 4 * dt
    def fa(dt, s): return 80 + 8 * dt + 4 * s
    def fb(p, T, s): return (144 if p == 0 else 192) + 8 * T + 4 * s
    def qa_reads(sg, dt):
        c, e = dt >> 1, dt & 1
        return [f"ds_read_b64_tr_b16 {ar(fa(dt, s) + 2*f, 2)}, v{40+c} offset:{WSLOT[sg % 3]*16384 + s*8192 + f*1024 + 8*e}"
                for s in range(2) for f in range(2)]
    def qb_read(sg, T, s):
        return f"ds_read_b128 {ar(fb(sg % 2, T, s))}, v{52 + s} offset:{(sg % 2)*24576 + T*2048}"
    A(f"s_waitcnt vmcnt({A.vm_after(['X0', 'W0'])})")
    A("s_barrier")
    for T in range(6):
        for s in range(2): A(qb_read(0, T, s))
    for dt in range(8):
        for r in qa_reads(0, dt): A(r)
    fill = [f"v_accvgpr_write_b32 a{i}, 0" for i in range(80)]
    pend = (dma_x(1) + dma_w(1) if cfg.early else []) + dma_w(2)
    NST = (5 if cfg.win else 8)
    qend = 8 + cfg.lag + NST
    PFW = [(f"buffer_load_dword v56, v54, s[88:91], 0 offen {cfg.wopfl}", "KVPF"), (f"buffer_load_dword v56, v55, s[88:91], 0 offen {cfg.wopfl}", "KVPF")]
    BG = [int(x) for x in cfg.barg.split(",")] if cfg.early else [10]
    for sg in range(10):
        last = sg == 9
        slots = [[] for _ in range(96)]
        if not last:
            need = [f"W{sg+1}", f"X{sg+1}"]
            G = BG[min(sg, len(BG) - 1)]
            slots[G] = ["WAIT"]; slots[G + 1] = ["BAR"]
            if G > 11: slots[11] = ["s_waitcnt lgkmcnt(0)"]
            rl = [(11, r) for r in qa_reads(sg + 1, 0)]
            for T in range(6): rl += [(0, qb_read(sg + 1, T, 0)), (0, qb_read(sg + 1, T, 1))]
            for dt in range(1, 8): rl += [(12*dt + 11, r) for r in qa_reads(sg + 1, dt)]
            for g in range(G + 2, 96):
                k = 0
                while rl and rl[0][0] <= g and (k < 2 or g == 95):
                    slots[g].append(rl.pop(0)[1]); k += 1
            assert not rl
        else:
            fill += [f"v_accvgpr_write_b32 a{i}, 0" for i in range(144, 192)]
            for n in range(5):
                fill += [f"v_add_u32 v14, {64*n}, v2", "v_mul_u32_u24 v15, 3277, v14", "v_lshrrev_b32 v15, 16, v15",
                         "v_mul_u32_u24 v34, 20, v15", "v_sub_u32 v14, v14, v34", "v_bfe_u32 v34, v15, 2, 1", "v_lshlrev_b32 v34, 1, v34",
                         "v_xor_b32 v14, v14, v34", "v_mul_u32_u24 v15, 1280, v15", f"v_lshl_add_u32 v{5+n}, v14, 4, v15"]
                if 0 < n < 4: fill.append(f"v_subrev_u32 v{5+n}, {1024*n}, v{5+n}")
        if cfg.slabst:
            A(f"s_memrealtime s[98:99]\ns_waitcnt lgkmcnt(0)\nv_writelane_b32 v57, s98, {sg + 1}")
        A("s_waitcnt lgkmcnt(15)")
        order = [(T, s) for T in range(6) for s in range(2)] if cfg.qchain else [(T, s) for s in range(2) for T in range(6)]
        g = 0
        for dt in range(8):
            for T, s in order:
                d = vr(acc(T, dt))
                A(mf(d, ar(fa(dt, s)), ar(fb(sg % 2, T, s)), "0" if sg == 0 and s == 0 else d))
                used = 0
                for x in slots[g]:
                    if x == "WAIT": A(f"s_waitcnt vmcnt({A.vm_after(need)}) lgkmcnt(0)"); used = 2
                    elif x == "BAR":
                        A("s_barrier"); used = 2
                        if sg + 2 < 10: pend += dma_x(sg + 2)
                        if cfg.kvpf and cfg.kvpf0 <= sg <= cfg.kvpf1:
                            r = sg - cfg.kvpf0
                            for k in range(r * npf // nsl, (r + 1) * npf // nsl): pend += kvpf_list[k]
                        if sg + 3 < 10: pend += dma_w(sg + 3)
                        if cfg.xwpf and sg in (cfg.pfb, cfg.pfb + 3): pend += xw_pf()
                        if cfg.wmode == 4 and cfg.wb0 <= sg < cfg.wb0 + cfg.wbn:
                            pend += [f"s_mov_b32 s60, {(sg - cfg.wb0) * (40960 // cfg.wbn)}", (f"buffer_load_dword v56, v55, s[88:91], s60 offen {cfg.wopfl}", "KVPF")]
                        if cfg.wmode == 3 and sg == cfg.wsg:
                            pend += PFW
                        if sg == (7 if cfg.kvq == 2 else 8) and cfg.kvq: pend += dma_kv(0)
                        if sg == 8 and cfg.kvq == 2: pend += dma_kv(1)
                    else: A(x); used = 2
                if last and g == 11:
                    A("s_waitcnt lgkmcnt(0)")
                    if cfg.kve:
                        A("s_barrier"); used = 2
                        pend += dma_kv(2, min(8, qend - 16)) + dma_kv(3, max(0, qend - 24))
                    if cfg.wmode == 3 and cfg.wsg == 9: pend += PFW
                if last and g % 12 == 11 and g < 95:
                    fill += [f"v_accvgpr_write_b32 a{i}, 0" for i in range(fa(dt, 0), fa(dt, 0) + 8)]
                if not used and pend:
                    if isinstance(pend[0], str): A(pend.pop(0))
                    elif g % (cfg.qdsp if sg >= len(BG) - 1 else 2) == 0:
                        it = pend.pop(0); used = 2
                        if cfg.q_nodma and not it[1].startswith("KV"): A.vm.append(it[1])
                        else: A.vmem(*it)
                if not used:
                    for _ in range(2):
                        if fill: A(fill.pop(0))
                g += 1
    assert not pend, len(pend)
    fill += [f"v_accvgpr_write_b32 a{i}, 0" for i in range(fa(7, 0), fa(7, 0) + 8)]
    if not cfg.kve: A("s_barrier")
    stamp(1)
    if cfg.slabst:
        A(f"s_memrealtime s[60:61]\ns_waitcnt lgkmcnt(0)\nv_writelane_b32 v57, s60, 11\nv_writelane_b32 v57, s64, 0")
        A(f"s_add_u32 s88, s44, {STAMP_BASE + 0x80000}\ns_addc_u32 s89, s45, 0\ns_mov_b32 s90, 0x100000\ns_mov_b32 s91, 0x20000")
        A("s_lshl_b32 s34, s2, 10\nv_lshlrev_b32 v62, 2, v0")
        A.vmem("buffer_store_dword v57, v62, s[88:91], s34 offen", "ST")
        A("s_nop 3")
    A("s_load_dwordx4 s[48:51], s[0:1], 80")
    A("s_lshl_b32 s41, s40, 2\ns_add_u32 s42, s41, s23\ns_add_u32 s41, s41, s28")
    A(f"s_add_u32 s8, s44, {MBOX}\ns_addc_u32 s9, s45, 0\ns_mov_b32 s10, 0x8000\ns_mov_b32 s11, 0x20000")
    A("s_lshl_b32 s99, s41, 8\ns_lshl_b32 s100, s42, 8\ns_add_u32 s100, s100, 0x4000")
    A("v_mov_b32 v57, 0")
    A.vmem("buffer_load_dword v62, v57, s[8:11], s99 offen sc1", "SNAP")
    A.vmem("buffer_load_dword v63, v57, s[8:11], s100 offen sc1", "SNAP")
    for st in range(cfg.kvq, 2): A.emit(dma_kv(st))
    for z in fill: A(z)
    for k in range(96):
        A(f"v_pk_mul_f32 v[{ACC+2*k}:{ACC+2*k+1}], v[{ACC+2*k}:{ACC+2*k+1}], v[46:47]")
        if k >= 1: A(f"v_cvt_pk_bf16_f32 v{ACC+k-1}, v{ACC+2*k-2}, v{ACC+2*k-1}")
    A(f"v_cvt_pk_bf16_f32 v{ACC+95}, v{ACC+190}, v{ACC+191}")
    def qf(T, c): return ACC + 16 * T + 4 * c
    A("s_waitcnt lgkmcnt(0)")
    if cfg.tlb:
        A.vmem("buffer_load_dword v56, v57, s[16:19], 0 offen sc1", "TLB")
        A(f"s_lshl_b32 s34, s42, 18\ns_add_u32 s34, s34, {PBASE + 15360}")
        A("s_add_u32 s4, s44, s34\ns_addc_u32 s5, s45, 0\ns_movk_i32 s6, 0x100\ns_mov_b32 s7, 0x20000")
        A.vmem("buffer_load_dword v56, v57, s[4:7], 0 offen sc1", "TLB")
        A("s_mul_i32 s34, s27, 491520\ns_and_b32 s35, s28, 1\ns_mul_i32 s35, s35, 245760\ns_add_u32 s34, s34, s35\ns_mul_i32 s35, s20, 61440\ns_add_u32 s34, s34, s35")
        A("s_add_u32 s4, s48, s34\ns_addc_u32 s5, s49, 0")
        A.vmem("buffer_load_dword v56, v57, s[4:7], 0 offen sc1", "TLB")
        A("s_mov_b32 s4, s50\ns_mov_b32 s5, s51")
        A.vmem("buffer_load_dword v56, v57, s[4:7], 0 offen sc1", "TLB")

    S = [160, 176]; P = [192, 200]; NEGM = 208; L = 232; ONES = 48
    KF = 192; VF = 224
    def O(T, dt): return 32 * T + 4 * dt
    def k_read(st, kt, c): return f"ds_read_b128 {ar(KF + 16*kt + 4*c)}, v{20+c} offset:{st*16384 + kt*4096}"
    def v_read(st, dt, e): return f"ds_read_b64_tr_b16 {ar(VF + 4*dt + 2*e, 2)}, v{24+dt} offset:{st*16384 + e*4096}"
    def qk_mfmas(t, par):
        r = []
        for Tl in range(2):
            T = 2*t + Tl
            for kt in range(2):
                d = vr(S[par] + 8*Tl + 4*kt)
                for c in range(4):
                    r.append(mf(d, ar(KF + 16*kt + 4*c), vr(qf(T, c)), vr(NEGM + 4*T) if c == 0 else d))
        return r
    def pv_mfmas(t, par):
        r = []
        if cfg.pvord:
            for dt in range(8):
                for Tl in range(2):
                    T = 2*t + Tl
                    r.append(mf(ar(O(T, dt)), ar(VF + 4*dt), vr(P[par] + 4*Tl), ar(O(T, dt))))
            for Tl in range(2):
                T = 2*t + Tl
                r.append(mf(vr(L + 4*T), vr(ONES), vr(P[par] + 4*Tl), vr(L + 4*T)))
            return r
        for Tl in range(2):
            T = 2*t + Tl
            for dt in range(8):
                r.append(mf(ar(O(T, dt)), ar(VF + 4*dt), vr(P[par] + 4*Tl), ar(O(T, dt))))
            r.append(mf(vr(L + 4*T), vr(ONES), vr(P[par] + 4*Tl), vr(L + 4*T)))
        return r
    def EX(par, e): return f"v_exp_f32 v{S[par]+e}, v{S[par]+e}" if not cfg.xp & 1 else "s_nop 1"
    def CV(par, k): return f"v_cvt_pk_bf16_f32 v{P[par]+k}, v{S[par]+2*k}, v{S[par]+2*k+1}" if not cfg.xp & 2 else f"v_mov_b32 v{P[par]+k}, 0x3f803f80"
    A(f"s_waitcnt vmcnt({A.vm_after(['KV0'])})")
    A("s_barrier")
    for c in range(4): A(f"ds_read_b128 {vr(S[1] + 4*c)}, v45 offset:{64*c}")
    for kt in range(2):
        for c in range(4): A(k_read(0, kt, c))
    for k in range(24): A(f"v_mov_b32 v{L+k}, 0")
    A("s_waitcnt lgkmcnt(8)")
    for k in range(16): A(f"v_xor_b32 v{S[1]+k}, 0x80008000, v{S[1]+k}")
    A("s_nop 1")
    if cfg.kve: kv2 = []; kv3 = []
    else: kv2 = dma_kv(2, min(8, qend - 16)); kv3 = dma_kv(3, max(0, qend - 24))
    gam = "v14"
    misc = ["v_and_b32 v14, 1, v4", "v_xor_b32 v15, 1, v14",
            "v_lshrrev_b32 v34, 2, v3", "v_lshl_add_u32 v34, v4, 2, v34", "v_mul_u32_u24 v34, 320, v34",
            "v_and_b32 v35, 3, v3", "v_lshl_add_u32 v34, v35, 3, v34", "v_add_u32 v34, s46, v34",
            "v_lshl_add_u32 v36, v14, 5, v34", "v_lshl_add_u32 v37, v15, 5, v34",
            "v_add_u32 v38, 128, v37", "v_add_u32 v39, 192, v36",
            "MASK",
            "v_cndmask_b32 v10, v36, v38, s[32:33]", "v_cndmask_b32 v11, v37, v39, s[32:33]",
            "v_cndmask_b32 v12, v38, v36, s[32:33]", "v_cndmask_b32 v13, v39, v37, s[32:33]",
            "v_mul_u32_u24 v34, 2560, v3", "v_lshl_add_u32 v34, v4, 3, v34",
            "v_lshlrev_b32 v35, 7, v0", "v_add_u32 v36, 0x8000, v35"]
    if cfg.wmode == 1:
        misc = misc[:-2] + ["v_mul_u32_u24 v35, 12, v1", "v_add_u32 v35, v35, v2", "v_lshlrev_b32 v35, 7, v35",
            "v_cmp_gt_u32 vcc, 12, v2", "v_mov_b32 v36, 0x100000", "s_nop 0", "v_cndmask_b32 v35, v36, v35, vcc", "s_mov_b32 s60, 0"]
    def misc_step():
        for _ in range(2):
            if misc:
                m = misc.pop(0)
                if m == "MASK": A("s_cmp_eq_u32 s21, 1\ns_cselect_b64 s[32:33], -1, 0")
                else: A(m)
    for T in range(6):
        for c in range(4):
            d = vr(NEGM + 4*T)
            A(mf(d, vr(S[1] + 4*c), vr(qf(T, c)), "0" if c == 0 else d))
            if kv2 and (isinstance(kv2[0], str) or c % 2 == 0): A.emit([kv2.pop(0)])
            else: misc_step()
    assert not kv2
    A("s_waitcnt lgkmcnt(0)")
    for k, m in enumerate(qk_mfmas(0, 0)):
        A(m)
        if kv3 and (isinstance(kv3[0], str) or k % 2 == 0): A.emit([kv3.pop(0)])
        else: misc_step()
    A.emit(kv3)
    while misc: misc_step()
    A("s_lshl_b32 s34, s26, 3\ns_add_u32 s34, s34, s27\ns_mul_i32 s34, s34, 40960")
    A("s_add_u32 s88, s92, s34\ns_addc_u32 s89, s93, 0\ns_mov_b32 s90, 40960\ns_mov_b32 s91, 0x20000")
    A("s_lshl_b32 s34, s28, 10\ns_lshl_b32 s35, s21, 7\ns_add_u32 s34, s34, s35\ns_lshl_b32 s35, s22, 4\ns_add_u32 s34, s34, s35")
    A("s_mul_i32 s34, s34, 1280\ns_mul_i32 s35, s23, 320\ns_add_u32 s34, s34, s35")
    A("s_add_u32 s92, s92, s34\ns_addc_u32 s93, s93, 0\ns_sub_u32 s94, 5242880, s34\ns_mov_b32 s95, 0x20000")
    if cfg.wmode == 2:
        A(f"buffer_load_dword v39, v35, s[88:91], 0 offen {cfg.wopfl}")
        A(f"buffer_load_dword v39, v36, s[88:91], 0 offen {cfg.wopfl}")
    for e in range(16): A(EX(0, e))
    for k in range(4): A(CV(0, k))
    A("s_mul_i32 s96, s23, 327680")
    A("s_mov_b32 s57, 7\ns_mov_b64 vcc, -1")
    if cfg.wramp: A(f"s_mov_b32 s61, 0x{cfg.wramp[::-1]}")
    if cfg.cpf2:
        tgt = "L_peel" if cfg.cpf2 == 2 else "L_epi"
        A("s_getpc_b64 s[4:5]\nL_pc2:")
        A(f"s_add_u32 s4, s4, {tgt} - L_pc2\ns_addc_u32 s5, s5, 0\ns_mov_b32 s6, L_end - {tgt}\ns_mov_b32 s7, 0x20000")
    if cfg.ssr:
        A(f"s_mul_i32 s61, s2, 0x9E3779B1\ns_lshr_b32 s61, s61, 16\ns_mul_i32 s61, s61, {cfg.ssr}\ns_lshr_b32 s61, s61, 16\ns_add_u32 s61, s61, {cfg.ss0}\ns_bfm_b32 s61, s61, 0")
    stamp(1)
    def w2_dma(c, sreg, tag, coff=1):
        r = []
        for n in range(5):
            if n == 0: r += [f"s_add_u32 m0, s54, {c*16384}", f"s_add_u32 s55, {sreg}, {c*40960*coff}"]
            if n == 4: r += [f"s_add_u32 m0, s54, {c*16384 + 4096}", "s_nop 0"]
            r.append((f"buffer_load_dwordx4 v{5+n}, s[92:95], s55 offen offset:{(n & 3)*1024} {cfg.wold} lds", tag))
        return r
    N = cfg.lag
    rq = []
    for q in range(8*29 + cfg.lag + NST, 256):
        if q % 4 == 0:
            rq += [f"s_add_u32 m0, s54, {((q >> 3) % 4)*16384 + (q & 4)*1024}", "s_and_b32 s55, s30, 0x3ffff",
                   "s_add_u32 s30, s30, s101" if q & 4 else "s_add_u32 s30, s30, 4096"]
        rq.append((f"buffer_load_dwordx4 v{16 + (q & 3)}, s[12:15], s55 offen offset:{(q & 3)*1024} {cfg.kv_flags} lds", f"KV{q >> 3}"))
    wq = [0, 1, 2, 3]
    def body(u, last):
        t, par, j = u % 3, u % 2, u // 3
        t1, par1 = (u + 1) % 3, (u + 1) % 2
        fin = last and u == 11
        kv_here = bool(rq) and cfg.ramp
        ms = qk_mfmas(t1, par1) + pv_mfmas(t, par)
        pre = [[] for _ in range(34)]
        val = [[] for _ in range(34)]
        val[0] = [CV(par, 4), CV(par, 5)]; val[1] = [CV(par, 6), CV(par, 7)]
        for e in range(16): val[16 + e] = [EX(par1, e)]
        val[32] = [CV(par1, 0), CV(par1, 1)]; val[33] = [CV(par1, 2), CV(par1, 3)]
        jj = (28 + j) if last else j
        iv = jj if t == 2 else jj - 1
        def q_of(i): return 8 * (iv + 2) + N + i
        def live(i): return (not last) or q_of(i) < 256
        def dma(i, g):
            q = q_of(i)
            if live(i):
                pre[g].append((f"buffer_load_dwordx4 v{16 + (q & 3)}, s[12:15], s55 offen offset:{(q & 3)*1024} {cfg.kv_flags} lds", f"KV{q >> 3}"))
        stn = (j + 1) % 4
        if t == 1:
            if not last:
                if cfg.ssr:
                    pre[3] += ["s_bitcmp1_b32 s61, 0"]
                    pre[4] += [f"s_cbranch_scc0 L_ss{u}", f"s_waitcnt vmcnt({cfg.ssn})", f"L_ss{u}:"]
                    pre[7] += ["s_lshr_b32 s61, s61, 1"]
                if cfg.ssk: pre[4] += [f"s_cbranch_vccz L_ss{u}", f"s_waitcnt vmcnt({cfg.ssn})", f"L_ss{u}:"]
                pre[5].append(f"s_waitcnt vmcnt({N})")
            elif j < 3: pre[5].append(lambda: A(f"s_waitcnt vmcnt({A.vm_after([f'KV{29+j}'])})"))
            pre[6].append("s_barrier")
            if not (last and j == 3):
                for kt in range(2):
                    for c in range(4): pre[8 + 4*kt + c].append(k_read(stn, kt, c))
                pre[33].append("s_waitcnt lgkmcnt(0)")
        def inc(q): return "s_add_u32 s30, s30, s101" if q & 4 else "s_add_u32 s30, s30, 4096"
        if cfg.win and not (last and cfg.ramp):
            assert N % 4 == 0
            sites = {1: [(-1, 7, 2), (0, 0, 18), (0, 1, 30)], 2: [(0, 2, 8), (0, 3, 20), (0, 4, 31)], 0: [(-1, 5, 11), (-1, 6, 24)]}[t]
            for off, i, g in sites:
                q = 8 * (jj + off + 2) + N + i
                if last and q >= 256: continue
                kv_here = True
                if q % 4 == 0:
                    pre[g - 3].append(f"s_add_u32 m0, s54, {((q >> 3) % 4)*16384 + (q & 4)*1024}")
                    pre[g - 2].append(kmap(q & 4))
                    pre[g + 1].append(inc(q))
                w = int(cfg.wpat[(8 * ((jj + off) % 4) + i) % len(cfg.wpat)])
                if cfg.wramp and not last:
                    cls = {0: 0, 4: 1, 2: 2, 6: 2}.get(i, 3)
                    pre[g - 1].append(f"s_bitcmp1_b32 s61, {cls}\ns_cbranch_scc0 L_w{u}_{i}\ns_waitcnt vmcnt(3)\nL_w{u}_{i}:")
                    if cfg.w5it: pre[g - 1].append(f"s_cbranch_vccz L_v{u}_{i}\ns_waitcnt vmcnt(4)\nL_v{u}_{i}:")
                pre[g - 1].append(f"s_waitcnt vmcnt({w - 1})")
                pre[g].append((f"buffer_load_dwordx4 v{16 + (q & 3)}, s[12:15], s55 offen offset:{(q & 3)*1024} {cfg.kv_flags} lds", f"KV{q >> 3}"))
        if t in (1, 2) and not (last and cfg.ramp) and not cfg.win:
            iv = jj
            g = (0 if N % 4 == 0 else 2) + cfg.dpos
            def put(gg, it):
                if t == 2 and gg >= 0: pre[gg].append(it)
                if t == 1 and gg < 0: pre[34 + gg].append(it)
            for i in range(8):
                q = 8 * (iv + 2) + N + i
                lv = (not last) or q < 256
                if q % 4 == 0:
                    if lv:
                        put(g, f"s_add_u32 m0, s54, {((q >> 3) % 4)*16384 + (q & 4)*1024}")
                        put(g + 1, "s_and_b32 s55, s30, 0x3ffff")
                        put(g + 1, inc(q))
                    g += 2
                if lv: put(g, (f"buffer_load_dwordx4 v{16 + (q & 3)}, s[12:15], s55 offen offset:{(q & 3)*1024} {cfg.kv_flags} lds", f"KV{q >> 3}"))
                g += 1 if i % 3 else 2
            assert g <= 33, g
            iv = jj if t == 2 else jj - 1
        if last and cfg.ramp and rq:
            gl = {0: list(range(10, 15)) + list(range(16, 32)), 1: [2, 3, 4, 7] + list(range(16, 32)), 2: list(range(2, 32))}[t]
            for g in gl:
                if not rq: break
                if isinstance(rq[0], tuple) and g >= 16 and g % 2: continue
                pre[g].append(rq.pop(0))
        if t == 0:
            for dt in range(8):
                pre[2 + dt] += [v_read(j % 4, dt, 0), v_read(j % 4, dt, 1)]
            pre[15].append("s_waitcnt lgkmcnt(0)")
        if last and ((not kv_here and not rq) if cfg.ramp else (not kv_here and u >= 2 + (16 - N) * 3 // 8)) and wq and wq[0] <= iv - 28 and t != 1 and u >= cfg.wlate:
            c = wq.pop(0)
            w = w2_dma(c, "s96", f"W{c}")
            gs = (0, 1, 2, 5, 8, 11, 12, 13, 14) if t == 2 else (0, 1, 10, 11, 12, 13, 16, 17, 18)
            if fin: gs = (16, 17, 18, 20, 22, 24, 25, 26, 27)
            for it, g in zip(w, gs): pre[g].append(it)
        if (cfg.cpf2 == 2 and not last and u == 6) or (cfg.cpf2 == 1 and last and u == 0):
            pre[13].append(("buffer_load_dword v39, v54, s[4:7], 0 offen", "PF"))
        if cfg.wmode == 1 and not last and u == 4:
            pre[7].append((f"buffer_load_dword v39, v35, s[88:91], s60 offen {cfg.wopfl}", "PF"))
            pre[16].append("s_add_u32 s60, s60, 6144")
        if cfg.wmode == 0 and cfg.wopf and last and u == cfg.wopf:
            assert t != 0
            pre[2].append((f"buffer_load_dword v39, v35, s[88:91], 0 offen {cfg.wopfl}", "PF"))
            pre[4].append((f"buffer_load_dword v39, v36, s[88:91], 0 offen {cfg.wopfl}", "PF"))
        if fin:
            for k in range(4, 8): A(CV(par, k))
            A("s_nop 0")
        for g in range(34):
            if fin and g < 16: continue
            A(ms[g])
            x = pre[g]
            if cfg.no_dma: x = [y for y in x if not isinstance(y, tuple)]
            A.emit(x)
            if not fin:
                for y in val[g]: A(y)
    A(".p2align 6")
    A("L_loop:")
    for u in range(12): body(u, False)
    if cfg.stamps & 16:
        A("s_memrealtime s[60:61]\ns_waitcnt lgkmcnt(0)")
        A("s_cmp_lt_u32 s57, 3\ns_cbranch_scc1 L_nosh")
        A("s_mov_b32 s68, s72\ns_mov_b32 s72, s76\ns_mov_b32 s76, s80\ns_mov_b32 s80, s84\ns_mov_b32 s84, s60")
        A("L_nosh:")
        stamp.n = 6
    if cfg.wramp: A("s_lshr_b32 s61, s61, 4")
    if cfg.w5it: A(f"s_cmp_gt_u32 s57, {8 - cfg.w5it}\ns_cselect_b64 vcc, -1, 0")
    if cfg.ssk: A(f"s_cmp_gt_u32 s57, {8 - cfg.ssk}\ns_cselect_b64 vcc, -1, 0")
    A("s_sub_u32 s57, s57, 1\ns_cmp_lg_u32 s57, 0\ns_cbranch_scc1 L_loop")
    A.vm = [f"KV{q >> 3}" for q in range(8*28, 8*29 + N + NST)]
    A("L_peel:")
    stamp(8)
    for u in range(12):
        body(u, True)
        if u in (4, 8): stamp(8)
    for c in wq: A.emit(w2_dma(c, "s96", f"W{c}"))
    stamp()
    A("v_readfirstlane_b32 s56, v62\nv_readfirstlane_b32 s58, v63")
    A("s_nop 5")
    A(f"v_cmp_nge_f32 vcc, s31, v{L}")
    for T in range(1, 6):
        A(f"v_cmp_nge_f32 s[34:35], s31, v{L + 4*T}")
        A("s_or_b64 vcc, vcc, s[34:35]")
    if cfg.force_fb: A("s_branch L_fallback")
    A("s_cbranch_vccnz L_fallback")
    A("L_epi:")
    BB = 40; KEEP = 136; AF = 192; AX = 16
    SENT = [32*(i // 4) + 4*(i % 4) for i in range(24)] + [232 + 4*i for i in range(6)]
    RL = 26
    TL = [16, 17, 20, 21, 35, 36, 37, 38]
    def bfr(c, T): return BB + 24 * c + 4 * T
    def acc2(nu, T): return vr(KEEP + 24*nu + 4*T) if nu < 5 else ar(SENT[6*(nu - 5) + T])
    def b_loads(c, tag):
        return [(f"buffer_load_dwordx4 {vr(bfr(c, T))}, v{32 + T//4}, s[4:7], s{88+c} offen offset:{(T % 4)*1024} {cfg.old}", tag) for T in range(6)]
    def o_store(c, T, tag):
        return (f"buffer_store_dwordx4 {vr(bfr(c, T))}, v{32 + T//4}, s[16:19], s52 offen offset:{(T % 4)*1024} {cfg.ost}", tag)
    def next_tile(c):
        return ["s_add_u32 s53, s62, s97\ns_lshr_b64 s[62:63], s[62:63], 4",
                "s_bfe_u32 s32, s53, 0x20002\ns_and_b32 s33, s53, 3",
                "s_lshl_b32 s34, s32, 3\ns_add_u32 s34, s34, s33",
                "s_mul_i32 s96, s34, 40960\ns_lshl_b32 s32, s32, 4",
                f"s_add_u32 s32, s32, s33\ns_mul_i32 s{88+c}, s32, 6144"]
    def a_reads(c, nu, dst=None):
        n5 = nu % 5
        reg = 10 + 2*(nu // 5) + (n5 & 1)
        d = AF + 4*nu if dst is None else dst
        return [f"ds_read_b64_tr_b16 {ar(d + 2*e, 2)}, v{reg} offset:{c*16384 + e*8192 + 64*(n5 >> 1)}" for e in range(2)]
    A("s_lshl_b32 s34, s40, 5\ns_lshl_b32 s35, s28, 3\ns_add_u32 s34, s34, s35\ns_add_u32 s34, s34, s21\ns_lshl_b32 s34, s34, 1\ns_add_u32 s34, s34, s22\ns_mul_i32 s34, s34, 24576")
    A(f"s_add_u32 s4, s44, s34\ns_addc_u32 s5, s45, 0\ns_mov_b32 s6, {3*98304 + 24576}\ns_mov_b32 s7, 0x20000")
    A(f"s_add_u32 s8, s44, {MBOX}\ns_addc_u32 s9, s45, 0\ns_mov_b32 s10, 0x8000\ns_mov_b32 s11, 0x20000")
    A("s_mov_b32 s36, s50\ns_mov_b32 s37, s51\ns_movk_i32 s38, 0x100\ns_mov_b32 s39, 0x20000")
    A("s_lshl_b32 s41, s41, 2\ns_lshl_b32 s97, s23, 2")
    tiles = [4*(1 + p) + c for c in range(4) for p in range(3)]
    tbl = sum(t << (4*i) for i, t in enumerate(tiles))
    A(f"s_mov_b32 s62, 0x{tbl & 0xffffffff:x}\ns_mov_b32 s63, 0x{tbl >> 32:x}\ns_mov_b32 s98, 0")
    A("v_mov_b32 v14, 0\nv_mov_b32 v15, 1\nv_mov_b32 v18, 0x100\nv_mov_b32 v22, 0x10000\nv_mov_b32 v23, 16\nv_mov_b32 v24, 0x100000")
    npoll = [0]
    def signal(vm, vd, mreg, sreg, wave=1):
        k = npoll[0]; npoll[0] += 1
        A(f"s_cmp_lg_u32 s20, {wave}\ns_cbranch_scc1 L_sg{k}")
        A("s_mov_b64 exec, 1")
        A(f"buffer_atomic_add {vm}, v14, s[8:11], {mreg} offen")
        A(f"buffer_atomic_add {vd}, v14, s[36:39], {sreg} offen")
        A("s_mov_b64 exec, -1")
        A(f"L_sg{k}:")
    def poll(mreg, snap, mfield, sreg, field, wave=0):
        k = npoll[0]; npoll[0] += 1
        if wave is not None: A(f"s_cmp_lg_u32 s20, {wave}\ns_cbranch_scc1 L_pd{k}")
        A(f"s_bfe_u32 s34, s98, {mfield}\ns_cmp_eq_u32 s34, 4\ns_cbranch_scc1 L_pd{k}")
        A("s_mov_b32 s61, 0x40000")
        A(f"L_pl{k}:")
        A(f"buffer_load_dword v19, v14, s[8:11], {mreg} offen sc1")
        A("s_waitcnt vmcnt(0)")
        A("v_readfirstlane_b32 s98, v19")
        A("s_sub_u32 s61, s61, 1")
        A(f"s_sub_u32 s98, s98, {snap}")
        A(f"s_bfe_u32 s34, s98, {mfield}\ns_cmp_eq_u32 s34, 4\ns_cbranch_scc1 L_pd{k}")
        if cfg.stamps: A("s_add_u32 s59, s59, 1")
        A(f"s_sleep {cfg.psleep}")
        A(f"s_and_b32 s34, s61, {cfg.rescue - 1}\ns_cbranch_scc1 L_pl{k}")
        A(f"buffer_load_dword v19, v14, s[36:39], {sreg} offen sc1")
        A("s_waitcnt vmcnt(0)")
        A("v_readfirstlane_b32 s34, v19")
        A(f"s_cmp_eq_u32 s61, 0\ns_cbranch_scc1 L_pd{k}")
        A(f"s_bfe_u32 s34, s34, {field}")
        A(f"s_cmp_lt_u32 s34, 4\ns_cbranch_scc1 L_pl{k}")
        A(f"L_pd{k}:")
    for T in range(6): A(f"v_rcp_f32 v{L + 4*T}, v{L + 4*T}")
    for T in range(6): A(f"v_mov_b32 v{L + 4*T + 1}, v{L + 4*T}")
    for T in range(6): A(f"v_mov_b32 v{RL + T}, v{L + 4*T}")
    late = []
    for c in (2, 3):
        for T in range(6):
            ob = bfr(c, T)
            late += [f"v_accvgpr_read_b32 v{TL[k]}, a{O(T, 2*c) + k}" for k in range(8)]
            late += [f"v_mul_f32 v{TL[k]}, v{TL[k]}, v{RL+T}" for k in range(8)]
            late += [f"v_cvt_pk_bf16_f32 v{ob+k}, v{TL[2*k]}, v{TL[2*k+1]}" for k in range(4)]
    q = 0
    NA = 1
    for c in range(2):
        if c < NA: A(f"s_movk_i32 s52, {c*6144}")
        for T in range(6):
            tb = KEEP + 8 * (q % 2); ob = bfr(c, T); q += 1
            for k in range(8): A(f"v_accvgpr_read_b32 v{tb+k}, a{O(T, 2*c) + k}")
            for k in range(4): A(f"v_pk_mul_f32 v[{tb+2*k}:{tb+2*k+1}], v[{tb+2*k}:{tb+2*k+1}], v[{L+4*T}:{L+4*T+1}]")
            for k in range(4): A(f"v_cvt_pk_bf16_f32 v{ob+k}, v{tb+2*k}, v{tb+2*k+1}")
            if c < NA:
                if cfg.swin: A(f"s_waitcnt vmcnt({cfg.swin - 1})")
                A.vmem(*o_store(c, T, "OA"))
        if c == cfg.ebar:
            A(f"s_waitcnt vmcnt({A.vm_after(['W0'] + (['OA'] if cfg.sigstep < 0 else []))})")
            A("s_barrier")
            if cfg.sigstep < 0: signal("v15", "v15", "s99", "s41")
            for nu in range(10): A.emit(a_reads(0, nu))
    stamp(101)
    def place(pre, seq, lo=7, hi=58):
        free = [g for g in range(lo, hi) if not pre[g]]
        nv = sum(isinstance(x, tuple) for x in seq)
        sp = max(1, (len(free) - (len(seq) - nv)) // max(nv, 1))
        k = 0
        for it in seq:
            pre[free[k]].append(it)
            k += sp if isinstance(it, tuple) else 1
    GR = [5, 0, 6, 1, 7, 2, 8, 3, 9, 4]
    def ax(pos, c): return AX + 8*(pos % 2) + 4*(c - 2)
    def ax_reads(pos): return a_reads(2, GR[pos], ax(pos, 2)) + a_reads(3, GR[pos], ax(pos, 3))
    def bx(c, T):
        i = 6*(c - 2) + T
        return ar(48 + 32*(i // 4) + 4*(i % 4))
    def bx_loads(c, tag):
        return [(f"buffer_load_dwordx4 {bx(c, T)}, v{32 + T//4}, s[4:7], s{88+c} offen offset:{(T % 4)*1024} {cfg.old}", tag) for T in range(6)]
    setup = [f"s_lshl_b32 s34, s42, 18\ns_add_u32 s34, s34, {PBASE}",
             "s_add_u32 s12, s44, s34\ns_addc_u32 s13, s45, 0",
             "s_cmp_eq_u32 s20, s28\ns_cselect_b32 s14, 0, 0x40000", "s_mov_b32 s15, 0x20000",
             "s_lshl_b32 s52, s20, 2\ns_add_u32 s52, s52, s28", "s_lshl_b32 s52, s52, 14\ns_lshl_b32 s42, s42, 2",
             "s_xor_b32 s34, s54, 0x10000\nv_add_u32 v16, s54, v32", "v_add_u32 v20, s34, v32\ns_lshl_b32 s34, s20, 13",
             "s_add_u32 s34, s34, 131072\ns_xor_b32 s35, s34, 0x4000", "v_add_u32 v17, s34, v32\nv_add_u32 v21, s35, v32"]
    sched = [int(x) for x in cfg.osched.split(",")]
    assert sum(sched) == 18
    obs = [(c, T) for c in (1, 2, 3) for T in range(6)]
    SIG = {cfg.sigstep: ("OA", "v15"), cfg.sigb: ("O1", "v23"), cfg.sigc: ("O3", "v18")}
    POLL = {cfg.pa: "0x40000", 5: "0x40004", 8: "0x40008"}
    assert cfg.lt0 + cfg.lt1 >= 120 and sched[0] + sched[1] <= 6 and sched[0] + sched[1] + sched[2] <= 12
    def step(k):
        c = k % 4; cn = (c + 1) % 4
        pre = [[] for _ in range(60)]
        for nu in range(10):
            pre[6*nu + 5 + (1 if nu == 0 else 0)] += a_reads(cn, nu)
        seq = []
        if k == cfg.pa == 3: seq += b_loads(0, "B4")
        if cfg.pa <= k < 12: seq += b_loads((c + 2) % 4, f"B{k+2}")
        if k < 12: seq += next_tile(c) + w2_dma(c, "s96", f"W{k+4}", 0)
        if k in (10, 11): seq += bx_loads(c, f"B{k+4}")
        if k == 12: seq += setup
        if k < len(sched) and sched[k]:
            n = sched[k]
            for i in range(n):
                cc, T = obs.pop(0)
                assert k < cc + 2, (k, cc)
                g = 2 + (i * 56) // n
                while pre[g] or pre[g - 1] or g in (4, 5, 6): g += 1
                if T == 0: pre[g - 1].append(f"s_movk_i32 s52, {cc*6144}")
                pre[g].append(o_store(cc, T, f"O{cc}"))
        if cfg.apoll and k + 1 in POLL:
            g = cfg.apg
            while pre[g]: g += 1
            pre[g].append(("buffer_load_dword v19, v14, s[8:11], s99 offen sc1", f"PL{k+1}"))
        need = ([f"PL{k}"] if cfg.apoll and k in POLL else []) + [f"W{k+1}"] + ([SIG[k][0]] if k in SIG else [])
        bar = [lambda: A(f"s_waitcnt vmcnt({A.vm_after(need)}) lgkmcnt(0)")]
        if cfg.apoll and k in POLL: bar.append("v_readfirstlane_b32 s98, v19\ns_nop 0\ns_sub_u32 s98, s98, s56")
        if k in POLL: bar.append(lambda: poll("s99", "s56", POLL[k], "s41", POLL[k]))
        bar.append("s_barrier")
        if k in SIG: bar.append(lambda: signal(SIG[k][1], SIG[k][1], "s99", "s41"))
        pre[4] += bar[:1]; pre[5] += bar[1:]
        if k == 12:
            pre[48].append("s_waitcnt vmcnt(0)"); pre[49].append("s_barrier")
            r0 = ax_reads(0); pre[50] += r0[:2]; pre[51] += r0[2:]
        place(pre, seq, 7, 58 if k < 12 else 46)
        if late:
            take = {0: cfg.lt0, 1: cfg.lt1, 2: len(late)}[k]
            work = late[:take]; del late[:take]
            gaps = [g for g in range(0, 58) if not pre[g] or (len(pre[g]) == 1 and isinstance(pre[g][0], str) and pre[g][0].startswith("s_") and "\n" not in pre[g][0] and g not in (4, 5))]
            for gi, g in enumerate(gaps):
                budget = max(2, -(-len(work) // (len(gaps) - gi)))
                pre[g] += work[:budget]; del work[:budget]
            assert not work
        if cfg.swin2 and k < cfg.swk:
            for g in range(1, 60):
                if any(isinstance(x, tuple) for x in pre[g]): pre[g].insert(0, f"s_waitcnt vmcnt({cfg.swin2 - 1})")
        A(f"s_waitcnt vmcnt({A.vm_after([f'B{k}'])}) lgkmcnt(15)" if k >= 4 else "s_waitcnt lgkmcnt(15)")
        for g in range(60):
            nu, T = g // 6, g % 6
            d = acc2(nu, T)
            A(mf(d, ar(AF + 4*nu), vr(bfr(c, T)), "0" if k == 0 else d))
            A.emit(pre[g])
    assert cfg.keep
    for k in range(13):
        step(k)
        if k == 1: stamp(4)
        if cfg.sk0 <= k < cfg.sk0 + 5 and cfg.sk0 > 0: stamp(128)
        if k < 4: stamp(64)
        if k == 3: stamp(36)
        if k == 11: stamp(32)
    TMP = bfr(0, 0)
    def x_reads(r): return [f"ds_read_b128 {vr(TMP + 4*T)}, v{20 + r % 2} offset:{T*1024}" for T in range(6)]
    def x_writes(r): return [f"ds_write_b128 v{16 + r % 2}, {ar(SENT[6*r + T])} offset:{T*1024}" for T in range(6)]
    def flush(r, pk=False):
        w = []
        for p in range(3):
            ob = KEEP + 24*r + 8*p
            if pk: w += [f"v_pk_add_f32 v[{ob+z}:{ob+z+1}], v[{ob+z}:{ob+z+1}], v[{TMP+8*p+z}:{TMP+8*p+z+1}]" for z in range(0, 8, 2)]
            else: w += [f"v_add_f32 v{ob+z}, v{ob+z}, v{TMP+8*p+z}" for z in range(8)]
            w += [f"v_cvt_pk_bf16_f32 v{ob+z}, v{ob+2*z}, v{ob+2*z+1}" for z in range(4)]
            w.append(("ST", f"buffer_store_dwordx4 {vr(ob)}, v32, s[12:15], s52 offen offset:{p*1024} {cfg.pst}"))
        w.append(("SA", "s_add_u32 s52, s52, 3072"))
        return w
    A("s_waitcnt lgkmcnt(0)")
    for r in range(5):
        pre = [[] for _ in range(36)]
        ra = ax_reads(2*r + 1); pre[0] += ra[:2]; pre[1] += ra[2:]
        if r < 4:
            rb = ax_reads(2*r + 2); pre[18] += rb[:2]; pre[19] += rb[2:]
        for T, w in enumerate(x_writes(r)): pre[cfg.xw0 + T*cfg.xwsp].append(w)
        if r == 4 and cfg.re_ < 4: pre[cfg.epg].append("buffer_load_dword v19, v14, s[8:11], s100 offen sc1")
        work = []
        if r:
            xr = x_reads(r - 1)
            for k in range(3): pre[2 + k] += xr[2*k:2*k+2]
            work = flush(r - 1)
        pre[8].append("s_waitcnt lgkmcnt(0)")
        gaps = [g for g in range(8, 35) if g == 8 or not pre[g]]
        for gi, g in enumerate(gaps):
            left = len(gaps) - gi
            cost = sum(2 if isinstance(x, tuple) and x[0] == "ST" else 0 if isinstance(x, tuple) else 1 for x in work)
            budget = max(2, -(-cost // left)); n = 0
            while work and n < budget:
                it = work[0]
                if isinstance(it, tuple):
                    if it[0] == "ST" and n > 0 and left > 1: break
                    pre[g].append(it[1]); n += 2 if it[0] == "ST" else 0
                else: pre[g].append(it); n += 1
                work.pop(0)
        for it in work: pre[34].append(it[1] if isinstance(it, tuple) else it)
        if r == cfg.re_: pre[35] += ["s_waitcnt vmcnt(3) lgkmcnt(0)", "s_barrier", lambda: signal("v23", "v24", "s100", "s42", 3)]
        else: pre[35] += ["s_waitcnt lgkmcnt(0)", "s_barrier"]
        g = 0
        for pos in (2*r, 2*r + 1):
            nu = GR[pos]
            for T in range(6):
                for c in (1, 2, 3):
                    d = acc2(nu, T)
                    A(mf(d, ar(AF + 4*nu) if c == 1 else ar(ax(pos, c)), vr(bfr(1, T)) if c == 1 else bx(c, T), d))
                    A.emit(pre[g]); g += 1
    stamp()
    A.emit(x_reads(4))
    A("s_waitcnt lgkmcnt(0)")
    for it in flush(4, True): A(it[1] if isinstance(it, tuple) else it)
    if cfg.keep:
        A("s_cmp_lg_u32 s20, s28\ns_cbranch_scc1 L_nokeep")
        for m in range(15): A(f"ds_write_b128 v32, {vr(KEEP + 8*m)} offset:{32768 + m*1024}")
        A("L_nokeep:")
        A("s_mov_b32 s14, 0x40000")
    A("s_mul_i32 s34, s27, 192\ns_and_b32 s35, s28, 1\ns_mul_i32 s35, s35, 96\ns_add_u32 s34, s34, s35\ns_lshl_b32 s35, s20, 5\ns_add_u32 s34, s34, s35\ns_mul_i32 s34, s34, 2560")
    A("s_mul_i32 s35, s25, 1280\ns_add_u32 s34, s34, s35\ns_mul_i32 s35, s23, 320\ns_add_u32 s34, s34, s35\ns_lshr_b32 s35, s28, 1\ns_mul_i32 s35, s35, 160\ns_add_u32 s34, s34, s35")
    A("s_add_u32 s16, s48, s34\ns_addc_u32 s17, s49, 0\ns_sub_u32 s18, 3932160, s34\ns_mov_b32 s19, 0x20000")
    A("s_lshl_b32 s52, s28, 16\ns_lshl_b32 s35, s20, 10\ns_add_u32 s52, s52, s35")
    if cfg.keep:
        for i in range(1, 4): A(f"s_add_u32 s34, s28, {i}\ns_and_b32 s34, s34, 3\ns_lshl_b32 s34, s34, 14\ns_add_u32 s{88+i}, s52, s34")
        A("v_add_u32 v16, s35, v32")
    else:
        for i in range(4): A(f"s_add_u32 s{88+i}, s52, {i*16384}")
    A("v_add_u32 v17, 6144, v32\nv_add_u32 v20, 12288, v32")
    stamp(2)
    A("s_waitcnt vmcnt(0) lgkmcnt(0)")
    A("s_barrier")
    stamp(2)
    A("v_readfirstlane_b32 s98, v19\ns_nop 0\ns_sub_u32 s98, s98, s58" if cfg.re_ < 4 else "s_mov_b32 s98, 0")
    A("s_cmp_lg_u32 s20, 3\ns_cbranch_scc1 L_fw")
    signal("v15", "v22", "s100", "s42", 3)
    poll("s100", "s58", "0x40000", "s42", "0x40010", None)
    A("s_barrier")
    A("s_endpgm")
    A("L_fw:")
    for nu in range(5): A(f"ds_read_b128 {vr(40 + 16*nu)}, v16 offset:{32768 + nu*3072}")
    A("s_mov_b32 s55, 40960")
    A("s_mov_b32 s33, 0xffff0000")
    def fin(nus):
        for nu in nus:
            for src in range(1, 4):
                A(f"buffer_load_dwordx4 {vr(40 + 16*nu + 4*src)}, v{(32, 17, 20)[nu // 2]}, s[12:15], s{88+src} offen offset:{(nu % 2)*3072} {cfg.pld}")
        for i, nu in enumerate(nus):
            A(f"s_waitcnt vmcnt({3*(len(nus) - 1 - i) + 2*i}) lgkmcnt(0)")
            b = 40 + 16*nu; lo = 128
            for k in range(16): A(f"v_lshlrev_b32 v{lo+k}, 16, v{b+k}")
            for k in range(16): A(f"v_and_b32 v{b+k}, s33, v{b+k}")
            for base in (lo, b):
                for z in range(2):
                    A(f"v_pk_add_f32 v[{base+2*z}:{base+2*z+1}], v[{base+2*z}:{base+2*z+1}], v[{base+4+2*z}:{base+5+2*z}]")
                    A(f"v_pk_add_f32 v[{base+8+2*z}:{base+9+2*z}], v[{base+8+2*z}:{base+9+2*z}], v[{base+12+2*z}:{base+13+2*z}]")
            for base in (lo, b):
                for z in range(2):
                    A(f"v_pk_add_f32 v[{base+2*z}:{base+2*z+1}], v[{base+2*z}:{base+2*z+1}], v[{base+8+2*z}:{base+9+2*z}]")
            for z in range(4): A(f"v_cvt_pk_bf16_f32 v{b+4+z}, v{lo+z}, v{b+z}")
            A(f"buffer_store_dwordx2 {vr(b+4, 2)}, v34, s[16:19], 0 offen offset:{nu*32} {cfg.outst}")
            A(f"buffer_store_dwordx2 {vr(b+6, 2)}, v34, s[16:19], s55 offen offset:{nu*32} {cfg.outst}")
    NE = cfg.re_ - 1 if cfg.re_ < 5 else 0
    if NE:
        poll("s100", "s58", "0x40004", "s42", "0x40014", None)
        fin(list(range(NE)))
    A("s_barrier")
    stamp(2)
    fin(list(range(NE, 5)))
    stamp.finish()
    A("L_end:\ns_endpgm")

    A("L_fallback:")
    A("s_waitcnt vmcnt(0) lgkmcnt(0)")
    A("s_mov_b32 s4, s36\ns_mov_b32 s5, s37\ns_mov_b32 s6, 0x40000\ns_mov_b32 s7, 0x20000")
    A("s_mov_b32 s8, s38\ns_mov_b32 s9, s39\ns_mov_b32 s10, 0x40000\ns_mov_b32 s11, 0x20000")
    A("s_lshl_b32 s52, s20, 13\ns_add_u32 s52, s52, 131072")
    A("v_xor_b32 v58, v3, v4")
    A("v_lshlrev_b32 v59, 1, v4\nv_xor_b32 v59, v3, v59")
    A("v_lshlrev_b32 v60, 8, v4")
    for n in range(4):
        A(f"v_xor_b32 v61, {4*n}, v58")
        A(f"v_lshl_add_u32 v{40+n}, v61, 4, v60")
    for n in range(2):
        A(f"v_xor_b32 v61, {8*n}, v59")
        A(f"v_lshl_add_u32 v{44+n}, v61, 4, v60")
    A("s_sub_u32 s34, s52, s46")
    for c in range(4): A(f"v_add_u32 v{20+c}, s34, v{20+c}")
    A("s_sub_u32 s34, s52, s47")
    for dt in range(8): A(f"v_add_u32 v{24+dt}, s34, v{24+dt}")
    for i in range(192): A(f"v_accvgpr_write_b32 a{i}, 0")
    for k in range(24): A(f"v_mov_b32 v{L+k}, 0")
    A("s_mov_b32 s60, 0")
    A("L_fb_loop:")
    for isv in range(2):
        for n in range(8):
            A(f"s_add_u32 m0, s52, {n*1024}")
            A(f"s_add_u32 s55, s60, {n*1024}")
            A(f"buffer_load_dwordx4 v{(44 + (n & 1)) if isv else (40 + (n & 3))}, s[{8 if isv else 4}:{11 if isv else 7}], s55 offen lds")
        A("s_waitcnt vmcnt(0)")
        if isv:
            for dt in range(8):
                for e in range(2): A(v_read(0, dt, e))
        else:
            for kt in range(2):
                for c in range(4): A(k_read(0, kt, c))
        A("s_waitcnt lgkmcnt(0)")
    R0, R1 = 52, 53
    for t in range(3):
        for m in qk_mfmas(t, 0): A(m)
        A("s_nop 7")
        for Tl in range(2):
            T = 2*t + Tl; s0 = S[0] + 8*Tl
            A(f"v_max3_f32 v{R0}, v{s0}, v{s0+1}, v{s0+2}")
            A(f"v_max3_f32 v{R0}, v{R0}, v{s0+3}, v{s0+4}")
            A(f"v_max3_f32 v{R0}, v{R0}, v{s0+5}, v{s0+6}")
            A(f"v_max3_f32 v{R0}, v{R0}, v{s0+7}, 0")
            A(f"v_mov_b32 v{R1}, v{R0}\ns_nop 1\nv_permlane16_swap_b32 v{R0}, v{R1}\nv_max_f32 v{R0}, v{R0}, v{R1}")
            A(f"v_mov_b32 v{R1}, v{R0}\ns_nop 1\nv_permlane32_swap_b32 v{R0}, v{R1}\nv_max_f32 v{R0}, v{R0}, v{R1}")
            A(f"v_exp_f32 v{R1}, -v{R0}")
            for k in range(8): A(f"v_sub_f32 v{s0+k}, v{s0+k}, v{R0}")
            for k in range(4): A(f"v_sub_f32 v{NEGM+4*T+k}, v{NEGM+4*T+k}, v{R0}")
            for k in range(4): A(f"v_mul_f32 v{L+4*T+k}, v{L+4*T+k}, v{R1}")
            for k in range(0, 32, 4):
                for q in range(4): A(f"v_accvgpr_read_b32 v{54+q}, a{32*T + k + q}")
                for q in range(4): A(f"v_mul_f32 v{54+q}, v{54+q}, v{R1}")
                for q in range(4): A(f"v_accvgpr_write_b32 a{32*T + k + q}, v{54+q}")
        for e in range(16): A(EX(0, e))
        A("s_nop 0")
        for k in range(8): A(CV(0, k))
        A("s_nop 1")
        for m in pv_mfmas(t, 0): A(m)
    A("s_add_u32 s60, s60, 8192\ns_cmp_lt_u32 s60, 0x40000\ns_cbranch_scc1 L_fb_loop")
    A("s_nop 7")
    A("s_branch L_epi")

def gen(cfg):
    A = Asm()
    A("""; Fused kernel (generated by the author's own script): Q projection -> attention -> output projection.
; kernarg: 0 A_x 8 A_k 16 A_v 24 A_wq 32 A_wo 40 B_x 48 B_k 56 B_v 64 B_wq 72 B_wo 80 out 88 debug 96 ws""")
    A("; @launch grid=(256,1,1) block=(256,1,1) lds=163840")
    A('.amdgcn_target "amdgcn-amd-amdhsa--gfx950"\n.text')
    gen_kernel(A, cfg)
    A('.section .rodata,"a"\n.p2align 6')
    A(f".amdhsa_kernel {NAME}_kernel\n  .amdhsa_next_free_vgpr 512\n  .amdhsa_next_free_sgpr 102\n"
      "  .amdhsa_accum_offset 256\n  .amdhsa_group_segment_fixed_size 0\n  .amdhsa_kernarg_size 104\n"
      "  .amdhsa_user_sgpr_count 2\n  .amdhsa_user_sgpr_kernarg_segment_ptr 1\n"
      "  .amdhsa_system_sgpr_workgroup_id_x 1\n.end_amdhsa_kernel")
    return A.text()

if __name__ == "__main__":
    cfg = Cfg()
    for a in sys.argv[2:]:
        k, v = a.split("=")
        old = getattr(cfg, k)
        setattr(cfg, k, type(old)(int(v)) if isinstance(old, (bool, int)) else v.replace('+', ' '))
    open(sys.argv[1], "w").write(gen(cfg))
```

```python
import sys, struct, math
NAME = "concat_heads__mha_block_cached__gqa_block_cached__near_ridge"
def f32bits(x): return struct.unpack("<I", struct.pack("<f", x))[0]

class Cfg:
    stamps = 0
    kv_flags = "sc1 nt"; xld = ''; wqld = ''; pfl = 'nt'
    ost = 'sc1'; old = 'sc1'; wold = ''; pst = 'sc1'; pld = 'sc1'; wopfl = ''; outst = ''
    wopf = 4
    force_fb = False
    thr_log2 = 64
    cpf = 1
    xwpf = 0
    qchain = 1
    qdsp = 3
    rot = 2
    rotd = 16
    wrot = 0
    wsg = 9
    wb0 = 3
    wbn = 4
    acq = 0
    psleep = 2
    rescue = 64
    lag = 8
    qrot = 2
    cpf2 = 0
    ramp = 0
    dpos = -5
    wpat = '5'
    win = 1
    xp = 0
    nearly = 2
    keep = 1
    tlb = 0
    pfb = 1
    kse = 0
    kve = 0
    swin = 0
    swin2 = 0
    swk = 4
    obsteps = 2
    sigb = 3
    sigc = 6
    re_ = 3
    epg = 33
    osched = '3,3,4,4,4'
    obk0 = 2
    pollk = 2
    apoll = 1
    nost = 0
    apg = 20
    ebar = 0
    lt0 = 84
    lt1 = 84
    pa = 2
    rx = 0
    sk0 = 0
    xw0 = 9
    xwsp = 4
    p2x = 0
    w5it = 0
    wramp = '777733'
    kvq = 2
    early = 0
    barg = '70,50,30,10'
    slabst = 0
    ssk = 0
    ss0 = 0
    ssr = 0
    ssn = 1
    sparse1 = 1
    pvord = 1
    wlate = 0
    wmode = 3
    stride = 1
    kvpf = 0
    kvpfl = ''
    kvpf0 = 0
    kvpf1 = 7
    pat = 3
    sigstep = 0
    no_dma = False; no_bar = False; q_nodma = False

class Asm:
    def __init__(s): s.l = []; s.vm = []
    def __call__(s, x): s.l.append(x)
    def vmem(s, x, tag): s.l.append(x); s.vm.append(tag)
    def vm_after(s, tags):
        last = -1
        for i, t in enumerate(s.vm):
            if t in tags: last = i
        assert last >= 0, tags
        return min(63, len(s.vm) - 1 - last)
    def emit(s, items):
        for it in items:
            if isinstance(it, tuple): s.vmem(it[0], it[1])
            elif callable(it): it()
            else: s(it)
    def text(s): return "\n".join(s.l) + "\n"

def mf(d, a, b, c): return f"v_mfma_f32_16x16x32_bf16 {d}, {a}, {b}, {c}"
def vr(b, n=4): return f"v[{b}:{b+n-1}]" if n > 1 else f"v{b}"
def ar(b, n=4): return f"a[{b}:{b+n-1}]" if n > 1 else f"a{b}"
STAMP_BASE = 64 << 20
PBASE = 32 << 20
MBOX = 30 << 20

class Stamper:
    def __init__(s, A, cfg): s.A = A; s.cfg = cfg; s.n = 0
    def __call__(s, mode=47):
        if s.cfg.stamps & mode:
            s.A(f"s_memrealtime s[{64+4*s.n}:{65+4*s.n}]\ns_memtime s[{66+4*s.n}:{67+4*s.n}]"); s.n += 1
    def finish(s):
        A = s.A
        if not s.cfg.stamps: return
        A("s_waitcnt vmcnt(0)")
        s(255)
        assert s.n <= 7
        A("s_waitcnt lgkmcnt(0)")
        A(f"s_add_u32 s44, s44, {STAMP_BASE}\ns_addc_u32 s45, s45, 0\ns_mov_b32 s46, 0x100000\ns_mov_b32 s47, 0x20000")
        A("s_lshl_b32 s34, s2, 2\ns_add_u32 s34, s34, s20\ns_lshl_b32 s34, s34, 6")
        A("v_mov_b32 v1, s34")
        A(f"v_mov_b32 v2, {s.n}\nv_mov_b32 v3, s59\nbuffer_store_dwordx2 v[2:3], v1, s[44:47], 0 offen offset:56\ns_nop 1")
        for k in range(s.n):
            A(f"v_mov_b32 v2, s{64+4*k}\nv_mov_b32 v3, s{66+4*k}")
            A(f"buffer_store_dwordx2 v[2:3], v1, s[44:47], 0 offen offset:{8*k}")
            A("s_nop 1")

XBUF = [114688, 139264]
WSLOT = [2, 0, 1]

def gen_kernel(A, cfg):
    K1 = NAME + "_kernel"
    A(f".globl {K1}\n.p2align 8\n.type {K1},@function\n{K1}:")
    A("s_cmp_ge_u32 s2, 256\ns_cbranch_scc1 L_end")
    stamp = Stamper(A, cfg)
    stamp(255)
    A("s_bfe_u32 s25, s2, 0x10002")
    A("s_mul_i32 s28, s25, 40")
    A("s_add_u32 s62, s0, s28\ns_addc_u32 s63, s1, 0")
    A("s_load_dwordx4 s[36:39], s[62:63], 0")
    A("s_load_dwordx4 s[40:43], s[62:63], 16")
    A("s_load_dwordx2 s[44:45], s[0:1], 96")
    A("s_load_dwordx2 s[92:93], s[62:63], 32")
    if cfg.cpf:
        A("s_getpc_b64 s[88:89]")
        A("L_pc:")
        A("s_mov_b32 s90, L_end - L_pc\ns_mov_b32 s91, 0x20000")
        A("v_lshlrev_b32 v54, 7, v0")
        A.vmem("buffer_load_dword v56, v54, s[88:91], 0 offen", "CPF")
    A("s_lshr_b32 s24, s2, 3")
    A("s_and_b32 s28, s2, 3")
    A("s_and_b32 s23, s24, 3")
    A("s_lshl_b32 s26, s28, 2\ns_add_u32 s26, s26, s23")
    A("s_lshr_b32 s27, s24, 2")
    A("v_lshrrev_b32 v1, 6, v0")
    A("v_and_b32 v2, 63, v0")
    A("v_readfirstlane_b32 s20, v1")
    A("v_and_b32 v3, 15, v2\nv_lshrrev_b32 v4, 4, v2")
    A("v_lshrrev_b32 v10, 3, v2\nv_and_b32 v11, 7, v2")
    A("v_xor_b32 v13, v11, v4")
    A("v_mul_u32_u24 v14, 1280, v10")
    A("v_lshl_add_u32 v58, v13, 4, v14")
    A("v_xor_b32 v13, 4, v13")
    A("v_lshl_add_u32 v59, v13, 4, v14")
    A("v_add_u32 v59, 9216, v59")
    A("v_add_u32 v60, 18432, v58\nv_add_u32 v61, 18432, v59")
    A("v_lshlrev_b32 v10, 2, v4\nv_xor_b32 v10, v3, v10")
    A("v_lshlrev_b32 v11, 13, v4")
    A("v_lshl_add_u32 v6, v10, 4, v11")
    for n in range(1, 4): A(f"v_add_u32 v{6+n}, {n*31744}, v6")
    A("s_lshr_b32 s21, s20, 1\ns_and_b32 s22, s20, 1")
    A("s_lshl_b32 s29, s26, 1\ns_add_u32 s29, s29, s21")
    A("s_lshl_b32 s46, s21, 16")
    A("s_mul_i32 s48, s20, 6144")
    A("s_lshl_b32 s54, s22, 13\ns_add_u32 s54, s54, s46")
    A("s_mul_i32 s34, s27, 245760\ns_mul_i32 s49, s20, 61440")
    A("s_lshl_b32 s35, s29, 8\ns_lshl_b32 s53, s22, 18")
    A("s_waitcnt lgkmcnt(0)")
    A("s_add_u32 s4, s36, s34\ns_addc_u32 s5, s37, 0\ns_mov_b32 s6, 245760\ns_mov_b32 s7, 0x20000")
    A("s_add_u32 s8, s42, s35\ns_addc_u32 s9, s43, 0\ns_sub_u32 s10, 5242880, s35\ns_mov_b32 s11, 0x20000")
    if cfg.qrot == 2: A("s_add_u32 s34, s27, s23\ns_and_b32 s34, s34, 1\ns_mul_i32 s34, s34, 5")
    elif cfg.qrot == 3: A("s_add_u32 s34, s27, s23\ns_and_b32 s34, s34, 3\ns_mul_i32 s34, s34, 5\ns_lshr_b32 s34, s34, 1")
    elif cfg.qrot:
        A("s_mul_i32 s34, s27, 5\ns_mul_i32 s35, s23, 10\ns_add_u32 s34, s34, s35\ns_lshr_b32 s34, s34, 2")
        A("s_cmp_ge_u32 s34, 10\ns_cselect_b32 s35, 10, 0\ns_sub_u32 s34, s34, s35")
    else: A("s_mov_b32 s34, 0")
    A("s_lshl_b32 s50, s34, 7\ns_add_u32 s50, s50, s49\ns_add_u32 s96, s49, 1280")
    A("s_lshl_b32 s51, s34, 19\ns_add_u32 s51, s51, s53\ns_add_u32 s97, s53, 5242880")
    def dma_x(xi):
        r = []
        for n in range(6):
            if n % 4 == 0:
                r += [f"s_add_u32 m0, s48, {XBUF[xi % 2] + n*1024}", f"s_add_u32 s55, s50, {n*10240}"]
            r.append((f"buffer_load_dwordx4 v{58 + (n & 3)}, s[4:7], s55 offen offset:{(n & 3)*1024} {cfg.xld} lds", f"X{xi}"))
        r += ["s_add_u32 s50, s50, 128", "s_cmp_eq_u32 s50, s96\ns_cselect_b32 s50, s49, s50"]
        return r
    def dma_w(sg):
        r = []
        for n in range(8):
            if n % 4 == 0:
                r += [f"s_add_u32 m0, s54, {WSLOT[sg % 3]*16384 + n*1024}", f"s_add_u32 s55, s51, {n*4*8192}"]
            r.append((f"buffer_load_dwordx4 v{6 + (n & 3)}, s[8:11], s55 offen offset:{(n & 3)*1024} {cfg.wqld} lds", f"W{sg}"))
        r += ["s_add_u32 s51, s51, 0x80000", "s_cmp_eq_u32 s51, s97\ns_cselect_b32 s51, s53, s51"]
        return r
    def kmap(half):
        e = cfg.kse
        if e == 0: return "s_and_b32 s55, s30, 0x3ffff"
        hi = 0x3ffff & ~((1 << (13 + e)) - 1)
        r = f"s_bfe_u32 s35, s30, 0x{(e << 16) | 13:x}\ns_lshl_b32 s55, s35, 10"
        if hi: r += f"\ns_and_b32 s35, s30, 0x{hi:x}\ns_or_b32 s55, s55, s35"
        if half: r += f"\ns_or_b32 s55, s55, 0x{1 << (12 + e):x}"
        return r
    def dma_kv(step, nmax=8):
        r = []
        for n in range(nmax):
            if n % 4 == 0:
                r += [f"s_add_u32 m0, s54, {(step % 4)*16384 + n*1024}", kmap(n), "s_add_u32 s30, s30, s101" if n else "s_add_u32 s30, s30, 4096"]
            r.append((f"buffer_load_dwordx4 v{16 + (n & 3)}, s[12:15], s55 offen offset:{(n & 3)*1024} {cfg.kv_flags} lds", f"KV{step}"))
        return r
    A.emit(dma_x(0)); A.emit(dma_w(0))
    def xw_pf():
        return [(f"buffer_load_dword v56, v62, s[4:7], s58 offen", "PF"), (f"buffer_load_dword v56, v63, s[84:87], s60 offen", "PF"),
                "s_add_u32 s58, s58, 512", "s_add_u32 s60, s60, 0x200000"]
    if cfg.xwpf:
        assert not cfg.qrot and cfg.wmode != 4
        A("v_min_u32 v62, 47, v2\nv_mul_u32_u24 v62, 1280, v62")
        A("v_lshrrev_b32 v63, 2, v2\nv_min_u32 v63, 7, v63\nv_lshlrev_b32 v63, 16, v63\nv_and_b32 v14, 3, v2\nv_lshl_add_u32 v63, v14, 7, v63")
        A("s_mul_i32 s58, s23, 61440\ns_lshl_b32 s34, s20, 7\ns_add_u32 s58, s58, s34\ns_add_u32 s58, s58, 128")
        A("s_lshl_b32 s60, s20, 6\ns_add_u32 s60, s60, s27\ns_add_u32 s60, s60, 64\ns_lshl_b32 s60, s60, 13")
        A("s_lshl_b32 s34, s21, 8\ns_sub_u32 s84, s8, s34\ns_subb_u32 s85, s9, 0\ns_add_u32 s86, s10, s34\ns_mov_b32 s87, 0x20000")
        A.emit(xw_pf())
    A("s_lshl_b32 s34, s27, 5\ns_add_u32 s34, s34, s29\ns_lshl_b32 s34, s34, 18")
    A("s_add_u32 s36, s38, s34\ns_addc_u32 s37, s39, 0")
    A("s_add_u32 s38, s40, s34\ns_addc_u32 s39, s41, 0")
    A("s_cmp_eq_u32 s22, 1")
    A("s_cselect_b32 s12, s38, s36\ns_cselect_b32 s13, s39, s37")
    A("s_mov_b32 s14, 0x40000\ns_mov_b32 s15, 0x20000")
    A("s_cselect_b64 s[32:33], -1, 0")
    A("v_xor_b32 v11, v3, v4")
    A("v_lshlrev_b32 v10, 1, v4\nv_xor_b32 v10, v3, v10")
    A("v_lshlrev_b32 v12, 8, v4")
    for n in range(4):
        A(f"v_xor_b32 v13, {4*n}, v11")
        A(f"v_xor_b32 v14, {8*(n&1)}, v10")
        A("v_cndmask_b32 v13, v13, v14, s[32:33]")
        A(f"v_lshl_add_u32 v{16+n}, v13, 4, v12")
        if n and cfg.kse: A(f"v_add_u32 v{16+n}, {n * ((1024 << cfg.kse) - 1024)}, v{16+n}")
    A("v_lshlrev_b32 v12, 8, v3\nv_add_u32 v12, s46, v12")
    for c in range(4):
        A(f"v_xor_b32 v13, {4*c}, v11")
        A(f"v_lshl_add_u32 v{20+c}, v13, 4, v12")
    A("v_lshrrev_b32 v10, 2, v3\nv_lshl_add_u32 v11, v4, 2, v10")
    A("v_and_b32 v12, 7, v11")
    A("v_lshlrev_b32 v11, 8, v11")
    A("v_and_b32 v13, 3, v3\nv_lshl_add_u32 v11, v13, 3, v11")
    A("s_add_u32 s47, s46, 8192")
    A("v_add_u32 v11, s47, v11")
    for dt in range(8):
        A(f"v_xor_b32 v14, {dt}, v12")
        A(f"v_lshl_add_u32 v{24+dt}, v14, 5, v11")
    A("v_lshlrev_b32 v32, 4, v2\nv_add_u32 v33, 4096, v32")
    A(f"s_mul_i32 s34, s22, 12288\ns_add_u32 s34, s34, {XBUF[0]}")
    A("v_lshrrev_b32 v11, 1, v3\nv_xor_b32 v11, v4, v11")
    A("v_lshlrev_b32 v12, 7, v3\nv_add_u32 v12, s34, v12")
    for s in range(2):
        A(f"v_xor_b32 v14, {4*s}, v11")
        A(f"v_lshl_add_u32 v{52+s}, v14, 4, v12")
    A("v_lshl_add_u32 v11, v4, 3, v10\nv_lshlrev_b32 v11, 8, v11")
    A("v_lshl_add_u32 v11, v13, 4, v11")
    A("v_add_u32 v11, s46, v11")
    for c in range(4):
        A(f"v_xor_b32 v14, {c}, v10")
        A(f"v_lshl_add_u32 v{40+c}, v14, 6, v11")
    if cfg.kvpf:
        lam = cfg.kvpf; sh = lam.bit_length() - 1
        A(f"v_lshrrev_b32 v55, {sh}, v2\nv_lshlrev_b32 v55, 13, v55\nv_and_b32 v14, {lam-1}, v2\nv_lshl_add_u32 v55, v14, 7, v55")
        npf = lam // 2
        kvpf_list = [[f"s_mov_b32 s50, {k*(64//lam)*8192}", (f"buffer_load_dword v56, v55, s[12:15], s50 offen {cfg.kvpfl}", "PF")] for k in range(npf)]
        nsl = cfg.kvpf1 - cfg.kvpf0 + 1
    if cfg.sparse1:
        A("v_and_b32 v14, 3, v2\nv_cmp_eq_u32 vcc, 0, v14\nv_mov_b32 v14, 0x3f803f80\ns_nop 0")
        for k in range(4): A(f"v_cndmask_b32 v{48+k}, 0, v14, vcc")
    else:
        for k in range(4): A(f"v_mov_b32 v{48+k}, 0x3f803f80")
    A("v_lshl_add_u32 v45, v4, 4, s46")
    cs = f32bits(128 ** -0.5 * math.log2(math.e))
    A(f"v_mov_b32 v46, 0x{cs:08x}\nv_mov_b32 v47, 0x{cs:08x}")
    A(f"s_mov_b32 s31, 0x{f32bits(2.0 ** cfg.thr_log2):08x}")
    A("s_lshl_b32 s40, s25, 3\ns_add_u32 s40, s40, s27")
    A("s_lshl_b32 s34, s40, 5\ns_add_u32 s34, s34, s29\ns_lshl_b32 s34, s34, 1\ns_add_u32 s34, s34, s22\ns_mul_i32 s34, s34, 24576")
    A("s_add_u32 s16, s44, s34\ns_addc_u32 s17, s45, 0\ns_movk_i32 s18, 0x6000\ns_mov_b32 s19, 0x20000")
    A("s_mov_b32 s59, 0")
    if cfg.rot:
        if cfg.rot == 1:
            A("s_lshl_b32 s30, s2, 1\ns_add_u32 s30, s30, s21\ns_mul_i32 s34, s30, 0x9E3779B1\ns_lshr_b32 s30, s34, 27\ns_lshl_b32 s30, s30, 13")
        else:
            A(f"s_add_u32 s30, s2, 1\ns_mul_i32 s34, s30, 0x9E3779B1\ns_lshr_b32 s30, s34, 27\ns_mul_i32 s35, s21, {cfg.rotd}\ns_add_u32 s30, s30, s35\ns_lshl_b32 s30, s30, 13")
        if cfg.stride: A("s_bfe_u32 s101, s34, 0x40017\ns_lshl_b32 s101, s101, 14\ns_add_u32 s101, s101, 4096")
        else: A("s_movk_i32 s101, 0x1000")
    else:
        A("s_mov_b32 s30, 0\ns_movk_i32 s101, 0x1000")
    if cfg.cpf:
        A("s_mov_b32 s34, 0x8000")
        A.vmem("buffer_load_dword v56, v54, s[88:91], s34 offen", "CPF")
    if cfg.wmode in (3, 4):
        A("s_lshl_b32 s34, s26, 3\ns_add_u32 s34, s34, s27\ns_mul_i32 s34, s34, 40960")
        A("s_add_u32 s88, s92, s34\ns_addc_u32 s89, s93, 0\ns_mov_b32 s90, 40960\ns_mov_b32 s91, 0x20000")
        A("v_add_u32 v55, 0x8000, v54")
        if cfg.wmode == 4:
            per = 320 // (4 * cfg.wbn)
            A(f"v_mul_u32_u24 v55, {per}, v1\nv_add_u32 v55, v55, v2\nv_lshlrev_b32 v55, 7, v55\nv_cmp_gt_u32 vcc, {per}, v2\nv_mov_b32 v14, 0x100000\ns_nop 0\nv_cndmask_b32 v55, v14, v55, vcc")
    if not cfg.early: A.emit(dma_x(1)); A.emit(dma_w(1))

    ACC = 64
    def acc(T, dt): return ACC + 32 * T + 4 * dt
    def fa(dt, s): return 80 + 8 * dt + 4 * s
    def fb(p, T, s): return (144 if p == 0 else 192) + 8 * T + 4 * s
    def qa_reads(sg, dt):
        c, e = dt >> 1, dt & 1
        return [f"ds_read_b64_tr_b16 {ar(fa(dt, s) + 2*f, 2)}, v{40+c} offset:{WSLOT[sg % 3]*16384 + s*8192 + f*1024 + 8*e}"
                for s in range(2) for f in range(2)]
    def qb_read(sg, T, s):
        return f"ds_read_b128 {ar(fb(sg % 2, T, s))}, v{52 + s} offset:{(sg % 2)*24576 + T*2048}"
    A(f"s_waitcnt vmcnt({A.vm_after(['X0', 'W0'])})")
    A("s_barrier")
    for T in range(6):
        for s in range(2): A(qb_read(0, T, s))
    for dt in range(8):
        for r in qa_reads(0, dt): A(r)
    fill = [f"v_accvgpr_write_b32 a{i}, 0" for i in range(80)]
    pend = (dma_x(1) + dma_w(1) if cfg.early else []) + dma_w(2)
    NST = (5 if cfg.win else 8)
    qend = 8 + cfg.lag + NST
    PFW = [(f"buffer_load_dword v56, v54, s[88:91], 0 offen {cfg.wopfl}", "KVPF"), (f"buffer_load_dword v56, v55, s[88:91], 0 offen {cfg.wopfl}", "KVPF")]
    BG = [int(x) for x in cfg.barg.split(",")] if cfg.early else [10]
    for sg in range(10):
        last = sg == 9
        slots = [[] for _ in range(96)]
        if not last:
            need = [f"W{sg+1}", f"X{sg+1}"]
            G = BG[min(sg, len(BG) - 1)]
            slots[G] = ["WAIT"]; slots[G + 1] = ["BAR"]
            if G > 11: slots[11] = ["s_waitcnt lgkmcnt(0)"]
            rl = [(11, r) for r in qa_reads(sg + 1, 0)]
            for T in range(6): rl += [(0, qb_read(sg + 1, T, 0)), (0, qb_read(sg + 1, T, 1))]
            for dt in range(1, 8): rl += [(12*dt + 11, r) for r in qa_reads(sg + 1, dt)]
            for g in range(G + 2, 96):
                k = 0
                while rl and rl[0][0] <= g and (k < 2 or g == 95):
                    slots[g].append(rl.pop(0)[1]); k += 1
            assert not rl
        else:
            fill += [f"v_accvgpr_write_b32 a{i}, 0" for i in range(144, 192)]
            for n in range(5):
                fill += [f"v_add_u32 v14, {64*n}, v2", "v_mul_u32_u24 v15, 3277, v14", "v_lshrrev_b32 v15, 16, v15",
                         "v_mul_u32_u24 v34, 20, v15", "v_sub_u32 v14, v14, v34", "v_bfe_u32 v34, v15, 2, 1", "v_lshlrev_b32 v34, 1, v34",
                         "v_xor_b32 v14, v14, v34", "v_mul_u32_u24 v15, 1280, v15", f"v_lshl_add_u32 v{5+n}, v14, 4, v15"]
                if 0 < n < 4: fill.append(f"v_subrev_u32 v{5+n}, {1024*n}, v{5+n}")
        if cfg.slabst:
            A(f"s_memrealtime s[98:99]\ns_waitcnt lgkmcnt(0)\nv_writelane_b32 v57, s98, {sg + 1}")
        A("s_waitcnt lgkmcnt(15)")
        order = [(T, s) for T in range(6) for s in range(2)] if cfg.qchain else [(T, s) for s in range(2) for T in range(6)]
        g = 0
        for dt in range(8):
            for T, s in order:
                d = vr(acc(T, dt))
                A(mf(d, ar(fa(dt, s)), ar(fb(sg % 2, T, s)), "0" if sg == 0 and s == 0 else d))
                used = 0
                for x in slots[g]:
                    if x == "WAIT": A(f"s_waitcnt vmcnt({A.vm_after(need)}) lgkmcnt(0)"); used = 2
                    elif x == "BAR":
                        A("s_barrier"); used = 2
                        if sg + 2 < 10: pend += dma_x(sg + 2)
                        if cfg.kvpf and cfg.kvpf0 <= sg <= cfg.kvpf1:
                            r = sg - cfg.kvpf0
                            for k in range(r * npf // nsl, (r + 1) * npf // nsl): pend += kvpf_list[k]
                        if sg + 3 < 10: pend += dma_w(sg + 3)
                        if cfg.xwpf and sg in (cfg.pfb, cfg.pfb + 3): pend += xw_pf()
                        if cfg.wmode == 4 and cfg.wb0 <= sg < cfg.wb0 + cfg.wbn:
                            pend += [f"s_mov_b32 s60, {(sg - cfg.wb0) * (40960 // cfg.wbn)}", (f"buffer_load_dword v56, v55, s[88:91], s60 offen {cfg.wopfl}", "KVPF")]
                        if cfg.wmode == 3 and sg == cfg.wsg:
                            pend += PFW
                        if sg == (7 if cfg.kvq == 2 else 8) and cfg.kvq: pend += dma_kv(0)
                        if sg == 8 and cfg.kvq == 2: pend += dma_kv(1)
                    else: A(x); used = 2
                if last and g == 11:
                    A("s_waitcnt lgkmcnt(0)")
                    if cfg.kve:
                        A("s_barrier"); used = 2
                        pend += dma_kv(2, min(8, qend - 16)) + dma_kv(3, max(0, qend - 24))
                    if cfg.wmode == 3 and cfg.wsg == 9: pend += PFW
                if last and g % 12 == 11 and g < 95:
                    fill += [f"v_accvgpr_write_b32 a{i}, 0" for i in range(fa(dt, 0), fa(dt, 0) + 8)]
                if not used and pend:
                    if isinstance(pend[0], str): A(pend.pop(0))
                    elif g % (cfg.qdsp if sg >= len(BG) - 1 else 2) == 0:
                        it = pend.pop(0); used = 2
                        if cfg.q_nodma and not it[1].startswith("KV"): A.vm.append(it[1])
                        else: A.vmem(*it)
                if not used:
                    for _ in range(2):
                        if fill: A(fill.pop(0))
                g += 1
    assert not pend, len(pend)
    fill += [f"v_accvgpr_write_b32 a{i}, 0" for i in range(fa(7, 0), fa(7, 0) + 8)]
    if not cfg.kve: A("s_barrier")
    stamp(1)
    if cfg.slabst:
        A(f"s_memrealtime s[60:61]\ns_waitcnt lgkmcnt(0)\nv_writelane_b32 v57, s60, 11\nv_writelane_b32 v57, s64, 0")
        A(f"s_add_u32 s88, s44, {STAMP_BASE + 0x80000}\ns_addc_u32 s89, s45, 0\ns_mov_b32 s90, 0x100000\ns_mov_b32 s91, 0x20000")
        A("s_lshl_b32 s34, s2, 10\nv_lshlrev_b32 v62, 2, v0")
        A.vmem("buffer_store_dword v57, v62, s[88:91], s34 offen", "ST")
        A("s_nop 3")
    A("s_load_dwordx4 s[48:51], s[0:1], 80")
    A("s_lshl_b32 s41, s40, 2\ns_add_u32 s42, s41, s23\ns_add_u32 s41, s41, s28")
    A(f"s_add_u32 s8, s44, {MBOX}\ns_addc_u32 s9, s45, 0\ns_mov_b32 s10, 0x8000\ns_mov_b32 s11, 0x20000")
    A("s_lshl_b32 s99, s41, 8\ns_lshl_b32 s100, s42, 8\ns_add_u32 s100, s100, 0x4000")
    A("v_mov_b32 v57, 0")
    A.vmem("buffer_load_dword v62, v57, s[8:11], s99 offen sc1", "SNAP")
    A.vmem("buffer_load_dword v63, v57, s[8:11], s100 offen sc1", "SNAP")
    for st in range(cfg.kvq, 2): A.emit(dma_kv(st))
    for z in fill: A(z)
    for k in range(96):
        A(f"v_pk_mul_f32 v[{ACC+2*k}:{ACC+2*k+1}], v[{ACC+2*k}:{ACC+2*k+1}], v[46:47]")
        if k >= 1: A(f"v_cvt_pk_bf16_f32 v{ACC+k-1}, v{ACC+2*k-2}, v{ACC+2*k-1}")
    A(f"v_cvt_pk_bf16_f32 v{ACC+95}, v{ACC+190}, v{ACC+191}")
    def qf(T, c): return ACC + 16 * T + 4 * c
    A("s_waitcnt lgkmcnt(0)")
    if cfg.tlb:
        A.vmem("buffer_load_dword v56, v57, s[16:19], 0 offen sc1", "TLB")
        A(f"s_lshl_b32 s34, s42, 18\ns_add_u32 s34, s34, {PBASE + 15360}")
        A("s_add_u32 s4, s44, s34\ns_addc_u32 s5, s45, 0\ns_movk_i32 s6, 0x100\ns_mov_b32 s7, 0x20000")
        A.vmem("buffer_load_dword v56, v57, s[4:7], 0 offen sc1", "TLB")
        A("s_mul_i32 s34, s27, 491520\ns_and_b32 s35, s28, 1\ns_mul_i32 s35, s35, 245760\ns_add_u32 s34, s34, s35\ns_mul_i32 s35, s20, 61440\ns_add_u32 s34, s34, s35")
        A("s_add_u32 s4, s48, s34\ns_addc_u32 s5, s49, 0")
        A.vmem("buffer_load_dword v56, v57, s[4:7], 0 offen sc1", "TLB")
        A("s_mov_b32 s4, s50\ns_mov_b32 s5, s51")
        A.vmem("buffer_load_dword v56, v57, s[4:7], 0 offen sc1", "TLB")

    S = [160, 176]; P = [192, 200]; NEGM = 208; L = 232; ONES = 48
    KF = 192; VF = 224
    def O(T, dt): return 32 * T + 4 * dt
    def k_read(st, kt, c): return f"ds_read_b128 {ar(KF + 16*kt + 4*c)}, v{20+c} offset:{st*16384 + kt*4096}"
    def v_read(st, dt, e): return f"ds_read_b64_tr_b16 {ar(VF + 4*dt + 2*e, 2)}, v{24+dt} offset:{st*16384 + e*4096}"
    def qk_mfmas(t, par):
        r = []
        for Tl in range(2):
            T = 2*t + Tl
            for kt in range(2):
                d = vr(S[par] + 8*Tl + 4*kt)
                for c in range(4):
                    r.append(mf(d, ar(KF + 16*kt + 4*c), vr(qf(T, c)), vr(NEGM + 4*T) if c == 0 else d))
        return r
    def pv_mfmas(t, par):
        r = []
        if cfg.pvord:
            for dt in range(8):
                for Tl in range(2):
                    T = 2*t + Tl
                    r.append(mf(ar(O(T, dt)), ar(VF + 4*dt), vr(P[par] + 4*Tl), ar(O(T, dt))))
            for Tl in range(2):
                T = 2*t + Tl
                r.append(mf(vr(L + 4*T), vr(ONES), vr(P[par] + 4*Tl), vr(L + 4*T)))
            return r
        for Tl in range(2):
            T = 2*t + Tl
            for dt in range(8):
                r.append(mf(ar(O(T, dt)), ar(VF + 4*dt), vr(P[par] + 4*Tl), ar(O(T, dt))))
            r.append(mf(vr(L + 4*T), vr(ONES), vr(P[par] + 4*Tl), vr(L + 4*T)))
        return r
    def EX(par, e): return f"v_exp_f32 v{S[par]+e}, v{S[par]+e}" if not cfg.xp & 1 else "s_nop 1"
    def CV(par, k): return f"v_cvt_pk_bf16_f32 v{P[par]+k}, v{S[par]+2*k}, v{S[par]+2*k+1}" if not cfg.xp & 2 else f"v_mov_b32 v{P[par]+k}, 0x3f803f80"
    A(f"s_waitcnt vmcnt({A.vm_after(['KV0'])})")
    A("s_barrier")
    for c in range(4): A(f"ds_read_b128 {vr(S[1] + 4*c)}, v45 offset:{64*c}")
    for kt in range(2):
        for c in range(4): A(k_read(0, kt, c))
    for k in range(24): A(f"v_mov_b32 v{L+k}, 0")
    A("s_waitcnt lgkmcnt(8)")
    for k in range(16): A(f"v_xor_b32 v{S[1]+k}, 0x80008000, v{S[1]+k}")
    A("s_nop 1")
    if cfg.kve: kv2 = []; kv3 = []
    else: kv2 = dma_kv(2, min(8, qend - 16)); kv3 = dma_kv(3, max(0, qend - 24))
    gam = "v14"
    misc = ["v_and_b32 v14, 1, v4", "v_xor_b32 v15, 1, v14",
            "v_lshrrev_b32 v34, 2, v3", "v_lshl_add_u32 v34, v4, 2, v34", "v_mul_u32_u24 v34, 320, v34",
            "v_and_b32 v35, 3, v3", "v_lshl_add_u32 v34, v35, 3, v34", "v_add_u32 v34, s46, v34",
            "v_lshl_add_u32 v36, v14, 5, v34", "v_lshl_add_u32 v37, v15, 5, v34",
            "v_add_u32 v38, 128, v37", "v_add_u32 v39, 192, v36",
            "MASK",
            "v_cndmask_b32 v10, v36, v38, s[32:33]", "v_cndmask_b32 v11, v37, v39, s[32:33]",
            "v_cndmask_b32 v12, v38, v36, s[32:33]", "v_cndmask_b32 v13, v39, v37, s[32:33]",
            "v_mul_u32_u24 v34, 2560, v3", "v_lshl_add_u32 v34, v4, 3, v34",
            "v_lshlrev_b32 v35, 7, v0", "v_add_u32 v36, 0x8000, v35"]
    if cfg.wmode == 1:
        misc = misc[:-2] + ["v_mul_u32_u24 v35, 12, v1", "v_add_u32 v35, v35, v2", "v_lshlrev_b32 v35, 7, v35",
            "v_cmp_gt_u32 vcc, 12, v2", "v_mov_b32 v36, 0x100000", "s_nop 0", "v_cndmask_b32 v35, v36, v35, vcc", "s_mov_b32 s60, 0"]
    def misc_step():
        for _ in range(2):
            if misc:
                m = misc.pop(0)
                if m == "MASK": A("s_cmp_eq_u32 s21, 1\ns_cselect_b64 s[32:33], -1, 0")
                else: A(m)
    for T in range(6):
        for c in range(4):
            d = vr(NEGM + 4*T)
            A(mf(d, vr(S[1] + 4*c), vr(qf(T, c)), "0" if c == 0 else d))
            if kv2 and (isinstance(kv2[0], str) or c % 2 == 0): A.emit([kv2.pop(0)])
            else: misc_step()
    assert not kv2
    A("s_waitcnt lgkmcnt(0)")
    for k, m in enumerate(qk_mfmas(0, 0)):
        A(m)
        if kv3 and (isinstance(kv3[0], str) or k % 2 == 0): A.emit([kv3.pop(0)])
        else: misc_step()
    A.emit(kv3)
    while misc: misc_step()
    A("s_lshl_b32 s34, s26, 3\ns_add_u32 s34, s34, s27\ns_mul_i32 s34, s34, 40960")
    A("s_add_u32 s88, s92, s34\ns_addc_u32 s89, s93, 0\ns_mov_b32 s90, 40960\ns_mov_b32 s91, 0x20000")
    A("s_lshl_b32 s34, s28, 10\ns_lshl_b32 s35, s21, 7\ns_add_u32 s34, s34, s35\ns_lshl_b32 s35, s22, 4\ns_add_u32 s34, s34, s35")
    A("s_mul_i32 s34, s34, 1280\ns_mul_i32 s35, s23, 320\ns_add_u32 s34, s34, s35")
    A("s_add_u32 s92, s92, s34\ns_addc_u32 s93, s93, 0\ns_sub_u32 s94, 5242880, s34\ns_mov_b32 s95, 0x20000")
    if cfg.wmode == 2:
        A(f"buffer_load_dword v39, v35, s[88:91], 0 offen {cfg.wopfl}")
        A(f"buffer_load_dword v39, v36, s[88:91], 0 offen {cfg.wopfl}")
    for e in range(16): A(EX(0, e))
    for k in range(4): A(CV(0, k))
    A("s_mul_i32 s96, s23, 327680")
    A("s_mov_b32 s57, 7\ns_mov_b64 vcc, -1")
    if cfg.wramp: A(f"s_mov_b32 s61, 0x{cfg.wramp[::-1]}")
    if cfg.cpf2:
        tgt = "L_peel" if cfg.cpf2 == 2 else "L_epi"
        A("s_getpc_b64 s[4:5]\nL_pc2:")
        A(f"s_add_u32 s4, s4, {tgt} - L_pc2\ns_addc_u32 s5, s5, 0\ns_mov_b32 s6, L_end - {tgt}\ns_mov_b32 s7, 0x20000")
    if cfg.ssr:
        A(f"s_mul_i32 s61, s2, 0x9E3779B1\ns_lshr_b32 s61, s61, 16\ns_mul_i32 s61, s61, {cfg.ssr}\ns_lshr_b32 s61, s61, 16\ns_add_u32 s61, s61, {cfg.ss0}\ns_bfm_b32 s61, s61, 0")
    stamp(1)
    def w2_dma(c, sreg, tag, coff=1):
        r = []
        for n in range(5):
            if n == 0: r += [f"s_add_u32 m0, s54, {c*16384}", f"s_add_u32 s55, {sreg}, {c*40960*coff}"]
            if n == 4: r += [f"s_add_u32 m0, s54, {c*16384 + 4096}", "s_nop 0"]
            r.append((f"buffer_load_dwordx4 v{5+n}, s[92:95], s55 offen offset:{(n & 3)*1024} {cfg.wold} lds", tag))
        return r
    N = cfg.lag
    rq = []
    for q in range(8*29 + cfg.lag + NST, 256):
        if q % 4 == 0:
            rq += [f"s_add_u32 m0, s54, {((q >> 3) % 4)*16384 + (q & 4)*1024}", "s_and_b32 s55, s30, 0x3ffff",
                   "s_add_u32 s30, s30, s101" if q & 4 else "s_add_u32 s30, s30, 4096"]
        rq.append((f"buffer_load_dwordx4 v{16 + (q & 3)}, s[12:15], s55 offen offset:{(q & 3)*1024} {cfg.kv_flags} lds", f"KV{q >> 3}"))
    wq = [0, 1, 2, 3]
    def body(u, last):
        t, par, j = u % 3, u % 2, u // 3
        t1, par1 = (u + 1) % 3, (u + 1) % 2
        fin = last and u == 11
        kv_here = bool(rq) and cfg.ramp
        ms = qk_mfmas(t1, par1) + pv_mfmas(t, par)
        pre = [[] for _ in range(34)]
        val = [[] for _ in range(34)]
        val[0] = [CV(par, 4), CV(par, 5)]; val[1] = [CV(par, 6), CV(par, 7)]
        for e in range(16): val[16 + e] = [EX(par1, e)]
        val[32] = [CV(par1, 0), CV(par1, 1)]; val[33] = [CV(par1, 2), CV(par1, 3)]
        jj = (28 + j) if last else j
        iv = jj if t == 2 else jj - 1
        def q_of(i): return 8 * (iv + 2) + N + i
        def live(i): return (not last) or q_of(i) < 256
        def dma(i, g):
            q = q_of(i)
            if live(i):
                pre[g].append((f"buffer_load_dwordx4 v{16 + (q & 3)}, s[12:15], s55 offen offset:{(q & 3)*1024} {cfg.kv_flags} lds", f"KV{q >> 3}"))
        stn = (j + 1) % 4
        if t == 1:
            if not last:
                if cfg.ssr:
                    pre[3] += ["s_bitcmp1_b32 s61, 0"]
                    pre[4] += [f"s_cbranch_scc0 L_ss{u}", f"s_waitcnt vmcnt({cfg.ssn})", f"L_ss{u}:"]
                    pre[7] += ["s_lshr_b32 s61, s61, 1"]
                if cfg.ssk: pre[4] += [f"s_cbranch_vccz L_ss{u}", f"s_waitcnt vmcnt({cfg.ssn})", f"L_ss{u}:"]
                pre[5].append(f"s_waitcnt vmcnt({N})")
            elif j < 3: pre[5].append(lambda: A(f"s_waitcnt vmcnt({A.vm_after([f'KV{29+j}'])})"))
            pre[6].append("s_barrier")
            if not (last and j == 3):
                for kt in range(2):
                    for c in range(4): pre[8 + 4*kt + c].append(k_read(stn, kt, c))
                pre[33].append("s_waitcnt lgkmcnt(0)")
        def inc(q): return "s_add_u32 s30, s30, s101" if q & 4 else "s_add_u32 s30, s30, 4096"
        if cfg.win and not (last and cfg.ramp):
            assert N % 4 == 0
            sites = {1: [(-1, 7, 2), (0, 0, 18), (0, 1, 30)], 2: [(0, 2, 8), (0, 3, 20), (0, 4, 31)], 0: [(-1, 5, 11), (-1, 6, 24)]}[t]
            for off, i, g in sites:
                q = 8 * (jj + off + 2) + N + i
                if last and q >= 256: continue
                kv_here = True
                if q % 4 == 0:
                    pre[g - 3].append(f"s_add_u32 m0, s54, {((q >> 3) % 4)*16384 + (q & 4)*1024}")
                    pre[g - 2].append(kmap(q & 4))
                    pre[g + 1].append(inc(q))
                w = int(cfg.wpat[(8 * ((jj + off) % 4) + i) % len(cfg.wpat)])
                if cfg.wramp and not last:
                    cls = {0: 0, 4: 1, 2: 2, 6: 2}.get(i, 3)
                    pre[g - 1].append(f"s_bitcmp1_b32 s61, {cls}\ns_cbranch_scc0 L_w{u}_{i}\ns_waitcnt vmcnt(3)\nL_w{u}_{i}:")
                    if cfg.w5it: pre[g - 1].append(f"s_cbranch_vccz L_v{u}_{i}\ns_waitcnt vmcnt(4)\nL_v{u}_{i}:")
                pre[g - 1].append(f"s_waitcnt vmcnt({w - 1})")
                pre[g].append((f"buffer_load_dwordx4 v{16 + (q & 3)}, s[12:15], s55 offen offset:{(q & 3)*1024} {cfg.kv_flags} lds", f"KV{q >> 3}"))
        if t in (1, 2) and not (last and cfg.ramp) and not cfg.win:
            iv = jj
            g = (0 if N % 4 == 0 else 2) + cfg.dpos
            def put(gg, it):
                if t == 2 and gg >= 0: pre[gg].append(it)
                if t == 1 and gg < 0: pre[34 + gg].append(it)
            for i in range(8):
                q = 8 * (iv + 2) + N + i
                lv = (not last) or q < 256
                if q % 4 == 0:
                    if lv:
                        put(g, f"s_add_u32 m0, s54, {((q >> 3) % 4)*16384 + (q & 4)*1024}")
                        put(g + 1, "s_and_b32 s55, s30, 0x3ffff")
                        put(g + 1, inc(q))
                    g += 2
                if lv: put(g, (f"buffer_load_dwordx4 v{16 + (q & 3)}, s[12:15], s55 offen offset:{(q & 3)*1024} {cfg.kv_flags} lds", f"KV{q >> 3}"))
                g += 1 if i % 3 else 2
            assert g <= 33, g
            iv = jj if t == 2 else jj - 1
        if last and cfg.ramp and rq:
            gl = {0: list(range(10, 15)) + list(range(16, 32)), 1: [2, 3, 4, 7] + list(range(16, 32)), 2: list(range(2, 32))}[t]
            for g in gl:
                if not rq: break
                if isinstance(rq[0], tuple) and g >= 16 and g % 2: continue
                pre[g].append(rq.pop(0))
        if t == 0:
            for dt in range(8):
                pre[2 + dt] += [v_read(j % 4, dt, 0), v_read(j % 4, dt, 1)]
            pre[15].append("s_waitcnt lgkmcnt(0)")
        if last and ((not kv_here and not rq) if cfg.ramp else (not kv_here and u >= 2 + (16 - N) * 3 // 8)) and wq and wq[0] <= iv - 28 and t != 1 and u >= cfg.wlate:
            c = wq.pop(0)
            w = w2_dma(c, "s96", f"W{c}")
            gs = (0, 1, 2, 5, 8, 11, 12, 13, 14) if t == 2 else (0, 1, 10, 11, 12, 13, 16, 17, 18)
            if fin: gs = (16, 17, 18, 20, 22, 24, 25, 26, 27)
            for it, g in zip(w, gs): pre[g].append(it)
        if (cfg.cpf2 == 2 and not last and u == 6) or (cfg.cpf2 == 1 and last and u == 0):
            pre[13].append(("buffer_load_dword v39, v54, s[4:7], 0 offen", "PF"))
        if cfg.wmode == 1 and not last and u == 4:
            pre[7].append((f"buffer_load_dword v39, v35, s[88:91], s60 offen {cfg.wopfl}", "PF"))
            pre[16].append("s_add_u32 s60, s60, 6144")
        if cfg.wmode == 0 and cfg.wopf and last and u == cfg.wopf:
            assert t != 0
            pre[2].append((f"buffer_load_dword v39, v35, s[88:91], 0 offen {cfg.wopfl}", "PF"))
            pre[4].append((f"buffer_load_dword v39, v36, s[88:91], 0 offen {cfg.wopfl}", "PF"))
        if fin:
            for k in range(4, 8): A(CV(par, k))
            A("s_nop 0")
        for g in range(34):
            if fin and g < 16: continue
            A(ms[g])
            x = pre[g]
            if cfg.no_dma: x = [y for y in x if not isinstance(y, tuple)]
            A.emit(x)
            if not fin:
                for y in val[g]: A(y)
    A(".p2align 6")
    A("L_loop:")
    for u in range(12): body(u, False)
    if cfg.stamps & 16:
        A("s_memrealtime s[60:61]\ns_waitcnt lgkmcnt(0)")
        A("s_cmp_lt_u32 s57, 3\ns_cbranch_scc1 L_nosh")
        A("s_mov_b32 s68, s72\ns_mov_b32 s72, s76\ns_mov_b32 s76, s80\ns_mov_b32 s80, s84\ns_mov_b32 s84, s60")
        A("L_nosh:")
        stamp.n = 6
    if cfg.wramp: A("s_lshr_b32 s61, s61, 4")
    if cfg.w5it: A(f"s_cmp_gt_u32 s57, {8 - cfg.w5it}\ns_cselect_b64 vcc, -1, 0")
    if cfg.ssk: A(f"s_cmp_gt_u32 s57, {8 - cfg.ssk}\ns_cselect_b64 vcc, -1, 0")
    A("s_sub_u32 s57, s57, 1\ns_cmp_lg_u32 s57, 0\ns_cbranch_scc1 L_loop")
    A.vm = [f"KV{q >> 3}" for q in range(8*28, 8*29 + N + NST)]
    A("L_peel:")
    stamp(8)
    for u in range(12):
        body(u, True)
        if u in (4, 8): stamp(8)
    for c in wq: A.emit(w2_dma(c, "s96", f"W{c}"))
    stamp()
    A("v_readfirstlane_b32 s56, v62\nv_readfirstlane_b32 s58, v63")
    A("s_nop 5")
    A(f"v_cmp_nge_f32 vcc, s31, v{L}")
    for T in range(1, 6):
        A(f"v_cmp_nge_f32 s[34:35], s31, v{L + 4*T}")
        A("s_or_b64 vcc, vcc, s[34:35]")
    if cfg.force_fb: A("s_branch L_fallback")
    A("s_cbranch_vccnz L_fallback")
    A("L_epi:")
    BB = 40; KEEP = 136; AF = 192; AX = 16
    SENT = [32*(i // 4) + 4*(i % 4) for i in range(24)] + [232 + 4*i for i in range(6)]
    RL = 26
    TL = [16, 17, 20, 21, 35, 36, 37, 38]
    def bfr(c, T): return BB + 24 * c + 4 * T
    def acc2(nu, T): return vr(KEEP + 24*nu + 4*T) if nu < 5 else ar(SENT[6*(nu - 5) + T])
    def b_loads(c, tag):
        return [(f"buffer_load_dwordx4 {vr(bfr(c, T))}, v{32 + T//4}, s[4:7], s{88+c} offen offset:{(T % 4)*1024} {cfg.old}", tag) for T in range(6)]
    def o_store(c, T, tag):
        return (f"buffer_store_dwordx4 {vr(bfr(c, T))}, v{32 + T//4}, s[16:19], s52 offen offset:{(T % 4)*1024} {cfg.ost}", tag)
    def next_tile(c):
        return ["s_add_u32 s53, s62, s97\ns_lshr_b64 s[62:63], s[62:63], 4",
                "s_bfe_u32 s32, s53, 0x20002\ns_and_b32 s33, s53, 3",
                "s_lshl_b32 s34, s32, 3\ns_add_u32 s34, s34, s33",
                "s_mul_i32 s96, s34, 40960\ns_lshl_b32 s32, s32, 4",
                f"s_add_u32 s32, s32, s33\ns_mul_i32 s{88+c}, s32, 6144"]
    def a_reads(c, nu, dst=None):
        n5 = nu % 5
        reg = 10 + 2*(nu // 5) + (n5 & 1)
        d = AF + 4*nu if dst is None else dst
        return [f"ds_read_b64_tr_b16 {ar(d + 2*e, 2)}, v{reg} offset:{c*16384 + e*8192 + 64*(n5 >> 1)}" for e in range(2)]
    A("s_lshl_b32 s34, s40, 5\ns_lshl_b32 s35, s28, 3\ns_add_u32 s34, s34, s35\ns_add_u32 s34, s34, s21\ns_lshl_b32 s34, s34, 1\ns_add_u32 s34, s34, s22\ns_mul_i32 s34, s34, 24576")
    A(f"s_add_u32 s4, s44, s34\ns_addc_u32 s5, s45, 0\ns_mov_b32 s6, {3*98304 + 24576}\ns_mov_b32 s7, 0x20000")
    A(f"s_add_u32 s8, s44, {MBOX}\ns_addc_u32 s9, s45, 0\ns_mov_b32 s10, 0x8000\ns_mov_b32 s11, 0x20000")
    A("s_mov_b32 s36, s50\ns_mov_b32 s37, s51\ns_movk_i32 s38, 0x100\ns_mov_b32 s39, 0x20000")
    A("s_lshl_b32 s41, s41, 2\ns_lshl_b32 s97, s23, 2")
    tiles = [4*(1 + p) + c for c in range(4) for p in range(3)]
    tbl = sum(t << (4*i) for i, t in enumerate(tiles))
    A(f"s_mov_b32 s62, 0x{tbl & 0xffffffff:x}\ns_mov_b32 s63, 0x{tbl >> 32:x}\ns_mov_b32 s98, 0")
    A("v_mov_b32 v14, 0\nv_mov_b32 v15, 1\nv_mov_b32 v18, 0x100\nv_mov_b32 v22, 0x10000\nv_mov_b32 v23, 16\nv_mov_b32 v24, 0x100000")
    npoll = [0]
    def signal(vm, vd, mreg, sreg, wave=1):
        k = npoll[0]; npoll[0] += 1
        A(f"s_cmp_lg_u32 s20, {wave}\ns_cbranch_scc1 L_sg{k}")
        A("s_mov_b64 exec, 1")
        A(f"buffer_atomic_add {vm}, v14, s[8:11], {mreg} offen")
        A(f"buffer_atomic_add {vd}, v14, s[36:39], {sreg} offen")
        A("s_mov_b64 exec, -1")
        A(f"L_sg{k}:")
    def poll(mreg, snap, mfield, sreg, field, wave=0):
        k = npoll[0]; npoll[0] += 1
        if wave is not None: A(f"s_cmp_lg_u32 s20, {wave}\ns_cbranch_scc1 L_pd{k}")
        A(f"s_bfe_u32 s34, s98, {mfield}\ns_cmp_eq_u32 s34, 4\ns_cbranch_scc1 L_pd{k}")
        A("s_mov_b32 s61, 0x40000")
        A(f"L_pl{k}:")
        A(f"buffer_load_dword v19, v14, s[8:11], {mreg} offen sc1")
        A("s_waitcnt vmcnt(0)")
        A("v_readfirstlane_b32 s98, v19")
        A("s_sub_u32 s61, s61, 1")
        A(f"s_sub_u32 s98, s98, {snap}")
        A(f"s_bfe_u32 s34, s98, {mfield}\ns_cmp_eq_u32 s34, 4\ns_cbranch_scc1 L_pd{k}")
        if cfg.stamps: A("s_add_u32 s59, s59, 1")
        A(f"s_sleep {cfg.psleep}")
        A(f"s_and_b32 s34, s61, {cfg.rescue - 1}\ns_cbranch_scc1 L_pl{k}")
        A(f"buffer_load_dword v19, v14, s[36:39], {sreg} offen sc1")
        A("s_waitcnt vmcnt(0)")
        A("v_readfirstlane_b32 s34, v19")
        A(f"s_cmp_eq_u32 s61, 0\ns_cbranch_scc1 L_pd{k}")
        A(f"s_bfe_u32 s34, s34, {field}")
        A(f"s_cmp_lt_u32 s34, 4\ns_cbranch_scc1 L_pl{k}")
        A(f"L_pd{k}:")
    for T in range(6): A(f"v_rcp_f32 v{L + 4*T}, v{L + 4*T}")
    for T in range(6): A(f"v_mov_b32 v{L + 4*T + 1}, v{L + 4*T}")
    for T in range(6): A(f"v_mov_b32 v{RL + T}, v{L + 4*T}")
    late = []
    for c in (2, 3):
        for T in range(6):
            ob = bfr(c, T)
            late += [f"v_accvgpr_read_b32 v{TL[k]}, a{O(T, 2*c) + k}" for k in range(8)]
            late += [f"v_mul_f32 v{TL[k]}, v{TL[k]}, v{RL+T}" for k in range(8)]
            late += [f"v_cvt_pk_bf16_f32 v{ob+k}, v{TL[2*k]}, v{TL[2*k+1]}" for k in range(4)]
    q = 0
    NA = 1
    for c in range(2):
        if c < NA: A(f"s_movk_i32 s52, {c*6144}")
        for T in range(6):
            tb = KEEP + 8 * (q % 2); ob = bfr(c, T); q += 1
            for k in range(8): A(f"v_accvgpr_read_b32 v{tb+k}, a{O(T, 2*c) + k}")
            for k in range(4): A(f"v_pk_mul_f32 v[{tb+2*k}:{tb+2*k+1}], v[{tb+2*k}:{tb+2*k+1}], v[{L+4*T}:{L+4*T+1}]")
            for k in range(4): A(f"v_cvt_pk_bf16_f32 v{ob+k}, v{tb+2*k}, v{tb+2*k+1}")
            if c < NA:
                if cfg.swin: A(f"s_waitcnt vmcnt({cfg.swin - 1})")
                A.vmem(*o_store(c, T, "OA"))
        if c == cfg.ebar:
            A(f"s_waitcnt vmcnt({A.vm_after(['W0'] + (['OA'] if cfg.sigstep < 0 else []))})")
            A("s_barrier")
            if cfg.sigstep < 0: signal("v15", "v15", "s99", "s41")
            for nu in range(10): A.emit(a_reads(0, nu))
    stamp(101)
    def place(pre, seq, lo=7, hi=58):
        free = [g for g in range(lo, hi) if not pre[g]]
        nv = sum(isinstance(x, tuple) for x in seq)
        sp = max(1, (len(free) - (len(seq) - nv)) // max(nv, 1))
        k = 0
        for it in seq:
            pre[free[k]].append(it)
            k += sp if isinstance(it, tuple) else 1
    GR = [5, 0, 6, 1, 7, 2, 8, 3, 9, 4]
    def ax(pos, c): return AX + 8*(pos % 2) + 4*(c - 2)
    def ax_reads(pos): return a_reads(2, GR[pos], ax(pos, 2)) + a_reads(3, GR[pos], ax(pos, 3))
    def bx(c, T):
        i = 6*(c - 2) + T
        return ar(48 + 32*(i // 4) + 4*(i % 4))
    def bx_loads(c, tag):
        return [(f"buffer_load_dwordx4 {bx(c, T)}, v{32 + T//4}, s[4:7], s{88+c} offen offset:{(T % 4)*1024} {cfg.old}", tag) for T in range(6)]
    setup = [f"s_lshl_b32 s34, s42, 18\ns_add_u32 s34, s34, {PBASE}",
             "s_add_u32 s12, s44, s34\ns_addc_u32 s13, s45, 0",
             "s_cmp_eq_u32 s20, s28\ns_cselect_b32 s14, 0, 0x40000", "s_mov_b32 s15, 0x20000",
             "s_lshl_b32 s52, s20, 2\ns_add_u32 s52, s52, s28", "s_lshl_b32 s52, s52, 14\ns_lshl_b32 s42, s42, 2",
             "s_xor_b32 s34, s54, 0x10000\nv_add_u32 v16, s54, v32", "v_add_u32 v20, s34, v32\ns_lshl_b32 s34, s20, 13",
             "s_add_u32 s34, s34, 131072\ns_xor_b32 s35, s34, 0x4000", "v_add_u32 v17, s34, v32\nv_add_u32 v21, s35, v32"]
    sched = [int(x) for x in cfg.osched.split(",")]
    assert sum(sched) == 18
    obs = [(c, T) for c in (1, 2, 3) for T in range(6)]
    SIG = {cfg.sigstep: ("OA", "v15"), cfg.sigb: ("O1", "v23"), cfg.sigc: ("O3", "v18")}
    POLL = {cfg.pa: "0x40000", 5: "0x40004", 8: "0x40008"}
    assert cfg.lt0 + cfg.lt1 >= 120 and sched[0] + sched[1] <= 6 and sched[0] + sched[1] + sched[2] <= 12
    def step(k):
        c = k % 4; cn = (c + 1) % 4
        pre = [[] for _ in range(60)]
        for nu in range(10):
            pre[6*nu + 5 + (1 if nu == 0 else 0)] += a_reads(cn, nu)
        seq = []
        if k == cfg.pa == 3: seq += b_loads(0, "B4")
        if cfg.pa <= k < 12: seq += b_loads((c + 2) % 4, f"B{k+2}")
        if k < 12: seq += next_tile(c) + w2_dma(c, "s96", f"W{k+4}", 0)
        if k in (10, 11): seq += bx_loads(c, f"B{k+4}")
        if k == 12: seq += setup
        if k < len(sched) and sched[k]:
            n = sched[k]
            for i in range(n):
                cc, T = obs.pop(0)
                assert k < cc + 2, (k, cc)
                g = 2 + (i * 56) // n
                while pre[g] or pre[g - 1] or g in (4, 5, 6): g += 1
                if T == 0: pre[g - 1].append(f"s_movk_i32 s52, {cc*6144}")
                pre[g].append(o_store(cc, T, f"O{cc}"))
        if cfg.apoll and k + 1 in POLL:
            g = cfg.apg
            while pre[g]: g += 1
            pre[g].append(("buffer_load_dword v19, v14, s[8:11], s99 offen sc1", f"PL{k+1}"))
        need = ([f"PL{k}"] if cfg.apoll and k in POLL else []) + [f"W{k+1}"] + ([SIG[k][0]] if k in SIG else [])
        bar = [lambda: A(f"s_waitcnt vmcnt({A.vm_after(need)}) lgkmcnt(0)")]
        if cfg.apoll and k in POLL: bar.append("v_readfirstlane_b32 s98, v19\ns_nop 0\ns_sub_u32 s98, s98, s56")
        if k in POLL: bar.append(lambda: poll("s99", "s56", POLL[k], "s41", POLL[k]))
        bar.append("s_barrier")
        if k in SIG: bar.append(lambda: signal(SIG[k][1], SIG[k][1], "s99", "s41"))
        pre[4] += bar[:1]; pre[5] += bar[1:]
        if k == 12:
            pre[48].append("s_waitcnt vmcnt(0)"); pre[49].append("s_barrier")
            r0 = ax_reads(0); pre[50] += r0[:2]; pre[51] += r0[2:]
        place(pre, seq, 7, 58 if k < 12 else 46)
        if late:
            take = {0: cfg.lt0, 1: cfg.lt1, 2: len(late)}[k]
            work = late[:take]; del late[:take]
            gaps = [g for g in range(0, 58) if not pre[g] or (len(pre[g]) == 1 and isinstance(pre[g][0], str) and pre[g][0].startswith("s_") and "\n" not in pre[g][0] and g not in (4, 5))]
            for gi, g in enumerate(gaps):
                budget = max(2, -(-len(work) // (len(gaps) - gi)))
                pre[g] += work[:budget]; del work[:budget]
            assert not work
        if cfg.swin2 and k < cfg.swk:
            for g in range(1, 60):
                if any(isinstance(x, tuple) for x in pre[g]): pre[g].insert(0, f"s_waitcnt vmcnt({cfg.swin2 - 1})")
        A(f"s_waitcnt vmcnt({A.vm_after([f'B{k}'])}) lgkmcnt(15)" if k >= 4 else "s_waitcnt lgkmcnt(15)")
        for g in range(60):
            nu, T = g // 6, g % 6
            d = acc2(nu, T)
            A(mf(d, ar(AF + 4*nu), vr(bfr(c, T)), "0" if k == 0 else d))
            A.emit(pre[g])
    assert cfg.keep
    for k in range(13):
        step(k)
        if k == 1: stamp(4)
        if cfg.sk0 <= k < cfg.sk0 + 5 and cfg.sk0 > 0: stamp(128)
        if k < 4: stamp(64)
        if k == 3: stamp(36)
        if k == 11: stamp(32)
    TMP = bfr(0, 0)
    def x_reads(r): return [f"ds_read_b128 {vr(TMP + 4*T)}, v{20 + r % 2} offset:{T*1024}" for T in range(6)]
    def x_writes(r): return [f"ds_write_b128 v{16 + r % 2}, {ar(SENT[6*r + T])} offset:{T*1024}" for T in range(6)]
    def flush(r, pk=False):
        w = []
        for p in range(3):
            ob = KEEP + 24*r + 8*p
            if pk: w += [f"v_pk_add_f32 v[{ob+z}:{ob+z+1}], v[{ob+z}:{ob+z+1}], v[{TMP+8*p+z}:{TMP+8*p+z+1}]" for z in range(0, 8, 2)]
            else: w += [f"v_add_f32 v{ob+z}, v{ob+z}, v{TMP+8*p+z}" for z in range(8)]
            w += [f"v_cvt_pk_bf16_f32 v{ob+z}, v{ob+2*z}, v{ob+2*z+1}" for z in range(4)]
            w.append(("ST", f"buffer_store_dwordx4 {vr(ob)}, v32, s[12:15], s52 offen offset:{p*1024} {cfg.pst}"))
        w.append(("SA", "s_add_u32 s52, s52, 3072"))
        return w
    A("s_waitcnt lgkmcnt(0)")
    for r in range(5):
        pre = [[] for _ in range(36)]
        ra = ax_reads(2*r + 1); pre[0] += ra[:2]; pre[1] += ra[2:]
        if r < 4:
            rb = ax_reads(2*r + 2); pre[18] += rb[:2]; pre[19] += rb[2:]
        for T, w in enumerate(x_writes(r)): pre[cfg.xw0 + T*cfg.xwsp].append(w)
        if r == 4 and cfg.re_ < 4: pre[cfg.epg].append("buffer_load_dword v19, v14, s[8:11], s100 offen sc1")
        work = []
        if r:
            xr = x_reads(r - 1)
            for k in range(3): pre[2 + k] += xr[2*k:2*k+2]
            work = flush(r - 1)
        pre[8].append("s_waitcnt lgkmcnt(0)")
        gaps = [g for g in range(8, 35) if g == 8 or not pre[g]]
        for gi, g in enumerate(gaps):
            left = len(gaps) - gi
            cost = sum(2 if isinstance(x, tuple) and x[0] == "ST" else 0 if isinstance(x, tuple) else 1 for x in work)
            budget = max(2, -(-cost // left)); n = 0
            while work and n < budget:
                it = work[0]
                if isinstance(it, tuple):
                    if it[0] == "ST" and n > 0 and left > 1: break
                    pre[g].append(it[1]); n += 2 if it[0] == "ST" else 0
                else: pre[g].append(it); n += 1
                work.pop(0)
        for it in work: pre[34].append(it[1] if isinstance(it, tuple) else it)
        if r == cfg.re_: pre[35] += ["s_waitcnt vmcnt(3) lgkmcnt(0)", "s_barrier", lambda: signal("v23", "v24", "s100", "s42", 3)]
        else: pre[35] += ["s_waitcnt lgkmcnt(0)", "s_barrier"]
        if cfg.rx & 1: pre = [[x for x in p if not (isinstance(x, str) and x.startswith("ds_write"))] for p in pre]
        if cfg.rx & 2: pre = [[x for x in p if not (isinstance(x, str) and x.startswith("buffer_store"))] for p in pre]
        if cfg.rx & 4 and r not in (cfg.re_, 4): pre = [[x for x in p if x != "s_barrier"] for p in pre]
        if cfg.rx & 8: pre = [[x for x in p if not (isinstance(x, str) and x.startswith("v_"))] for p in pre]
        g = 0
        for pos in (2*r, 2*r + 1):
            nu = GR[pos]
            for T in range(6):
                for c in (1, 2, 3):
                    d = acc2(nu, T)
                    A(mf(d, ar(AF + 4*nu) if c == 1 else ar(ax(pos, c)), vr(bfr(1, T)) if c == 1 else bx(c, T), d))
                    A.emit(pre[g]); g += 1
    stamp()
    A.emit(x_reads(4))
    A("s_waitcnt lgkmcnt(0)")
    for it in flush(4, True): A(it[1] if isinstance(it, tuple) else it)
    if cfg.keep:
        A("s_cmp_lg_u32 s20, s28\ns_cbranch_scc1 L_nokeep")
        for m in range(15): A(f"ds_write_b128 v32, {vr(KEEP + 8*m)} offset:{32768 + m*1024}")
        A("L_nokeep:")
        A("s_mov_b32 s14, 0x40000")
    A("s_mul_i32 s34, s27, 192\ns_and_b32 s35, s28, 1\ns_mul_i32 s35, s35, 96\ns_add_u32 s34, s34, s35\ns_lshl_b32 s35, s20, 5\ns_add_u32 s34, s34, s35\ns_mul_i32 s34, s34, 2560")
    A("s_mul_i32 s35, s25, 1280\ns_add_u32 s34, s34, s35\ns_mul_i32 s35, s23, 320\ns_add_u32 s34, s34, s35\ns_lshr_b32 s35, s28, 1\ns_mul_i32 s35, s35, 160\ns_add_u32 s34, s34, s35")
    A("s_add_u32 s16, s48, s34\ns_addc_u32 s17, s49, 0\ns_sub_u32 s18, 3932160, s34\ns_mov_b32 s19, 0x20000")
    A("s_lshl_b32 s52, s28, 16\ns_lshl_b32 s35, s20, 10\ns_add_u32 s52, s52, s35")
    if cfg.keep:
        for i in range(1, 4): A(f"s_add_u32 s34, s28, {i}\ns_and_b32 s34, s34, 3\ns_lshl_b32 s34, s34, 14\ns_add_u32 s{88+i}, s52, s34")
        A("v_add_u32 v16, s35, v32")
    else:
        for i in range(4): A(f"s_add_u32 s{88+i}, s52, {i*16384}")
    A("v_add_u32 v17, 6144, v32\nv_add_u32 v20, 12288, v32")
    stamp(2)
    A("s_waitcnt vmcnt(0) lgkmcnt(0)")
    A("s_barrier")
    stamp(2)
    A("v_readfirstlane_b32 s98, v19\ns_nop 0\ns_sub_u32 s98, s98, s58" if cfg.re_ < 4 else "s_mov_b32 s98, 0")
    A("s_cmp_lg_u32 s20, 3\ns_cbranch_scc1 L_fw")
    signal("v15", "v22", "s100", "s42", 3)
    poll("s100", "s58", "0x40000", "s42", "0x40010", None)
    A("s_barrier")
    A("s_endpgm")
    A("L_fw:")
    for nu in range(5): A(f"ds_read_b128 {vr(40 + 16*nu)}, v16 offset:{32768 + nu*3072}")
    A("s_mov_b32 s55, 40960")
    A("s_mov_b32 s33, 0xffff0000")
    def fin(nus):
        for nu in nus:
            for src in range(1, 4):
                A(f"buffer_load_dwordx4 {vr(40 + 16*nu + 4*src)}, v{(32, 17, 20)[nu // 2]}, s[12:15], s{88+src} offen offset:{(nu % 2)*3072} {cfg.pld}")
        for i, nu in enumerate(nus):
            A(f"s_waitcnt vmcnt({3*(len(nus) - 1 - i) + 2*i}) lgkmcnt(0)")
            b = 40 + 16*nu; lo = 128
            for k in range(16): A(f"v_lshlrev_b32 v{lo+k}, 16, v{b+k}")
            for k in range(16): A(f"v_and_b32 v{b+k}, s33, v{b+k}")
            for base in (lo, b):
                for z in range(2):
                    A(f"v_pk_add_f32 v[{base+2*z}:{base+2*z+1}], v[{base+2*z}:{base+2*z+1}], v[{base+4+2*z}:{base+5+2*z}]")
                    A(f"v_pk_add_f32 v[{base+8+2*z}:{base+9+2*z}], v[{base+8+2*z}:{base+9+2*z}], v[{base+12+2*z}:{base+13+2*z}]")
            for base in (lo, b):
                for z in range(2):
                    A(f"v_pk_add_f32 v[{base+2*z}:{base+2*z+1}], v[{base+2*z}:{base+2*z+1}], v[{base+8+2*z}:{base+9+2*z}]")
            for z in range(4): A(f"v_cvt_pk_bf16_f32 v{b+4+z}, v{lo+z}, v{b+z}")
            A(f"buffer_store_dwordx2 {vr(b+4, 2)}, v34, s[16:19], 0 offen offset:{nu*32} {cfg.outst}")
            A(f"buffer_store_dwordx2 {vr(b+6, 2)}, v34, s[16:19], s55 offen offset:{nu*32} {cfg.outst}")
    NE = cfg.re_ - 1 if cfg.re_ < 5 else 0
    if NE:
        poll("s100", "s58", "0x40004", "s42", "0x40014", None)
        fin(list(range(NE)))
    A("s_barrier")
    stamp(2)
    fin(list(range(NE, 5)))
    stamp.finish()
    A("L_end:\ns_endpgm")

    A("L_fallback:")
    A("s_waitcnt vmcnt(0) lgkmcnt(0)")
    A("s_mov_b32 s4, s36\ns_mov_b32 s5, s37\ns_mov_b32 s6, 0x40000\ns_mov_b32 s7, 0x20000")
    A("s_mov_b32 s8, s38\ns_mov_b32 s9, s39\ns_mov_b32 s10, 0x40000\ns_mov_b32 s11, 0x20000")
    A("s_lshl_b32 s52, s20, 13\ns_add_u32 s52, s52, 131072")
    A("v_xor_b32 v58, v3, v4")
    A("v_lshlrev_b32 v59, 1, v4\nv_xor_b32 v59, v3, v59")
    A("v_lshlrev_b32 v60, 8, v4")
    for n in range(4):
        A(f"v_xor_b32 v61, {4*n}, v58")
        A(f"v_lshl_add_u32 v{40+n}, v61, 4, v60")
    for n in range(2):
        A(f"v_xor_b32 v61, {8*n}, v59")
        A(f"v_lshl_add_u32 v{44+n}, v61, 4, v60")
    A("s_sub_u32 s34, s52, s46")
    for c in range(4): A(f"v_add_u32 v{20+c}, s34, v{20+c}")
    A("s_sub_u32 s34, s52, s47")
    for dt in range(8): A(f"v_add_u32 v{24+dt}, s34, v{24+dt}")
    for i in range(192): A(f"v_accvgpr_write_b32 a{i}, 0")
    for k in range(24): A(f"v_mov_b32 v{L+k}, 0")
    A("s_mov_b32 s60, 0")
    A("L_fb_loop:")
    for isv in range(2):
        for n in range(8):
            A(f"s_add_u32 m0, s52, {n*1024}")
            A(f"s_add_u32 s55, s60, {n*1024}")
            A(f"buffer_load_dwordx4 v{(44 + (n & 1)) if isv else (40 + (n & 3))}, s[{8 if isv else 4}:{11 if isv else 7}], s55 offen lds")
        A("s_waitcnt vmcnt(0)")
        if isv:
            for dt in range(8):
                for e in range(2): A(v_read(0, dt, e))
        else:
            for kt in range(2):
                for c in range(4): A(k_read(0, kt, c))
        A("s_waitcnt lgkmcnt(0)")
    R0, R1 = 52, 53
    for t in range(3):
        for m in qk_mfmas(t, 0): A(m)
        A("s_nop 7")
        for Tl in range(2):
            T = 2*t + Tl; s0 = S[0] + 8*Tl
            A(f"v_max3_f32 v{R0}, v{s0}, v{s0+1}, v{s0+2}")
            A(f"v_max3_f32 v{R0}, v{R0}, v{s0+3}, v{s0+4}")
            A(f"v_max3_f32 v{R0}, v{R0}, v{s0+5}, v{s0+6}")
            A(f"v_max3_f32 v{R0}, v{R0}, v{s0+7}, 0")
            A(f"v_mov_b32 v{R1}, v{R0}\ns_nop 1\nv_permlane16_swap_b32 v{R0}, v{R1}\nv_max_f32 v{R0}, v{R0}, v{R1}")
            A(f"v_mov_b32 v{R1}, v{R0}\ns_nop 1\nv_permlane32_swap_b32 v{R0}, v{R1}\nv_max_f32 v{R0}, v{R0}, v{R1}")
            A(f"v_exp_f32 v{R1}, -v{R0}")
            for k in range(8): A(f"v_sub_f32 v{s0+k}, v{s0+k}, v{R0}")
            for k in range(4): A(f"v_sub_f32 v{NEGM+4*T+k}, v{NEGM+4*T+k}, v{R0}")
            for k in range(4): A(f"v_mul_f32 v{L+4*T+k}, v{L+4*T+k}, v{R1}")
            for k in range(0, 32, 4):
                for q in range(4): A(f"v_accvgpr_read_b32 v{54+q}, a{32*T + k + q}")
                for q in range(4): A(f"v_mul_f32 v{54+q}, v{54+q}, v{R1}")
                for q in range(4): A(f"v_accvgpr_write_b32 a{32*T + k + q}, v{54+q}")
        for e in range(16): A(EX(0, e))
        A("s_nop 0")
        for k in range(8): A(CV(0, k))
        A("s_nop 1")
        for m in pv_mfmas(t, 0): A(m)
    A("s_add_u32 s60, s60, 8192\ns_cmp_lt_u32 s60, 0x40000\ns_cbranch_scc1 L_fb_loop")
    A("s_nop 7")
    A("s_branch L_epi")

def gen(cfg):
    A = Asm()
    A("""; Fused kernel (generated by the author's own script): Q projection -> attention -> output projection.
; kernarg: 0 A_x 8 A_k 16 A_v 24 A_wq 32 A_wo 40 B_x 48 B_k 56 B_v 64 B_wq 72 B_wo 80 out 88 debug 96 ws""")
    A("; @launch grid=(256,1,1) block=(256,1,1) lds=163840")
    A('.amdgcn_target "amdgcn-amd-amdhsa--gfx950"\n.text')
    gen_kernel(A, cfg)
    A('.section .rodata,"a"\n.p2align 6')
    A(f".amdhsa_kernel {NAME}_kernel\n  .amdhsa_next_free_vgpr 512\n  .amdhsa_next_free_sgpr 102\n"
      "  .amdhsa_accum_offset 256\n  .amdhsa_group_segment_fixed_size 0\n  .amdhsa_kernarg_size 104\n"
      "  .amdhsa_user_sgpr_count 2\n  .amdhsa_user_sgpr_kernarg_segment_ptr 1\n"
      "  .amdhsa_system_sgpr_workgroup_id_x 1\n.end_amdhsa_kernel")
    return A.text()

if __name__ == "__main__":
    cfg = Cfg()
    for a in sys.argv[2:]:
        k, v = a.split("=")
        old = getattr(cfg, k)
        setattr(cfg, k, type(old)(int(v)) if isinstance(old, (bool, int)) else v.replace('+', ' '))
    open(sys.argv[1], "w").write(gen(cfg))
```

```python
import sys, struct, math
NAME = "concat_heads__mha_block_cached__gqa_block_cached__near_ridge"
def f32bits(x): return struct.unpack("<I", struct.pack("<f", x))[0]

class Cfg:
    stamps = 0
    kv_flags = "sc1 nt"; xld = ''; wqld = ''; pfl = 'nt'
    ost = 'sc1'; old = 'sc1'; wold = ''; pst = 'sc1'; pld = 'sc1'; wopfl = ''; outst = ''
    wopf = 4
    force_fb = False
    thr_log2 = 64
    cpf = 1
    xwpf = 0
    qchain = 1
    qdsp = 3
    rot = 2
    rotd = 16
    wrot = 0
    wsg = 9
    wb0 = 3
    wbn = 4
    acq = 0
    psleep = 2
    rescue = 64
    lag = 8
    qrot = 2
    cpf2 = 0
    ramp = 0
    dpos = -5
    wpat = '5'
    win = 1
    xp = 0
    nearly = 2
    keep = 1
    tlb = 0
    pfb = 1
    kse = 0
    kve = 0
    swin = 0
    swin2 = 0
    swk = 4
    obsteps = 2
    sigb = 3
    sigc = 6
    re_ = 3
    epg = 33
    osched = '3,3,4,4,4'
    obk0 = 2
    pollk = 2
    apoll = 1
    nost = 0
    apg = 20
    ebar = 0
    lt0 = 84
    lt1 = 84
    pa = 2
    dbgst = 0
    rx = 0
    sk0 = 0
    xw0 = 9
    xwsp = 4
    p2x = 0
    w5it = 0
    wramp = '777733'
    kvq = 2
    early = 0
    barg = '70,50,30,10'
    slabst = 0
    ssk = 0
    ss0 = 0
    ssr = 0
    ssn = 1
    sparse1 = 1
    pvord = 1
    wlate = 0
    wmode = 3
    stride = 1
    kvpf = 0
    kvpfl = ''
    kvpf0 = 0
    kvpf1 = 7
    pat = 3
    sigstep = 0
    no_dma = False; no_bar = False; q_nodma = False

class Asm:
    def __init__(s): s.l = []; s.vm = []
    def __call__(s, x): s.l.append(x)
    def vmem(s, x, tag): s.l.append(x); s.vm.append(tag)
    def vm_after(s, tags):
        last = -1
        for i, t in enumerate(s.vm):
            if t in tags: last = i
        assert last >= 0, tags
        return min(63, len(s.vm) - 1 - last)
    def emit(s, items):
        for it in items:
            if isinstance(it, tuple): s.vmem(it[0], it[1])
            elif callable(it): it()
            else: s(it)
    def text(s): return "\n".join(s.l) + "\n"

def mf(d, a, b, c): return f"v_mfma_f32_16x16x32_bf16 {d}, {a}, {b}, {c}"
def vr(b, n=4): return f"v[{b}:{b+n-1}]" if n > 1 else f"v{b}"
def ar(b, n=4): return f"a[{b}:{b+n-1}]" if n > 1 else f"a{b}"
STAMP_BASE = 64 << 20
PBASE = 32 << 20
MBOX = 30 << 20

class Stamper:
    def __init__(s, A, cfg): s.A = A; s.cfg = cfg; s.n = 0
    def __call__(s, mode=47):
        if s.cfg.stamps & mode:
            s.A(f"s_memrealtime s[{64+4*s.n}:{65+4*s.n}]\ns_memtime s[{66+4*s.n}:{67+4*s.n}]"); s.n += 1
    def finish(s):
        A = s.A
        if not s.cfg.stamps: return
        A("s_waitcnt vmcnt(0)")
        s(255)
        assert s.n <= 7
        A("s_waitcnt lgkmcnt(0)")
        if s.cfg.dbgst:
            A("s_movk_i32 s38, 0x100\ns_mov_b64 exec, 1\nv_mov_b32 v1, 0")
            A("s_not_b32 s34, s64\nv_mov_b32 v2, s34\nbuffer_atomic_umax v2, v1, s[36:39], 0 offen\ns_nop 1")
            for k in range(1, s.n):
                A(f"v_mov_b32 v2, s{64+4*k}\nbuffer_atomic_umax v2, v1, s[36:39], 0 offen offset:{4*k}\ns_nop 1")
                A(f"s_sub_u32 s34, s{64+4*k}, s{60+4*k}\nv_mov_b32 v2, s34\nbuffer_atomic_add v2, v1, s[36:39], 0 offen offset:{32+4*k}\ns_nop 1")
            return
        A(f"s_add_u32 s44, s44, {STAMP_BASE}\ns_addc_u32 s45, s45, 0\ns_mov_b32 s46, 0x100000\ns_mov_b32 s47, 0x20000")
        A("s_lshl_b32 s34, s2, 2\ns_add_u32 s34, s34, s20\ns_lshl_b32 s34, s34, 6")
        A("v_mov_b32 v1, s34")
        A(f"v_mov_b32 v2, {s.n}\nv_mov_b32 v3, s59\nbuffer_store_dwordx2 v[2:3], v1, s[44:47], 0 offen offset:56\ns_nop 1")
        for k in range(s.n):
            A(f"v_mov_b32 v2, s{64+4*k}\nv_mov_b32 v3, s{66+4*k}")
            A(f"buffer_store_dwordx2 v[2:3], v1, s[44:47], 0 offen offset:{8*k}")
            A("s_nop 1")

XBUF = [114688, 139264]
WSLOT = [2, 0, 1]

def gen_kernel(A, cfg):
    K1 = NAME + "_kernel"
    A(f".globl {K1}\n.p2align 8\n.type {K1},@function\n{K1}:")
    A("s_cmp_ge_u32 s2, 256\ns_cbranch_scc1 L_end")
    stamp = Stamper(A, cfg)
    stamp(255)
    A("s_bfe_u32 s25, s2, 0x10002")
    A("s_mul_i32 s28, s25, 40")
    A("s_add_u32 s62, s0, s28\ns_addc_u32 s63, s1, 0")
    A("s_load_dwordx4 s[36:39], s[62:63], 0")
    A("s_load_dwordx4 s[40:43], s[62:63], 16")
    A("s_load_dwordx2 s[44:45], s[0:1], 96")
    A("s_load_dwordx2 s[92:93], s[62:63], 32")
    if cfg.cpf:
        A("s_getpc_b64 s[88:89]")
        A("L_pc:")
        A("s_mov_b32 s90, L_end - L_pc\ns_mov_b32 s91, 0x20000")
        A("v_lshlrev_b32 v54, 7, v0")
        A.vmem("buffer_load_dword v56, v54, s[88:91], 0 offen", "CPF")
    A("s_lshr_b32 s24, s2, 3")
    A("s_and_b32 s28, s2, 3")
    A("s_and_b32 s23, s24, 3")
    A("s_lshl_b32 s26, s28, 2\ns_add_u32 s26, s26, s23")
    A("s_lshr_b32 s27, s24, 2")
    A("v_lshrrev_b32 v1, 6, v0")
    A("v_and_b32 v2, 63, v0")
    A("v_readfirstlane_b32 s20, v1")
    A("v_and_b32 v3, 15, v2\nv_lshrrev_b32 v4, 4, v2")
    A("v_lshrrev_b32 v10, 3, v2\nv_and_b32 v11, 7, v2")
    A("v_xor_b32 v13, v11, v4")
    A("v_mul_u32_u24 v14, 1280, v10")
    A("v_lshl_add_u32 v58, v13, 4, v14")
    A("v_xor_b32 v13, 4, v13")
    A("v_lshl_add_u32 v59, v13, 4, v14")
    A("v_add_u32 v59, 9216, v59")
    A("v_add_u32 v60, 18432, v58\nv_add_u32 v61, 18432, v59")
    A("v_lshlrev_b32 v10, 2, v4\nv_xor_b32 v10, v3, v10")
    A("v_lshlrev_b32 v11, 13, v4")
    A("v_lshl_add_u32 v6, v10, 4, v11")
    for n in range(1, 4): A(f"v_add_u32 v{6+n}, {n*31744}, v6")
    A("s_lshr_b32 s21, s20, 1\ns_and_b32 s22, s20, 1")
    A("s_lshl_b32 s29, s26, 1\ns_add_u32 s29, s29, s21")
    A("s_lshl_b32 s46, s21, 16")
    A("s_mul_i32 s48, s20, 6144")
    A("s_lshl_b32 s54, s22, 13\ns_add_u32 s54, s54, s46")
    A("s_mul_i32 s34, s27, 245760\ns_mul_i32 s49, s20, 61440")
    A("s_lshl_b32 s35, s29, 8\ns_lshl_b32 s53, s22, 18")
    A("s_waitcnt lgkmcnt(0)")
    A("s_add_u32 s4, s36, s34\ns_addc_u32 s5, s37, 0\ns_mov_b32 s6, 245760\ns_mov_b32 s7, 0x20000")
    A("s_add_u32 s8, s42, s35\ns_addc_u32 s9, s43, 0\ns_sub_u32 s10, 5242880, s35\ns_mov_b32 s11, 0x20000")
    if cfg.qrot == 2: A("s_add_u32 s34, s27, s23\ns_and_b32 s34, s34, 1\ns_mul_i32 s34, s34, 5")
    elif cfg.qrot == 3: A("s_add_u32 s34, s27, s23\ns_and_b32 s34, s34, 3\ns_mul_i32 s34, s34, 5\ns_lshr_b32 s34, s34, 1")
    elif cfg.qrot:
        A("s_mul_i32 s34, s27, 5\ns_mul_i32 s35, s23, 10\ns_add_u32 s34, s34, s35\ns_lshr_b32 s34, s34, 2")
        A("s_cmp_ge_u32 s34, 10\ns_cselect_b32 s35, 10, 0\ns_sub_u32 s34, s34, s35")
    else: A("s_mov_b32 s34, 0")
    A("s_lshl_b32 s50, s34, 7\ns_add_u32 s50, s50, s49\ns_add_u32 s96, s49, 1280")
    A("s_lshl_b32 s51, s34, 19\ns_add_u32 s51, s51, s53\ns_add_u32 s97, s53, 5242880")
    def dma_x(xi):
        r = []
        for n in range(6):
            if n % 4 == 0:
                r += [f"s_add_u32 m0, s48, {XBUF[xi % 2] + n*1024}", f"s_add_u32 s55, s50, {n*10240}"]
            r.append((f"buffer_load_dwordx4 v{58 + (n & 3)}, s[4:7], s55 offen offset:{(n & 3)*1024} {cfg.xld} lds", f"X{xi}"))
        r += ["s_add_u32 s50, s50, 128", "s_cmp_eq_u32 s50, s96\ns_cselect_b32 s50, s49, s50"]
        return r
    def dma_w(sg):
        r = []
        for n in range(8):
            if n % 4 == 0:
                r += [f"s_add_u32 m0, s54, {WSLOT[sg % 3]*16384 + n*1024}", f"s_add_u32 s55, s51, {n*4*8192}"]
            r.append((f"buffer_load_dwordx4 v{6 + (n & 3)}, s[8:11], s55 offen offset:{(n & 3)*1024} {cfg.wqld} lds", f"W{sg}"))
        r += ["s_add_u32 s51, s51, 0x80000", "s_cmp_eq_u32 s51, s97\ns_cselect_b32 s51, s53, s51"]
        return r
    def kmap(half):
        e = cfg.kse
        if e == 0: return "s_and_b32 s55, s30, 0x3ffff"
        hi = 0x3ffff & ~((1 << (13 + e)) - 1)
        r = f"s_bfe_u32 s35, s30, 0x{(e << 16) | 13:x}\ns_lshl_b32 s55, s35, 10"
        if hi: r += f"\ns_and_b32 s35, s30, 0x{hi:x}\ns_or_b32 s55, s55, s35"
        if half: r += f"\ns_or_b32 s55, s55, 0x{1 << (12 + e):x}"
        return r
    def dma_kv(step, nmax=8):
        r = []
        for n in range(nmax):
            if n % 4 == 0:
                r += [f"s_add_u32 m0, s54, {(step % 4)*16384 + n*1024}", kmap(n), "s_add_u32 s30, s30, s101" if n else "s_add_u32 s30, s30, 4096"]
            r.append((f"buffer_load_dwordx4 v{16 + (n & 3)}, s[12:15], s55 offen offset:{(n & 3)*1024} {cfg.kv_flags} lds", f"KV{step}"))
        return r
    A.emit(dma_x(0)); A.emit(dma_w(0))
    def xw_pf():
        return [(f"buffer_load_dword v56, v62, s[4:7], s58 offen", "PF"), (f"buffer_load_dword v56, v63, s[84:87], s60 offen", "PF"),
                "s_add_u32 s58, s58, 512", "s_add_u32 s60, s60, 0x200000"]
    if cfg.xwpf:
        assert not cfg.qrot and cfg.wmode != 4
        A("v_min_u32 v62, 47, v2\nv_mul_u32_u24 v62, 1280, v62")
        A("v_lshrrev_b32 v63, 2, v2\nv_min_u32 v63, 7, v63\nv_lshlrev_b32 v63, 16, v63\nv_and_b32 v14, 3, v2\nv_lshl_add_u32 v63, v14, 7, v63")
        A("s_mul_i32 s58, s23, 61440\ns_lshl_b32 s34, s20, 7\ns_add_u32 s58, s58, s34\ns_add_u32 s58, s58, 128")
        A("s_lshl_b32 s60, s20, 6\ns_add_u32 s60, s60, s27\ns_add_u32 s60, s60, 64\ns_lshl_b32 s60, s60, 13")
        A("s_lshl_b32 s34, s21, 8\ns_sub_u32 s84, s8, s34\ns_subb_u32 s85, s9, 0\ns_add_u32 s86, s10, s34\ns_mov_b32 s87, 0x20000")
        A.emit(xw_pf())
    A("s_lshl_b32 s34, s27, 5\ns_add_u32 s34, s34, s29\ns_lshl_b32 s34, s34, 18")
    A("s_add_u32 s36, s38, s34\ns_addc_u32 s37, s39, 0")
    A("s_add_u32 s38, s40, s34\ns_addc_u32 s39, s41, 0")
    A("s_cmp_eq_u32 s22, 1")
    A("s_cselect_b32 s12, s38, s36\ns_cselect_b32 s13, s39, s37")
    A("s_mov_b32 s14, 0x40000\ns_mov_b32 s15, 0x20000")
    A("s_cselect_b64 s[32:33], -1, 0")
    A("v_xor_b32 v11, v3, v4")
    A("v_lshlrev_b32 v10, 1, v4\nv_xor_b32 v10, v3, v10")
    A("v_lshlrev_b32 v12, 8, v4")
    for n in range(4):
        A(f"v_xor_b32 v13, {4*n}, v11")
        A(f"v_xor_b32 v14, {8*(n&1)}, v10")
        A("v_cndmask_b32 v13, v13, v14, s[32:33]")
        A(f"v_lshl_add_u32 v{16+n}, v13, 4, v12")
        if n and cfg.kse: A(f"v_add_u32 v{16+n}, {n * ((1024 << cfg.kse) - 1024)}, v{16+n}")
    A("v_lshlrev_b32 v12, 8, v3\nv_add_u32 v12, s46, v12")
    for c in range(4):
        A(f"v_xor_b32 v13, {4*c}, v11")
        A(f"v_lshl_add_u32 v{20+c}, v13, 4, v12")
    A("v_lshrrev_b32 v10, 2, v3\nv_lshl_add_u32 v11, v4, 2, v10")
    A("v_and_b32 v12, 7, v11")
    A("v_lshlrev_b32 v11, 8, v11")
    A("v_and_b32 v13, 3, v3\nv_lshl_add_u32 v11, v13, 3, v11")
    A("s_add_u32 s47, s46, 8192")
    A("v_add_u32 v11, s47, v11")
    for dt in range(8):
        A(f"v_xor_b32 v14, {dt}, v12")
        A(f"v_lshl_add_u32 v{24+dt}, v14, 5, v11")
    A("v_lshlrev_b32 v32, 4, v2\nv_add_u32 v33, 4096, v32")
    A(f"s_mul_i32 s34, s22, 12288\ns_add_u32 s34, s34, {XBUF[0]}")
    A("v_lshrrev_b32 v11, 1, v3\nv_xor_b32 v11, v4, v11")
    A("v_lshlrev_b32 v12, 7, v3\nv_add_u32 v12, s34, v12")
    for s in range(2):
        A(f"v_xor_b32 v14, {4*s}, v11")
        A(f"v_lshl_add_u32 v{52+s}, v14, 4, v12")
    A("v_lshl_add_u32 v11, v4, 3, v10\nv_lshlrev_b32 v11, 8, v11")
    A("v_lshl_add_u32 v11, v13, 4, v11")
    A("v_add_u32 v11, s46, v11")
    for c in range(4):
        A(f"v_xor_b32 v14, {c}, v10")
        A(f"v_lshl_add_u32 v{40+c}, v14, 6, v11")
    if cfg.kvpf:
        lam = cfg.kvpf; sh = lam.bit_length() - 1
        A(f"v_lshrrev_b32 v55, {sh}, v2\nv_lshlrev_b32 v55, 13, v55\nv_and_b32 v14, {lam-1}, v2\nv_lshl_add_u32 v55, v14, 7, v55")
        npf = lam // 2
        kvpf_list = [[f"s_mov_b32 s50, {k*(64//lam)*8192}", (f"buffer_load_dword v56, v55, s[12:15], s50 offen {cfg.kvpfl}", "PF")] for k in range(npf)]
        nsl = cfg.kvpf1 - cfg.kvpf0 + 1
    if cfg.sparse1:
        A("v_and_b32 v14, 3, v2\nv_cmp_eq_u32 vcc, 0, v14\nv_mov_b32 v14, 0x3f803f80\ns_nop 0")
        for k in range(4): A(f"v_cndmask_b32 v{48+k}, 0, v14, vcc")
    else:
        for k in range(4): A(f"v_mov_b32 v{48+k}, 0x3f803f80")
    A("v_lshl_add_u32 v45, v4, 4, s46")
    cs = f32bits(128 ** -0.5 * math.log2(math.e))
    A(f"v_mov_b32 v46, 0x{cs:08x}\nv_mov_b32 v47, 0x{cs:08x}")
    A(f"s_mov_b32 s31, 0x{f32bits(2.0 ** cfg.thr_log2):08x}")
    A("s_lshl_b32 s40, s25, 3\ns_add_u32 s40, s40, s27")
    A("s_lshl_b32 s34, s40, 5\ns_add_u32 s34, s34, s29\ns_lshl_b32 s34, s34, 1\ns_add_u32 s34, s34, s22\ns_mul_i32 s34, s34, 24576")
    A("s_add_u32 s16, s44, s34\ns_addc_u32 s17, s45, 0\ns_movk_i32 s18, 0x6000\ns_mov_b32 s19, 0x20000")
    A("s_mov_b32 s59, 0")
    if cfg.rot:
        if cfg.rot == 1:
            A("s_lshl_b32 s30, s2, 1\ns_add_u32 s30, s30, s21\ns_mul_i32 s34, s30, 0x9E3779B1\ns_lshr_b32 s30, s34, 27\ns_lshl_b32 s30, s30, 13")
        else:
            A(f"s_add_u32 s30, s2, 1\ns_mul_i32 s34, s30, 0x9E3779B1\ns_lshr_b32 s30, s34, 27\ns_mul_i32 s35, s21, {cfg.rotd}\ns_add_u32 s30, s30, s35\ns_lshl_b32 s30, s30, 13")
        if cfg.stride: A("s_bfe_u32 s101, s34, 0x40017\ns_lshl_b32 s101, s101, 14\ns_add_u32 s101, s101, 4096")
        else: A("s_movk_i32 s101, 0x1000")
    else:
        A("s_mov_b32 s30, 0\ns_movk_i32 s101, 0x1000")
    if cfg.cpf:
        A("s_mov_b32 s34, 0x8000")
        A.vmem("buffer_load_dword v56, v54, s[88:91], s34 offen", "CPF")
    if cfg.wmode in (3, 4):
        A("s_lshl_b32 s34, s26, 3\ns_add_u32 s34, s34, s27\ns_mul_i32 s34, s34, 40960")
        A("s_add_u32 s88, s92, s34\ns_addc_u32 s89, s93, 0\ns_mov_b32 s90, 40960\ns_mov_b32 s91, 0x20000")
        A("v_add_u32 v55, 0x8000, v54")
        if cfg.wmode == 4:
            per = 320 // (4 * cfg.wbn)
            A(f"v_mul_u32_u24 v55, {per}, v1\nv_add_u32 v55, v55, v2\nv_lshlrev_b32 v55, 7, v55\nv_cmp_gt_u32 vcc, {per}, v2\nv_mov_b32 v14, 0x100000\ns_nop 0\nv_cndmask_b32 v55, v14, v55, vcc")
    if not cfg.early: A.emit(dma_x(1)); A.emit(dma_w(1))

    ACC = 64
    def acc(T, dt): return ACC + 32 * T + 4 * dt
    def fa(dt, s): return 80 + 8 * dt + 4 * s
    def fb(p, T, s): return (144 if p == 0 else 192) + 8 * T + 4 * s
    def qa_reads(sg, dt):
        c, e = dt >> 1, dt & 1
        return [f"ds_read_b64_tr_b16 {ar(fa(dt, s) + 2*f, 2)}, v{40+c} offset:{WSLOT[sg % 3]*16384 + s*8192 + f*1024 + 8*e}"
                for s in range(2) for f in range(2)]
    def qb_read(sg, T, s):
        return f"ds_read_b128 {ar(fb(sg % 2, T, s))}, v{52 + s} offset:{(sg % 2)*24576 + T*2048}"
    A(f"s_waitcnt vmcnt({A.vm_after(['X0', 'W0'])})")
    A("s_barrier")
    for T in range(6):
        for s in range(2): A(qb_read(0, T, s))
    for dt in range(8):
        for r in qa_reads(0, dt): A(r)
    fill = [f"v_accvgpr_write_b32 a{i}, 0" for i in range(80)]
    pend = (dma_x(1) + dma_w(1) if cfg.early else []) + dma_w(2)
    NST = (5 if cfg.win else 8)
    qend = 8 + cfg.lag + NST
    PFW = [(f"buffer_load_dword v56, v54, s[88:91], 0 offen {cfg.wopfl}", "KVPF"), (f"buffer_load_dword v56, v55, s[88:91], 0 offen {cfg.wopfl}", "KVPF")]
    BG = [int(x) for x in cfg.barg.split(",")] if cfg.early else [10]
    for sg in range(10):
        last = sg == 9
        slots = [[] for _ in range(96)]
        if not last:
            need = [f"W{sg+1}", f"X{sg+1}"]
            G = BG[min(sg, len(BG) - 1)]
            slots[G] = ["WAIT"]; slots[G + 1] = ["BAR"]
            if G > 11: slots[11] = ["s_waitcnt lgkmcnt(0)"]
            rl = [(11, r) for r in qa_reads(sg + 1, 0)]
            for T in range(6): rl += [(0, qb_read(sg + 1, T, 0)), (0, qb_read(sg + 1, T, 1))]
            for dt in range(1, 8): rl += [(12*dt + 11, r) for r in qa_reads(sg + 1, dt)]
            for g in range(G + 2, 96):
                k = 0
                while rl and rl[0][0] <= g and (k < 2 or g == 95):
                    slots[g].append(rl.pop(0)[1]); k += 1
            assert not rl
        else:
            fill += [f"v_accvgpr_write_b32 a{i}, 0" for i in range(144, 192)]
            for n in range(5):
                fill += [f"v_add_u32 v14, {64*n}, v2", "v_mul_u32_u24 v15, 3277, v14", "v_lshrrev_b32 v15, 16, v15",
                         "v_mul_u32_u24 v34, 20, v15", "v_sub_u32 v14, v14, v34", "v_bfe_u32 v34, v15, 2, 1", "v_lshlrev_b32 v34, 1, v34",
                         "v_xor_b32 v14, v14, v34", "v_mul_u32_u24 v15, 1280, v15", f"v_lshl_add_u32 v{5+n}, v14, 4, v15"]
                if 0 < n < 4: fill.append(f"v_subrev_u32 v{5+n}, {1024*n}, v{5+n}")
        if cfg.slabst:
            A(f"s_memrealtime s[98:99]\ns_waitcnt lgkmcnt(0)\nv_writelane_b32 v57, s98, {sg + 1}")
        A("s_waitcnt lgkmcnt(15)")
        order = [(T, s) for T in range(6) for s in range(2)] if cfg.qchain else [(T, s) for s in range(2) for T in range(6)]
        g = 0
        for dt in range(8):
            for T, s in order:
                d = vr(acc(T, dt))
                A(mf(d, ar(fa(dt, s)), ar(fb(sg % 2, T, s)), "0" if sg == 0 and s == 0 else d))
                used = 0
                for x in slots[g]:
                    if x == "WAIT": A(f"s_waitcnt vmcnt({A.vm_after(need)}) lgkmcnt(0)"); used = 2
                    elif x == "BAR":
                        A("s_barrier"); used = 2
                        if sg + 2 < 10: pend += dma_x(sg + 2)
                        if cfg.kvpf and cfg.kvpf0 <= sg <= cfg.kvpf1:
                            r = sg - cfg.kvpf0
                            for k in range(r * npf // nsl, (r + 1) * npf // nsl): pend += kvpf_list[k]
                        if sg + 3 < 10: pend += dma_w(sg + 3)
                        if cfg.xwpf and sg in (cfg.pfb, cfg.pfb + 3): pend += xw_pf()
                        if cfg.wmode == 4 and cfg.wb0 <= sg < cfg.wb0 + cfg.wbn:
                            pend += [f"s_mov_b32 s60, {(sg - cfg.wb0) * (40960 // cfg.wbn)}", (f"buffer_load_dword v56, v55, s[88:91], s60 offen {cfg.wopfl}", "KVPF")]
                        if cfg.wmode == 3 and sg == cfg.wsg:
                            pend += PFW
                        if sg == (7 if cfg.kvq == 2 else 8) and cfg.kvq: pend += dma_kv(0)
                        if sg == 8 and cfg.kvq == 2: pend += dma_kv(1)
                    else: A(x); used = 2
                if last and g == 11:
                    A("s_waitcnt lgkmcnt(0)")
                    if cfg.kve:
                        A("s_barrier"); used = 2
                        pend += dma_kv(2, min(8, qend - 16)) + dma_kv(3, max(0, qend - 24))
                    if cfg.wmode == 3 and cfg.wsg == 9: pend += PFW
                if last and g % 12 == 11 and g < 95:
                    fill += [f"v_accvgpr_write_b32 a{i}, 0" for i in range(fa(dt, 0), fa(dt, 0) + 8)]
                if not used and pend:
                    if isinstance(pend[0], str): A(pend.pop(0))
                    elif g % (cfg.qdsp if sg >= len(BG) - 1 else 2) == 0:
                        it = pend.pop(0); used = 2
                        if cfg.q_nodma and not it[1].startswith("KV"): A.vm.append(it[1])
                        else: A.vmem(*it)
                if not used:
                    for _ in range(2):
                        if fill: A(fill.pop(0))
                g += 1
    assert not pend, len(pend)
    fill += [f"v_accvgpr_write_b32 a{i}, 0" for i in range(fa(7, 0), fa(7, 0) + 8)]
    if not cfg.kve: A("s_barrier")
    stamp(1)
    if cfg.slabst:
        A(f"s_memrealtime s[60:61]\ns_waitcnt lgkmcnt(0)\nv_writelane_b32 v57, s60, 11\nv_writelane_b32 v57, s64, 0")
        A(f"s_add_u32 s88, s44, {STAMP_BASE + 0x80000}\ns_addc_u32 s89, s45, 0\ns_mov_b32 s90, 0x100000\ns_mov_b32 s91, 0x20000")
        A("s_lshl_b32 s34, s2, 10\nv_lshlrev_b32 v62, 2, v0")
        A.vmem("buffer_store_dword v57, v62, s[88:91], s34 offen", "ST")
        A("s_nop 3")
    A("s_load_dwordx4 s[48:51], s[0:1], 80")
    A("s_lshl_b32 s41, s40, 2\ns_add_u32 s42, s41, s23\ns_add_u32 s41, s41, s28")
    A(f"s_add_u32 s8, s44, {MBOX}\ns_addc_u32 s9, s45, 0\ns_mov_b32 s10, 0x8000\ns_mov_b32 s11, 0x20000")
    A("s_lshl_b32 s99, s41, 8\ns_lshl_b32 s100, s42, 8\ns_add_u32 s100, s100, 0x4000")
    A("v_mov_b32 v57, 0")
    A.vmem("buffer_load_dword v62, v57, s[8:11], s99 offen sc1", "SNAP")
    A.vmem("buffer_load_dword v63, v57, s[8:11], s100 offen sc1", "SNAP")
    for st in range(cfg.kvq, 2): A.emit(dma_kv(st))
    for z in fill: A(z)
    for k in range(96):
        A(f"v_pk_mul_f32 v[{ACC+2*k}:{ACC+2*k+1}], v[{ACC+2*k}:{ACC+2*k+1}], v[46:47]")
        if k >= 1: A(f"v_cvt_pk_bf16_f32 v{ACC+k-1}, v{ACC+2*k-2}, v{ACC+2*k-1}")
    A(f"v_cvt_pk_bf16_f32 v{ACC+95}, v{ACC+190}, v{ACC+191}")
    def qf(T, c): return ACC + 16 * T + 4 * c
    A("s_waitcnt lgkmcnt(0)")
    if cfg.tlb:
        A.vmem("buffer_load_dword v56, v57, s[16:19], 0 offen sc1", "TLB")
        A(f"s_lshl_b32 s34, s42, 18\ns_add_u32 s34, s34, {PBASE + 15360}")
        A("s_add_u32 s4, s44, s34\ns_addc_u32 s5, s45, 0\ns_movk_i32 s6, 0x100\ns_mov_b32 s7, 0x20000")
        A.vmem("buffer_load_dword v56, v57, s[4:7], 0 offen sc1", "TLB")
        A("s_mul_i32 s34, s27, 491520\ns_and_b32 s35, s28, 1\ns_mul_i32 s35, s35, 245760\ns_add_u32 s34, s34, s35\ns_mul_i32 s35, s20, 61440\ns_add_u32 s34, s34, s35")
        A("s_add_u32 s4, s48, s34\ns_addc_u32 s5, s49, 0")
        A.vmem("buffer_load_dword v56, v57, s[4:7], 0 offen sc1", "TLB")
        A("s_mov_b32 s4, s50\ns_mov_b32 s5, s51")
        A.vmem("buffer_load_dword v56, v57, s[4:7], 0 offen sc1", "TLB")

    S = [160, 176]; P = [192, 200]; NEGM = 208; L = 232; ONES = 48
    KF = 192; VF = 224
    def O(T, dt): return 32 * T + 4 * dt
    def k_read(st, kt, c): return f"ds_read_b128 {ar(KF + 16*kt + 4*c)}, v{20+c} offset:{st*16384 + kt*4096}"
    def v_read(st, dt, e): return f"ds_read_b64_tr_b16 {ar(VF + 4*dt + 2*e, 2)}, v{24+dt} offset:{st*16384 + e*4096}"
    def qk_mfmas(t, par):
        r = []
        for Tl in range(2):
            T = 2*t + Tl
            for kt in range(2):
                d = vr(S[par] + 8*Tl + 4*kt)
                for c in range(4):
                    r.append(mf(d, ar(KF + 16*kt + 4*c), vr(qf(T, c)), vr(NEGM + 4*T) if c == 0 else d))
        return r
    def pv_mfmas(t, par):
        r = []
        if cfg.pvord:
            for dt in range(8):
                for Tl in range(2):
                    T = 2*t + Tl
                    r.append(mf(ar(O(T, dt)), ar(VF + 4*dt), vr(P[par] + 4*Tl), ar(O(T, dt))))
            for Tl in range(2):
                T = 2*t + Tl
                r.append(mf(vr(L + 4*T), vr(ONES), vr(P[par] + 4*Tl), vr(L + 4*T)))
            return r
        for Tl in range(2):
            T = 2*t + Tl
            for dt in range(8):
                r.append(mf(ar(O(T, dt)), ar(VF + 4*dt), vr(P[par] + 4*Tl), ar(O(T, dt))))
            r.append(mf(vr(L + 4*T), vr(ONES), vr(P[par] + 4*Tl), vr(L + 4*T)))
        return r
    def EX(par, e): return f"v_exp_f32 v{S[par]+e}, v{S[par]+e}" if not cfg.xp & 1 else "s_nop 1"
    def CV(par, k): return f"v_cvt_pk_bf16_f32 v{P[par]+k}, v{S[par]+2*k}, v{S[par]+2*k+1}" if not cfg.xp & 2 else f"v_mov_b32 v{P[par]+k}, 0x3f803f80"
    A(f"s_waitcnt vmcnt({A.vm_after(['KV0'])})")
    A("s_barrier")
    for c in range(4): A(f"ds_read_b128 {vr(S[1] + 4*c)}, v45 offset:{64*c}")
    for kt in range(2):
        for c in range(4): A(k_read(0, kt, c))
    for k in range(24): A(f"v_mov_b32 v{L+k}, 0")
    A("s_waitcnt lgkmcnt(8)")
    for k in range(16): A(f"v_xor_b32 v{S[1]+k}, 0x80008000, v{S[1]+k}")
    A("s_nop 1")
    if cfg.kve: kv2 = []; kv3 = []
    else: kv2 = dma_kv(2, min(8, qend - 16)); kv3 = dma_kv(3, max(0, qend - 24))
    gam = "v14"
    misc = ["v_and_b32 v14, 1, v4", "v_xor_b32 v15, 1, v14",
            "v_lshrrev_b32 v34, 2, v3", "v_lshl_add_u32 v34, v4, 2, v34", "v_mul_u32_u24 v34, 320, v34",
            "v_and_b32 v35, 3, v3", "v_lshl_add_u32 v34, v35, 3, v34", "v_add_u32 v34, s46, v34",
            "v_lshl_add_u32 v36, v14, 5, v34", "v_lshl_add_u32 v37, v15, 5, v34",
            "v_add_u32 v38, 128, v37", "v_add_u32 v39, 192, v36",
            "MASK",
            "v_cndmask_b32 v10, v36, v38, s[32:33]", "v_cndmask_b32 v11, v37, v39, s[32:33]",
            "v_cndmask_b32 v12, v38, v36, s[32:33]", "v_cndmask_b32 v13, v39, v37, s[32:33]",
            "v_mul_u32_u24 v34, 2560, v3", "v_lshl_add_u32 v34, v4, 3, v34",
            "v_lshlrev_b32 v35, 7, v0", "v_add_u32 v36, 0x8000, v35"]
    if cfg.wmode == 1:
        misc = misc[:-2] + ["v_mul_u32_u24 v35, 12, v1", "v_add_u32 v35, v35, v2", "v_lshlrev_b32 v35, 7, v35",
            "v_cmp_gt_u32 vcc, 12, v2", "v_mov_b32 v36, 0x100000", "s_nop 0", "v_cndmask_b32 v35, v36, v35, vcc", "s_mov_b32 s60, 0"]
    def misc_step():
        for _ in range(2):
            if misc:
                m = misc.pop(0)
                if m == "MASK": A("s_cmp_eq_u32 s21, 1\ns_cselect_b64 s[32:33], -1, 0")
                else: A(m)
    for T in range(6):
        for c in range(4):
            d = vr(NEGM + 4*T)
            A(mf(d, vr(S[1] + 4*c), vr(qf(T, c)), "0" if c == 0 else d))
            if kv2 and (isinstance(kv2[0], str) or c % 2 == 0): A.emit([kv2.pop(0)])
            else: misc_step()
    assert not kv2
    A("s_waitcnt lgkmcnt(0)")
    for k, m in enumerate(qk_mfmas(0, 0)):
        A(m)
        if kv3 and (isinstance(kv3[0], str) or k % 2 == 0): A.emit([kv3.pop(0)])
        else: misc_step()
    A.emit(kv3)
    while misc: misc_step()
    A("s_lshl_b32 s34, s26, 3\ns_add_u32 s34, s34, s27\ns_mul_i32 s34, s34, 40960")
    A("s_add_u32 s88, s92, s34\ns_addc_u32 s89, s93, 0\ns_mov_b32 s90, 40960\ns_mov_b32 s91, 0x20000")
    A("s_lshl_b32 s34, s28, 10\ns_lshl_b32 s35, s21, 7\ns_add_u32 s34, s34, s35\ns_lshl_b32 s35, s22, 4\ns_add_u32 s34, s34, s35")
    A("s_mul_i32 s34, s34, 1280\ns_mul_i32 s35, s23, 320\ns_add_u32 s34, s34, s35")
    A("s_add_u32 s92, s92, s34\ns_addc_u32 s93, s93, 0\ns_sub_u32 s94, 5242880, s34\ns_mov_b32 s95, 0x20000")
    if cfg.wmode == 2:
        A(f"buffer_load_dword v39, v35, s[88:91], 0 offen {cfg.wopfl}")
        A(f"buffer_load_dword v39, v36, s[88:91], 0 offen {cfg.wopfl}")
    for e in range(16): A(EX(0, e))
    for k in range(4): A(CV(0, k))
    A("s_mul_i32 s96, s23, 327680")
    A("s_mov_b32 s57, 7\ns_mov_b64 vcc, -1")
    if cfg.wramp: A(f"s_mov_b32 s61, 0x{cfg.wramp[::-1]}")
    if cfg.cpf2:
        tgt = "L_peel" if cfg.cpf2 == 2 else "L_epi"
        A("s_getpc_b64 s[4:5]\nL_pc2:")
        A(f"s_add_u32 s4, s4, {tgt} - L_pc2\ns_addc_u32 s5, s5, 0\ns_mov_b32 s6, L_end - {tgt}\ns_mov_b32 s7, 0x20000")
    if cfg.ssr:
        A(f"s_mul_i32 s61, s2, 0x9E3779B1\ns_lshr_b32 s61, s61, 16\ns_mul_i32 s61, s61, {cfg.ssr}\ns_lshr_b32 s61, s61, 16\ns_add_u32 s61, s61, {cfg.ss0}\ns_bfm_b32 s61, s61, 0")
    stamp(1)
    def w2_dma(c, sreg, tag, coff=1):
        r = []
        for n in range(5):
            if n == 0: r += [f"s_add_u32 m0, s54, {c*16384}", f"s_add_u32 s55, {sreg}, {c*40960*coff}"]
            if n == 4: r += [f"s_add_u32 m0, s54, {c*16384 + 4096}", "s_nop 0"]
            r.append((f"buffer_load_dwordx4 v{5+n}, s[92:95], s55 offen offset:{(n & 3)*1024} {cfg.wold} lds", tag))
        return r
    N = cfg.lag
    rq = []
    for q in range(8*29 + cfg.lag + NST, 256):
        if q % 4 == 0:
            rq += [f"s_add_u32 m0, s54, {((q >> 3) % 4)*16384 + (q & 4)*1024}", "s_and_b32 s55, s30, 0x3ffff",
                   "s_add_u32 s30, s30, s101" if q & 4 else "s_add_u32 s30, s30, 4096"]
        rq.append((f"buffer_load_dwordx4 v{16 + (q & 3)}, s[12:15], s55 offen offset:{(q & 3)*1024} {cfg.kv_flags} lds", f"KV{q >> 3}"))
    wq = [0, 1, 2, 3]
    def body(u, last):
        t, par, j = u % 3, u % 2, u // 3
        t1, par1 = (u + 1) % 3, (u + 1) % 2
        fin = last and u == 11
        kv_here = bool(rq) and cfg.ramp
        ms = qk_mfmas(t1, par1) + pv_mfmas(t, par)
        pre = [[] for _ in range(34)]
        val = [[] for _ in range(34)]
        val[0] = [CV(par, 4), CV(par, 5)]; val[1] = [CV(par, 6), CV(par, 7)]
        for e in range(16): val[16 + e] = [EX(par1, e)]
        val[32] = [CV(par1, 0), CV(par1, 1)]; val[33] = [CV(par1, 2), CV(par1, 3)]
        jj = (28 + j) if last else j
        iv = jj if t == 2 else jj - 1
        def q_of(i): return 8 * (iv + 2) + N + i
        def live(i): return (not last) or q_of(i) < 256
        def dma(i, g):
            q = q_of(i)
            if live(i):
                pre[g].append((f"buffer_load_dwordx4 v{16 + (q & 3)}, s[12:15], s55 offen offset:{(q & 3)*1024} {cfg.kv_flags} lds", f"KV{q >> 3}"))
        stn = (j + 1) % 4
        if t == 1:
            if not last:
                if cfg.ssr:
                    pre[3] += ["s_bitcmp1_b32 s61, 0"]
                    pre[4] += [f"s_cbranch_scc0 L_ss{u}", f"s_waitcnt vmcnt({cfg.ssn})", f"L_ss{u}:"]
                    pre[7] += ["s_lshr_b32 s61, s61, 1"]
                if cfg.ssk: pre[4] += [f"s_cbranch_vccz L_ss{u}", f"s_waitcnt vmcnt({cfg.ssn})", f"L_ss{u}:"]
                pre[5].append(f"s_waitcnt vmcnt({N})")
            elif j < 3: pre[5].append(lambda: A(f"s_waitcnt vmcnt({A.vm_after([f'KV{29+j}'])})"))
            pre[6].append("s_barrier")
            if not (last and j == 3):
                for kt in range(2):
                    for c in range(4): pre[8 + 4*kt + c].append(k_read(stn, kt, c))
                pre[33].append("s_waitcnt lgkmcnt(0)")
        def inc(q): return "s_add_u32 s30, s30, s101" if q & 4 else "s_add_u32 s30, s30, 4096"
        if cfg.win and not (last and cfg.ramp):
            assert N % 4 == 0
            sites = {1: [(-1, 7, 2), (0, 0, 18), (0, 1, 30)], 2: [(0, 2, 8), (0, 3, 20), (0, 4, 31)], 0: [(-1, 5, 11), (-1, 6, 24)]}[t]
            for off, i, g in sites:
                q = 8 * (jj + off + 2) + N + i
                if last and q >= 256: continue
                kv_here = True
                if q % 4 == 0:
                    pre[g - 3].append(f"s_add_u32 m0, s54, {((q >> 3) % 4)*16384 + (q & 4)*1024}")
                    pre[g - 2].append(kmap(q & 4))
                    pre[g + 1].append(inc(q))
                w = int(cfg.wpat[(8 * ((jj + off) % 4) + i) % len(cfg.wpat)])
                if cfg.wramp and not last:
                    cls = {0: 0, 4: 1, 2: 2, 6: 2}.get(i, 3)
                    pre[g - 1].append(f"s_bitcmp1_b32 s61, {cls}\ns_cbranch_scc0 L_w{u}_{i}\ns_waitcnt vmcnt(3)\nL_w{u}_{i}:")
                    if cfg.w5it: pre[g - 1].append(f"s_cbranch_vccz L_v{u}_{i}\ns_waitcnt vmcnt(4)\nL_v{u}_{i}:")
                pre[g - 1].append(f"s_waitcnt vmcnt({w - 1})")
                pre[g].append((f"buffer_load_dwordx4 v{16 + (q & 3)}, s[12:15], s55 offen offset:{(q & 3)*1024} {cfg.kv_flags} lds", f"KV{q >> 3}"))
        if t in (1, 2) and not (last and cfg.ramp) and not cfg.win:
            iv = jj
            g = (0 if N % 4 == 0 else 2) + cfg.dpos
            def put(gg, it):
                if t == 2 and gg >= 0: pre[gg].append(it)
                if t == 1 and gg < 0: pre[34 + gg].append(it)
            for i in range(8):
                q = 8 * (iv + 2) + N + i
                lv = (not last) or q < 256
                if q % 4 == 0:
                    if lv:
                        put(g, f"s_add_u32 m0, s54, {((q >> 3) % 4)*16384 + (q & 4)*1024}")
                        put(g + 1, "s_and_b32 s55, s30, 0x3ffff")
                        put(g + 1, inc(q))
                    g += 2
                if lv: put(g, (f"buffer_load_dwordx4 v{16 + (q & 3)}, s[12:15], s55 offen offset:{(q & 3)*1024} {cfg.kv_flags} lds", f"KV{q >> 3}"))
                g += 1 if i % 3 else 2
            assert g <= 33, g
            iv = jj if t == 2 else jj - 1
        if last and cfg.ramp and rq:
            gl = {0: list(range(10, 15)) + list(range(16, 32)), 1: [2, 3, 4, 7] + list(range(16, 32)), 2: list(range(2, 32))}[t]
            for g in gl:
                if not rq: break
                if isinstance(rq[0], tuple) and g >= 16 and g % 2: continue
                pre[g].append(rq.pop(0))
        if t == 0:
            for dt in range(8):
                pre[2 + dt] += [v_read(j % 4, dt, 0), v_read(j % 4, dt, 1)]
            pre[15].append("s_waitcnt lgkmcnt(0)")
        if last and ((not kv_here and not rq) if cfg.ramp else (not kv_here and u >= 2 + (16 - N) * 3 // 8)) and wq and wq[0] <= iv - 28 and t != 1 and u >= cfg.wlate:
            c = wq.pop(0)
            w = w2_dma(c, "s96", f"W{c}")
            gs = (0, 1, 2, 5, 8, 11, 12, 13, 14) if t == 2 else (0, 1, 10, 11, 12, 13, 16, 17, 18)
            if fin: gs = (16, 17, 18, 20, 22, 24, 25, 26, 27)
            for it, g in zip(w, gs): pre[g].append(it)
        if (cfg.cpf2 == 2 and not last and u == 6) or (cfg.cpf2 == 1 and last and u == 0):
            pre[13].append(("buffer_load_dword v39, v54, s[4:7], 0 offen", "PF"))
        if cfg.wmode == 1 and not last and u == 4:
            pre[7].append((f"buffer_load_dword v39, v35, s[88:91], s60 offen {cfg.wopfl}", "PF"))
            pre[16].append("s_add_u32 s60, s60, 6144")
        if cfg.wmode == 0 and cfg.wopf and last and u == cfg.wopf:
            assert t != 0
            pre[2].append((f"buffer_load_dword v39, v35, s[88:91], 0 offen {cfg.wopfl}", "PF"))
            pre[4].append((f"buffer_load_dword v39, v36, s[88:91], 0 offen {cfg.wopfl}", "PF"))
        if fin:
            for k in range(4, 8): A(CV(par, k))
            A("s_nop 0")
        for g in range(34):
            if fin and g < 16: continue
            A(ms[g])
            x = pre[g]
            if cfg.no_dma: x = [y for y in x if not isinstance(y, tuple)]
            A.emit(x)
            if not fin:
                for y in val[g]: A(y)
    A(".p2align 6")
    A("L_loop:")
    for u in range(12): body(u, False)
    if cfg.stamps & 16:
        A("s_memrealtime s[60:61]\ns_waitcnt lgkmcnt(0)")
        A("s_cmp_lt_u32 s57, 3\ns_cbranch_scc1 L_nosh")
        A("s_mov_b32 s68, s72\ns_mov_b32 s72, s76\ns_mov_b32 s76, s80\ns_mov_b32 s80, s84\ns_mov_b32 s84, s60")
        A("L_nosh:")
        stamp.n = 6
    if cfg.wramp: A("s_lshr_b32 s61, s61, 4")
    if cfg.w5it: A(f"s_cmp_gt_u32 s57, {8 - cfg.w5it}\ns_cselect_b64 vcc, -1, 0")
    if cfg.ssk: A(f"s_cmp_gt_u32 s57, {8 - cfg.ssk}\ns_cselect_b64 vcc, -1, 0")
    A("s_sub_u32 s57, s57, 1\ns_cmp_lg_u32 s57, 0\ns_cbranch_scc1 L_loop")
    A.vm = [f"KV{q >> 3}" for q in range(8*28, 8*29 + N + NST)]
    A("L_peel:")
    stamp(8)
    for u in range(12):
        body(u, True)
        if u in (4, 8): stamp(8)
    for c in wq: A.emit(w2_dma(c, "s96", f"W{c}"))
    stamp()
    A("v_readfirstlane_b32 s56, v62\nv_readfirstlane_b32 s58, v63")
    A("s_nop 5")
    A(f"v_cmp_nge_f32 vcc, s31, v{L}")
    for T in range(1, 6):
        A(f"v_cmp_nge_f32 s[34:35], s31, v{L + 4*T}")
        A("s_or_b64 vcc, vcc, s[34:35]")
    if cfg.force_fb: A("s_branch L_fallback")
    A("s_cbranch_vccnz L_fallback")
    A("L_epi:")
    BB = 40; KEEP = 136; AF = 192; AX = 16
    SENT = [32*(i // 4) + 4*(i % 4) for i in range(24)] + [232 + 4*i for i in range(6)]
    RL = 26
    TL = [16, 17, 20, 21, 35, 36, 37, 38]
    def bfr(c, T): return BB + 24 * c + 4 * T
    def acc2(nu, T): return vr(KEEP + 24*nu + 4*T) if nu < 5 else ar(SENT[6*(nu - 5) + T])
    def b_loads(c, tag):
        return [(f"buffer_load_dwordx4 {vr(bfr(c, T))}, v{32 + T//4}, s[4:7], s{88+c} offen offset:{(T % 4)*1024} {cfg.old}", tag) for T in range(6)]
    def o_store(c, T, tag):
        return (f"buffer_store_dwordx4 {vr(bfr(c, T))}, v{32 + T//4}, s[16:19], s52 offen offset:{(T % 4)*1024} {cfg.ost}", tag)
    def next_tile(c):
        return ["s_add_u32 s53, s62, s97\ns_lshr_b64 s[62:63], s[62:63], 4",
                "s_bfe_u32 s32, s53, 0x20002\ns_and_b32 s33, s53, 3",
                "s_lshl_b32 s34, s32, 3\ns_add_u32 s34, s34, s33",
                "s_mul_i32 s96, s34, 40960\ns_lshl_b32 s32, s32, 4",
                f"s_add_u32 s32, s32, s33\ns_mul_i32 s{88+c}, s32, 6144"]
    def a_reads(c, nu, dst=None):
        n5 = nu % 5
        reg = 10 + 2*(nu // 5) + (n5 & 1)
        d = AF + 4*nu if dst is None else dst
        return [f"ds_read_b64_tr_b16 {ar(d + 2*e, 2)}, v{reg} offset:{c*16384 + e*8192 + 64*(n5 >> 1)}" for e in range(2)]
    A("s_lshl_b32 s34, s40, 5\ns_lshl_b32 s35, s28, 3\ns_add_u32 s34, s34, s35\ns_add_u32 s34, s34, s21\ns_lshl_b32 s34, s34, 1\ns_add_u32 s34, s34, s22\ns_mul_i32 s34, s34, 24576")
    A(f"s_add_u32 s4, s44, s34\ns_addc_u32 s5, s45, 0\ns_mov_b32 s6, {3*98304 + 24576}\ns_mov_b32 s7, 0x20000")
    A(f"s_add_u32 s8, s44, {MBOX}\ns_addc_u32 s9, s45, 0\ns_mov_b32 s10, 0x8000\ns_mov_b32 s11, 0x20000")
    A("s_mov_b32 s36, s50\ns_mov_b32 s37, s51\ns_movk_i32 s38, 0x100\ns_mov_b32 s39, 0x20000")
    if cfg.dbgst: A("s_mov_b32 s38, 0")
    A("s_lshl_b32 s41, s41, 2\ns_lshl_b32 s97, s23, 2")
    tiles = [4*(1 + p) + c for c in range(4) for p in range(3)]
    tbl = sum(t << (4*i) for i, t in enumerate(tiles))
    A(f"s_mov_b32 s62, 0x{tbl & 0xffffffff:x}\ns_mov_b32 s63, 0x{tbl >> 32:x}\ns_mov_b32 s98, 0")
    A("v_mov_b32 v14, 0\nv_mov_b32 v15, 1\nv_mov_b32 v18, 0x100\nv_mov_b32 v22, 0x10000\nv_mov_b32 v23, 16\nv_mov_b32 v24, 0x100000")
    npoll = [0]
    def signal(vm, vd, mreg, sreg, wave=1):
        k = npoll[0]; npoll[0] += 1
        A(f"s_cmp_lg_u32 s20, {wave}\ns_cbranch_scc1 L_sg{k}")
        A("s_mov_b64 exec, 1")
        A(f"buffer_atomic_add {vm}, v14, s[8:11], {mreg} offen")
        A(f"buffer_atomic_add {vd}, v14, s[36:39], {sreg} offen")
        A("s_mov_b64 exec, -1")
        A(f"L_sg{k}:")
    def poll(mreg, snap, mfield, sreg, field, wave=0):
        k = npoll[0]; npoll[0] += 1
        if wave is not None: A(f"s_cmp_lg_u32 s20, {wave}\ns_cbranch_scc1 L_pd{k}")
        A(f"s_bfe_u32 s34, s98, {mfield}\ns_cmp_eq_u32 s34, 4\ns_cbranch_scc1 L_pd{k}")
        A("s_mov_b32 s61, 0x40000")
        A(f"L_pl{k}:")
        A(f"buffer_load_dword v19, v14, s[8:11], {mreg} offen sc1")
        A("s_waitcnt vmcnt(0)")
        A("v_readfirstlane_b32 s98, v19")
        A("s_sub_u32 s61, s61, 1")
        A(f"s_sub_u32 s98, s98, {snap}")
        A(f"s_bfe_u32 s34, s98, {mfield}\ns_cmp_eq_u32 s34, 4\ns_cbranch_scc1 L_pd{k}")
        if cfg.stamps: A("s_add_u32 s59, s59, 1")
        A(f"s_sleep {cfg.psleep}")
        A(f"s_and_b32 s34, s61, {cfg.rescue - 1}\ns_cbranch_scc1 L_pl{k}")
        A(f"buffer_load_dword v19, v14, s[36:39], {sreg} offen sc1")
        A("s_waitcnt vmcnt(0)")
        A("v_readfirstlane_b32 s34, v19")
        A(f"s_cmp_eq_u32 s61, 0\ns_cbranch_scc1 L_pd{k}")
        A(f"s_bfe_u32 s34, s34, {field}")
        A(f"s_cmp_lt_u32 s34, 4\ns_cbranch_scc1 L_pl{k}")
        A(f"L_pd{k}:")
    for T in range(6): A(f"v_rcp_f32 v{L + 4*T}, v{L + 4*T}")
    for T in range(6): A(f"v_mov_b32 v{L + 4*T + 1}, v{L + 4*T}")
    for T in range(6): A(f"v_mov_b32 v{RL + T}, v{L + 4*T}")
    late = []
    for c in (2, 3):
        for T in range(6):
            ob = bfr(c, T)
            late += [f"v_accvgpr_read_b32 v{TL[k]}, a{O(T, 2*c) + k}" for k in range(8)]
            late += [f"v_mul_f32 v{TL[k]}, v{TL[k]}, v{RL+T}" for k in range(8)]
            late += [f"v_cvt_pk_bf16_f32 v{ob+k}, v{TL[2*k]}, v{TL[2*k+1]}" for k in range(4)]
    q = 0
    NA = 1
    for c in range(2):
        if c < NA: A(f"s_movk_i32 s52, {c*6144}")
        for T in range(6):
            tb = KEEP + 8 * (q % 2); ob = bfr(c, T); q += 1
            for k in range(8): A(f"v_accvgpr_read_b32 v{tb+k}, a{O(T, 2*c) + k}")
            for k in range(4): A(f"v_pk_mul_f32 v[{tb+2*k}:{tb+2*k+1}], v[{tb+2*k}:{tb+2*k+1}], v[{L+4*T}:{L+4*T+1}]")
            for k in range(4): A(f"v_cvt_pk_bf16_f32 v{ob+k}, v{tb+2*k}, v{tb+2*k+1}")
            if c < NA:
                if cfg.swin: A(f"s_waitcnt vmcnt({cfg.swin - 1})")
                A.vmem(*o_store(c, T, "OA"))
        if c == cfg.ebar:
            A(f"s_waitcnt vmcnt({A.vm_after(['W0'] + (['OA'] if cfg.sigstep < 0 else []))})")
            A("s_barrier")
            if cfg.sigstep < 0: signal("v15", "v15", "s99", "s41")
            for nu in range(10): A.emit(a_reads(0, nu))
    stamp(101)
    def place(pre, seq, lo=7, hi=58):
        free = [g for g in range(lo, hi) if not pre[g]]
        nv = sum(isinstance(x, tuple) for x in seq)
        sp = max(1, (len(free) - (len(seq) - nv)) // max(nv, 1))
        k = 0
        for it in seq:
            pre[free[k]].append(it)
            k += sp if isinstance(it, tuple) else 1
    GR = [5, 0, 6, 1, 7, 2, 8, 3, 9, 4]
    def ax(pos, c): return AX + 8*(pos % 2) + 4*(c - 2)
    def ax_reads(pos): return a_reads(2, GR[pos], ax(pos, 2)) + a_reads(3, GR[pos], ax(pos, 3))
    def bx(c, T):
        i = 6*(c - 2) + T
        return ar(48 + 32*(i // 4) + 4*(i % 4))
    def bx_loads(c, tag):
        return [(f"buffer_load_dwordx4 {bx(c, T)}, v{32 + T//4}, s[4:7], s{88+c} offen offset:{(T % 4)*1024} {cfg.old}", tag) for T in range(6)]
    setup = [f"s_lshl_b32 s34, s42, 18\ns_add_u32 s34, s34, {PBASE}",
             "s_add_u32 s12, s44, s34\ns_addc_u32 s13, s45, 0",
             "s_cmp_eq_u32 s20, s28\ns_cselect_b32 s14, 0, 0x40000", "s_mov_b32 s15, 0x20000",
             "s_lshl_b32 s52, s20, 2\ns_add_u32 s52, s52, s28", "s_lshl_b32 s52, s52, 14\ns_lshl_b32 s42, s42, 2",
             "s_xor_b32 s34, s54, 0x10000\nv_add_u32 v16, s54, v32", "v_add_u32 v20, s34, v32\ns_lshl_b32 s34, s20, 13",
             "s_add_u32 s34, s34, 131072\ns_xor_b32 s35, s34, 0x4000", "v_add_u32 v17, s34, v32\nv_add_u32 v21, s35, v32"]
    sched = [int(x) for x in cfg.osched.split(",")]
    assert sum(sched) == 18
    obs = [(c, T) for c in (1, 2, 3) for T in range(6)]
    SIG = {cfg.sigstep: ("OA", "v15"), cfg.sigb: ("O1", "v23"), cfg.sigc: ("O3", "v18")}
    POLL = {cfg.pa: "0x40000", 5: "0x40004", 8: "0x40008"}
    assert cfg.lt0 + cfg.lt1 >= 120 and sched[0] + sched[1] <= 6 and sched[0] + sched[1] + sched[2] <= 12
    def step(k):
        c = k % 4; cn = (c + 1) % 4
        pre = [[] for _ in range(60)]
        for nu in range(10):
            pre[6*nu + 5 + (1 if nu == 0 else 0)] += a_reads(cn, nu)
        seq = []
        if k == cfg.pa == 3: seq += b_loads(0, "B4")
        if cfg.pa <= k < 12: seq += b_loads((c + 2) % 4, f"B{k+2}")
        if k < 12: seq += next_tile(c) + w2_dma(c, "s96", f"W{k+4}", 0)
        if k in (10, 11): seq += bx_loads(c, f"B{k+4}")
        if k == 12: seq += setup
        if k < len(sched) and sched[k]:
            n = sched[k]
            for i in range(n):
                cc, T = obs.pop(0)
                assert k < cc + 2, (k, cc)
                g = 2 + (i * 56) // n
                while pre[g] or pre[g - 1] or g in (4, 5, 6): g += 1
                if T == 0: pre[g - 1].append(f"s_movk_i32 s52, {cc*6144}")
                pre[g].append(o_store(cc, T, f"O{cc}"))
        if cfg.apoll and k + 1 in POLL:
            g = cfg.apg
            while pre[g]: g += 1
            pre[g].append(("buffer_load_dword v19, v14, s[8:11], s99 offen sc1", f"PL{k+1}"))
        need = ([f"PL{k}"] if cfg.apoll and k in POLL else []) + [f"W{k+1}"] + ([SIG[k][0]] if k in SIG else [])
        bar = [lambda: A(f"s_waitcnt vmcnt({A.vm_after(need)}) lgkmcnt(0)")]
        if cfg.apoll and k in POLL: bar.append("v_readfirstlane_b32 s98, v19\ns_nop 0\ns_sub_u32 s98, s98, s56")
        if k in POLL: bar.append(lambda: poll("s99", "s56", POLL[k], "s41", POLL[k]))
        bar.append("s_barrier")
        if k in SIG: bar.append(lambda: signal(SIG[k][1], SIG[k][1], "s99", "s41"))
        pre[4] += bar[:1]; pre[5] += bar[1:]
        if k == 12:
            pre[48].append("s_waitcnt vmcnt(0)"); pre[49].append("s_barrier")
            r0 = ax_reads(0); pre[50] += r0[:2]; pre[51] += r0[2:]
        place(pre, seq, 7, 58 if k < 12 else 46)
        if late:
            take = {0: cfg.lt0, 1: cfg.lt1, 2: len(late)}[k]
            work = late[:take]; del late[:take]
            gaps = [g for g in range(0, 58) if not pre[g] or (len(pre[g]) == 1 and isinstance(pre[g][0], str) and pre[g][0].startswith("s_") and "\n" not in pre[g][0] and g not in (4, 5))]
            for gi, g in enumerate(gaps):
                budget = max(2, -(-len(work) // (len(gaps) - gi)))
                pre[g] += work[:budget]; del work[:budget]
            assert not work
        if cfg.swin2 and k < cfg.swk:
            for g in range(1, 60):
                if any(isinstance(x, tuple) for x in pre[g]): pre[g].insert(0, f"s_waitcnt vmcnt({cfg.swin2 - 1})")
        A(f"s_waitcnt vmcnt({A.vm_after([f'B{k}'])}) lgkmcnt(15)" if k >= 4 else "s_waitcnt lgkmcnt(15)")
        for g in range(60):
            nu, T = g // 6, g % 6
            d = acc2(nu, T)
            A(mf(d, ar(AF + 4*nu), vr(bfr(c, T)), "0" if k == 0 else d))
            A.emit(pre[g])
    assert cfg.keep
    for k in range(13):
        step(k)
        if k == 1: stamp(4)
        if cfg.sk0 <= k < cfg.sk0 + 5 and cfg.sk0 > 0: stamp(128)
        if k < 4: stamp(64)
        if k == 3: stamp(36)
        if k == 11: stamp(32)
    TMP = bfr(0, 0)
    def x_reads(r): return [f"ds_read_b128 {vr(TMP + 4*T)}, v{20 + r % 2} offset:{T*1024}" for T in range(6)]
    def x_writes(r): return [f"ds_write_b128 v{16 + r % 2}, {ar(SENT[6*r + T])} offset:{T*1024}" for T in range(6)]
    def flush(r, pk=False):
        w = []
        for p in range(3):
            ob = KEEP + 24*r + 8*p
            if pk: w += [f"v_pk_add_f32 v[{ob+z}:{ob+z+1}], v[{ob+z}:{ob+z+1}], v[{TMP+8*p+z}:{TMP+8*p+z+1}]" for z in range(0, 8, 2)]
            else: w += [f"v_add_f32 v{ob+z}, v{ob+z}, v{TMP+8*p+z}" for z in range(8)]
            w += [f"v_cvt_pk_bf16_f32 v{ob+z}, v{ob+2*z}, v{ob+2*z+1}" for z in range(4)]
            w.append(("ST", f"buffer_store_dwordx4 {vr(ob)}, v32, s[12:15], s52 offen offset:{p*1024} {cfg.pst}"))
        w.append(("SA", "s_add_u32 s52, s52, 3072"))
        return w
    A("s_waitcnt lgkmcnt(0)")
    for r in range(5):
        pre = [[] for _ in range(36)]
        ra = ax_reads(2*r + 1); pre[0] += ra[:2]; pre[1] += ra[2:]
        if r < 4:
            rb = ax_reads(2*r + 2); pre[18] += rb[:2]; pre[19] += rb[2:]
        for T, w in enumerate(x_writes(r)): pre[cfg.xw0 + T*cfg.xwsp].append(w)
        if r == 4 and cfg.re_ < 4: pre[cfg.epg].append("buffer_load_dword v19, v14, s[8:11], s100 offen sc1")
        work = []
        if r:
            xr = x_reads(r - 1)
            for k in range(3): pre[2 + k] += xr[2*k:2*k+2]
            work = flush(r - 1)
        pre[8].append("s_waitcnt lgkmcnt(0)")
        gaps = [g for g in range(8, 35) if g == 8 or not pre[g]]
        for gi, g in enumerate(gaps):
            left = len(gaps) - gi
            cost = sum(2 if isinstance(x, tuple) and x[0] == "ST" else 0 if isinstance(x, tuple) else 1 for x in work)
            budget = max(2, -(-cost // left)); n = 0
            while work and n < budget:
                it = work[0]
                if isinstance(it, tuple):
                    if it[0] == "ST" and n > 0 and left > 1: break
                    pre[g].append(it[1]); n += 2 if it[0] == "ST" else 0
                else: pre[g].append(it); n += 1
                work.pop(0)
        for it in work: pre[34].append(it[1] if isinstance(it, tuple) else it)
        if r == cfg.re_: pre[35] += ["s_waitcnt vmcnt(3) lgkmcnt(0)", "s_barrier", lambda: signal("v23", "v24", "s100", "s42", 3)]
        else: pre[35] += ["s_waitcnt lgkmcnt(0)", "s_barrier"]
        if cfg.rx & 1: pre = [[x for x in p if not (isinstance(x, str) and x.startswith("ds_write"))] for p in pre]
        if cfg.rx & 2: pre = [[x for x in p if not (isinstance(x, str) and x.startswith("buffer_store"))] for p in pre]
        if cfg.rx & 4 and r not in (cfg.re_, 4): pre = [[x for x in p if x != "s_barrier"] for p in pre]
        if cfg.rx & 8: pre = [[x for x in p if not (isinstance(x, str) and x.startswith("v_"))] for p in pre]
        g = 0
        for pos in (2*r, 2*r + 1):
            nu = GR[pos]
            for T in range(6):
                for c in (1, 2, 3):
                    d = acc2(nu, T)
                    A(mf(d, ar(AF + 4*nu) if c == 1 else ar(ax(pos, c)), vr(bfr(1, T)) if c == 1 else bx(c, T), d))
                    A.emit(pre[g]); g += 1
    stamp()
    A.emit(x_reads(4))
    A("s_waitcnt lgkmcnt(0)")
    for it in flush(4, True): A(it[1] if isinstance(it, tuple) else it)
    if cfg.keep:
        A("s_cmp_lg_u32 s20, s28\ns_cbranch_scc1 L_nokeep")
        for m in range(15): A(f"ds_write_b128 v32, {vr(KEEP + 8*m)} offset:{32768 + m*1024}")
        A("L_nokeep:")
        A("s_mov_b32 s14, 0x40000")
    A("s_mul_i32 s34, s27, 192\ns_and_b32 s35, s28, 1\ns_mul_i32 s35, s35, 96\ns_add_u32 s34, s34, s35\ns_lshl_b32 s35, s20, 5\ns_add_u32 s34, s34, s35\ns_mul_i32 s34, s34, 2560")
    A("s_mul_i32 s35, s25, 1280\ns_add_u32 s34, s34, s35\ns_mul_i32 s35, s23, 320\ns_add_u32 s34, s34, s35\ns_lshr_b32 s35, s28, 1\ns_mul_i32 s35, s35, 160\ns_add_u32 s34, s34, s35")
    A("s_add_u32 s16, s48, s34\ns_addc_u32 s17, s49, 0\ns_sub_u32 s18, 3932160, s34\ns_mov_b32 s19, 0x20000")
    A("s_lshl_b32 s52, s28, 16\ns_lshl_b32 s35, s20, 10\ns_add_u32 s52, s52, s35")
    if cfg.keep:
        for i in range(1, 4): A(f"s_add_u32 s34, s28, {i}\ns_and_b32 s34, s34, 3\ns_lshl_b32 s34, s34, 14\ns_add_u32 s{88+i}, s52, s34")
        A("v_add_u32 v16, s35, v32")
    else:
        for i in range(4): A(f"s_add_u32 s{88+i}, s52, {i*16384}")
    A("v_add_u32 v17, 6144, v32\nv_add_u32 v20, 12288, v32")
    stamp(2)
    A("s_waitcnt vmcnt(0) lgkmcnt(0)")
    A("s_barrier")
    stamp(2)
    A("v_readfirstlane_b32 s98, v19\ns_nop 0\ns_sub_u32 s98, s98, s58" if cfg.re_ < 4 else "s_mov_b32 s98, 0")
    A("s_cmp_lg_u32 s20, 3\ns_cbranch_scc1 L_fw")
    signal("v15", "v22", "s100", "s42", 3)
    poll("s100", "s58", "0x40000", "s42", "0x40010", None)
    A("s_barrier")
    A("s_endpgm")
    A("L_fw:")
    for nu in range(5): A(f"ds_read_b128 {vr(40 + 16*nu)}, v16 offset:{32768 + nu*3072}")
    A("s_mov_b32 s55, 40960")
    A("s_mov_b32 s33, 0xffff0000")
    def fin(nus):
        for nu in nus:
            for src in range(1, 4):
                A(f"buffer_load_dwordx4 {vr(40 + 16*nu + 4*src)}, v{(32, 17, 20)[nu // 2]}, s[12:15], s{88+src} offen offset:{(nu % 2)*3072} {cfg.pld}")
        for i, nu in enumerate(nus):
            A(f"s_waitcnt vmcnt({3*(len(nus) - 1 - i) + 2*i}) lgkmcnt(0)")
            b = 40 + 16*nu; lo = 128
            for k in range(16): A(f"v_lshlrev_b32 v{lo+k}, 16, v{b+k}")
            for k in range(16): A(f"v_and_b32 v{b+k}, s33, v{b+k}")
            for base in (lo, b):
                for z in range(2):
                    A(f"v_pk_add_f32 v[{base+2*z}:{base+2*z+1}], v[{base+2*z}:{base+2*z+1}], v[{base+4+2*z}:{base+5+2*z}]")
                    A(f"v_pk_add_f32 v[{base+8+2*z}:{base+9+2*z}], v[{base+8+2*z}:{base+9+2*z}], v[{base+12+2*z}:{base+13+2*z}]")
            for base in (lo, b):
                for z in range(2):
                    A(f"v_pk_add_f32 v[{base+2*z}:{base+2*z+1}], v[{base+2*z}:{base+2*z+1}], v[{base+8+2*z}:{base+9+2*z}]")
            for z in range(4): A(f"v_cvt_pk_bf16_f32 v{b+4+z}, v{lo+z}, v{b+z}")
            A(f"buffer_store_dwordx2 {vr(b+4, 2)}, v34, s[16:19], 0 offen offset:{nu*32} {cfg.outst}")
            A(f"buffer_store_dwordx2 {vr(b+6, 2)}, v34, s[16:19], s55 offen offset:{nu*32} {cfg.outst}")
    NE = cfg.re_ - 1 if cfg.re_ < 5 else 0
    if NE:
        poll("s100", "s58", "0x40004", "s42", "0x40014", None)
        fin(list(range(NE)))
    A("s_barrier")
    stamp(2)
    fin(list(range(NE, 5)))
    stamp.finish()
    A("L_end:\ns_endpgm")

    A("L_fallback:")
    A("s_waitcnt vmcnt(0) lgkmcnt(0)")
    A("s_mov_b32 s4, s36\ns_mov_b32 s5, s37\ns_mov_b32 s6, 0x40000\ns_mov_b32 s7, 0x20000")
    A("s_mov_b32 s8, s38\ns_mov_b32 s9, s39\ns_mov_b32 s10, 0x40000\ns_mov_b32 s11, 0x20000")
    A("s_lshl_b32 s52, s20, 13\ns_add_u32 s52, s52, 131072")
    A("v_xor_b32 v58, v3, v4")
    A("v_lshlrev_b32 v59, 1, v4\nv_xor_b32 v59, v3, v59")
    A("v_lshlrev_b32 v60, 8, v4")
    for n in range(4):
        A(f"v_xor_b32 v61, {4*n}, v58")
        A(f"v_lshl_add_u32 v{40+n}, v61, 4, v60")
    for n in range(2):
        A(f"v_xor_b32 v61, {8*n}, v59")
        A(f"v_lshl_add_u32 v{44+n}, v61, 4, v60")
    A("s_sub_u32 s34, s52, s46")
    for c in range(4): A(f"v_add_u32 v{20+c}, s34, v{20+c}")
    A("s_sub_u32 s34, s52, s47")
    for dt in range(8): A(f"v_add_u32 v{24+dt}, s34, v{24+dt}")
    for i in range(192): A(f"v_accvgpr_write_b32 a{i}, 0")
    for k in range(24): A(f"v_mov_b32 v{L+k}, 0")
    A("s_mov_b32 s60, 0")
    A("L_fb_loop:")
    for isv in range(2):
        for n in range(8):
            A(f"s_add_u32 m0, s52, {n*1024}")
            A(f"s_add_u32 s55, s60, {n*1024}")
            A(f"buffer_load_dwordx4 v{(44 + (n & 1)) if isv else (40 + (n & 3))}, s[{8 if isv else 4}:{11 if isv else 7}], s55 offen lds")
        A("s_waitcnt vmcnt(0)")
        if isv:
            for dt in range(8):
                for e in range(2): A(v_read(0, dt, e))
        else:
            for kt in range(2):
                for c in range(4): A(k_read(0, kt, c))
        A("s_waitcnt lgkmcnt(0)")
    R0, R1 = 52, 53
    for t in range(3):
        for m in qk_mfmas(t, 0): A(m)
        A("s_nop 7")
        for Tl in range(2):
            T = 2*t + Tl; s0 = S[0] + 8*Tl
            A(f"v_max3_f32 v{R0}, v{s0}, v{s0+1}, v{s0+2}")
            A(f"v_max3_f32 v{R0}, v{R0}, v{s0+3}, v{s0+4}")
            A(f"v_max3_f32 v{R0}, v{R0}, v{s0+5}, v{s0+6}")
            A(f"v_max3_f32 v{R0}, v{R0}, v{s0+7}, 0")
            A(f"v_mov_b32 v{R1}, v{R0}\ns_nop 1\nv_permlane16_swap_b32 v{R0}, v{R1}\nv_max_f32 v{R0}, v{R0}, v{R1}")
            A(f"v_mov_b32 v{R1}, v{R0}\ns_nop 1\nv_permlane32_swap_b32 v{R0}, v{R1}\nv_max_f32 v{R0}, v{R0}, v{R1}")
            A(f"v_exp_f32 v{R1}, -v{R0}")
            for k in range(8): A(f"v_sub_f32 v{s0+k}, v{s0+k}, v{R0}")
            for k in range(4): A(f"v_sub_f32 v{NEGM+4*T+k}, v{NEGM+4*T+k}, v{R0}")
            for k in range(4): A(f"v_mul_f32 v{L+4*T+k}, v{L+4*T+k}, v{R1}")
            for k in range(0, 32, 4):
                for q in range(4): A(f"v_accvgpr_read_b32 v{54+q}, a{32*T + k + q}")
                for q in range(4): A(f"v_mul_f32 v{54+q}, v{54+q}, v{R1}")
                for q in range(4): A(f"v_accvgpr_write_b32 a{32*T + k + q}, v{54+q}")
        for e in range(16): A(EX(0, e))
        A("s_nop 0")
        for k in range(8): A(CV(0, k))
        A("s_nop 1")
        for m in pv_mfmas(t, 0): A(m)
    A("s_add_u32 s60, s60, 8192\ns_cmp_lt_u32 s60, 0x40000\ns_cbranch_scc1 L_fb_loop")
    A("s_nop 7")
    A("s_branch L_epi")

def gen(cfg):
    A = Asm()
    A("""; Fused kernel (generated by the author's own script): Q projection -> attention -> output projection.
; kernarg: 0 A_x 8 A_k 16 A_v 24 A_wq 32 A_wo 40 B_x 48 B_k 56 B_v 64 B_wq 72 B_wo 80 out 88 debug 96 ws""")
    A("; @launch grid=(256,1,1) block=(256,1,1) lds=163840")
    A('.amdgcn_target "amdgcn-amd-amdhsa--gfx950"\n.text')
    gen_kernel(A, cfg)
    A('.section .rodata,"a"\n.p2align 6')
    A(f".amdhsa_kernel {NAME}_kernel\n  .amdhsa_next_free_vgpr 512\n  .amdhsa_next_free_sgpr 102\n"
      "  .amdhsa_accum_offset 256\n  .amdhsa_group_segment_fixed_size 0\n  .amdhsa_kernarg_size 104\n"
      "  .amdhsa_user_sgpr_count 2\n  .amdhsa_user_sgpr_kernarg_segment_ptr 1\n"
      "  .amdhsa_system_sgpr_workgroup_id_x 1\n.end_amdhsa_kernel")
    return A.text()

if __name__ == "__main__":
    cfg = Cfg()
    for a in sys.argv[2:]:
        k, v = a.split("=")
        old = getattr(cfg, k)
        setattr(cfg, k, type(old)(int(v)) if isinstance(old, (bool, int)) else v.replace('+', ' '))
    open(sys.argv[1], "w").write(gen(cfg))
```

```python
import sys, struct, math
NAME = "concat_heads__mha_block_cached__gqa_block_cached__near_ridge"
def f32bits(x): return struct.unpack("<I", struct.pack("<f", x))[0]

class Cfg:
    stamps = 0
    kv_flags = "sc1 nt"; xld = ''; wqld = ''; pfl = 'nt'
    ost = 'sc1'; old = 'sc1'; wold = ''; pst = 'sc1'; pld = 'sc1'; wopfl = ''; outst = ''
    wopf = 4
    force_fb = False
    thr_log2 = 64
    cpf = 1
    xwpf = 0
    qchain = 1
    qdsp = 3
    rot = 2
    rotd = 16
    wrot = 0
    wsg = 9
    wb0 = 3
    wbn = 4
    acq = 0
    psleep = 2
    rescue = 64
    lag = 8
    qrot = 2
    cpf2 = 0
    ramp = 0
    dpos = -5
    wpat = '5'
    win = 1
    xp = 0
    nearly = 2
    keep = 1
    tlb = 0
    pfb = 1
    kse = 0
    kve = 0
    swin = 0
    swin2 = 0
    swk = 4
    obsteps = 2
    sigb = 3
    sigc = 6
    re_ = 3
    epg = 33
    osched = '3,3,4,4,4'
    obk0 = 2
    pollk = 2
    apoll = 1
    nost = 0
    apg = 20
    ebar = 0
    lt0 = 84
    lt1 = 84
    pa = 2
    wdel = 9
    dbgst = 0
    rx = 0
    sk0 = 0
    xw0 = 9
    xwsp = 4
    p2x = 0
    w5it = 0
    wramp = ''
    kvq = 2
    early = 0
    barg = '70,50,30,10'
    slabst = 0
    ssk = 0
    ss0 = 0
    ssr = 0
    ssn = 1
    sparse1 = 1
    pvord = 1
    wlate = 0
    wmode = 3
    stride = 1
    kvpf = 0
    kvpfl = ''
    kvpf0 = 0
    kvpf1 = 7
    pat = 3
    sigstep = 0
    no_dma = False; no_bar = False; q_nodma = False

class Asm:
    def __init__(s): s.l = []; s.vm = []
    def __call__(s, x): s.l.append(x)
    def vmem(s, x, tag): s.l.append(x); s.vm.append(tag)
    def vm_after(s, tags):
        last = -1
        for i, t in enumerate(s.vm):
            if t in tags: last = i
        assert last >= 0, tags
        return min(63, len(s.vm) - 1 - last)
    def emit(s, items):
        for it in items:
            if isinstance(it, tuple): s.vmem(it[0], it[1])
            elif callable(it): it()
            else: s(it)
    def text(s): return "\n".join(s.l) + "\n"

def mf(d, a, b, c): return f"v_mfma_f32_16x16x32_bf16 {d}, {a}, {b}, {c}"
def vr(b, n=4): return f"v[{b}:{b+n-1}]" if n > 1 else f"v{b}"
def ar(b, n=4): return f"a[{b}:{b+n-1}]" if n > 1 else f"a{b}"
STAMP_BASE = 64 << 20
PBASE = 32 << 20
MBOX = 30 << 20

class Stamper:
    def __init__(s, A, cfg): s.A = A; s.cfg = cfg; s.n = 0
    def __call__(s, mode=47):
        if s.cfg.stamps & mode:
            s.A(f"s_memrealtime s[{64+4*s.n}:{65+4*s.n}]\ns_memtime s[{66+4*s.n}:{67+4*s.n}]"); s.n += 1
    def finish(s):
        A = s.A
        if not s.cfg.stamps: return
        A("s_waitcnt vmcnt(0)")
        s(255)
        assert s.n <= 7
        A("s_waitcnt lgkmcnt(0)")
        if s.cfg.dbgst:
            A("s_movk_i32 s38, 0x100\ns_mov_b64 exec, 1\nv_mov_b32 v1, 0")
            A("s_not_b32 s34, s64\nv_mov_b32 v2, s34\nbuffer_atomic_umax v2, v1, s[36:39], 0 offen\ns_nop 1")
            for k in range(1, s.n):
                A(f"v_mov_b32 v2, s{64+4*k}\nbuffer_atomic_umax v2, v1, s[36:39], 0 offen offset:{4*k}\ns_nop 1")
                A(f"s_sub_u32 s34, s{64+4*k}, s{60+4*k}\nv_mov_b32 v2, s34\nbuffer_atomic_add v2, v1, s[36:39], 0 offen offset:{32+4*k}\ns_nop 1")
            return
        A(f"s_add_u32 s44, s44, {STAMP_BASE}\ns_addc_u32 s45, s45, 0\ns_mov_b32 s46, 0x100000\ns_mov_b32 s47, 0x20000")
        A("s_lshl_b32 s34, s2, 2\ns_add_u32 s34, s34, s20\ns_lshl_b32 s34, s34, 6")
        A("v_mov_b32 v1, s34")
        A(f"v_mov_b32 v2, {s.n}\nv_mov_b32 v3, s59\nbuffer_store_dwordx2 v[2:3], v1, s[44:47], 0 offen offset:56\ns_nop 1")
        for k in range(s.n):
            A(f"v_mov_b32 v2, s{64+4*k}\nv_mov_b32 v3, s{66+4*k}")
            A(f"buffer_store_dwordx2 v[2:3], v1, s[44:47], 0 offen offset:{8*k}")
            A("s_nop 1")

XBUF = [114688, 139264]
WSLOT = [2, 0, 1]

def gen_kernel(A, cfg):
    K1 = NAME + "_kernel"
    A(f".globl {K1}\n.p2align 8\n.type {K1},@function\n{K1}:")
    A("s_cmp_ge_u32 s2, 256\ns_cbranch_scc1 L_end")
    stamp = Stamper(A, cfg)
    stamp(255)
    A("s_bfe_u32 s25, s2, 0x10002")
    A("s_mul_i32 s28, s25, 40")
    A("s_add_u32 s62, s0, s28\ns_addc_u32 s63, s1, 0")
    A("s_load_dwordx4 s[36:39], s[62:63], 0")
    A("s_load_dwordx4 s[40:43], s[62:63], 16")
    A("s_load_dwordx2 s[44:45], s[0:1], 96")
    A("s_load_dwordx2 s[92:93], s[62:63], 32")
    if cfg.cpf:
        A("s_getpc_b64 s[88:89]")
        A("L_pc:")
        A("s_mov_b32 s90, L_end - L_pc\ns_mov_b32 s91, 0x20000")
        A("v_lshlrev_b32 v54, 7, v0")
        A.vmem("buffer_load_dword v56, v54, s[88:91], 0 offen", "CPF")
    A("s_lshr_b32 s24, s2, 3")
    A("s_and_b32 s28, s2, 3")
    A("s_and_b32 s23, s24, 3")
    A("s_lshl_b32 s26, s28, 2\ns_add_u32 s26, s26, s23")
    A("s_lshr_b32 s27, s24, 2")
    A("v_lshrrev_b32 v1, 6, v0")
    A("v_and_b32 v2, 63, v0")
    A("v_readfirstlane_b32 s20, v1")
    A("v_and_b32 v3, 15, v2\nv_lshrrev_b32 v4, 4, v2")
    A("v_lshrrev_b32 v10, 3, v2\nv_and_b32 v11, 7, v2")
    A("v_xor_b32 v13, v11, v4")
    A("v_mul_u32_u24 v14, 1280, v10")
    A("v_lshl_add_u32 v58, v13, 4, v14")
    A("v_xor_b32 v13, 4, v13")
    A("v_lshl_add_u32 v59, v13, 4, v14")
    A("v_add_u32 v59, 9216, v59")
    A("v_add_u32 v60, 18432, v58\nv_add_u32 v61, 18432, v59")
    A("v_lshlrev_b32 v10, 2, v4\nv_xor_b32 v10, v3, v10")
    A("v_lshlrev_b32 v11, 13, v4")
    A("v_lshl_add_u32 v6, v10, 4, v11")
    for n in range(1, 4): A(f"v_add_u32 v{6+n}, {n*31744}, v6")
    A("s_lshr_b32 s21, s20, 1\ns_and_b32 s22, s20, 1")
    A("s_lshl_b32 s29, s26, 1\ns_add_u32 s29, s29, s21")
    A("s_lshl_b32 s46, s21, 16")
    A("s_mul_i32 s48, s20, 6144")
    A("s_lshl_b32 s54, s22, 13\ns_add_u32 s54, s54, s46")
    A("s_mul_i32 s34, s27, 245760\ns_mul_i32 s49, s20, 61440")
    A("s_lshl_b32 s35, s29, 8\ns_lshl_b32 s53, s22, 18")
    A("s_waitcnt lgkmcnt(0)")
    A("s_add_u32 s4, s36, s34\ns_addc_u32 s5, s37, 0\ns_mov_b32 s6, 245760\ns_mov_b32 s7, 0x20000")
    A("s_add_u32 s8, s42, s35\ns_addc_u32 s9, s43, 0\ns_sub_u32 s10, 5242880, s35\ns_mov_b32 s11, 0x20000")
    if cfg.qrot == 2: A("s_add_u32 s34, s27, s23\ns_and_b32 s34, s34, 1\ns_mul_i32 s34, s34, 5")
    elif cfg.qrot == 3: A("s_add_u32 s34, s27, s23\ns_and_b32 s34, s34, 3\ns_mul_i32 s34, s34, 5\ns_lshr_b32 s34, s34, 1")
    elif cfg.qrot:
        A("s_mul_i32 s34, s27, 5\ns_mul_i32 s35, s23, 10\ns_add_u32 s34, s34, s35\ns_lshr_b32 s34, s34, 2")
        A("s_cmp_ge_u32 s34, 10\ns_cselect_b32 s35, 10, 0\ns_sub_u32 s34, s34, s35")
    else: A("s_mov_b32 s34, 0")
    A("s_lshl_b32 s50, s34, 7\ns_add_u32 s50, s50, s49\ns_add_u32 s96, s49, 1280")
    A("s_lshl_b32 s51, s34, 19\ns_add_u32 s51, s51, s53\ns_add_u32 s97, s53, 5242880")
    def dma_x(xi):
        r = []
        for n in range(6):
            if n % 4 == 0:
                r += [f"s_add_u32 m0, s48, {XBUF[xi % 2] + n*1024}", f"s_add_u32 s55, s50, {n*10240}"]
            r.append((f"buffer_load_dwordx4 v{58 + (n & 3)}, s[4:7], s55 offen offset:{(n & 3)*1024} {cfg.xld} lds", f"X{xi}"))
        r += ["s_add_u32 s50, s50, 128", "s_cmp_eq_u32 s50, s96\ns_cselect_b32 s50, s49, s50"]
        return r
    def dma_w(sg):
        r = []
        for n in range(8):
            if n % 4 == 0:
                r += [f"s_add_u32 m0, s54, {WSLOT[sg % 3]*16384 + n*1024}", f"s_add_u32 s55, s51, {n*4*8192}"]
            r.append((f"buffer_load_dwordx4 v{6 + (n & 3)}, s[8:11], s55 offen offset:{(n & 3)*1024} {cfg.wqld} lds", f"W{sg}"))
        r += ["s_add_u32 s51, s51, 0x80000", "s_cmp_eq_u32 s51, s97\ns_cselect_b32 s51, s53, s51"]
        return r
    def kmap(half):
        e = cfg.kse
        if e == 0: return "s_and_b32 s55, s30, 0x3ffff"
        hi = 0x3ffff & ~((1 << (13 + e)) - 1)
        r = f"s_bfe_u32 s35, s30, 0x{(e << 16) | 13:x}\ns_lshl_b32 s55, s35, 10"
        if hi: r += f"\ns_and_b32 s35, s30, 0x{hi:x}\ns_or_b32 s55, s55, s35"
        if half: r += f"\ns_or_b32 s55, s55, 0x{1 << (12 + e):x}"
        return r
    def dma_kv(step, nmax=8):
        r = []
        for n in range(nmax):
            if n % 4 == 0:
                r += [f"s_add_u32 m0, s54, {(step % 4)*16384 + n*1024}", kmap(n), "s_add_u32 s30, s30, s101" if n else "s_add_u32 s30, s30, 4096"]
            r.append((f"buffer_load_dwordx4 v{16 + (n & 3)}, s[12:15], s55 offen offset:{(n & 3)*1024} {cfg.kv_flags} lds", f"KV{step}"))
        return r
    A.emit(dma_x(0)); A.emit(dma_w(0))
    def xw_pf():
        return [(f"buffer_load_dword v56, v62, s[4:7], s58 offen", "PF"), (f"buffer_load_dword v56, v63, s[84:87], s60 offen", "PF"),
                "s_add_u32 s58, s58, 512", "s_add_u32 s60, s60, 0x200000"]
    if cfg.xwpf:
        assert not cfg.qrot and cfg.wmode != 4
        A("v_min_u32 v62, 47, v2\nv_mul_u32_u24 v62, 1280, v62")
        A("v_lshrrev_b32 v63, 2, v2\nv_min_u32 v63, 7, v63\nv_lshlrev_b32 v63, 16, v63\nv_and_b32 v14, 3, v2\nv_lshl_add_u32 v63, v14, 7, v63")
        A("s_mul_i32 s58, s23, 61440\ns_lshl_b32 s34, s20, 7\ns_add_u32 s58, s58, s34\ns_add_u32 s58, s58, 128")
        A("s_lshl_b32 s60, s20, 6\ns_add_u32 s60, s60, s27\ns_add_u32 s60, s60, 64\ns_lshl_b32 s60, s60, 13")
        A("s_lshl_b32 s34, s21, 8\ns_sub_u32 s84, s8, s34\ns_subb_u32 s85, s9, 0\ns_add_u32 s86, s10, s34\ns_mov_b32 s87, 0x20000")
        A.emit(xw_pf())
    A("s_lshl_b32 s34, s27, 5\ns_add_u32 s34, s34, s29\ns_lshl_b32 s34, s34, 18")
    A("s_add_u32 s36, s38, s34\ns_addc_u32 s37, s39, 0")
    A("s_add_u32 s38, s40, s34\ns_addc_u32 s39, s41, 0")
    A("s_cmp_eq_u32 s22, 1")
    A("s_cselect_b32 s12, s38, s36\ns_cselect_b32 s13, s39, s37")
    A("s_mov_b32 s14, 0x40000\ns_mov_b32 s15, 0x20000")
    A("s_cselect_b64 s[32:33], -1, 0")
    A("v_xor_b32 v11, v3, v4")
    A("v_lshlrev_b32 v10, 1, v4\nv_xor_b32 v10, v3, v10")
    A("v_lshlrev_b32 v12, 8, v4")
    for n in range(4):
        A(f"v_xor_b32 v13, {4*n}, v11")
        A(f"v_xor_b32 v14, {8*(n&1)}, v10")
        A("v_cndmask_b32 v13, v13, v14, s[32:33]")
        A(f"v_lshl_add_u32 v{16+n}, v13, 4, v12")
        if n and cfg.kse: A(f"v_add_u32 v{16+n}, {n * ((1024 << cfg.kse) - 1024)}, v{16+n}")
    A("v_lshlrev_b32 v12, 8, v3\nv_add_u32 v12, s46, v12")
    for c in range(4):
        A(f"v_xor_b32 v13, {4*c}, v11")
        A(f"v_lshl_add_u32 v{20+c}, v13, 4, v12")
    A("v_lshrrev_b32 v10, 2, v3\nv_lshl_add_u32 v11, v4, 2, v10")
    A("v_and_b32 v12, 7, v11")
    A("v_lshlrev_b32 v11, 8, v11")
    A("v_and_b32 v13, 3, v3\nv_lshl_add_u32 v11, v13, 3, v11")
    A("s_add_u32 s47, s46, 8192")
    A("v_add_u32 v11, s47, v11")
    for dt in range(8):
        A(f"v_xor_b32 v14, {dt}, v12")
        A(f"v_lshl_add_u32 v{24+dt}, v14, 5, v11")
    A("v_lshlrev_b32 v32, 4, v2\nv_add_u32 v33, 4096, v32")
    A(f"s_mul_i32 s34, s22, 12288\ns_add_u32 s34, s34, {XBUF[0]}")
    A("v_lshrrev_b32 v11, 1, v3\nv_xor_b32 v11, v4, v11")
    A("v_lshlrev_b32 v12, 7, v3\nv_add_u32 v12, s34, v12")
    for s in range(2):
        A(f"v_xor_b32 v14, {4*s}, v11")
        A(f"v_lshl_add_u32 v{52+s}, v14, 4, v12")
    A("v_lshl_add_u32 v11, v4, 3, v10\nv_lshlrev_b32 v11, 8, v11")
    A("v_lshl_add_u32 v11, v13, 4, v11")
    A("v_add_u32 v11, s46, v11")
    for c in range(4):
        A(f"v_xor_b32 v14, {c}, v10")
        A(f"v_lshl_add_u32 v{40+c}, v14, 6, v11")
    if cfg.kvpf:
        lam = cfg.kvpf; sh = lam.bit_length() - 1
        A(f"v_lshrrev_b32 v55, {sh}, v2\nv_lshlrev_b32 v55, 13, v55\nv_and_b32 v14, {lam-1}, v2\nv_lshl_add_u32 v55, v14, 7, v55")
        npf = lam // 2
        kvpf_list = [[f"s_mov_b32 s50, {k*(64//lam)*8192}", (f"buffer_load_dword v56, v55, s[12:15], s50 offen {cfg.kvpfl}", "PF")] for k in range(npf)]
        nsl = cfg.kvpf1 - cfg.kvpf0 + 1
    if cfg.sparse1:
        A("v_and_b32 v14, 3, v2\nv_cmp_eq_u32 vcc, 0, v14\nv_mov_b32 v14, 0x3f803f80\ns_nop 0")
        for k in range(4): A(f"v_cndmask_b32 v{48+k}, 0, v14, vcc")
    else:
        for k in range(4): A(f"v_mov_b32 v{48+k}, 0x3f803f80")
    A("v_lshl_add_u32 v45, v4, 4, s46")
    cs = f32bits(128 ** -0.5 * math.log2(math.e))
    A(f"v_mov_b32 v46, 0x{cs:08x}\nv_mov_b32 v47, 0x{cs:08x}")
    A(f"s_mov_b32 s31, 0x{f32bits(2.0 ** cfg.thr_log2):08x}")
    A("s_lshl_b32 s40, s25, 3\ns_add_u32 s40, s40, s27")
    A("s_lshl_b32 s34, s40, 5\ns_add_u32 s34, s34, s29\ns_lshl_b32 s34, s34, 1\ns_add_u32 s34, s34, s22\ns_mul_i32 s34, s34, 24576")
    A("s_add_u32 s16, s44, s34\ns_addc_u32 s17, s45, 0\ns_movk_i32 s18, 0x6000\ns_mov_b32 s19, 0x20000")
    A("s_mov_b32 s59, 0")
    if cfg.rot:
        if cfg.rot == 1:
            A("s_lshl_b32 s30, s2, 1\ns_add_u32 s30, s30, s21\ns_mul_i32 s34, s30, 0x9E3779B1\ns_lshr_b32 s30, s34, 27\ns_lshl_b32 s30, s30, 13")
        else:
            A(f"s_add_u32 s30, s2, 1\ns_mul_i32 s34, s30, 0x9E3779B1\ns_lshr_b32 s30, s34, 27\ns_mul_i32 s35, s21, {cfg.rotd}\ns_add_u32 s30, s30, s35\ns_lshl_b32 s30, s30, 13")
        if cfg.stride: A("s_bfe_u32 s101, s34, 0x40017\ns_lshl_b32 s101, s101, 14\ns_add_u32 s101, s101, 4096")
        else: A("s_movk_i32 s101, 0x1000")
    else:
        A("s_mov_b32 s30, 0\ns_movk_i32 s101, 0x1000")
    if cfg.cpf:
        A("s_mov_b32 s34, 0x8000")
        A.vmem("buffer_load_dword v56, v54, s[88:91], s34 offen", "CPF")
    if cfg.wmode in (3, 4):
        A("s_lshl_b32 s34, s26, 3\ns_add_u32 s34, s34, s27\ns_mul_i32 s34, s34, 40960")
        A("s_add_u32 s88, s92, s34\ns_addc_u32 s89, s93, 0\ns_mov_b32 s90, 40960\ns_mov_b32 s91, 0x20000")
        A("v_add_u32 v55, 0x8000, v54")
        if cfg.wmode == 4:
            per = 320 // (4 * cfg.wbn)
            A(f"v_mul_u32_u24 v55, {per}, v1\nv_add_u32 v55, v55, v2\nv_lshlrev_b32 v55, 7, v55\nv_cmp_gt_u32 vcc, {per}, v2\nv_mov_b32 v14, 0x100000\ns_nop 0\nv_cndmask_b32 v55, v14, v55, vcc")
    if not cfg.early: A.emit(dma_x(1)); A.emit(dma_w(1))

    ACC = 64
    def acc(T, dt): return ACC + 32 * T + 4 * dt
    def fa(dt, s): return 80 + 8 * dt + 4 * s
    def fb(p, T, s): return (144 if p == 0 else 192) + 8 * T + 4 * s
    def qa_reads(sg, dt):
        c, e = dt >> 1, dt & 1
        return [f"ds_read_b64_tr_b16 {ar(fa(dt, s) + 2*f, 2)}, v{40+c} offset:{WSLOT[sg % 3]*16384 + s*8192 + f*1024 + 8*e}"
                for s in range(2) for f in range(2)]
    def qb_read(sg, T, s):
        return f"ds_read_b128 {ar(fb(sg % 2, T, s))}, v{52 + s} offset:{(sg % 2)*24576 + T*2048}"
    A(f"s_waitcnt vmcnt({A.vm_after(['X0', 'W0'])})")
    A("s_barrier")
    for T in range(6):
        for s in range(2): A(qb_read(0, T, s))
    for dt in range(8):
        for r in qa_reads(0, dt): A(r)
    fill = [f"v_accvgpr_write_b32 a{i}, 0" for i in range(80)]
    pend = (dma_x(1) + dma_w(1) if cfg.early else []) + dma_w(2)
    NST = (5 if cfg.win else 8)
    qend = 8 + cfg.lag + NST
    PFW = [(f"buffer_load_dword v56, v54, s[88:91], 0 offen {cfg.wopfl}", "KVPF"), (f"buffer_load_dword v56, v55, s[88:91], 0 offen {cfg.wopfl}", "KVPF")]
    BG = [int(x) for x in cfg.barg.split(",")] if cfg.early else [10]
    for sg in range(10):
        last = sg == 9
        slots = [[] for _ in range(96)]
        if not last:
            need = [f"W{sg+1}", f"X{sg+1}"]
            G = BG[min(sg, len(BG) - 1)]
            slots[G] = ["WAIT"]; slots[G + 1] = ["BAR"]
            if G > 11: slots[11] = ["s_waitcnt lgkmcnt(0)"]
            rl = [(11, r) for r in qa_reads(sg + 1, 0)]
            for T in range(6): rl += [(0, qb_read(sg + 1, T, 0)), (0, qb_read(sg + 1, T, 1))]
            for dt in range(1, 8): rl += [(12*dt + 11, r) for r in qa_reads(sg + 1, dt)]
            for g in range(G + 2, 96):
                k = 0
                while rl and rl[0][0] <= g and (k < 2 or g == 95):
                    slots[g].append(rl.pop(0)[1]); k += 1
            assert not rl
        else:
            fill += [f"v_accvgpr_write_b32 a{i}, 0" for i in range(144, 192)]
            for n in range(5):
                fill += [f"v_add_u32 v14, {64*n}, v2", "v_mul_u32_u24 v15, 3277, v14", "v_lshrrev_b32 v15, 16, v15",
                         "v_mul_u32_u24 v34, 20, v15", "v_sub_u32 v14, v14, v34", "v_bfe_u32 v34, v15, 2, 1", "v_lshlrev_b32 v34, 1, v34",
                         "v_xor_b32 v14, v14, v34", "v_mul_u32_u24 v15, 1280, v15", f"v_lshl_add_u32 v{5+n}, v14, 4, v15"]
                if 0 < n < 4: fill.append(f"v_subrev_u32 v{5+n}, {1024*n}, v{5+n}")
        if cfg.slabst:
            A(f"s_memrealtime s[98:99]\ns_waitcnt lgkmcnt(0)\nv_writelane_b32 v57, s98, {sg + 1}")
        A("s_waitcnt lgkmcnt(15)")
        order = [(T, s) for T in range(6) for s in range(2)] if cfg.qchain else [(T, s) for s in range(2) for T in range(6)]
        g = 0
        for dt in range(8):
            for T, s in order:
                d = vr(acc(T, dt))
                A(mf(d, ar(fa(dt, s)), ar(fb(sg % 2, T, s)), "0" if sg == 0 and s == 0 else d))
                used = 0
                for x in slots[g]:
                    if x == "WAIT": A(f"s_waitcnt vmcnt({A.vm_after(need)}) lgkmcnt(0)"); used = 2
                    elif x == "BAR":
                        A("s_barrier"); used = 2
                        if sg + 2 < 10: pend += dma_x(sg + 2)
                        if cfg.kvpf and cfg.kvpf0 <= sg <= cfg.kvpf1:
                            r = sg - cfg.kvpf0
                            for k in range(r * npf // nsl, (r + 1) * npf // nsl): pend += kvpf_list[k]
                        if sg + 3 < 10: pend += dma_w(sg + 3)
                        if cfg.xwpf and sg in (cfg.pfb, cfg.pfb + 3): pend += xw_pf()
                        if cfg.wmode == 4 and cfg.wb0 <= sg < cfg.wb0 + cfg.wbn:
                            pend += [f"s_mov_b32 s60, {(sg - cfg.wb0) * (40960 // cfg.wbn)}", (f"buffer_load_dword v56, v55, s[88:91], s60 offen {cfg.wopfl}", "KVPF")]
                        if cfg.wmode == 3 and sg == cfg.wsg:
                            pend += PFW
                        if sg == (7 if cfg.kvq == 2 else 8) and cfg.kvq: pend += dma_kv(0)
                        if sg == 8 and cfg.kvq == 2: pend += dma_kv(1)
                    else: A(x); used = 2
                if last and g == 11:
                    A("s_waitcnt lgkmcnt(0)")
                    if cfg.kve:
                        A("s_barrier"); used = 2
                        pend += dma_kv(2, min(8, qend - 16)) + dma_kv(3, max(0, qend - 24))
                    if cfg.wmode == 3 and cfg.wsg == 9: pend += PFW
                if last and g % 12 == 11 and g < 95:
                    fill += [f"v_accvgpr_write_b32 a{i}, 0" for i in range(fa(dt, 0), fa(dt, 0) + 8)]
                if not used and pend:
                    if isinstance(pend[0], str): A(pend.pop(0))
                    elif g % (cfg.qdsp if sg >= len(BG) - 1 else 2) == 0:
                        it = pend.pop(0); used = 2
                        if cfg.q_nodma and not it[1].startswith("KV"): A.vm.append(it[1])
                        else: A.vmem(*it)
                if not used:
                    for _ in range(2):
                        if fill: A(fill.pop(0))
                g += 1
    assert not pend, len(pend)
    fill += [f"v_accvgpr_write_b32 a{i}, 0" for i in range(fa(7, 0), fa(7, 0) + 8)]
    if not cfg.kve: A("s_barrier")
    stamp(1)
    if cfg.slabst:
        A(f"s_memrealtime s[60:61]\ns_waitcnt lgkmcnt(0)\nv_writelane_b32 v57, s60, 11\nv_writelane_b32 v57, s64, 0")
        A(f"s_add_u32 s88, s44, {STAMP_BASE + 0x80000}\ns_addc_u32 s89, s45, 0\ns_mov_b32 s90, 0x100000\ns_mov_b32 s91, 0x20000")
        A("s_lshl_b32 s34, s2, 10\nv_lshlrev_b32 v62, 2, v0")
        A.vmem("buffer_store_dword v57, v62, s[88:91], s34 offen", "ST")
        A("s_nop 3")
    A("s_load_dwordx4 s[48:51], s[0:1], 80")
    A("s_lshl_b32 s41, s40, 2\ns_add_u32 s42, s41, s23\ns_add_u32 s41, s41, s28")
    A(f"s_add_u32 s8, s44, {MBOX}\ns_addc_u32 s9, s45, 0\ns_mov_b32 s10, 0x8000\ns_mov_b32 s11, 0x20000")
    A("s_lshl_b32 s99, s41, 8\ns_lshl_b32 s100, s42, 8\ns_add_u32 s100, s100, 0x4000")
    A("v_mov_b32 v57, 0")
    A.vmem("buffer_load_dword v62, v57, s[8:11], s99 offen sc1", "SNAP")
    A.vmem("buffer_load_dword v63, v57, s[8:11], s100 offen sc1", "SNAP")
    for st in range(cfg.kvq, 2): A.emit(dma_kv(st))
    for z in fill: A(z)
    for k in range(96):
        A(f"v_pk_mul_f32 v[{ACC+2*k}:{ACC+2*k+1}], v[{ACC+2*k}:{ACC+2*k+1}], v[46:47]")
        if k >= 1: A(f"v_cvt_pk_bf16_f32 v{ACC+k-1}, v{ACC+2*k-2}, v{ACC+2*k-1}")
    A(f"v_cvt_pk_bf16_f32 v{ACC+95}, v{ACC+190}, v{ACC+191}")
    def qf(T, c): return ACC + 16 * T + 4 * c
    A("s_waitcnt lgkmcnt(0)")
    if cfg.tlb:
        A.vmem("buffer_load_dword v56, v57, s[16:19], 0 offen sc1", "TLB")
        A(f"s_lshl_b32 s34, s42, 18\ns_add_u32 s34, s34, {PBASE + 15360}")
        A("s_add_u32 s4, s44, s34\ns_addc_u32 s5, s45, 0\ns_movk_i32 s6, 0x100\ns_mov_b32 s7, 0x20000")
        A.vmem("buffer_load_dword v56, v57, s[4:7], 0 offen sc1", "TLB")
        A("s_mul_i32 s34, s27, 491520\ns_and_b32 s35, s28, 1\ns_mul_i32 s35, s35, 245760\ns_add_u32 s34, s34, s35\ns_mul_i32 s35, s20, 61440\ns_add_u32 s34, s34, s35")
        A("s_add_u32 s4, s48, s34\ns_addc_u32 s5, s49, 0")
        A.vmem("buffer_load_dword v56, v57, s[4:7], 0 offen sc1", "TLB")
        A("s_mov_b32 s4, s50\ns_mov_b32 s5, s51")
        A.vmem("buffer_load_dword v56, v57, s[4:7], 0 offen sc1", "TLB")

    S = [160, 176]; P = [192, 200]; NEGM = 208; L = 232; ONES = 48
    KF = 192; VF = 224
    def O(T, dt): return 32 * T + 4 * dt
    def k_read(st, kt, c): return f"ds_read_b128 {ar(KF + 16*kt + 4*c)}, v{20+c} offset:{st*16384 + kt*4096}"
    def v_read(st, dt, e): return f"ds_read_b64_tr_b16 {ar(VF + 4*dt + 2*e, 2)}, v{24+dt} offset:{st*16384 + e*4096}"
    def qk_mfmas(t, par):
        r = []
        for Tl in range(2):
            T = 2*t + Tl
            for kt in range(2):
                d = vr(S[par] + 8*Tl + 4*kt)
                for c in range(4):
                    r.append(mf(d, ar(KF + 16*kt + 4*c), vr(qf(T, c)), vr(NEGM + 4*T) if c == 0 else d))
        return r
    def pv_mfmas(t, par):
        r = []
        if cfg.pvord:
            for dt in range(8):
                for Tl in range(2):
                    T = 2*t + Tl
                    r.append(mf(ar(O(T, dt)), ar(VF + 4*dt), vr(P[par] + 4*Tl), ar(O(T, dt))))
            for Tl in range(2):
                T = 2*t + Tl
                r.append(mf(vr(L + 4*T), vr(ONES), vr(P[par] + 4*Tl), vr(L + 4*T)))
            return r
        for Tl in range(2):
            T = 2*t + Tl
            for dt in range(8):
                r.append(mf(ar(O(T, dt)), ar(VF + 4*dt), vr(P[par] + 4*Tl), ar(O(T, dt))))
            r.append(mf(vr(L + 4*T), vr(ONES), vr(P[par] + 4*Tl), vr(L + 4*T)))
        return r
    def EX(par, e): return f"v_exp_f32 v{S[par]+e}, v{S[par]+e}" if not cfg.xp & 1 else "s_nop 1"
    def CV(par, k): return f"v_cvt_pk_bf16_f32 v{P[par]+k}, v{S[par]+2*k}, v{S[par]+2*k+1}" if not cfg.xp & 2 else f"v_mov_b32 v{P[par]+k}, 0x3f803f80"
    A(f"s_waitcnt vmcnt({A.vm_after(['KV0'])})")
    A("s_barrier")
    for c in range(4): A(f"ds_read_b128 {vr(S[1] + 4*c)}, v45 offset:{64*c}")
    for kt in range(2):
        for c in range(4): A(k_read(0, kt, c))
    for k in range(24): A(f"v_mov_b32 v{L+k}, 0")
    A("s_waitcnt lgkmcnt(8)")
    for k in range(16): A(f"v_xor_b32 v{S[1]+k}, 0x80008000, v{S[1]+k}")
    A("s_nop 1")
    if cfg.kve: kv2 = []; kv3 = []
    else: kv2 = dma_kv(2, min(8, qend - 16)); kv3 = dma_kv(3, max(0, qend - 24))
    gam = "v14"
    misc = ["v_and_b32 v14, 1, v4", "v_xor_b32 v15, 1, v14",
            "v_lshrrev_b32 v34, 2, v3", "v_lshl_add_u32 v34, v4, 2, v34", "v_mul_u32_u24 v34, 320, v34",
            "v_and_b32 v35, 3, v3", "v_lshl_add_u32 v34, v35, 3, v34", "v_add_u32 v34, s46, v34",
            "v_lshl_add_u32 v36, v14, 5, v34", "v_lshl_add_u32 v37, v15, 5, v34",
            "v_add_u32 v38, 128, v37", "v_add_u32 v39, 192, v36",
            "MASK",
            "v_cndmask_b32 v10, v36, v38, s[32:33]", "v_cndmask_b32 v11, v37, v39, s[32:33]",
            "v_cndmask_b32 v12, v38, v36, s[32:33]", "v_cndmask_b32 v13, v39, v37, s[32:33]",
            "v_mul_u32_u24 v34, 2560, v3", "v_lshl_add_u32 v34, v4, 3, v34",
            "v_lshlrev_b32 v35, 7, v0", "v_add_u32 v36, 0x8000, v35"]
    if cfg.wmode == 1:
        misc = misc[:-2] + ["v_mul_u32_u24 v35, 12, v1", "v_add_u32 v35, v35, v2", "v_lshlrev_b32 v35, 7, v35",
            "v_cmp_gt_u32 vcc, 12, v2", "v_mov_b32 v36, 0x100000", "s_nop 0", "v_cndmask_b32 v35, v36, v35, vcc", "s_mov_b32 s60, 0"]
    def misc_step():
        for _ in range(2):
            if misc:
                m = misc.pop(0)
                if m == "MASK": A("s_cmp_eq_u32 s21, 1\ns_cselect_b64 s[32:33], -1, 0")
                else: A(m)
    for T in range(6):
        for c in range(4):
            d = vr(NEGM + 4*T)
            A(mf(d, vr(S[1] + 4*c), vr(qf(T, c)), "0" if c == 0 else d))
            if kv2 and (isinstance(kv2[0], str) or c % 2 == 0): A.emit([kv2.pop(0)])
            else: misc_step()
    assert not kv2
    A("s_waitcnt lgkmcnt(0)")
    for k, m in enumerate(qk_mfmas(0, 0)):
        A(m)
        if kv3 and (isinstance(kv3[0], str) or k % 2 == 0): A.emit([kv3.pop(0)])
        else: misc_step()
    A.emit(kv3)
    while misc: misc_step()
    A("s_lshl_b32 s34, s26, 3\ns_add_u32 s34, s34, s27\ns_mul_i32 s34, s34, 40960")
    A("s_add_u32 s88, s92, s34\ns_addc_u32 s89, s93, 0\ns_mov_b32 s90, 40960\ns_mov_b32 s91, 0x20000")
    A("s_lshl_b32 s34, s28, 10\ns_lshl_b32 s35, s21, 7\ns_add_u32 s34, s34, s35\ns_lshl_b32 s35, s22, 4\ns_add_u32 s34, s34, s35")
    A("s_mul_i32 s34, s34, 1280\ns_mul_i32 s35, s23, 320\ns_add_u32 s34, s34, s35")
    A("s_add_u32 s92, s92, s34\ns_addc_u32 s93, s93, 0\ns_sub_u32 s94, 5242880, s34\ns_mov_b32 s95, 0x20000")
    if cfg.wmode == 2:
        A(f"buffer_load_dword v39, v35, s[88:91], 0 offen {cfg.wopfl}")
        A(f"buffer_load_dword v39, v36, s[88:91], 0 offen {cfg.wopfl}")
    for e in range(16): A(EX(0, e))
    for k in range(4): A(CV(0, k))
    A("s_mul_i32 s96, s23, 327680")
    A("s_mov_b32 s57, 7\ns_mov_b64 vcc, -1")
    if cfg.wramp: A(f"s_mov_b32 s61, 0x{cfg.wramp[::-1]}")
    if cfg.cpf2:
        tgt = "L_peel" if cfg.cpf2 == 2 else "L_epi"
        A("s_getpc_b64 s[4:5]\nL_pc2:")
        A(f"s_add_u32 s4, s4, {tgt} - L_pc2\ns_addc_u32 s5, s5, 0\ns_mov_b32 s6, L_end - {tgt}\ns_mov_b32 s7, 0x20000")
    if cfg.ssr:
        A(f"s_mul_i32 s61, s2, 0x9E3779B1\ns_lshr_b32 s61, s61, 16\ns_mul_i32 s61, s61, {cfg.ssr}\ns_lshr_b32 s61, s61, 16\ns_add_u32 s61, s61, {cfg.ss0}\ns_bfm_b32 s61, s61, 0")
    stamp(1)
    def w2_dma(c, sreg, tag, coff=1):
        r = []
        for n in range(5):
            if n == 0: r += [f"s_add_u32 m0, s54, {c*16384}", f"s_add_u32 s55, {sreg}, {c*40960*coff}"]
            if n == 4: r += [f"s_add_u32 m0, s54, {c*16384 + 4096}", "s_nop 0"]
            r.append((f"buffer_load_dwordx4 v{5+n}, s[92:95], s55 offen offset:{(n & 3)*1024} {cfg.wold} lds", tag))
        return r
    N = cfg.lag
    rq = []
    for q in range(8*29 + cfg.lag + NST, 256):
        if q % 4 == 0:
            rq += [f"s_add_u32 m0, s54, {((q >> 3) % 4)*16384 + (q & 4)*1024}", "s_and_b32 s55, s30, 0x3ffff",
                   "s_add_u32 s30, s30, s101" if q & 4 else "s_add_u32 s30, s30, 4096"]
        rq.append((f"buffer_load_dwordx4 v{16 + (q & 3)}, s[12:15], s55 offen offset:{(q & 3)*1024} {cfg.kv_flags} lds", f"KV{q >> 3}"))
    wq = [0, 1, 2, 3]
    def body(u, last):
        t, par, j = u % 3, u % 2, u // 3
        t1, par1 = (u + 1) % 3, (u + 1) % 2
        fin = last and u == 11
        kv_here = bool(rq) and cfg.ramp
        ms = qk_mfmas(t1, par1) + pv_mfmas(t, par)
        pre = [[] for _ in range(34)]
        val = [[] for _ in range(34)]
        val[0] = [CV(par, 4), CV(par, 5)]; val[1] = [CV(par, 6), CV(par, 7)]
        for e in range(16): val[16 + e] = [EX(par1, e)]
        val[32] = [CV(par1, 0), CV(par1, 1)]; val[33] = [CV(par1, 2), CV(par1, 3)]
        jj = (28 + j) if last else j
        iv = jj if t == 2 else jj - 1
        def q_of(i): return 8 * (iv + 2) + N + i
        def live(i): return (not last) or q_of(i) < 256
        def dma(i, g):
            q = q_of(i)
            if live(i):
                pre[g].append((f"buffer_load_dwordx4 v{16 + (q & 3)}, s[12:15], s55 offen offset:{(q & 3)*1024} {cfg.kv_flags} lds", f"KV{q >> 3}"))
        stn = (j + 1) % 4
        if t == 1:
            if not last:
                if cfg.ssr:
                    pre[3] += ["s_bitcmp1_b32 s61, 0"]
                    pre[4] += [f"s_cbranch_scc0 L_ss{u}", f"s_waitcnt vmcnt({cfg.ssn})", f"L_ss{u}:"]
                    pre[7] += ["s_lshr_b32 s61, s61, 1"]
                if cfg.ssk: pre[4] += [f"s_cbranch_vccz L_ss{u}", f"s_waitcnt vmcnt({cfg.ssn})", f"L_ss{u}:"]
                pre[5].append(f"s_waitcnt vmcnt({N})")
            elif j < 3: pre[5].append(lambda: A(f"s_waitcnt vmcnt({A.vm_after([f'KV{29+j}'])})"))
            pre[6].append("s_barrier")
            if not (last and j == 3):
                for kt in range(2):
                    for c in range(4): pre[8 + 4*kt + c].append(k_read(stn, kt, c))
                pre[33].append("s_waitcnt lgkmcnt(0)")
        def inc(q): return "s_add_u32 s30, s30, s101" if q & 4 else "s_add_u32 s30, s30, 4096"
        if cfg.win and not (last and cfg.ramp):
            assert N % 4 == 0
            sites = {1: [(-1, 7, 2), (0, 0, 18), (0, 1, 30)], 2: [(0, 2, 8), (0, 3, 20), (0, 4, 31)], 0: [(-1, 5, 11), (-1, 6, 24)]}[t]
            for off, i, g in sites:
                q = 8 * (jj + off + 2) + N + i
                if last and q >= 256: continue
                kv_here = True
                if q % 4 == 0:
                    pre[g - 3].append(f"s_add_u32 m0, s54, {((q >> 3) % 4)*16384 + (q & 4)*1024}")
                    pre[g - 2].append(kmap(q & 4))
                    pre[g + 1].append(inc(q))
                w = int(cfg.wpat[(8 * ((jj + off) % 4) + i) % len(cfg.wpat)])
                if cfg.wdel == 1:
                    if cfg.wramp and not last:
                        cls = {0: 0, 4: 1, 2: 2, 6: 2}.get(i, 3)
                        pre[g - 1].append(f"s_bitcmp1_b32 s61, {cls}\ns_cbranch_scc0 L_w{u}_{i}\ns_waitcnt vmcnt(3)\nL_w{u}_{i}:")
                        if cfg.w5it: pre[g - 1].append(f"s_cbranch_vccz L_v{u}_{i}\ns_waitcnt vmcnt(4)\nL_v{u}_{i}:")
                    pre[g - 1].append(f"s_waitcnt vmcnt({w - 1})")
                elif g - cfg.wdel >= 0: pre[g - cfg.wdel].append(f"s_waitcnt vmcnt({w - 1})")
                pre[g].append((f"buffer_load_dwordx4 v{16 + (q & 3)}, s[12:15], s55 offen offset:{(q & 3)*1024} {cfg.kv_flags} lds", f"KV{q >> 3}"))
            if cfg.wdel > 1:
                g0 = {0: 2, 1: 8, 2: 11}[t]
                if g0 - cfg.wdel < 0 and not (last and u >= 4): pre[34 + g0 - cfg.wdel].append(f"s_waitcnt vmcnt({int(cfg.wpat[0]) - 1})")
        if t in (1, 2) and not (last and cfg.ramp) and not cfg.win:
            iv = jj
            g = (0 if N % 4 == 0 else 2) + cfg.dpos
            def put(gg, it):
                if t == 2 and gg >= 0: pre[gg].append(it)
                if t == 1 and gg < 0: pre[34 + gg].append(it)
            for i in range(8):
                q = 8 * (iv + 2) + N + i
                lv = (not last) or q < 256
                if q % 4 == 0:
                    if lv:
                        put(g, f"s_add_u32 m0, s54, {((q >> 3) % 4)*16384 + (q & 4)*1024}")
                        put(g + 1, "s_and_b32 s55, s30, 0x3ffff")
                        put(g + 1, inc(q))
                    g += 2
                if lv: put(g, (f"buffer_load_dwordx4 v{16 + (q & 3)}, s[12:15], s55 offen offset:{(q & 3)*1024} {cfg.kv_flags} lds", f"KV{q >> 3}"))
                g += 1 if i % 3 else 2
            assert g <= 33, g
            iv = jj if t == 2 else jj - 1
        if last and cfg.ramp and rq:
            gl = {0: list(range(10, 15)) + list(range(16, 32)), 1: [2, 3, 4, 7] + list(range(16, 32)), 2: list(range(2, 32))}[t]
            for g in gl:
                if not rq: break
                if isinstance(rq[0], tuple) and g >= 16 and g % 2: continue
                pre[g].append(rq.pop(0))
        if t == 0:
            for dt in range(8):
                pre[2 + dt] += [v_read(j % 4, dt, 0), v_read(j % 4, dt, 1)]
            pre[15].append("s_waitcnt lgkmcnt(0)")
        if last and ((not kv_here and not rq) if cfg.ramp else (not kv_here and u >= 2 + (16 - N) * 3 // 8)) and wq and wq[0] <= iv - 28 and t != 1 and u >= cfg.wlate:
            c = wq.pop(0)
            w = w2_dma(c, "s96", f"W{c}")
            gs = (0, 1, 2, 5, 8, 11, 12, 13, 14) if t == 2 else (0, 1, 10, 11, 12, 13, 16, 17, 18)
            if fin: gs = (16, 17, 18, 20, 22, 24, 25, 26, 27)
            for it, g in zip(w, gs): pre[g].append(it)
        if (cfg.cpf2 == 2 and not last and u == 6) or (cfg.cpf2 == 1 and last and u == 0):
            pre[13].append(("buffer_load_dword v39, v54, s[4:7], 0 offen", "PF"))
        if cfg.wmode == 1 and not last and u == 4:
            pre[7].append((f"buffer_load_dword v39, v35, s[88:91], s60 offen {cfg.wopfl}", "PF"))
            pre[16].append("s_add_u32 s60, s60, 6144")
        if cfg.wmode == 0 and cfg.wopf and last and u == cfg.wopf:
            assert t != 0
            pre[2].append((f"buffer_load_dword v39, v35, s[88:91], 0 offen {cfg.wopfl}", "PF"))
            pre[4].append((f"buffer_load_dword v39, v36, s[88:91], 0 offen {cfg.wopfl}", "PF"))
        if fin:
            for k in range(4, 8): A(CV(par, k))
            A("s_nop 0")
        for g in range(34):
            if fin and g < 16: continue
            A(ms[g])
            x = pre[g]
            if cfg.no_dma: x = [y for y in x if not isinstance(y, tuple)]
            A.emit(x)
            if not fin:
                for y in val[g]: A(y)
    A(".p2align 6")
    A("L_loop:")
    for u in range(12): body(u, False)
    if cfg.stamps & 16:
        A("s_memrealtime s[60:61]\ns_waitcnt lgkmcnt(0)")
        A("s_cmp_lt_u32 s57, 3\ns_cbranch_scc1 L_nosh")
        A("s_mov_b32 s68, s72\ns_mov_b32 s72, s76\ns_mov_b32 s76, s80\ns_mov_b32 s80, s84\ns_mov_b32 s84, s60")
        A("L_nosh:")
        stamp.n = 6
    if cfg.wramp: A("s_lshr_b32 s61, s61, 4")
    if cfg.w5it: A(f"s_cmp_gt_u32 s57, {8 - cfg.w5it}\ns_cselect_b64 vcc, -1, 0")
    if cfg.ssk: A(f"s_cmp_gt_u32 s57, {8 - cfg.ssk}\ns_cselect_b64 vcc, -1, 0")
    A("s_sub_u32 s57, s57, 1\ns_cmp_lg_u32 s57, 0\ns_cbranch_scc1 L_loop")
    A.vm = [f"KV{q >> 3}" for q in range(8*28, 8*29 + N + NST)]
    A("L_peel:")
    stamp(8)
    for u in range(12):
        body(u, True)
        if u in (4, 8): stamp(8)
    for c in wq: A.emit(w2_dma(c, "s96", f"W{c}"))
    stamp()
    A("v_readfirstlane_b32 s56, v62\nv_readfirstlane_b32 s58, v63")
    A("s_nop 5")
    A(f"v_cmp_nge_f32 vcc, s31, v{L}")
    for T in range(1, 6):
        A(f"v_cmp_nge_f32 s[34:35], s31, v{L + 4*T}")
        A("s_or_b64 vcc, vcc, s[34:35]")
    if cfg.force_fb: A("s_branch L_fallback")
    A("s_cbranch_vccnz L_fallback")
    A("L_epi:")
    BB = 40; KEEP = 136; AF = 192; AX = 16
    SENT = [32*(i // 4) + 4*(i % 4) for i in range(24)] + [232 + 4*i for i in range(6)]
    RL = 26
    TL = [16, 17, 20, 21, 35, 36, 37, 38]
    def bfr(c, T): return BB + 24 * c + 4 * T
    def acc2(nu, T): return vr(KEEP + 24*nu + 4*T) if nu < 5 else ar(SENT[6*(nu - 5) + T])
    def b_loads(c, tag):
        return [(f"buffer_load_dwordx4 {vr(bfr(c, T))}, v{32 + T//4}, s[4:7], s{88+c} offen offset:{(T % 4)*1024} {cfg.old}", tag) for T in range(6)]
    def o_store(c, T, tag):
        return (f"buffer_store_dwordx4 {vr(bfr(c, T))}, v{32 + T//4}, s[16:19], s52 offen offset:{(T % 4)*1024} {cfg.ost}", tag)
    def next_tile(c):
        return ["s_add_u32 s53, s62, s97\ns_lshr_b64 s[62:63], s[62:63], 4",
                "s_bfe_u32 s32, s53, 0x20002\ns_and_b32 s33, s53, 3",
                "s_lshl_b32 s34, s32, 3\ns_add_u32 s34, s34, s33",
                "s_mul_i32 s96, s34, 40960\ns_lshl_b32 s32, s32, 4",
                f"s_add_u32 s32, s32, s33\ns_mul_i32 s{88+c}, s32, 6144"]
    def a_reads(c, nu, dst=None):
        n5 = nu % 5
        reg = 10 + 2*(nu // 5) + (n5 & 1)
        d = AF + 4*nu if dst is None else dst
        return [f"ds_read_b64_tr_b16 {ar(d + 2*e, 2)}, v{reg} offset:{c*16384 + e*8192 + 64*(n5 >> 1)}" for e in range(2)]
    A("s_lshl_b32 s34, s40, 5\ns_lshl_b32 s35, s28, 3\ns_add_u32 s34, s34, s35\ns_add_u32 s34, s34, s21\ns_lshl_b32 s34, s34, 1\ns_add_u32 s34, s34, s22\ns_mul_i32 s34, s34, 24576")
    A(f"s_add_u32 s4, s44, s34\ns_addc_u32 s5, s45, 0\ns_mov_b32 s6, {3*98304 + 24576}\ns_mov_b32 s7, 0x20000")
    A(f"s_add_u32 s8, s44, {MBOX}\ns_addc_u32 s9, s45, 0\ns_mov_b32 s10, 0x8000\ns_mov_b32 s11, 0x20000")
    A("s_mov_b32 s36, s50\ns_mov_b32 s37, s51\ns_movk_i32 s38, 0x100\ns_mov_b32 s39, 0x20000")
    if cfg.dbgst: A("s_mov_b32 s38, 0")
    A("s_lshl_b32 s41, s41, 2\ns_lshl_b32 s97, s23, 2")
    tiles = [4*(1 + p) + c for c in range(4) for p in range(3)]
    tbl = sum(t << (4*i) for i, t in enumerate(tiles))
    A(f"s_mov_b32 s62, 0x{tbl & 0xffffffff:x}\ns_mov_b32 s63, 0x{tbl >> 32:x}\ns_mov_b32 s98, 0")
    A("v_mov_b32 v14, 0\nv_mov_b32 v15, 1\nv_mov_b32 v18, 0x100\nv_mov_b32 v22, 0x10000\nv_mov_b32 v23, 16\nv_mov_b32 v24, 0x100000")
    npoll = [0]
    def signal(vm, vd, mreg, sreg, wave=1):
        k = npoll[0]; npoll[0] += 1
        A(f"s_cmp_lg_u32 s20, {wave}\ns_cbranch_scc1 L_sg{k}")
        A("s_mov_b64 exec, 1")
        A(f"buffer_atomic_add {vm}, v14, s[8:11], {mreg} offen")
        A(f"buffer_atomic_add {vd}, v14, s[36:39], {sreg} offen")
        A("s_mov_b64 exec, -1")
        A(f"L_sg{k}:")
    def poll(mreg, snap, mfield, sreg, field, wave=0):
        k = npoll[0]; npoll[0] += 1
        if wave is not None: A(f"s_cmp_lg_u32 s20, {wave}\ns_cbranch_scc1 L_pd{k}")
        A(f"s_bfe_u32 s34, s98, {mfield}\ns_cmp_eq_u32 s34, 4\ns_cbranch_scc1 L_pd{k}")
        A("s_mov_b32 s61, 0x40000")
        A(f"L_pl{k}:")
        A(f"buffer_load_dword v19, v14, s[8:11], {mreg} offen sc1")
        A("s_waitcnt vmcnt(0)")
        A("v_readfirstlane_b32 s98, v19")
        A("s_sub_u32 s61, s61, 1")
        A(f"s_sub_u32 s98, s98, {snap}")
        A(f"s_bfe_u32 s34, s98, {mfield}\ns_cmp_eq_u32 s34, 4\ns_cbranch_scc1 L_pd{k}")
        if cfg.stamps: A("s_add_u32 s59, s59, 1")
        A(f"s_sleep {cfg.psleep}")
        A(f"s_and_b32 s34, s61, {cfg.rescue - 1}\ns_cbranch_scc1 L_pl{k}")
        A(f"buffer_load_dword v19, v14, s[36:39], {sreg} offen sc1")
        A("s_waitcnt vmcnt(0)")
        A("v_readfirstlane_b32 s34, v19")
        A(f"s_cmp_eq_u32 s61, 0\ns_cbranch_scc1 L_pd{k}")
        A(f"s_bfe_u32 s34, s34, {field}")
        A(f"s_cmp_lt_u32 s34, 4\ns_cbranch_scc1 L_pl{k}")
        A(f"L_pd{k}:")
    for T in range(6): A(f"v_rcp_f32 v{L + 4*T}, v{L + 4*T}")
    for T in range(6): A(f"v_mov_b32 v{L + 4*T + 1}, v{L + 4*T}")
    for T in range(6): A(f"v_mov_b32 v{RL + T}, v{L + 4*T}")
    late = []
    for c in (2, 3):
        for T in range(6):
            ob = bfr(c, T)
            late += [f"v_accvgpr_read_b32 v{TL[k]}, a{O(T, 2*c) + k}" for k in range(8)]
            late += [f"v_mul_f32 v{TL[k]}, v{TL[k]}, v{RL+T}" for k in range(8)]
            late += [f"v_cvt_pk_bf16_f32 v{ob+k}, v{TL[2*k]}, v{TL[2*k+1]}" for k in range(4)]
    q = 0
    NA = 1
    for c in range(2):
        if c < NA: A(f"s_movk_i32 s52, {c*6144}")
        for T in range(6):
            tb = KEEP + 8 * (q % 2); ob = bfr(c, T); q += 1
            for k in range(8): A(f"v_accvgpr_read_b32 v{tb+k}, a{O(T, 2*c) + k}")
            for k in range(4): A(f"v_pk_mul_f32 v[{tb+2*k}:{tb+2*k+1}], v[{tb+2*k}:{tb+2*k+1}], v[{L+4*T}:{L+4*T+1}]")
            for k in range(4): A(f"v_cvt_pk_bf16_f32 v{ob+k}, v{tb+2*k}, v{tb+2*k+1}")
            if c < NA:
                if cfg.swin: A(f"s_waitcnt vmcnt({cfg.swin - 1})")
                A.vmem(*o_store(c, T, "OA"))
        if c == cfg.ebar:
            A(f"s_waitcnt vmcnt({A.vm_after(['W0'] + (['OA'] if cfg.sigstep < 0 else []))})")
            A("s_barrier")
            if cfg.sigstep < 0: signal("v15", "v15", "s99", "s41")
            for nu in range(10): A.emit(a_reads(0, nu))
    stamp(101)
    def place(pre, seq, lo=7, hi=58):
        free = [g for g in range(lo, hi) if not pre[g]]
        nv = sum(isinstance(x, tuple) for x in seq)
        sp = max(1, (len(free) - (len(seq) - nv)) // max(nv, 1))
        k = 0
        for it in seq:
            pre[free[k]].append(it)
            k += sp if isinstance(it, tuple) else 1
    GR = [5, 0, 6, 1, 7, 2, 8, 3, 9, 4]
    def ax(pos, c): return AX + 8*(pos % 2) + 4*(c - 2)
    def ax_reads(pos): return a_reads(2, GR[pos], ax(pos, 2)) + a_reads(3, GR[pos], ax(pos, 3))
    def bx(c, T):
        i = 6*(c - 2) + T
        return ar(48 + 32*(i // 4) + 4*(i % 4))
    def bx_loads(c, tag):
        return [(f"buffer_load_dwordx4 {bx(c, T)}, v{32 + T//4}, s[4:7], s{88+c} offen offset:{(T % 4)*1024} {cfg.old}", tag) for T in range(6)]
    setup = [f"s_lshl_b32 s34, s42, 18\ns_add_u32 s34, s34, {PBASE}",
             "s_add_u32 s12, s44, s34\ns_addc_u32 s13, s45, 0",
             "s_cmp_eq_u32 s20, s28\ns_cselect_b32 s14, 0, 0x40000", "s_mov_b32 s15, 0x20000",
             "s_lshl_b32 s52, s20, 2\ns_add_u32 s52, s52, s28", "s_lshl_b32 s52, s52, 14\ns_lshl_b32 s42, s42, 2",
             "s_xor_b32 s34, s54, 0x10000\nv_add_u32 v16, s54, v32", "v_add_u32 v20, s34, v32\ns_lshl_b32 s34, s20, 13",
             "s_add_u32 s34, s34, 131072\ns_xor_b32 s35, s34, 0x4000", "v_add_u32 v17, s34, v32\nv_add_u32 v21, s35, v32"]
    sched = [int(x) for x in cfg.osched.split(",")]
    assert sum(sched) == 18
    obs = [(c, T) for c in (1, 2, 3) for T in range(6)]
    SIG = {cfg.sigstep: ("OA", "v15"), cfg.sigb: ("O1", "v23"), cfg.sigc: ("O3", "v18")}
    POLL = {cfg.pa: "0x40000", 5: "0x40004", 8: "0x40008"}
    assert cfg.lt0 + cfg.lt1 >= 120 and sched[0] + sched[1] <= 6 and sched[0] + sched[1] + sched[2] <= 12
    def step(k):
        c = k % 4; cn = (c + 1) % 4
        pre = [[] for _ in range(60)]
        for nu in range(10):
            pre[6*nu + 5 + (1 if nu == 0 else 0)] += a_reads(cn, nu)
        seq = []
        if k == cfg.pa == 3: seq += b_loads(0, "B4")
        if cfg.pa <= k < 12: seq += b_loads((c + 2) % 4, f"B{k+2}")
        if k < 12: seq += next_tile(c) + w2_dma(c, "s96", f"W{k+4}", 0)
        if k in (10, 11): seq += bx_loads(c, f"B{k+4}")
        if k == 12: seq += setup
        if k < len(sched) and sched[k]:
            n = sched[k]
            for i in range(n):
                cc, T = obs.pop(0)
                assert k < cc + 2, (k, cc)
                g = 2 + (i * 56) // n
                while pre[g] or pre[g - 1] or g in (4, 5, 6): g += 1
                if T == 0: pre[g - 1].append(f"s_movk_i32 s52, {cc*6144}")
                pre[g].append(o_store(cc, T, f"O{cc}"))
        if cfg.apoll and k + 1 in POLL:
            g = cfg.apg
            while pre[g]: g += 1
            pre[g].append(("buffer_load_dword v19, v14, s[8:11], s99 offen sc1", f"PL{k+1}"))
        need = ([f"PL{k}"] if cfg.apoll and k in POLL else []) + [f"W{k+1}"] + ([SIG[k][0]] if k in SIG else [])
        bar = [lambda: A(f"s_waitcnt vmcnt({A.vm_after(need)}) lgkmcnt(0)")]
        if cfg.apoll and k in POLL: bar.append("v_readfirstlane_b32 s98, v19\ns_nop 0\ns_sub_u32 s98, s98, s56")
        if k in POLL: bar.append(lambda: poll("s99", "s56", POLL[k], "s41", POLL[k]))
        bar.append("s_barrier")
        if k in SIG: bar.append(lambda: signal(SIG[k][1], SIG[k][1], "s99", "s41"))
        pre[4] += bar[:1]; pre[5] += bar[1:]
        if k == 12:
            pre[48].append("s_waitcnt vmcnt(0)"); pre[49].append("s_barrier")
            r0 = ax_reads(0); pre[50] += r0[:2]; pre[51] += r0[2:]
        place(pre, seq, 7, 58 if k < 12 else 46)
        if late:
            take = {0: cfg.lt0, 1: cfg.lt1, 2: len(late)}[k]
            work = late[:take]; del late[:take]
            gaps = [g for g in range(0, 58) if not pre[g] or (len(pre[g]) == 1 and isinstance(pre[g][0], str) and pre[g][0].startswith("s_") and "\n" not in pre[g][0] and g not in (4, 5))]
            for gi, g in enumerate(gaps):
                budget = max(2, -(-len(work) // (len(gaps) - gi)))
                pre[g] += work[:budget]; del work[:budget]
            assert not work
        if cfg.swin2 and k < cfg.swk:
            for g in range(1, 60):
                if any(isinstance(x, tuple) for x in pre[g]): pre[g].insert(0, f"s_waitcnt vmcnt({cfg.swin2 - 1})")
        A(f"s_waitcnt vmcnt({A.vm_after([f'B{k}'])}) lgkmcnt(15)" if k >= 4 else "s_waitcnt lgkmcnt(15)")
        for g in range(60):
            nu, T = g // 6, g % 6
            d = acc2(nu, T)
            A(mf(d, ar(AF + 4*nu), vr(bfr(c, T)), "0" if k == 0 else d))
            A.emit(pre[g])
    assert cfg.keep
    for k in range(13):
        step(k)
        if k == 1: stamp(4)
        if cfg.sk0 <= k < cfg.sk0 + 5 and cfg.sk0 > 0: stamp(128)
        if k < 4: stamp(64)
        if k == 3: stamp(36)
        if k == 11: stamp(32)
    TMP = bfr(0, 0)
    def x_reads(r): return [f"ds_read_b128 {vr(TMP + 4*T)}, v{20 + r % 2} offset:{T*1024}" for T in range(6)]
    def x_writes(r): return [f"ds_write_b128 v{16 + r % 2}, {ar(SENT[6*r + T])} offset:{T*1024}" for T in range(6)]
    def flush(r, pk=False):
        w = []
        for p in range(3):
            ob = KEEP + 24*r + 8*p
            if pk: w += [f"v_pk_add_f32 v[{ob+z}:{ob+z+1}], v[{ob+z}:{ob+z+1}], v[{TMP+8*p+z}:{TMP+8*p+z+1}]" for z in range(0, 8, 2)]
            else: w += [f"v_add_f32 v{ob+z}, v{ob+z}, v{TMP+8*p+z}" for z in range(8)]
            w += [f"v_cvt_pk_bf16_f32 v{ob+z}, v{ob+2*z}, v{ob+2*z+1}" for z in range(4)]
            w.append(("ST", f"buffer_store_dwordx4 {vr(ob)}, v32, s[12:15], s52 offen offset:{p*1024} {cfg.pst}"))
        w.append(("SA", "s_add_u32 s52, s52, 3072"))
        return w
    A("s_waitcnt lgkmcnt(0)")
    for r in range(5):
        pre = [[] for _ in range(36)]
        ra = ax_reads(2*r + 1); pre[0] += ra[:2]; pre[1] += ra[2:]
        if r < 4:
            rb = ax_reads(2*r + 2); pre[18] += rb[:2]; pre[19] += rb[2:]
        for T, w in enumerate(x_writes(r)): pre[cfg.xw0 + T*cfg.xwsp].append(w)
        if r == 4 and cfg.re_ < 4: pre[cfg.epg].append("buffer_load_dword v19, v14, s[8:11], s100 offen sc1")
        work = []
        if r:
            xr = x_reads(r - 1)
            for k in range(3): pre[2 + k] += xr[2*k:2*k+2]
            work = flush(r - 1)
        pre[8].append("s_waitcnt lgkmcnt(0)")
        gaps = [g for g in range(8, 35) if g == 8 or not pre[g]]
        for gi, g in enumerate(gaps):
            left = len(gaps) - gi
            cost = sum(2 if isinstance(x, tuple) and x[0] == "ST" else 0 if isinstance(x, tuple) else 1 for x in work)
            budget = max(2, -(-cost // left)); n = 0
            while work and n < budget:
                it = work[0]
                if isinstance(it, tuple):
                    if it[0] == "ST" and n > 0 and left > 1: break
                    pre[g].append(it[1]); n += 2 if it[0] == "ST" else 0
                else: pre[g].append(it); n += 1
                work.pop(0)
        for it in work: pre[34].append(it[1] if isinstance(it, tuple) else it)
        if r == cfg.re_: pre[35] += ["s_waitcnt vmcnt(3) lgkmcnt(0)", "s_barrier", lambda: signal("v23", "v24", "s100", "s42", 3)]
        else: pre[35] += ["s_waitcnt lgkmcnt(0)", "s_barrier"]
        if cfg.rx & 1: pre = [[x for x in p if not (isinstance(x, str) and x.startswith("ds_write"))] for p in pre]
        if cfg.rx & 2: pre = [[x for x in p if not (isinstance(x, str) and x.startswith("buffer_store"))] for p in pre]
        if cfg.rx & 4 and r not in (cfg.re_, 4): pre = [[x for x in p if x != "s_barrier"] for p in pre]
        if cfg.rx & 8: pre = [[x for x in p if not (isinstance(x, str) and x.startswith("v_"))] for p in pre]
        g = 0
        for pos in (2*r, 2*r + 1):
            nu = GR[pos]
            for T in range(6):
                for c in (1, 2, 3):
                    d = acc2(nu, T)
                    A(mf(d, ar(AF + 4*nu) if c == 1 else ar(ax(pos, c)), vr(bfr(1, T)) if c == 1 else bx(c, T), d))
                    A.emit(pre[g]); g += 1
    stamp()
    A.emit(x_reads(4))
    A("s_waitcnt lgkmcnt(0)")
    for it in flush(4, True): A(it[1] if isinstance(it, tuple) else it)
    if cfg.keep:
        A("s_cmp_lg_u32 s20, s28\ns_cbranch_scc1 L_nokeep")
        for m in range(15): A(f"ds_write_b128 v32, {vr(KEEP + 8*m)} offset:{32768 + m*1024}")
        A("L_nokeep:")
        A("s_mov_b32 s14, 0x40000")
    A("s_mul_i32 s34, s27, 192\ns_and_b32 s35, s28, 1\ns_mul_i32 s35, s35, 96\ns_add_u32 s34, s34, s35\ns_lshl_b32 s35, s20, 5\ns_add_u32 s34, s34, s35\ns_mul_i32 s34, s34, 2560")
    A("s_mul_i32 s35, s25, 1280\ns_add_u32 s34, s34, s35\ns_mul_i32 s35, s23, 320\ns_add_u32 s34, s34, s35\ns_lshr_b32 s35, s28, 1\ns_mul_i32 s35, s35, 160\ns_add_u32 s34, s34, s35")
    A("s_add_u32 s16, s48, s34\ns_addc_u32 s17, s49, 0\ns_sub_u32 s18, 3932160, s34\ns_mov_b32 s19, 0x20000")
    A("s_lshl_b32 s52, s28, 16\ns_lshl_b32 s35, s20, 10\ns_add_u32 s52, s52, s35")
    if cfg.keep:
        for i in range(1, 4): A(f"s_add_u32 s34, s28, {i}\ns_and_b32 s34, s34, 3\ns_lshl_b32 s34, s34, 14\ns_add_u32 s{88+i}, s52, s34")
        A("v_add_u32 v16, s35, v32")
    else:
        for i in range(4): A(f"s_add_u32 s{88+i}, s52, {i*16384}")
    A("v_add_u32 v17, 6144, v32\nv_add_u32 v20, 12288, v32")
    stamp(2)
    A("s_waitcnt vmcnt(0) lgkmcnt(0)")
    A("s_barrier")
    stamp(2)
    A("v_readfirstlane_b32 s98, v19\ns_nop 0\ns_sub_u32 s98, s98, s58" if cfg.re_ < 4 else "s_mov_b32 s98, 0")
    A("s_cmp_lg_u32 s20, 3\ns_cbranch_scc1 L_fw")
    signal("v15", "v22", "s100", "s42", 3)
    poll("s100", "s58", "0x40000", "s42", "0x40010", None)
    A("s_barrier")
    A("s_endpgm")
    A("L_fw:")
    for nu in range(5): A(f"ds_read_b128 {vr(40 + 16*nu)}, v16 offset:{32768 + nu*3072}")
    A("s_mov_b32 s55, 40960")
    A("s_mov_b32 s33, 0xffff0000")
    def fin(nus):
        for nu in nus:
            for src in range(1, 4):
                A(f"buffer_load_dwordx4 {vr(40 + 16*nu + 4*src)}, v{(32, 17, 20)[nu // 2]}, s[12:15], s{88+src} offen offset:{(nu % 2)*3072} {cfg.pld}")
        for i, nu in enumerate(nus):
            A(f"s_waitcnt vmcnt({3*(len(nus) - 1 - i) + 2*i}) lgkmcnt(0)")
            b = 40 + 16*nu; lo = 128
            for k in range(16): A(f"v_lshlrev_b32 v{lo+k}, 16, v{b+k}")
            for k in range(16): A(f"v_and_b32 v{b+k}, s33, v{b+k}")
            for base in (lo, b):
                for z in range(2):
                    A(f"v_pk_add_f32 v[{base+2*z}:{base+2*z+1}], v[{base+2*z}:{base+2*z+1}], v[{base+4+2*z}:{base+5+2*z}]")
                    A(f"v_pk_add_f32 v[{base+8+2*z}:{base+9+2*z}], v[{base+8+2*z}:{base+9+2*z}], v[{base+12+2*z}:{base+13+2*z}]")
            for base in (lo, b):
                for z in range(2):
                    A(f"v_pk_add_f32 v[{base+2*z}:{base+2*z+1}], v[{base+2*z}:{base+2*z+1}], v[{base+8+2*z}:{base+9+2*z}]")
            for z in range(4): A(f"v_cvt_pk_bf16_f32 v{b+4+z}, v{lo+z}, v{b+z}")
            A(f"buffer_store_dwordx2 {vr(b+4, 2)}, v34, s[16:19], 0 offen offset:{nu*32} {cfg.outst}")
            A(f"buffer_store_dwordx2 {vr(b+6, 2)}, v34, s[16:19], s55 offen offset:{nu*32} {cfg.outst}")
    NE = cfg.re_ - 1 if cfg.re_ < 5 else 0
    if NE:
        poll("s100", "s58", "0x40004", "s42", "0x40014", None)
        fin(list(range(NE)))
    A("s_barrier")
    stamp(2)
    fin(list(range(NE, 5)))
    stamp.finish()
    A("L_end:\ns_endpgm")

    A("L_fallback:")
    A("s_waitcnt vmcnt(0) lgkmcnt(0)")
    A("s_mov_b32 s4, s36\ns_mov_b32 s5, s37\ns_mov_b32 s6, 0x40000\ns_mov_b32 s7, 0x20000")
    A("s_mov_b32 s8, s38\ns_mov_b32 s9, s39\ns_mov_b32 s10, 0x40000\ns_mov_b32 s11, 0x20000")
    A("s_lshl_b32 s52, s20, 13\ns_add_u32 s52, s52, 131072")
    A("v_xor_b32 v58, v3, v4")
    A("v_lshlrev_b32 v59, 1, v4\nv_xor_b32 v59, v3, v59")
    A("v_lshlrev_b32 v60, 8, v4")
    for n in range(4):
        A(f"v_xor_b32 v61, {4*n}, v58")
        A(f"v_lshl_add_u32 v{40+n}, v61, 4, v60")
    for n in range(2):
        A(f"v_xor_b32 v61, {8*n}, v59")
        A(f"v_lshl_add_u32 v{44+n}, v61, 4, v60")
    A("s_sub_u32 s34, s52, s46")
    for c in range(4): A(f"v_add_u32 v{20+c}, s34, v{20+c}")
    A("s_sub_u32 s34, s52, s47")
    for dt in range(8): A(f"v_add_u32 v{24+dt}, s34, v{24+dt}")
    for i in range(192): A(f"v_accvgpr_write_b32 a{i}, 0")
    for k in range(24): A(f"v_mov_b32 v{L+k}, 0")
    A("s_mov_b32 s60, 0")
    A("L_fb_loop:")
    for isv in range(2):
        for n in range(8):
            A(f"s_add_u32 m0, s52, {n*1024}")
            A(f"s_add_u32 s55, s60, {n*1024}")
            A(f"buffer_load_dwordx4 v{(44 + (n & 1)) if isv else (40 + (n & 3))}, s[{8 if isv else 4}:{11 if isv else 7}], s55 offen lds")
        A("s_waitcnt vmcnt(0)")
        if isv:
            for dt in range(8):
                for e in range(2): A(v_read(0, dt, e))
        else:
            for kt in range(2):
                for c in range(4): A(k_read(0, kt, c))
        A("s_waitcnt lgkmcnt(0)")
    R0, R1 = 52, 53
    for t in range(3):
        for m in qk_mfmas(t, 0): A(m)
        A("s_nop 7")
        for Tl in range(2):
            T = 2*t + Tl; s0 = S[0] + 8*Tl
            A(f"v_max3_f32 v{R0}, v{s0}, v{s0+1}, v{s0+2}")
            A(f"v_max3_f32 v{R0}, v{R0}, v{s0+3}, v{s0+4}")
            A(f"v_max3_f32 v{R0}, v{R0}, v{s0+5}, v{s0+6}")
            A(f"v_max3_f32 v{R0}, v{R0}, v{s0+7}, 0")
            A(f"v_mov_b32 v{R1}, v{R0}\ns_nop 1\nv_permlane16_swap_b32 v{R0}, v{R1}\nv_max_f32 v{R0}, v{R0}, v{R1}")
            A(f"v_mov_b32 v{R1}, v{R0}\ns_nop 1\nv_permlane32_swap_b32 v{R0}, v{R1}\nv_max_f32 v{R0}, v{R0}, v{R1}")
            A(f"v_exp_f32 v{R1}, -v{R0}")
            for k in range(8): A(f"v_sub_f32 v{s0+k}, v{s0+k}, v{R0}")
            for k in range(4): A(f"v_sub_f32 v{NEGM+4*T+k}, v{NEGM+4*T+k}, v{R0}")
            for k in range(4): A(f"v_mul_f32 v{L+4*T+k}, v{L+4*T+k}, v{R1}")
            for k in range(0, 32, 4):
                for q in range(4): A(f"v_accvgpr_read_b32 v{54+q}, a{32*T + k + q}")
                for q in range(4): A(f"v_mul_f32 v{54+q}, v{54+q}, v{R1}")
                for q in range(4): A(f"v_accvgpr_write_b32 a{32*T + k + q}, v{54+q}")
        for e in range(16): A(EX(0, e))
        A("s_nop 0")
        for k in range(8): A(CV(0, k))
        A("s_nop 1")
        for m in pv_mfmas(t, 0): A(m)
    A("s_add_u32 s60, s60, 8192\ns_cmp_lt_u32 s60, 0x40000\ns_cbranch_scc1 L_fb_loop")
    A("s_nop 7")
    A("s_branch L_epi")

def gen(cfg):
    A = Asm()
    A("""; Fused kernel (generated by the author's own script): Q projection -> attention -> output projection.
; kernarg: 0 A_x 8 A_k 16 A_v 24 A_wq 32 A_wo 40 B_x 48 B_k 56 B_v 64 B_wq 72 B_wo 80 out 88 debug 96 ws""")
    A("; @launch grid=(256,1,1) block=(256,1,1) lds=163840")
    A('.amdgcn_target "amdgcn-amd-amdhsa--gfx950"\n.text')
    gen_kernel(A, cfg)
    A('.section .rodata,"a"\n.p2align 6')
    A(f".amdhsa_kernel {NAME}_kernel\n  .amdhsa_next_free_vgpr 512\n  .amdhsa_next_free_sgpr 102\n"
      "  .amdhsa_accum_offset 256\n  .amdhsa_group_segment_fixed_size 0\n  .amdhsa_kernarg_size 104\n"
      "  .amdhsa_user_sgpr_count 2\n  .amdhsa_user_sgpr_kernarg_segment_ptr 1\n"
      "  .amdhsa_system_sgpr_workgroup_id_x 1\n.end_amdhsa_kernel")
    return A.text()

if __name__ == "__main__":
    cfg = Cfg()
    for a in sys.argv[2:]:
        k, v = a.split("=")
        old = getattr(cfg, k)
        setattr(cfg, k, type(old)(int(v)) if isinstance(old, (bool, int)) else v.replace('+', ' '))
    open(sys.argv[1], "w").write(gen(cfg))
```
